```python
import torch

def _softmax(x, axis=-1):
    return torch.softmax(x, dim=axis)
def _gelu(x):
    return torch.nn.functional.gelu(x, approximate="tanh")
def _silu(x):
    return torch.nn.functional.silu(x)
def _sigmoid(x):
    return torch.sigmoid(x)
def _layernorm(x, axis=-1, eps=1e-5):
    m = x.mean(dim=axis, keepdim=True)
    v = x.var(dim=axis, keepdim=True, unbiased=False)
    return (x - m) / torch.sqrt(v + eps)
def _scatter_add(tgt, idx, src, axis=0):
    return tgt.clone().index_add_(axis, idx, src)
def _segment_sum(src, seg, n):
    out = torch.zeros((n,) + src.shape[1:], dtype=src.dtype)
    return out.index_add_(0, seg, src)
def _pad(x, pw):
    flat = tuple(v for pair in reversed(pw) for v in pair)
    return torch.nn.functional.pad(x, flat)

kernel_name = 'sequential_preLN__linear_kernel_hedgehog__glu_gated_geglu__prompt'

def setup_inputs():

    _w = (lambda a: (lambda t: t.to(torch.bfloat16) if t.is_floating_point() else t)(torch.as_tensor(a)))
    def _A_setup():
        B, S, D, H = 1, 2048, 640, 32
        Dh = D // H
        return {
            "x": _w((lambda *s: torch.randn(*s, dtype=torch.bfloat16) * 0.05)(B, S, D)),
            "wqkv": _w((lambda *s: torch.randn(*s, dtype=torch.bfloat16) * 0.2)(D, 3 * D)),
            "w_phi": _w((lambda *s: torch.randn(*s, dtype=torch.bfloat16) * 0.2)(H, Dh, Dh) * (Dh ** -0.5)),
            "wo": _w((lambda *s: torch.randn(*s, dtype=torch.bfloat16) * 0.05)(D, D)),
        }
    _A_in = _A_setup()

    def _B_setup():
        B, S, Dm, Df = 1, 2048, 640, 1728
        return {
            "x": _w((lambda *s: torch.randn(*s, dtype=torch.bfloat16) * 0.05)(B, S, Dm)),
            "w_gate": _w((lambda *s: torch.randn(*s, dtype=torch.bfloat16) * 0.4)(Dm, Df) * (Dm ** -0.5)),
            "w_up": _w((lambda *s: torch.randn(*s, dtype=torch.bfloat16) * 0.4)(Dm, Df) * (Dm ** -0.5)),
            "w_down": _w((lambda *s: torch.randn(*s, dtype=torch.bfloat16) * 0.4)(Df, Dm) * (Df ** -0.5)),
        }
    _B_in = _B_setup()

    return {
        "A_x": _A_in["x"],
        "A_wqkv": _A_in["wqkv"],
        "A_w_phi": _A_in["w_phi"],
        "A_wo": _A_in["wo"],
        "B_x": _B_in["x"],
        "B_w_gate": _B_in["w_gate"],
        "B_w_up": _B_in["w_up"],
        "B_w_down": _B_in["w_down"],
    }

def reference(A_x, A_wqkv, A_w_phi, A_wo, B_x, B_w_gate, B_w_up, B_w_down):
    def _A_ref(x, wqkv, w_phi, wo):
        B, S, D = x.shape
        H = 32; Dh = D // H
        qkv = (lambda x, *d: x.permute(*d))((x @ wqkv).reshape(B, S, 3, H, Dh), 2, 0, 3, 1, 4)
        q, k, v = qkv[0], qkv[1], qkv[2]
        pq = torch.einsum("bhsd,hdf->bhsf", q, w_phi)
        pk = torch.einsum("bhsd,hdf->bhsf", k, w_phi)
        phi_q = torch.concatenate([_softmax(pq, axis=-1), _softmax(-pq, axis=-1)], axis=-1)
        phi_k = torch.concatenate([_softmax(pk, axis=-1), _softmax(-pk, axis=-1)], axis=-1)
        kv = torch.einsum("bhsf,bhsd->bhfd", phi_k, v)
        z  = torch.einsum("bhsf->bhf", phi_k)
        num = torch.einsum("bhqf,bhfd->bhqd", phi_q, kv)
        den = torch.einsum("bhqf,bhf->bhq", phi_q, z)[..., None] + 1e-6
        o = num / den
        return (lambda x, *d: x.permute(*d))(o, 0, 2, 1, 3).reshape(B, S, D) @ wo

    def _B_ref(x, w_gate, w_up, w_down):
        g = torch.einsum("bsd,df->bsf", x, w_gate)
        u = torch.einsum("bsd,df->bsf", x, w_up)
        h = _gelu(g) * u
        return torch.einsum("bsf,fd->bsd", h, w_down)

    x = A_x
    h = x + _A_ref(_layernorm(x, axis=-1), A_wqkv, A_w_phi, A_wo)
    h2 = h + _B_ref(_layernorm(h, axis=-1), B_w_gate, B_w_up, B_w_down)
    return h2
```

```python
import re

_REG = re.compile(r'\b([vas])(\d+)\b|\b([vas])\[(\d+):(\d+)\]|\b(vcc|exec|m0|scc)\b')

def regs_of(tok):
    out = []
    for m in _REG.finditer(tok):
        if m.group(1):
            out.append((m.group(1), int(m.group(2))))
        elif m.group(3):
            out += [(m.group(3), i) for i in range(int(m.group(4)), int(m.group(5)) + 1)]
        else:
            out.append((m.group(6), 0))
    return out

TRANS = ('v_exp_f32', 'v_rcp_f32', 'v_rsq_f32', 'v_log_f32', 'v_sqrt_f32', 'v_sin_f32', 'v_cos_f32')

class Ins:
    __slots__ = ('text', 'op', 'kind', 'w', 'r', 'passes', 'ab', 'c', 'states', 'widest', 'dpp')
    def __init__(self, text):
        self.text = text
        t = text.split(';')[0].strip()
        self.w, self.r, self.passes, self.ab, self.c = [], [], 0, [], []
        self.states = 1
        self.widest = False
        self.dpp = False
        if not t or t.endswith(':') or t.startswith('.'):
            self.kind = 'label' if t.endswith(':') else 'none'
            self.op = ''
            self.states = 0
            return
        parts = t.split(None, 1)
        op = parts[0]
        self.op = op
        ops = [o.strip() for o in parts[1].split(',')] if len(parts) > 1 else []
        R = [regs_of(o) for o in ops]
        flat = lambda l: [x for y in l for x in y]
        if op == 's_nop':
            self.kind = 'salu'; self.states = int(ops[0], 0) + 1
        elif op.startswith('v_mfma'):
            self.kind = 'mfma'
            self.passes = 8 if '32x32' in op else 4
            self.w = R[0]; self.ab = R[1] + R[2]; self.c = R[3]; self.r = self.ab + self.c
        elif op.startswith('v_cmp'):
            self.kind = 'valu'; self.w = R[0]; self.r = flat(R[1:])
        elif op.startswith('v_permlane') and 'swap' in op:
            self.kind = 'valu'; self.w = R[0] + R[1]; self.r = R[0] + R[1]
        elif op.startswith('v_'):
            self.kind = 'valu'; self.w = R[0]; self.r = flat(R[1:])
            if op.startswith(('v_fmac', 'v_dot2c', 'v_pk_fmac')):
                self.r = self.r + R[0]
            if op.startswith(('v_add_co', 'v_sub_co', 'v_addc_co')):
                self.w = R[0] + R[1]; self.r = flat(R[2:])
            if op.startswith('v_cndmask') and len(ops) == 3:
                self.r = self.r + [('vcc', 0)]
            if '_dpp' in op or 'quad_perm' in t or 'row_' in t:
                self.dpp = True
                self.r = self.r + R[0]
        elif op.startswith(('buffer_load', 'global_load')):
            self.kind = 'vmem'
            if re.search(r'\blds\b', t):
                self.r = flat(R) + [('m0', 0)]; self.kind = 'dma'
            else:
                self.w = R[0]; self.r = flat(R[1:])
        elif op.startswith(('buffer_store', 'global_store', 'buffer_atomic', 'global_atomic')):
            self.kind = 'vmem'; self.r = flat(R)
            if 'x4' in op or 'x3' in op:
                self.widest = R[0] if op.startswith('buffer') else R[1]
        elif op.startswith('ds_read') or op.startswith('ds_bpermute') or op.startswith('ds_swizzle'):
            self.kind = 'ds'; self.w = R[0]; self.r = flat(R[1:])
        elif op.startswith('ds_'):
            self.kind = 'ds'; self.r = flat(R)
        elif op.startswith('s_'):
            self.kind = 'salu'
            if op.startswith(('s_cmp', 's_cbranch', 's_branch', 's_waitcnt', 's_barrier', 's_endpgm', 's_setprio', 's_sleep')):
                self.r = flat(R)
            else:
                self.w = R[0] if R else []; self.r = flat(R[1:])
                if 'saveexec' in op:
                    self.w = self.w + [('exec', 0)]
        else:
            raise ValueError("unknown instruction: " + text)

def need(p, c):
    n = 0
    pw = set(p.w)
    if p.kind == 'valu':
        vg = {x for x in pw if x[0] in 'va'}
        sg = {x for x in pw if x[0] == 's' or x[0] == 'vcc'}
        if c.kind == 'mfma' and vg & set(c.r): n = max(n, 2)
        if c.kind == 'valu':
            if p.op.startswith(TRANS) and vg & (set(c.r) | set(c.w)): n = max(n, 1)
            if (c.dpp or c.op.startswith('v_permlane')) and vg & set(c.r): n = max(n, 2)
            if c.op.startswith(('v_readlane', 'v_readfirstlane')) and vg & set(c.r): n = max(n, 1)
            if sg & set(c.r): n = max(n, 4 if c.op.startswith(('v_readlane', 'v_writelane')) else 2)
            if 'sdwa' in p.op and vg & (set(c.r) | set(c.w)): n = max(n, 1)
        if c.kind in ('vmem', 'dma') and sg & set(c.r): n = max(n, 5)
        if c.kind == 'salu' and sg & set(c.r): n = max(n, 2)
    elif p.kind == 'mfma':
        big = 12 if p.passes == 8 else 8
        if c.kind == 'mfma':
            if pw & set(c.ab): n = max(n, big)
            if pw & set(c.c):
                if not (c.c == p.w and c.passes == p.passes): n = max(n, big - 2)
            elif pw & set(c.w): n = max(n, big - 2)
        elif c.kind in ('valu', 'vmem', 'dma', 'ds'):
            if pw & (set(c.r) | set(c.w)): n = max(n, big)
            if c.kind == 'valu' and set(p.c) & set(c.w): n = max(n, 7 if p.passes == 8 else 3)
    elif p.kind == 'salu':
        if ('m0', 0) in pw and c.kind == 'dma': n = max(n, 1)
    elif p.kind == 'vmem' and p.widest:
        if set(p.widest) & set(c.w): n = max(n, 2)
    if c.kind == 'valu' and c.dpp and p.kind in ('ds', 'vmem') and pw & set(c.r):
        pass
    return n

class Asm:
    def __init__(self):
        self.ins = []
        self.vm_issued = 0; self.vm_done = 0
        self.lg_issued = 0; self.lg_done = 0
    def __call__(self, text):
        for line in text.strip().split('\n'):
            line = line.strip()
            if not line: continue
            i = Ins(line)
            if i.kind not in ('none', 'label'):
                dist = 0; pad = 0
                for p in reversed(self.ins[-24:]):
                    if p.kind in ('none', 'label'): continue
                    nd = need(p, i)
                    if nd > dist: pad = max(pad, nd - dist)
                    dist += p.states
                    if dist >= 12: break
                while pad > 0:
                    k = min(pad, 16)
                    self.ins.append(Ins("s_nop %d" % (k - 1))); pad -= k
            self.ins.append(i)
            if i.kind in ('vmem', 'dma'):
                self.vm_issued += 1
                assert self.vm_issued - self.vm_done <= 63, "vmcnt overflow"
            elif i.kind == 'ds':
                self.lg_issued += 1
        return self
    def vm(self, text):
        self(text); return self.vm_issued
    def ds(self, text):
        self(text); return self.lg_issued
    def wait(self, vm=None, lg=None):
        parts = []
        if vm is not None and vm > self.vm_done:
            parts.append("vmcnt(%d)" % (self.vm_issued - vm)); self.vm_done = vm
        if lg is not None and lg > self.lg_done:
            n = self.lg_issued - lg
            if n > 15:
                n = 15
            parts.append("lgkmcnt(%d)" % n); self.lg_done = self.lg_issued - n
        if parts:
            self("s_waitcnt " + " ".join(parts))
    def wait_all_lg(self):
        self("s_waitcnt lgkmcnt(0)"); self.lg_done = self.lg_issued
    def wait_all_vm(self):
        self("s_waitcnt vmcnt(0)"); self.vm_done = self.vm_issued
    def reset_counters(self):
        self.vm_issued = self.vm_done = self.lg_issued = self.lg_done = 0
    def fence(self):
        self.ins.append(Ins("s_nop 11"))
    def text(self):
        return "\n".join(("" if i.kind == 'label' else "  ") + i.text for i in self.ins) + "\n"
    def maxreg(self, cls):
        m = -1
        for i in self.ins:
            for r in list(i.w) + list(i.r):
                if r[0] == cls: m = max(m, r[1])
        return m
```

```python
import struct
from asmlib import Asm
from layout import *

def f32(x):
    return "0x%08x" % struct.unpack("<I", struct.pack("<f", x))[0]

def srd(a, d, base, off, size):
    if off:
        a(f"s_add_u32 s{d}, s{base}, {off}\ns_addc_u32 s{d+1}, s{base+1}, 0")
    else:
        a(f"s_mov_b32 s{d}, s{base}\ns_mov_b32 s{d+1}, s{base+1}")
    a(f"s_mov_b32 s{d+2}, {size}\ns_mov_b32 s{d+3}, 0x20000")

def srd_dyn(a, d, base, off, sreg, size):
    a(f"s_add_u32 s{d}, s{base}, {off}\ns_addc_u32 s{d+1}, s{base+1}, 0")
    a(f"s_add_u32 s{d}, s{d}, s{sreg}\ns_addc_u32 s{d+1}, s{d+1}, 0")
    a(f"s_mov_b32 s{d+2}, {size}\ns_mov_b32 s{d+3}, 0x20000")

STAMPS = False
def stamp_begin(a):
    if STAMPS:
        a("s_memrealtime s[96:97]")
def stamp_end(a, kidx, ws):
    if not STAMPS: return
    a("s_waitcnt vmcnt(0) lgkmcnt(0)")
    a("s_memrealtime s[98:99]")
    a("s_mov_b64 exec, 1")
    a("s_waitcnt lgkmcnt(0)")
    a(f"""
    s_lshl_b32 s94, s2, 3
    s_add_u32 s94, s94, s95
    s_lshl_b32 s94, s94, 4
    s_add_u32 s94, s94, {STAMP_OFF + kidx * 0x40000}
    v_mov_b32 v1, s94
    v_mov_b32 v4, s96
    v_mov_b32 v5, s97
    v_mov_b32 v6, s98
    v_mov_b32 v7, s99
    global_store_dwordx4 v1, v[4:7], s[{ws}:{ws+1}]
    """)

def kernel_text(name, a, vgpr=None, agpr=None):
    nv = a.maxreg('v') + 1
    na = a.maxreg('a') + 1
    ns = a.maxreg('s') + 1
    acc = (nv + 3) // 4 * 4
    nfv = acc + na if na > 0 else nv
    body = f".globl {name}\n.p2align 8\n.type {name},@function\n{name}:\n" + a.text()
    desc = f""".amdhsa_kernel {name}
  .amdhsa_next_free_vgpr {nfv}
  .amdhsa_next_free_sgpr {max(ns, 8)}
  .amdhsa_accum_offset {acc}
  .amdhsa_group_segment_fixed_size 0
  .amdhsa_kernarg_size 88
  .amdhsa_user_sgpr_count 2
  .amdhsa_user_sgpr_kernarg_segment_ptr 1
  .amdhsa_system_sgpr_workgroup_id_x 1
  .amdhsa_float_denorm_mode_32 3
.end_amdhsa_kernel
"""
    return body, desc
```

```python
from common import *
import common

N_W1, N_LN, N_W3, N_W4, N_WO = 160, 256, 216, 135, 40
K0_GRID = N_W1 + N_LN + N_W3 + N_W4 + N_WO
K0_LDS = 20480

def reduce32(a, v, t):
    a(f"v_add_f32_dpp v{v}, v{v}, v{v} quad_perm:[1,0,3,2] row_mask:0xf bank_mask:0xf")
    a(f"v_add_f32_dpp v{v}, v{v}, v{v} quad_perm:[2,3,0,1] row_mask:0xf bank_mask:0xf")
    a(f"v_add_f32_dpp v{v}, v{v}, v{v} row_half_mirror row_mask:0xf bank_mask:0xf")
    a(f"v_add_f32_dpp v{v}, v{v}, v{v} row_mirror row_mask:0xf bank_mask:0xf")
    a(f"v_mov_b32 v{t}, v{v}")
    a(f"v_permlane16_swap_b32 v{v}, v{t}")
    a(f"v_add_f32 v{v}, v{v}, v{t}")

def gen_k0(npf):
    a = Asm()
    stamp_begin(a)
    a(f"""
    s_load_dwordx16 s[4:19], s[0:1], 0
    s_load_dwordx2 s[20:21], s[0:1], 80
    v_lshrrev_b32 v1, 6, v0
    v_and_b32 v2, 63, v0
    v_readfirstlane_b32 s95, v1
    s_cmp_ge_u32 s2, {K0_GRID}
    s_cbranch_scc1 K0_exit
    s_cmp_ge_u32 s2, 16
    s_cbranch_scc1 K0_nopf
    s_getpc_b64 s[22:23]
K0_pc:
    v_lshlrev_b32 v8, 7, v0
    v_mov_b32 v11, s23
    """)
    for n in range(npf):
        a(f"""
        v_cmp_gt_u32 vcc, CODE_END-K0_pc, v8
        s_and_saveexec_b64 s[40:41], vcc
        s_cbranch_execz K0_pf{n}
        v_add_co_u32 v10, vcc, s22, v8
        v_addc_co_u32 v11, vcc, 0, v11, vcc
        global_load_dword v120, v[10:11], off
K0_pf{n}:
        s_mov_b64 exec, s[40:41]
        v_mov_b32 v11, s23
        v_add_u32 v8, 0x8000, v8
        """)
    a.reset_counters()
    a(f"""
K0_nopf:
    s_waitcnt lgkmcnt(0)
    s_cmp_lt_u32 s2, {N_W1}
    s_cbranch_scc1 K0_W1
    s_sub_u32 s3, s2, {N_W1}
    s_cmp_lt_u32 s3, {N_LN}
    s_cbranch_scc1 K0_LN
    s_sub_u32 s3, s3, {N_LN}
    s_cmp_lt_u32 s3, {N_W3}
    s_cbranch_scc1 K0_W3
    s_sub_u32 s3, s3, {N_W3}
    s_cmp_lt_u32 s3, {N_W4}
    s_cbranch_scc1 K0_W4
    s_sub_u32 s3, s3, {N_W4}
    s_branch K0_WO
    """)
    a("K0_LN:")
    srd(a, 24, 4, 0, 2621440)
    a(f"""
    v_lshrrev_b32 v3, 5, v0
    v_and_b32 v4, 31, v0
    v_mul_u32_u24 v5, 1280, v3
    v_lshl_add_u32 v5, v4, 3, v5
    s_mul_i32 s40, s3, 10240
    """)
    for i in range(5):
        a(f"buffer_load_dwordx2 v[{10+2*i}:{11+2*i}], v5, s[24:27], s40 offen offset:{256*i}")
    srd(a, 28, 20, XN_OFF, XN_SZ)
    srd(a, 32, 20, KV_OFF, KV_SZ)
    a(f"""
    v_mov_b32 v44, 0
    v_mov_b32 v45, 0
    v_mov_b32 v46, 0
    v_mov_b32 v47, 0
    v_lshlrev_b32 v6, 4, v0
    s_mul_i32 s41, s3, 480
    v_cmp_gt_u32 vcc, 30, v0
    s_and_saveexec_b64 s[42:43], vcc
    s_cbranch_execz K0_LN_z
    buffer_store_dwordx4 v[44:47], v6, s[32:35], s41 offen
K0_LN_z:
    s_mov_b64 exec, s[42:43]
    """)
    a(f"""
    v_lshrrev_b32 v6, 1, v4
    v_xor_b32 v7, v3, v6
    v_and_b32 v7, 7, v7
    v_lshlrev_b32 v7, 4, v7
    v_lshl_add_u32 v7, v6, 7, v7
    v_and_b32 v6, 1, v4
    v_lshl_add_u32 v7, v6, 3, v7
    v_lshrrev_b32 v6, 3, v0
    v_xor_b32 v8, v0, v6
    v_and_b32 v8, 7, v8
    v_lshlrev_b32 v8, 4, v8
    v_lshl_add_u32 v8, v6, 7, v8
    v_and_b32 v9, 7, v0
    v_lshlrev_b32 v9, 4, v9
    v_lshl_add_u32 v9, v6, 9, v9
    s_lshr_b32 s44, s3, 2
    s_mul_i32 s44, s44, 40960
    s_and_b32 s45, s3, 3
    s_lshl_b32 s45, s45, 7
    s_add_u32 s44, s44, s45
    s_add_u32 s45, s44, 16384
    s_add_u32 s46, s44, 32768
    s_mov_b32 s47, 0xffff0000
    s_waitcnt vmcnt(0)
    """)
    F = 20
    for i in range(10):
        a(f"v_lshlrev_b32 v{F+2*i}, 16, v{10+i}")
        a(f"v_and_b32 v{F+2*i+1}, s47, v{10+i}")
    a(f"v_pk_add_f32 v[40:41], v[{F}:{F+1}], v[{F+2}:{F+3}]")
    for i in range(2, 10):
        a(f"v_pk_add_f32 v[40:41], v[40:41], v[{F+2*i}:{F+2*i+1}]")
    a("v_add_f32 v40, v40, v41")
    reduce32(a, 40, 41)
    a(f"v_mul_f32 v40, {f32(1.0/640)}, v40")
    for i in range(10):
        a(f"v_pk_add_f32 v[{F+2*i}:{F+2*i+1}], v[{F+2*i}:{F+2*i+1}], v[40:41] op_sel_hi:[1,0] neg_lo:[0,1] neg_hi:[0,1]")
    a(f"v_pk_mul_f32 v[42:43], v[{F}:{F+1}], v[{F}:{F+1}]")
    for i in range(1, 10):
        a(f"v_pk_fma_f32 v[42:43], v[{F+2*i}:{F+2*i+1}], v[{F+2*i}:{F+2*i+1}], v[42:43]")
    a("v_add_f32 v42, v42, v43")
    reduce32(a, 42, 43)
    a(f"v_mov_b32 v43, {f32(1e-5)}")
    a(f"v_fmac_f32 v43, {f32(1.0/640)}, v42")
    a("v_rsq_f32 v42, v43")
    for i in range(10):
        a(f"v_pk_mul_f32 v[{F+2*i}:{F+2*i+1}], v[{F+2*i}:{F+2*i+1}], v[42:43] op_sel_hi:[1,0]")
    for i in range(10):
        a(f"v_cvt_pk_bf16_f32 v{10+i}, v{F+2*i}, v{F+2*i+1}")
    for i in range(5):
        a(f"ds_write_b64 v7, v[{10+2*i}:{11+2*i}] offset:{2048*i}")
    a(f"""
    s_waitcnt lgkmcnt(0)
    s_barrier
    ds_read_b128 v[20:23], v8
    ds_read_b128 v[24:27], v8 offset:4096
    ds_read_b128 v[28:31], v8 offset:8192
    s_waitcnt lgkmcnt(2)
    buffer_store_dwordx4 v[20:23], v9, s[28:31], s44 offen
    s_waitcnt lgkmcnt(1)
    buffer_store_dwordx4 v[24:27], v9, s[28:31], s45 offen
    s_cmp_ge_u32 s95, 2
    s_cbranch_scc1 K0_end
    s_waitcnt lgkmcnt(0)
    buffer_store_dwordx4 v[28:31], v9, s[28:31], s46 offen
    s_branch K0_end
    """)
    a.reset_counters()
    a("K0_W1:")
    srd(a, 24, 6, 0, 640 * 3840)
    srd(a, 28, 8, 0, 32 * 800)
    a(f"""
    s_mul_i32 s40, s2, 205
    s_lshr_b32 s40, s40, 10
    s_mul_i32 s41, s40, 5
    s_sub_u32 s41, s2, s41
    s_lshl_b32 s41, s41, 2
    s_add_u32 s41, s41, s95
    v_and_b32 v3, 31, v0
    v_bfe_u32 v4, v0, 5, 1
    v_and_b32 v5, 0x13, v3
    v_lshrrev_b32 v6, 1, v3
    v_and_b32 v6, 4, v6
    v_lshlrev_b32 v7, 1, v3
    v_and_b32 v7, 8, v7
    v_or3_b32 v5, v5, v6, v7
    v_mul_u32_u24 v5, 3840, v5
    v_lshl_add_u32 v6, v4, 4, v5
    v_lshl_add_u32 v7, v4, 28, v5
    s_mul_i32 s42, s41, {32*3840}
    s_mul_i32 s43, s40, 40
    s_add_u32 s42, s42, s43
    s_mul_i32 s43, s40, 800
    v_mul_u32_u24 v8, 320, v4
    v_lshl_add_u32 v8, v3, 1, v8
    """)
    U = 48
    for j in range(8):
        a(f"buffer_load_ushort v{U+j}, v8, s[28:31], s43 offen offset:{40*j}")
    for j in range(4):
        a(f"buffer_load_ushort v{U+8+j}, v8, s[28:31], s43 offen offset:{640+40*j}")
    tB = a.vm_issued
    A0 = [12, 20, 28]; A1 = [16, 24, 32]
    tA = []
    for sg in range(3):
        a(f"buffer_load_dwordx4 v[{A0[sg]}:{A0[sg]+3}], v6, s[24:27], s42 offen offset:{1280*sg}")
        tA.append(a.vm(f"buffer_load_dwordx2 v[{A1[sg]}:{A1[sg]+1}], v7, s[24:27], s42 offen offset:{1280*sg+32}"))
    for sg in range(3):
        a(f"v_mov_b32 v{A1[sg]+2}, 0\nv_mov_b32 v{A1[sg]+3}, 0")
    a(f"""
    v_add_u32 v9, 2, v3
    v_cmp_gt_u32 vcc, 18, v3
    v_cndmask_b32 v9, v9, v3, vcc
    v_bfe_u32 v10, v9, 2, 1
    v_mul_u32_u24 v10, 10, v10
    v_lshrrev_b32 v11, 3, v9
    v_lshl_add_u32 v10, v11, 2, v10
    v_and_b32 v11, 3, v9
    v_add_u32 v10, v10, v11
    v_lshlrev_b32 v11, 3, v4
    v_sub_u32 v10, v10, v11
    v_and_b32 v11, 1, v10
    v_lshlrev_b32 v11, 4, v11
    v_mov_b32 v9, 0x3f80
    v_lshlrev_b32 v11, v11, v9
    v_lshrrev_b32 v10, 1, v10
    """)
    for jj, cmpv in enumerate([0, 1, 2, 3, 8, 9]):
        a(f"v_cmp_eq_u32 vcc, {cmpv}, v10\nv_cndmask_b32 v{60+jj}, 0, v11, vcc")
    a("v_mov_b32 v66, 0\nv_mov_b32 v67, 0\nv_mov_b32 v42, 0\nv_mov_b32 v43, 0")
    for sg, sb in enumerate([40, 0, 20]):
        d = 68 + sg
        a(f"""
        v_add_u32 v9, {sb}, v3
        v_lshrrev_b32 v10, 4, v9
        v_lshlrev_b32 v{d}, 10, v10
        v_bfe_u32 v11, v9, 2, 2
        v_lshl_add_u32 v{d}, v11, 7, v{d}
        v_and_b32 v11, 3, v9
        v_lshl_add_u32 v{d}, v11, 4, v{d}
        v_lshl_add_u32 v{d}, v4, 9, v{d}
        """)
        if sg == 0:
            a(f"""
            v_cmp_eq_u32 vcc, 3, v10
            v_lshlrev_b32 v11, 7, v4
            v_cndmask_b32 v11, 0, v11, vcc
            v_sub_u32 v{d}, v{d}, v11
            """)
    srd(a, 32, 20, W1_OFF, W1_SZ)
    a(f"""
    s_lshr_b32 s44, s40, 1
    s_mul_i32 s44, s44, 153600
    s_mul_i32 s45, s41, 7680
    s_add_u32 s44, s44, s45
    s_and_b32 s45, s40, 1
    s_lshl_b32 s45, s45, 6
    s_add_u32 s44, s44, s45
    s_mov_b32 s46, {f32(LOG2E)}
    """)
    a.wait(vm=tB)
    for jj in range(6):
        a(f"v_lshl_or_b32 v{36+jj}, v{U+2*jj+1}, 16, v{U+2*jj}")
    Dr = [72, 88, 104]
    for sg in range(3):
        a.wait(vm=tA[sg])
        b0, b1 = (36, 40) if sg < 2 else (60, 64)
        a(f"v_mfma_f32_32x32x16_bf16 v[{Dr[sg]}:{Dr[sg]+15}], v[{A0[sg]}:{A0[sg]+3}], v[{b0}:{b0+3}], 0")
        a(f"v_mfma_f32_32x32x16_bf16 v[{Dr[sg]}:{Dr[sg]+15}], v[{A1[sg]}:{A1[sg]+3}], v[{b1}:{b1+3}], v[{Dr[sg]}:{Dr[sg]+15}]")
    a("v_cmp_gt_u32 vcc, 20, v3\ns_and_saveexec_b64 s[48:49], vcc")
    for sg in range(3):
        d = Dr[sg]
        if sg < 2:
            for r in range(0, 16, 2):
                a(f"v_pk_mul_f32 v[{d+r}:{d+r+1}], v[{d+r}:{d+r+1}], s[46:47] op_sel_hi:[1,0]")
        o = 12 + 8 * sg
        for r in range(8):
            a(f"v_cvt_pk_bf16_f32 v{o+r}, v{d+2*r}, v{d+2*r+1}")
        a(f"buffer_store_dwordx4 v[{o}:{o+3}], v{68+sg}, s[32:35], s44 offen")
        a(f"buffer_store_dwordx4 v[{o+4}:{o+7}], v{68+sg}, s[32:35], s44 offen offset:3840")
    a("s_branch K0_end")
    a.reset_counters()
    a("K0_W3:")
    a(f"""
    s_cmp_ge_u32 s3, 108
    s_cselect_b32 s40, 1, 0
    s_cselect_b32 s24, s16, s14
    s_cselect_b32 s25, s17, s15
    s_mov_b32 s26, {640*3456}
    s_mov_b32 s27, 0x20000
    s_mul_i32 s41, s40, 108
    s_sub_u32 s41, s3, s41
    s_and_b32 s42, s41, 3
    s_lshr_b32 s41, s41, 2
    v_lshrrev_b32 v3, 3, v2
    v_mul_u32_u24 v3, 3456, v3
    v_and_b32 v4, 7, v2
    v_lshl_add_u32 v3, v4, 4, v3
    s_mul_i32 s43, s42, 160
    s_mul_i32 s44, s95, 40
    s_add_u32 s43, s43, s44
    s_mul_i32 s43, s43, 3456
    s_lshl_b32 s44, s41, 7
    s_add_u32 s43, s43, s44
    s_mul_i32 s44, s95, 5120
    """)
    for n in range(5):
        a(f"s_add_u32 m0, s44, {1024*n}")
        a(f"buffer_load_dwordx4 v3, s[24:27], s43 offen lds")
        if n < 4: a(f"s_add_u32 s43, s43, {8*3456}")
    srd(a, 28, 20, W3_OFF, W3_SZ)
    srd(a, 32, 20, CS_OFF, CS_SZ)
    a(f"""
    v_lshrrev_b32 v5, 4, v2
    v_bfe_u32 v6, v2, 2, 2
    v_lshl_add_u32 v6, v5, 3, v6
    v_lshlrev_b32 v6, 7, v6
    v_and_b32 v7, 3, v2
    v_lshl_add_u32 v6, v7, 3, v6
    s_lshl_b32 s45, s95, 5
    v_add_u32 v6, s45, v6
    v_bfe_u32 v7, v2, 3, 1
    v_mul_u32_u24 v8, 20480, v7
    v_lshlrev_b32 v9, 9, v7
    v_lshl_add_u32 v9, v4, 4, v9
    v_lshl_add_u32 v8, v4, 4, v8
    v_lshrrev_b32 v7, 5, v2
    v_lshl_add_u32 v8, v7, 9, v8
    v_xor_b32 v7, s40, v5
    v_and_b32 v7, 1, v7
    v_lshl_add_u32 v8, v7, 7, v8
    s_lshl_b32 s45, s41, 3
    s_lshl_b32 s46, s95, 1
    s_add_u32 s45, s45, s46
    s_mul_i32 s46, s45, 20480
    s_mul_i32 s47, s42, 5120
    s_add_u32 s46, s46, s47
    s_lshl_b32 s47, s40, 8
    s_add_u32 s46, s46, s47
    s_add_u32 s48, s46, 4096
    s_lshl_b32 s45, s45, 9
    s_add_u32 s45, s45, s47
    s_lshr_b32 s47, s42, 1
    s_xor_b32 s47, s47, s40
    s_lshl_b32 s47, s47, 7
    s_add_u32 s45, s45, s47
    s_and_b32 s47, s42, 1
    s_lshl_b32 s47, s47, 3
    s_add_u32 s45, s45, s47
    v_mov_b32 v40, 0x3f803f80
    v_mov_b32 v41, 0x3f803f80
    v_mov_b32 v42, 0x3f803f80
    v_mov_b32 v43, 0x3f803f80
    s_waitcnt vmcnt(0)
    s_barrier
    """)
    a.reset_counters()
    t = []
    for ss in range(5):
        a(f"ds_read_b64_tr_b16 v[{12+4*ss}:{13+4*ss}], v6 offset:{4096*ss}")
        t.append(a.ds(f"ds_read_b64_tr_b16 v[{14+4*ss}:{15+4*ss}], v6 offset:{4096*ss+512}"))
    for ss in range(5):
        a.wait(lg=t[ss])
        a(f"v_mfma_f32_16x16x32_bf16 v[44:47], v[40:43], v[{12+4*ss}:{15+4*ss}], " + ("0" if ss == 0 else "v[44:47]"))
        if ss < 4:
            a(f"buffer_store_dwordx4 v[{12+4*ss}:{15+4*ss}], v8, s[28:31], s46 offen offset:{1024*ss}")
        else:
            a(f"buffer_store_dwordx4 v[{12+4*ss}:{15+4*ss}], v8, s[28:31], s48 offen")
    a(f"""
    v_cvt_pk_bf16_f32 v48, v44, v44
    v_lshlrev_b32 v50, 16, v48
    v_sub_f32 v50, v44, v50
    v_cvt_pk_bf16_f32 v49, v50, v50
    s_mov_b64 exec, 0xffff
    buffer_store_dwordx2 v[48:49], v9, s[32:35], s45 offen
    s_branch K0_end
    """)
    a.reset_counters()
    a("K0_W4:")
    srd(a, 24, 18, 0, 1728 * 1280)
    a(f"""
    s_lshl_b32 s40, s3, 2
    s_add_u32 s40, s40, s95
    s_mul_i32 s41, s40, 1214
    s_lshr_b32 s41, s41, 16
    s_mul_i32 s42, s41, 54
    s_sub_u32 s42, s40, s42
    v_lshrrev_b32 v3, 3, v2
    v_mul_u32_u24 v3, 1280, v3
    v_and_b32 v4, 7, v2
    v_lshl_add_u32 v3, v4, 4, v3
    s_mul_i32 s43, s42, {32*1280}
    s_lshl_b32 s44, s41, 7
    s_add_u32 s43, s43, s44
    s_lshl_b32 s44, s95, 12
    """)
    for n in range(4):
        a(f"s_add_u32 m0, s44, {1024*n}")
        a(f"buffer_load_dwordx4 v3, s[24:27], s43 offen lds")
        if n < 3: a(f"s_add_u32 s43, s43, {8*1280}")
    srd(a, 28, 20, W4_OFF, W4_SZ)
    a(f"""
    v_lshrrev_b32 v5, 4, v2
    v_bfe_u32 v6, v2, 2, 2
    v_lshl_add_u32 v6, v5, 3, v6
    v_lshlrev_b32 v6, 7, v6
    v_and_b32 v7, 3, v2
    v_lshl_add_u32 v6, v7, 3, v6
    v_add_u32 v6, s44, v6
    v_lshlrev_b32 v8, 4, v2
    s_mul_i32 s45, s41, 216
    s_add_u32 s45, s45, s42
    s_lshl_b32 s45, s45, 10
    s_waitcnt vmcnt(0)
    """)
    a.reset_counters()
    t = []
    for f in range(4):
        a(f"ds_read_b64_tr_b16 v[{12+4*f}:{13+4*f}], v6 offset:{32*f}")
        t.append(a.ds(f"ds_read_b64_tr_b16 v[{14+4*f}:{15+4*f}], v6 offset:{32*f+512}"))
    for f in range(4):
        a.wait(lg=t[f])
        a(f"buffer_store_dwordx4 v[{12+4*f}:{15+4*f}], v8, s[28:31], s45 offen")
        if f < 3: a(f"s_add_u32 s45, s45, {54*1024}")
    a("s_branch K0_end")
    a.reset_counters()
    a("K0_WO:")
    srd(a, 24, 10, 0, 640 * 1280)
    a(f"""
    s_and_b32 s42, s3, 3
    s_lshr_b32 s41, s3, 2
    v_lshrrev_b32 v3, 3, v2
    v_mul_u32_u24 v3, 1280, v3
    v_and_b32 v4, 7, v2
    v_lshl_add_u32 v3, v4, 4, v3
    s_mul_i32 s43, s42, 160
    s_mul_i32 s44, s95, 40
    s_add_u32 s43, s43, s44
    s_mul_i32 s43, s43, 1280
    s_lshl_b32 s44, s41, 7
    s_add_u32 s43, s43, s44
    s_mul_i32 s44, s95, 5120
    """)
    for n in range(5):
        a(f"s_add_u32 m0, s44, {1024*n}")
        a(f"buffer_load_dwordx4 v3, s[24:27], s43 offen lds")
        if n < 4: a(f"s_add_u32 s43, s43, {8*1280}")
    srd(a, 28, 20, WO_OFF, WO_SZ)
    a(f"""
    s_lshr_b32 s45, s95, 1
    s_and_b32 s46, s95, 1
    v_lshrrev_b32 v5, 5, v2
    v_mul_u32_u24 v5, 10, v5
    v_bfe_u32 v6, v2, 2, 2
    v_add_u32 v5, v5, v6
    v_lshlrev_b32 v5, 7, v5
    v_bfe_u32 v7, v2, 4, 1
    v_lshl_add_u32 v5, v7, 5, v5
    v_and_b32 v7, 3, v2
    v_lshl_add_u32 v5, v7, 3, v5
    s_mul_i32 s47, s45, {80*128}
    s_lshl_b32 s48, s46, 6
    s_add_u32 s47, s47, s48
    v_add_u32 v5, s47, v5
    v_lshrrev_b32 v6, 1, v6
    v_mul_u32_u24 v6, 1280, v6
    v_add_u32 v6, v5, v6
    v_lshlrev_b32 v8, 4, v2
    s_lshl_b32 s47, s41, 1
    s_add_u32 s47, s47, s46
    s_mul_i32 s48, s47, 205
    s_lshr_b32 s48, s48, 10
    s_mul_i32 s49, s48, 5
    s_sub_u32 s49, s47, s49
    s_lshl_b32 s48, s48, 2
    s_add_u32 s48, s48, s42
    s_mul_i32 s48, s48, 50
    s_mul_i32 s49, s49, 10
    s_add_u32 s48, s48, s49
    s_mul_i32 s49, s45, 5
    s_add_u32 s48, s48, s49
    s_lshl_b32 s48, s48, 10
    s_add_u32 s49, s48, 4096
    s_waitcnt vmcnt(0)
    s_barrier
    """)
    a.reset_counters()
    t = []
    for sp in range(5):
        for rho in range(2):
            p0 = 8 * sp + 4 * rho
            av = 6 if p0 in (8, 28) else 5
            tk = a.ds(f"ds_read_b64_tr_b16 v[{12+4*sp+2*rho}:{13+4*sp+2*rho}], v{av} offset:{(p0 + 10*(p0//10))*128}")
        t.append(tk)
    for sp in range(5):
        a.wait(lg=t[sp])
        if sp < 4:
            a(f"buffer_store_dwordx4 v[{12+4*sp}:{15+4*sp}], v8, s[28:31], s48 offen offset:{1024*sp}")
        else:
            a(f"buffer_store_dwordx4 v[{12+4*sp}:{15+4*sp}], v8, s[28:31], s49 offen")
    a("K0_end:")
    stamp_end(a, 0, 20)
    a("K0_exit:\ns_endpgm")
    return a
```

```python
from common import *

K1_GRID = 256
K1_LDS = 152 * 1024 + 1024

def softmax_pair(a, P, E, O, tmp):
    mx, mn = tmp, tmp + 2
    a(f"v_max3_f32 v{mx}, v{P}, v{P+1}, v{P+2}")
    a(f"v_min3_f32 v{mn}, v{P}, v{P+1}, v{P+2}")
    for i in range(3, 19, 2):
        a(f"v_max3_f32 v{mx}, v{mx}, v{P+i}, v{P+i+1}")
        a(f"v_min3_f32 v{mn}, v{mn}, v{P+i}, v{P+i+1}")
    a(f"v_max_f32 v{mx}, v{mx}, v{P+19}")
    a(f"v_min_f32 v{mn}, v{mn}, v{P+19}")
    for i in range(0, 20, 2):
        a(f"v_pk_add_f32 v[{E+i}:{E+i+1}], v[{P+i}:{P+i+1}], v[{mx}:{mx+1}] op_sel_hi:[1,0] neg_lo:[0,1] neg_hi:[0,1]")
        a(f"v_pk_add_f32 v[{E+20+i}:{E+21+i}], v[{P+i}:{P+i+1}], v[{mn}:{mn+1}] op_sel_hi:[1,0] neg_lo:[1,0] neg_hi:[1,0]")
    for i in range(40):
        a(f"v_exp_f32 v{E+i}, v{E+i}")
    sp, sn = tmp, tmp + 2
    a(f"v_pk_add_f32 v[{sp}:{sp+1}], v[{E}:{E+1}], v[{E+2}:{E+3}]")
    a(f"v_pk_add_f32 v[{sn}:{sn+1}], v[{E+20}:{E+21}], v[{E+22}:{E+23}]")
    for i in range(4, 20, 2):
        a(f"v_pk_add_f32 v[{sp}:{sp+1}], v[{sp}:{sp+1}], v[{E+i}:{E+i+1}]")
        a(f"v_pk_add_f32 v[{sn}:{sn+1}], v[{sn}:{sn+1}], v[{E+20+i}:{E+21+i}]")
    a(f"v_add_f32 v{sp}, v{sp}, v{sp+1}")
    a(f"v_add_f32 v{sn}, v{sn}, v{sn+1}")
    a(f"v_rcp_f32 v{sp}, v{sp}")
    a(f"v_rcp_f32 v{sn}, v{sn}")
    for i in range(0, 20, 2):
        a(f"v_pk_mul_f32 v[{E+i}:{E+i+1}], v[{E+i}:{E+i+1}], v[{sp}:{sp+1}] op_sel_hi:[1,0]")
        a(f"v_pk_mul_f32 v[{E+20+i}:{E+21+i}], v[{E+20+i}:{E+21+i}], v[{sn}:{sn+1}] op_sel_hi:[1,0]")
    for i in range(20):
        a(f"v_cvt_pk_bf16_f32 v{O+i}, v{E+2*i}, v{E+2*i+1}")

def gen_k1():
    a = Asm()
    stamp_begin(a)
    a(f"""
    s_load_dwordx2 s[20:21], s[0:1], 80
    v_lshrrev_b32 v1, 6, v0
    v_and_b32 v2, 63, v0
    v_readfirstlane_b32 s95, v1
    s_cmp_ge_u32 s2, {K1_GRID}
    s_cbranch_scc1 K1_exit
    s_and_b32 s40, s2, 7
    s_lshr_b32 s41, s2, 3
    s_lshr_b32 s42, s40, 1
    s_lshl_b32 s42, s42, 2
    s_and_b32 s43, s41, 3
    s_add_u32 s42, s42, s43
    s_and_b32 s43, s40, 1
    s_lshl_b32 s43, s43, 3
    s_lshr_b32 s44, s41, 2
    s_add_u32 s43, s43, s44
    s_lshl_b32 s44, s42, 2
    s_add_u32 s44, s44, s95
    s_mul_i32 s45, s44, 40960
    s_mul_i32 s46, s43, 153600
    s_lshl_b32 s47, s95, 12
    s_lshl_b32 s48, s95, 11
    v_lshlrev_b32 v3, 4, v2
    s_waitcnt lgkmcnt(0)
    """)
    srd(a, 24, 20, XN_OFF, XN_SZ)
    srd_dyn(a, 28, 20, W1_OFF, 46, 153600)
    tW, tX = {}, {}
    def issue(n):
        if n < 9:
            a(f"s_add_u32 m0, s47, {16384*n}")
            cnt = 4
        else:
            a(f"s_add_u32 m0, s48, {16384*n}")
            cnt = 2
        a(f"buffer_load_dwordx4 a[{16*n}:{16*n+3}], v3, s[24:27], s45 offen")
        for c in range(cnt):
            tW[n] = a.vm(f"buffer_load_dwordx4 v3, s[28:31], m0 offen offset:{1024*c} lds")
        for c in range(1, 4):
            tX[n] = a.vm(f"buffer_load_dwordx4 a[{16*n+4*c}:{16*n+4*c+3}], v3, s[24:27], s45 offen offset:{1024*c}")
        if n < 9: a(f"s_add_u32 s45, s45, 4096")
    PRE = 7
    for n in range(PRE): issue(n)
    a(f"""
    v_lshrrev_b32 v4, 5, v2
    v_lshlrev_b32 v5, 7, v4
    v_sub_u32 v5, v3, v5
    v_add_u32 v6, {16*3840}, v3
    v_add_u32 v7, {16*3840}, v5
    v_add_u32 v8, {32*3840}, v3
    v_add_u32 v9, {32*3840}, v5
    """)
    ACC = 64
    WF = 16
    def rd(s, T):
        win = s // 16
        base = [(3, 5), (6, 7), (8, 9)][win][1 if T == 3 else 0]
        off = (s - 16 * win) * 3840 + T * 1024
        r = WF + 4 * ((s % 2) * 4 + T)
        return a.ds(f"ds_read_b128 v[{r}:{r+3}], v{base} offset:{off}")
    tR = {}
    a.wait(vm=tX[0])
    a("s_barrier")
    for T in range(4): tR[(0, T)] = rd(0, T)
    for s in range(40):
        n = s // 4
        nxt = s + 1
        if nxt < 40 and nxt % 4 == 0:
            a.wait(vm=tX[nxt // 4])
            a("s_barrier")
            if n + PRE < 10: issue(n + PRE)
        for T in range(4):
            if nxt < 40: tR[(nxt, T)] = rd(nxt, T)
            a.wait(lg=tR[(s, T)])
            r = WF + 4 * ((s % 2) * 4 + T)
            d = ACC + 16 * T
            a(f"v_mfma_f32_32x32x16_bf16 v[{d}:{d+15}], v[{r}:{r+3}], a[{4*s}:{4*s+3}], " + ("0" if s == 0 else f"v[{d}:{d+15}]"))
    srd(a, 32, 20, KV_OFF, KV_SZ)
    srd(a, 36, 20, PQ_OFF, PQ_SZ)
    a(f"""
    v_and_b32 v10, 31, v2
    s_lshl_b32 s50, s95, 5
    v_add_u32 v11, s50, v10
    v_mul_u32_u24 v11, 272, v11
    v_lshl_add_u32 v11, v4, 7, v11
    s_barrier
    """)
    E, O, TMP = 128, 168, 12
    VP = 188
    for i in range(9):
        a(f"v_cvt_pk_bf16_f32 v{VP+i}, v{84+2*i}, v{85+2*i}")
    a(f"v_mov_b32 v{VP+9}, 0x3f80\nv_cvt_pk_bf16_f32 v{VP+10}, v102, v103\nv_mov_b32 v{VP+11}, 0x3f80")
    for c in range(3):
        a(f"ds_write_b128 v11, v[{VP+4*c}:{VP+4*c+3}] offset:{80+16*c}")
    softmax_pair(a, 64, E, O, TMP)
    for c in range(5):
        a(f"ds_write_b128 v11, v[{O+4*c}:{O+4*c+3}] offset:{16*c}")
    a(f"""
    v_bfe_u32 v48, v2, 2, 2
    v_lshlrev_b32 v48, 2, v48
    v_lshl_add_u32 v48, v4, 1, v48
    v_mul_u32_u24 v48, 272, v48
    v_bfe_u32 v49, v2, 4, 1
    v_lshl_add_u32 v48, v49, 5, v48
    v_and_b32 v49, 3, v2
    v_lshl_add_u32 v48, v49, 3, v48
    s_lshr_b32 s51, s95, 1
    s_and_b32 s52, s95, 1
    s_lshl_b32 s53, s51, 7
    v_add_u32 v48, s53, v48
    s_mul_i32 s53, s52, 40
    v_add_u32 v49, s53, v48
    """)
    a.wait_all_lg()
    a("s_barrier")
    tk = []
    FA, FB = 128, 200
    for ks in range(8):
        for rho in range(2):
            off = (16 * ks + rho) * 272
            a(f"ds_read_b64_tr_b16 v[{FA+4*ks+2*rho}:{FA+4*ks+2*rho+1}], v49 offset:{off}")
            t = a.ds(f"ds_read_b64_tr_b16 v[{FB+4*ks+2*rho}:{FB+4*ks+2*rho+1}], v48 offset:{off+80}")
        tk.append(t)
        if ks >= 2:
            k2 = ks - 2
            a.wait(lg=tk[k2])
            a(f"v_mfma_f32_32x32x16_bf16 v[16:31], v[{FA+4*k2}:{FA+4*k2+3}], v[{FB+4*k2}:{FB+4*k2+3}], " + ("0" if k2 == 0 else "v[16:31]"))
    for k2 in (6, 7):
        a.wait(lg=tk[k2])
        a(f"v_mfma_f32_32x32x16_bf16 v[16:31], v[{FA+4*k2}:{FA+4*k2+3}], v[{FB+4*k2}:{FB+4*k2+3}], v[16:31]")
    a(f"""
    s_add_u32 s53, s47, 40960
    v_mul_u32_u24 v50, 384, v4
    v_lshl_add_u32 v50, v10, 4, v50
    v_add_u32 v50, s53, v50
    v_lshl_add_u32 v51, v2, 2, s53
    v_lshlrev_b32 v52, 2, v2
    s_lshl_b32 s54, s43, 1
    s_add_u32 s54, s54, s51
    s_mul_i32 s54, s54, 3840
    s_mul_i32 s55, s52, 1920
    s_add_u32 s54, s54, s55
    v_cmp_gt_u32 vcc, 24, v10
    s_and_saveexec_b64 s[56:57], vcc
    """)
    for c in range(3):
        a(f"ds_write_b128 v50, v[{16+4*c}:{19+4*c}] offset:{768*c}")
    a("s_mov_b64 exec, s[56:57]")
    a.wait_all_lg()
    tk = [a.ds(f"ds_read_b32 v{32+i}, v51 offset:{256*i}") for i in range(8)]
    for i in range(8):
        a.wait(lg=tk[i])
        if i == 7: a("s_mov_b32 exec_hi, 0")
        a(f"buffer_atomic_add_f32 v{32+i}, v52, s[32:35], s54 offen offset:{256*i}")
    a("s_mov_b64 exec, -1")
    softmax_pair(a, 104, E, O, TMP)
    a(f"""
    v_lshlrev_b32 v53, 4, v10
    v_lshl_add_u32 v53, v4, 11, v53
    s_lshl_b32 s58, s44, 4
    s_add_u32 s58, s58, s43
    s_mul_i32 s58, s58, 5120
    s_add_u32 s59, s58, 4096
    """)
    for c in range(4):
        a(f"buffer_store_dwordx4 v[{O+4*c}:{O+4*c+3}], v53, s[36:39], s58 offen offset:{512*c}")
    a(f"buffer_store_dwordx4 v[{O+16}:{O+19}], v3, s[36:39], s59 offen")
    stamp_end(a, 1, 20)
    a("K1_exit:\ns_endpgm")
    return a
```

```python
from common import *

K2_GRID = 256
K2_LDS = 4 * 20480 + 12288

def gen_k2():
    a = Asm()
    stamp_begin(a)
    a(f"""
    s_load_dwordx2 s[20:21], s[0:1], 80
    s_load_dwordx2 s[4:5], s[0:1], 0
    v_lshrrev_b32 v1, 6, v0
    v_and_b32 v2, 63, v0
    v_readfirstlane_b32 s95, v1
    s_cmp_ge_u32 s2, {K2_GRID}
    s_cbranch_scc1 K2_exit
    s_and_b32 s40, s2, 7
    s_lshr_b32 s41, s2, 3
    s_lshl_b32 s42, s40, 3
    s_and_b32 s43, s41, 7
    s_add_u32 s42, s42, s43
    s_lshr_b32 s43, s41, 3
    v_lshlrev_b32 v3, 4, v2
    v_lshrrev_b32 v4, 5, v2
    v_and_b32 v5, 31, v2
    v_min_u32 v6, 23, v5
    v_lshlrev_b32 v6, 4, v6
    v_mul_u32_u24 v7, 3840, v4
    v_add_u32 v7, v7, v6
    v_mul_u32_u24 v8, 768, v4
    v_add_u32 v6, v8, v6
    s_mul_i32 s44, s95, {8*3840}
    s_lshl_b32 s45, s42, 4
    s_lshl_b32 s46, s95, 2
    s_add_u32 s45, s45, s46
    s_mul_i32 s45, s45, 5120
    s_lshl_b32 s46, s43, 2
    s_add_u32 s46, s46, s95
    s_mul_i32 s46, s46, 51200
    s_waitcnt lgkmcnt(0)
    """)
    srd(a, 24, 20, KV_OFF, KV_SZ)
    srd(a, 28, 20, PQ_OFF, PQ_SZ)
    srd(a, 32, 20, WO_OFF, WO_SZ)
    KVR = 96
    PQR = 0
    WOR = 80
    tP = []
    for p in range(4):
        b = KVR + 40 * p
        for hh in range(2):
            for u in range(2):
                for e in range(2):
                    r = b + 16 * hh + 8 * u + 4 * e
                    a(f"buffer_load_dwordx4 v[{r}:{r+3}], v6, s[24:27], s44 offen offset:{(4*u+e)*384}")
            if hh == 0:
                for e in range(2):
                    r = b + 32 + 4 * e
                    a(f"buffer_load_dwordx4 v[{r}:{r+3}], v7, s[24:27], s44 offen offset:{(8+e)*384}")
            a("s_add_u32 s44, s44, 3840")
        for f in range(4):
            r = PQR + 20 * p + 4 * f
            a(f"buffer_load_dwordx4 a[{r}:{r+3}], v3, s[28:31], s45 offen offset:{1024*f}")
        a("s_add_u32 s45, s45, 4096")
        r = PQR + 20 * p + 16
        tP.append(a.vm(f"buffer_load_dwordx4 a[{r}:{r+3}], v3, s[28:31], s45 offen"))
        if p < 3: a("s_add_u32 s45, s45, 1024")
    XL = 4 * 20480
    srd(a, 36, 4, 0, 2621440)
    a(f"""
    s_mul_i32 s47, s42, {32*1280}
    s_mul_i32 s48, s43, 320
    s_add_u32 s47, s47, s48
    s_lshl_b32 s48, s95, 10
    s_mov_b32 s49, 3277
    """)
    for n in range(3):
        a(f"""
        v_add_u32 v8, {256*n}, v0
        v_min_u32 v8, 639, v8
        v_mul_u32_u24 v9, s49, v8
        v_lshrrev_b32 v9, 16, v9
        v_mul_u32_u24 v9, {1280-320}, v9
        v_lshl_add_u32 v8, v8, 4, v9
        s_add_u32 m0, s48, {XL + 4096*n}
        """)
        tXl = a.vm(f"buffer_load_dwordx4 v8, s[36:39], s47 offen lds")
    wo_next = [0]
    tWO = {}
    def wo_reg(i):
        return WOR + 4 * i if i < 44 else 4 * (i - 44)
    def issue_wo(k):
        for _ in range(k):
            i = wo_next[0]
            if i >= 50: return
            r = wo_reg(i)
            tWO[i] = a.vm(f"buffer_load_dwordx4 a[{r}:{r+3}], v3, s[32:35], s46 offen offset:{1024*(i%4)}")
            if i % 4 == 3: a("s_add_u32 s46, s46, 4096")
            wo_next[0] += 1
    for r in range(12, 20): a(f"v_mov_b32 v{r}, 0")
    OB = 56
    OD = [24, 40]
    for p in range(4):
        a.wait(vm=tP[p])
        issue_wo(15 if p < 3 else 0) if p < 2 else issue_wo(14 if p == 2 else 0)
        b = KVR + 40 * p
        for hh in range(2):
            for u in range(2):
                r = b + 16 * hh + 8 * u
                for j in range(4):
                    a(f"v_cvt_pk_bf16_f32 v{r+j}, v{r+2*j}, v{r+2*j+1}")
        a("s_mov_b32 exec_hi, 0")
        for j in range(4): a(f"v_cvt_pk_bf16_f32 v{12+j}, v{b+32+2*j}, v{b+33+2*j}")
        a("s_mov_b32 exec_hi, -1\ns_mov_b32 exec_lo, 0")
        for j in range(4): a(f"v_cvt_pk_bf16_f32 v{16+j}, v{b+32+2*j}, v{b+33+2*j}")
        a("s_mov_b32 exec_lo, -1\ns_nop 1")
        q = PQR + 20 * p
        for hh in range(2):
            d = OD[hh]
            for u in range(2):
                r = b + 16 * hh + 8 * u
                a(f"v_mfma_f32_32x32x16_bf16 v[{d}:{d+15}], v[{r}:{r+3}], a[{q+8*hh+4*u}:{q+8*hh+4*u+3}], " + ("0" if u == 0 else f"v[{d}:{d+15}]"))
            a(f"v_mfma_f32_32x32x16_bf16 v[{d}:{d+15}], v[{12+4*hh}:{15+4*hh}], a[{q+16}:{q+19}], v[{d}:{d+15}]")
        for hh in range(2):
            d = OD[hh]
            a(f"v_add_f32 v{d+10}, {f32(1e-6)}, v{d+10}")
            a(f"v_rcp_f32 v{d+10}, v{d+10}")
            for j in range(0, 10, 2):
                a(f"v_pk_mul_f32 v[{d+j}:{d+j+1}], v[{d+j}:{d+j+1}], v[{d+10}:{d+11}] op_sel_hi:[1,0]")
            o = OB + 10 * p + 5 * hh
            for j in range(5):
                a(f"v_cvt_pk_bf16_f32 v{o+j}, v{d+2*j}, v{d+2*j+1}")
        if p == 3: issue_wo(50)
    a(f"s_mul_i32 s50, s95, 20480\nv_add_u32 v9, s50, v3")
    AC = [96, 112]
    def flush(T):
        d = AC[T % 2]
        for q in range(4):
            a(f"ds_write_b128 v9, v[{d+4*q}:{d+4*q+3}] offset:{T*4096 + q*1024}")
    for T in range(5):
        d = AC[T % 2]
        for k in range(10):
            i = 10 * T + k
            a.wait(vm=tWO[i])
            r = wo_reg(i)
            a(f"v_mfma_f32_32x32x16_bf16 v[{d}:{d+15}], a[{r}:{r+3}], v[{OB+4*k}:{OB+4*k+3}], " + ("0" if k == 0 else f"v[{d}:{d+15}]"))
            if k == 3 and T > 0: flush(T - 1)
    srd(a, 24, 20, H_OFF, H_SZ)
    srd(a, 28, 20, ST_OFF, ST_SZ)
    a(f"""
    v_lshlrev_b32 v10, 4, v5
    v_lshl_add_u32 v10, v4, 10, v10
    s_lshl_b32 s51, s95, 11
    v_add_u32 v10, s51, v10
    v_add_u32 v11, 40960, v10
    v_mul_u32_u24 v20, 320, v5
    v_lshl_add_u32 v20, v4, 4, v20
    s_lshl_b32 s51, s95, 5
    s_add_u32 s51, s51, {XL}
    v_add_u32 v20, s51, v20
    s_mul_i32 s52, s42, 40
    s_mul_i32 s53, s43, 10
    s_add_u32 s52, s52, s53
    s_add_u32 s52, s52, s95
    s_lshl_b32 s52, s52, 10
    s_mov_b32 s54, 0xffff0000
    v_mov_b32 v21, 0x3f803f80
    v_mov_b32 v22, 0
    v_mov_b32 v23, 0
    """)
    flush(4)
    a.wait_all_lg()
    a("s_barrier")
    for it in range(3):
        if it == 2:
            a("s_cmp_ge_u32 s95, 2\ns_cbranch_scc1 K2_fin")
        R = 128 + 40 * it
        tk = []
        for w in range(4):
            base = 10 if w < 2 else 11
            off = (w % 2) * 20480 + it * 8192
            a(f"ds_read_b128 v[{R+8*w}:{R+8*w+3}], v{base} offset:{off}")
            tk.append(a.ds(f"ds_read_b128 v[{R+8*w+4}:{R+8*w+7}], v{base} offset:{off+512}"))
        tx = a.ds(f"ds_read_b128 v[{R+32}:{R+35}], v20 offset:{128*it}")
        a.wait(lg=tk[1])
        for j in range(0, 8, 2):
            a(f"v_pk_add_f32 v[{R+j}:{R+j+1}], v[{R+j}:{R+j+1}], v[{R+8+j}:{R+9+j}]")
        a.wait(lg=tk[3])
        for j in range(0, 8, 2):
            a(f"v_pk_add_f32 v[{R+16+j}:{R+17+j}], v[{R+16+j}:{R+17+j}], v[{R+24+j}:{R+25+j}]")
        a.wait(lg=tx)
        for j in range(4):
            a(f"v_lshlrev_b32 v{R+8+2*j}, 16, v{R+32+j}")
            a(f"v_and_b32 v{R+9+2*j}, s54, v{R+32+j}")
        for j in range(0, 8, 2):
            a(f"v_pk_add_f32 v[{R+j}:{R+j+1}], v[{R+j}:{R+j+1}], v[{R+16+j}:{R+17+j}]")
        for j in range(0, 8, 2):
            a(f"v_pk_add_f32 v[{R+j}:{R+j+1}], v[{R+j}:{R+j+1}], v[{R+8+j}:{R+9+j}]")
        for j in range(4):
            a(f"v_cvt_pk_bf16_f32 v{R+36+j}, v{R+2*j}, v{R+2*j+1}")
        a(f"buffer_store_dwordx4 v[{R+36}:{R+39}], v3, s[24:27], s52 offen")
        if it < 2: a("s_add_u32 s52, s52, 4096")
        for j in range(4):
            a(f"v_dot2c_f32_bf16 v22, v{R+36+j}, v21")
            a(f"v_dot2c_f32_bf16 v23, v{R+36+j}, v{R+36+j}")
    a("K2_fin:\ns_nop 3")
    a(f"""
    v_mov_b32 v24, v22
    v_mov_b32 v25, v23
    v_permlane32_swap_b32 v22, v24
    v_permlane32_swap_b32 v23, v25
    v_add_f32 v22, v22, v24
    v_add_f32 v23, v23, v25
    s_lshl_b32 s55, s42, 4
    s_lshl_b32 s56, s43, 2
    s_add_u32 s55, s55, s56
    s_add_u32 s55, s55, s95
    s_lshl_b32 s55, s55, 8
    v_lshlrev_b32 v24, 3, v5
    s_mov_b32 exec_hi, 0
    buffer_store_dwordx2 v[22:23], v24, s[28:31], s55 offen
    """)
    stamp_end(a, 2, 20)
    a("K2_exit:\ns_endpgm")
    return a
```

```python
from common import *
import math

K3_GRID = 256
K3_LDS = 160 * 1024
C0 = -2.0 * math.sqrt(2.0 / math.pi) * LOG2E
C1 = C0 * 0.044715

def epi_ops(d, tmp, out, store):
    L = []
    for j in range(8): L.append(f"v_mul_f32 v{d+j}, v14, v{d+j}")
    for j in range(8): L.append(f"v_mul_f32 v{tmp+j}, v{d+j}, v{d+j}")
    for j in range(8): L.append(f"v_fma_f32 v{tmp+j}, v{tmp+j}, s60, v15")
    for j in range(8): L.append(f"v_mul_f32 v{tmp+j}, v{tmp+j}, v{d+j}")
    for j in range(8):
        L.append(f"v_exp_f32 v{tmp+j}, v{tmp+j}")
        L.append(f"v_mul_f32 v{d+j}, v{d+j}, v{d+8+j}")
    for j in range(8): L.append(f"v_add_f32 v{tmp+j}, 1.0, v{tmp+j}")
    for j in range(8): L.append(f"v_rcp_f32 v{tmp+j}, v{tmp+j}")
    for j in range(8): L.append(f"v_mul_f32 v{d+j}, v{d+j}, v{tmp+j}")
    for j in range(4): L.append(f"v_cvt_pk_bf16_f32 v{out+j}, v{d+2*j}, v{d+2*j+1}")
    L += store
    return L

def epi_ops_pk(d, tmp, out, store):
    L = []
    P = lambda r: f"v[{r}:{r+1}]"
    for j in range(0, 8, 2): L.append(f"v_pk_mul_f32 {P(d+j)}, {P(d+j)}, v[14:15] op_sel_hi:[1,0]")
    for j in range(0, 8, 2): L.append(f"v_pk_mul_f32 {P(tmp+j)}, {P(d+j)}, {P(d+j)}")
    for j in range(0, 8, 2): L.append(f"v_pk_fma_f32 {P(tmp+j)}, {P(tmp+j)}, s[60:61], v[14:15] op_sel:[0,0,1] op_sel_hi:[1,0,1]")
    for j in range(0, 8, 2): L.append(f"v_pk_mul_f32 {P(tmp+j)}, {P(tmp+j)}, {P(d+j)}")
    for j in range(8): L.append(f"v_exp_f32 v{tmp+j}, v{tmp+j}")
    for j in range(0, 8, 2): L.append(f"v_pk_mul_f32 {P(d+j)}, {P(d+j)}, {P(d+8+j)}")
    for j in range(0, 8, 2): L.append(f"v_pk_add_f32 {P(tmp+j)}, {P(tmp+j)}, 1.0 op_sel_hi:[1,0]")
    for j in range(8): L.append(f"v_rcp_f32 v{tmp+j}, v{tmp+j}")
    for j in range(0, 8, 2): L.append(f"v_pk_mul_f32 {P(d+j)}, {P(d+j)}, {P(tmp+j)}")
    for j in range(4): L.append(f"v_cvt_pk_bf16_f32 v{out+j}, v{d+2*j}, v{d+2*j+1}")
    L += store
    return L

def gen_k3():
    a = Asm()
    stamp_begin(a)
    a(f"""
    s_load_dwordx2 s[20:21], s[0:1], 80
    v_lshrrev_b32 v1, 6, v0
    v_and_b32 v2, 63, v0
    v_readfirstlane_b32 s95, v1
    s_cmp_ge_u32 s2, {K3_GRID}
    s_cbranch_scc1 K3_exit
    s_and_b32 s40, s2, 7
    s_lshr_b32 s41, s2, 3
    s_lshr_b32 s42, s40, 2
    s_lshl_b32 s42, s42, 3
    s_and_b32 s43, s41, 7
    s_add_u32 s42, s42, s43
    s_and_b32 s43, s40, 3
    s_lshl_b32 s43, s43, 2
    s_lshr_b32 s44, s41, 3
    s_add_u32 s43, s43, s44
    s_lshl_b32 s44, s42, 2
    s_add_u32 s44, s44, s95
    s_mul_i32 s45, s44, 40960
    s_mul_i32 s46, s43, 27
    s_lshr_b32 s46, s46, 1
    s_mul_i32 s47, s46, 20480
    v_lshlrev_b32 v3, 4, v2
    v_lshrrev_b32 v4, 5, v2
    v_and_b32 v5, 31, v2
    s_waitcnt lgkmcnt(0)
    """)
    srd(a, 24, 20, H_OFF, H_SZ)
    srd_dyn(a, 28, 20, W3_OFF, 47, 163840)
    srd(a, 36, 20, ST_OFF, ST_SZ)
    a(f"""
    v_lshlrev_b32 v6, 3, v5
    v_lshl_add_u32 v6, v4, 11, v6
    s_lshl_b32 s48, s44, 12
    """)
    SR = 208
    for p in range(8):
        tS = a.vm(f"buffer_load_dwordx2 v[{SR+2*p}:{SR+2*p+1}], v6, s[36:39], s48 offen offset:{256*p}")
    for j in range(3):
        a(f"""
        s_mul_i32 s50, s95, 3
        s_add_u32 s50, s50, {j}
        s_lshr_b32 s51, s50, 1
        s_mul_i32 s51, s51, 20480
        s_and_b32 s50, s50, 1
        s_lshl_b32 s50, s50, 10
        s_add_u32 s{52+j}, s50, s51
        """)
    tA = {}
    def issueA(n):
        for j in range(3):
            a(f"s_add_u32 m0, s{52+j}, {2048*n}")
            a(f"buffer_load_dwordx4 a[{16*n+4*j}:{16*n+4*j+3}], v3, s[24:27], s45 offen offset:{1024*j}")
            a(f"buffer_load_dwordx4 v3, s[28:31], m0 offen lds")
        tA[n] = a.vm(f"buffer_load_dwordx4 a[{16*n+12}:{16*n+15}], v3, s[24:27], s45 offen offset:3072")
        if n < 9: a("s_add_u32 s45, s45, 4096")
    tB = {}
    def issueB(T, part=None):
        sr = 28 if T < 4 else 32
        for c in range(10):
            if part is not None and c // 5 != part: continue
            if c % 5 == 0 or c % 5 == 4:
                a(f"s_add_u32 m0, s55, {(T%4)*40960 + 1024*c}")
                base = c
                a("s_nop 0")
            tB[T] = a.vm(f"buffer_load_dwordx4 v3, s[{sr}:{sr+3}], m0 offen offset:{1024*(c-base)} lds")
    PRE = 7
    for n in range(PRE): issueA(n)
    srd_dyn(a, 32, 20, W3_OFF + 163840, 47, 122880)
    a("s_mul_i32 s55, s95, 10240")
    a(f"""
    v_bfe_u32 v7, v2, 2, 1
    v_bfe_u32 v8, v2, 4, 1
    v_xor_b32 v9, v8, v4
    v_lshlrev_b32 v9, 7, v9
    v_lshl_add_u32 v9, v8, 8, v9
    v_bfe_u32 v8, v2, 3, 1
    v_lshl_add_u32 v9, v8, 6, v9
    v_and_b32 v8, 3, v2
    v_lshl_add_u32 v9, v8, 4, v9
    v_lshl_add_u32 v8, v7, 9, v9
    v_mul_u32_u24 v7, 20480, v7
    v_add_u32 v10, v7, v9
    v_add_u32 v11, 40960, v10
    v_add_u32 v12, 81920, v10
    v_add_u32 v13, 122880, v10
    """)
    a.wait(vm=tS)
    for p in range(1, 8):
        a(f"v_pk_add_f32 v[{SR}:{SR+1}], v[{SR}:{SR+1}], v[{SR+2*p}:{SR+2*p+1}]")
    a(f"""
    v_mov_b32 v{SR+2}, v{SR}
    v_mov_b32 v{SR+3}, v{SR+1}
    v_permlane32_swap_b32 v{SR}, v{SR+2}
    v_permlane32_swap_b32 v{SR+1}, v{SR+3}
    v_add_f32 v{SR}, v{SR}, v{SR+2}
    v_add_f32 v{SR+1}, v{SR+1}, v{SR+3}
    v_mul_f32 v{SR}, {f32(-1.0/640)}, v{SR}
    v_mul_f32 v{SR+1}, {f32(1.0/640)}, v{SR+1}
    v_fma_f32 v{SR+1}, -v{SR}, v{SR}, v{SR+1}
    v_max_f32 v{SR+1}, 0, v{SR+1}
    v_add_f32 v{SR+1}, {f32(1e-5)}, v{SR+1}
    v_rsq_f32 v14, v{SR+1}
    v_cvt_pk_bf16_f32 v{SR+2}, v{SR}, v{SR}
    v_lshlrev_b32 v{SR+2}, 16, v{SR+2}
    v_sub_f32 v{SR+3}, v{SR}, v{SR+2}
    v_cvt_pk_bf16_f32 v16, v{SR+2}, v{SR+3}
    v_mov_b32 v17, v16
    v_mov_b32 v18, v16
    v_mov_b32 v19, v16
    v_mov_b32 v15, {f32(C0)}
    s_mov_b32 s60, {f32(C1)}
    s_mov_b32 s61, {f32(C1)}
    """)
    srd(a, 36, 20, CS_OFF, CS_SZ)
    a("s_lshl_b32 s48, s46, 9\ns_add_u32 s49, s48, 4096")
    for T in range(7):
        tC = a.vm(f"buffer_load_dwordx4 a[{160+4*T}:{163+4*T}], v8, s[36:39], s{48 if T < 4 else 49} offen offset:{1024*(T%4)}")
    ACC = [96 + 16 * T for T in range(7)]
    WF = 24
    slot = [0]
    def rd(T, s):
        r = WF + 4 * (slot[0] % 8); slot[0] += 1
        t = a.ds(f"ds_read_b128 v[{r}:{r+3}], v{10 + T % 4} offset:{512*s}")
        return (r, t)
    def mm(T, s, fr):
        r, t = fr
        a.wait(lg=t)
        d = ACC[T]
        a(f"v_mfma_f32_32x32x16_bf16 v[{d}:{d+15}], v[{r}:{r+3}], a[{4*s}:{4*s+3}], " + ("0" if s == 0 else f"v[{d}:{d+15}]"))
    def mmx(T):
        d = ACC[T]
        a(f"v_mfma_f32_32x32x16_bf16 v[{d}:{d+15}], a[{160+4*T}:{163+4*T}], v[16:19], v[{d}:{d+15}]")
    srd(a, 64, 20, HH_OFF, HH_SZ)
    srd(a, 68, 20, RS_OFF, RS_SZ)
    a(f"""
    v_lshrrev_b32 v20, 4, v5
    v_mul_u32_u24 v20, 55296, v20
    v_and_b32 v21, 15, v2
    v_lshl_add_u32 v20, v21, 4, v20
    v_lshl_add_u32 v20, v4, 8, v20
    s_mul_i32 s62, s44, 110592
    s_lshl_b32 s63, s46, 8
    s_add_u32 s62, s62, s63
    v_lshlrev_b32 v21, 2, v5
    s_lshl_b32 s63, s44, 7
    """)
    def store(T, out):
        return [f"buffer_store_dwordx4 v[{out}:{out+3}], v20, s[64:67], s62 offen offset:{512*T}"]
    a.wait(vm=tA[0])
    a("s_barrier")
    fr = {}
    for T in range(3): fr[(T, 0)] = rd(T, 0)
    for s in range(40):
        n = s // 4
        nxt = s + 1
        if nxt < 40 and nxt % 4 == 0:
            a.wait(vm=tA[nxt // 4])
            a("s_barrier")
            if n + PRE < 10: issueA(n + PRE)
            elif n + PRE == 10: issueB(3, 0)
            elif n + PRE == 11:
                issueB(3, 1)
                a("buffer_store_dword v14, v21, s[68:71], s63 offen")
        for T in range(3):
            if nxt < 40: fr[(T, nxt)] = rd(T, nxt)
            mm(T, s, fr[(T, s)])
    a.wait(vm=tC)
    for T in range(3): mmx(T)
    a("s_barrier")
    for T in (4, 5, 6): issueB(T)
    TMP, OUT = 56, [64, 68]
    for ins in epi_ops_pk(ACC[0], TMP, OUT[0], store(0, OUT[0])): a(ins)
    pending = epi_ops(ACC[1], TMP, OUT[1], store(1, OUT[1])) + epi_ops(ACC[2], TMP, OUT[0], store(2, OUT[0]))
    for T in range(3, 7):
        a.wait(vm=tB[T])
        a("s_barrier")
        q = [rd(T, s) for s in range(4)]
        per = 4
        for s in range(40):
            if s + 4 < 40: q.append(rd(T, s + 4))
            mm(T, s, q[s])
            if s >= 1:
                cost = 0
                while pending and cost < per:
                    ins = pending.pop(0)
                    a(ins)
                    cost += 2 if ins.startswith(("v_exp", "v_rcp")) else 1
        mmx(T)
        if T < 6:
            pending += epi_ops(ACC[T], TMP, OUT[T % 2], store(T, OUT[T % 2]))
    for ins in pending: a(ins)
    for ins in epi_ops_pk(ACC[6], TMP, OUT[0], store(6, OUT[0])): a(ins)
    stamp_end(a, 3, 20)
    a("K3_exit:\ns_endpgm")
    return a
```

```python
from common import *

K4_GRID = 256
PITCH = 336
PW = 64 * PITCH
K4_LDS = 4 * PW

def gen_k4():
    a = Asm()
    stamp_begin(a)
    a(f"""
    s_load_dwordx2 s[20:21], s[0:1], 80
    s_load_dwordx2 s[4:5], s[0:1], 64
    v_lshrrev_b32 v1, 6, v0
    v_and_b32 v2, 63, v0
    v_readfirstlane_b32 s95, v1
    s_cmp_ge_u32 s2, {K4_GRID}
    s_cbranch_scc1 K4_exit
    s_and_b32 s40, s2, 7
    s_lshr_b32 s41, s2, 3
    s_lshr_b32 s42, s40, 1
    s_lshl_b32 s42, s42, 3
    s_and_b32 s43, s41, 7
    s_add_u32 s42, s42, s43
    s_and_b32 s43, s40, 1
    s_lshl_b32 s43, s43, 2
    s_lshr_b32 s44, s41, 3
    s_add_u32 s43, s43, s44
    v_lshlrev_b32 v3, 4, v2
    s_mul_i32 s44, s95, 14
    s_mul_i32 s45, s42, {4*54}
    s_add_u32 s45, s45, s44
    s_lshl_b32 s45, s45, 10
    s_mul_i32 s46, s43, {5*54}
    s_add_u32 s46, s46, s44
    s_lshl_b32 s46, s46, 10
    s_waitcnt lgkmcnt(0)
    """)
    srd(a, 24, 20, HH_OFF, HH_SZ)
    srd(a, 28, 20, W4_OFF, W4_SZ)
    a(f"""
    s_cmp_eq_u32 s95, 3
    s_cselect_b32 s47, 0x10000000, 0
    v_add_u32 v4, s47, v3
    """)
    for tt in range(4): a(f"s_add_u32 s{48+tt}, s45, {tt*55296}")
    HR = 0
    WR = [32, 88, 144, 200]
    tH, tW = {}, {}
    def ldH(k):
        for tt in range(4):
            r = HR + 16 * k + 4 * tt
            tH[k] = a.vm(f"buffer_load_dwordx4 a[{r}:{r+3}], v{4 if k >= 12 else 3}, s[24:27], s{48+tt} offen offset:{1024*(k%4)}")
        if k % 4 == 3:
            for tt in range(4): a(f"s_add_u32 s{48+tt}, s{48+tt}, 4096")
    def ldW(T, k):
        r = WR[T % 4] + 4 * k
        a(f"s_add_u32 s52, s46, {T*55296 + 4096*(k//4)}") if k % 4 == 0 else None
        tW[(T, k)] = a.vm(f"buffer_load_dwordx4 v[{r}:{r+3}], v{4 if k >= 12 else 3}, s[28:31], s52 offen offset:{1024*(k%4)}")
    order = []
    for k in range(14): order += [('W', 0, k), ('H', k)]
    for T in range(1, 5):
        for k in range(14): order.append(('W', T, k))
    pos = [0]
    def fill(limit=62, maxT=99):
        while pos[0] < len(order):
            o = order[pos[0]]
            c = 4 if o[0] == 'H' else 1
            if a.vm_issued - a.vm_done + c > limit: break
            if o[0] == 'W' and o[1] > maxT: break
            if o[0] == 'H': ldH(o[1])
            else: ldW(o[1], o[2])
            pos[0] += 1
    fill()
    a(f"""
    v_and_b32 v5, 15, v2
    v_mul_u32_u24 v5, {PITCH}, v5
    v_lshrrev_b32 v6, 4, v2
    v_lshl_add_u32 v5, v6, 4, v5
    s_mul_i32 s53, s95, {PW}
    v_add_u32 v5, s53, v5
    """)
    AC = [224, 240]
    def flush(T):
        d = AC[T % 2]
        for tt in range(4):
            a(f"ds_write_b128 v5, a[{d+4*tt}:{d+4*tt+3}] offset:{tt*16*PITCH + T*64}")
    tres = None
    for T in range(5):
        d = AC[T % 2]
        for k in range(14):
            a.wait(vm=max(tW[(T, k)], tH[k]))
            fill(maxT=T + 3 if k > 0 else T + 2)
            r = WR[T % 4] + 4 * k
            for tt in range(4):
                h = HR + 16 * k + 4 * tt
                a(f"v_mfma_f32_16x16x32_bf16 a[{d+4*tt}:{d+4*tt+3}], v[{r}:{r+3}], a[{h}:{h+3}], " + ("0" if k == 0 else f"a[{d+4*tt}:{d+4*tt+3}]"))
            if k == 2 and T > 0: flush(T - 1)
        if T == 2:
            assert pos[0] == len(order)
            srd(a, 32, 20, H_OFF, H_SZ)
            srd(a, 36, 20, RS_OFF, RS_SZ)
            a(f"""
            s_mov_b32 s54, 6554
            s_mul_i32 s55, s42, {2*40960}
            s_mul_i32 s56, s43, 5120
            s_add_u32 s55, s55, s56
            s_lshl_b32 s56, s42, 8
            """)
            for it in range(3):
                b = 8 + 8 * it
                a(f"""
                v_add_u32 v6, {256*it}, v0
                v_min_u32 v6, 639, v6
                v_mul_u32_u24 v7, s54, v6
                v_lshrrev_b32 v7, 16, v7
                v_mul_u32_u24 v{b}, 10, v7
                v_sub_u32 v6, v6, v{b}
                v_mul_u32_u24 v{b}, {PITCH}, v7
                v_lshl_add_u32 v{b}, v6, 5, v{b}
                v_mul_u32_u24 v{b+1}, 1280, v7
                v_lshl_add_u32 v{b+1}, v6, 4, v{b+1}
                v_lshlrev_b32 v{b+2}, 2, v7
                v_lshrrev_b32 v{b+3}, 5, v7
                v_mul_u32_u24 v{b+3}, 40960, v{b+3}
                v_and_b32 v7, 31, v7
                v_lshl_add_u32 v{b+3}, v7, 4, v{b+3}
                v_lshl_add_u32 v{b+3}, v6, 9, v{b+3}
                buffer_load_dword v{b+2}, v{b+2}, s[36:39], s56 offen
                """)
                tres = a.vm(f"buffer_load_dwordx4 v[{b+4}:{b+7}], v{b+3}, s[32:35], s55 offen")
    srd(a, 24, 4, 0, 2621440)
    a(f"""
    s_mul_i32 s57, s42, {64*1280}
    s_mul_i32 s58, s43, 160
    s_add_u32 s57, s57, s58
    s_mov_b32 s59, 0xffff0000
    """)
    flush(4)
    a.wait(vm=tres)
    a.wait_all_lg()
    a("s_barrier")
    for it in range(3):
        if it == 2:
            a("s_cmp_ge_u32 s95, 2\ns_cbranch_scc1 K4_fin")
        b = 8 + 8 * it
        R = 88 + 40 * it
        tk = []
        for w in range(4):
            a(f"ds_read_b128 v[{R+8*w}:{R+8*w+3}], v{b} offset:{w*PW}")
            tk.append(a.ds(f"ds_read_b128 v[{R+8*w+4}:{R+8*w+7}], v{b} offset:{w*PW+16}"))
        for j in range(4):
            a(f"v_lshlrev_b32 v{R+32+2*j}, 16, v{b+4+j}")
            a(f"v_and_b32 v{R+33+2*j}, s59, v{b+4+j}")
        a.wait(lg=tk[1])
        for j in range(0, 8, 2):
            a(f"v_pk_add_f32 v[{R+j}:{R+j+1}], v[{R+j}:{R+j+1}], v[{R+8+j}:{R+9+j}]")
        a.wait(lg=tk[3])
        for j in range(0, 8, 2):
            a(f"v_pk_add_f32 v[{R+16+j}:{R+17+j}], v[{R+16+j}:{R+17+j}], v[{R+24+j}:{R+25+j}]")
        for j in range(0, 8, 2):
            a(f"v_pk_add_f32 v[{R+j}:{R+j+1}], v[{R+j}:{R+j+1}], v[{R+16+j}:{R+17+j}]")
        for j in range(0, 8, 2):
            a(f"v_pk_fma_f32 v[{R+j}:{R+j+1}], v[{R+j}:{R+j+1}], v[{b+2}:{b+3}], v[{R+32+j}:{R+33+j}] op_sel_hi:[1,0,1]")
        for j in range(4):
            a(f"v_cvt_pk_bf16_f32 v{R+8+j}, v{R+2*j}, v{R+2*j+1}")
        a(f"buffer_store_dwordx4 v[{R+8}:{R+11}], v{b+1}, s[24:27], s57 offen")
    a("K4_fin:")
    stamp_end(a, 4, 20)
    a("K4_exit:\ns_endpgm")
    return a
```

```python
S, D, H, DH, DF = 2048, 640, 32, 20, 1728
XN_OFF, XN_SZ = 0x0, 2621440
W1_OFF, W1_SZ = 0x280000, 16 * 153600
KV_OFF, KV_SZ = 0x4E0000, 32 * 3840
PQ_OFF, PQ_SZ = 0x500000, 64 * 16 * 5120
WO_OFF, WO_SZ = 0xA00000, 819200
H_OFF, H_SZ = 0xB00000, 2621440
ST_OFF, ST_SZ = 0xD80000, 64 * 16 * 32 * 8
CS_OFF, CS_SZ = 0xDC0000, 216 * 512
RS_OFF, RS_SZ = 0xDE0000, 2048 * 4
W3_OFF, W3_SZ = 0xE00000, 216 * 20480
W4_OFF, W4_SZ = 0x1240000, 40 * 54 * 1024
HH_OFF, HH_SZ = 0x1480000, 128 * 54 * 1024
STAMP_OFF = 0x2000000
LOG2E = 1.4426950408889634
```

```python
import sys, os
sys.path.insert(0, os.path.dirname(os.path.abspath(__file__)))
import common
from common import *
import k0, k1, k2, k3, k4

NAME = "sequential_preLN__linear_kernel_hedgehog__glu_gated_geglu__prompt"
def build(stamps=False, extra_empty=0):
    common.STAMPS = stamps
    ks = [("hh_prep_kernel", k0.gen_k0(2), k0.K0_GRID, k0.K0_LDS),
          ("hh_qkv_kernel", k1.gen_k1(), k1.K1_GRID, k1.K1_LDS),
          ("hh_attn_kernel", k2.gen_k2(), k2.K2_GRID, k2.K2_LDS),
          ("hh_up_kernel", k3.gen_k3(), k3.K3_GRID, k3.K3_LDS),
          (NAME + "_kernel", k4.gen_k4(), k4.K4_GRID, k4.K4_LDS)]
    head = open("cdna_kernels/" + NAME + ".s.ref").read().split("; Override launch")[0]
    out = head
    for n, a, g, l in ks:
        out += f"; @launch kernel={n} grid=({g},1,1) block=(256,1,1) lds={l}\n"
    for _ in range(extra_empty):
        out += "; @launch kernel=hh_empty_kernel grid=(256,1,1) block=(256,1,1) lds=0\n"
    out += '.amdgcn_target "amdgcn-amd-amdhsa--gfx950"\n.text\n'
    descs = ""
    if extra_empty:
        e = Asm(); e("v_mov_b32 v1, 0\ns_endpgm")
        ks.append(("hh_empty_kernel", e, 0, 0))
    for n, a, g, l in ks:
        b, d = kernel_text(n, a)
        out += b
        descs += ".p2align 6\n" + d
    out += "CODE_END:\n  s_endpgm\n"
    out += '.section .rodata,"a"\n' + descs
    return out

if __name__ == "__main__":
    open("cdna_kernels/" + NAME + ".s", "w").write(build())
    open("stamped.s", "w").write(build(stamps=True))
    if len(sys.argv) > 1:
        open("extra.s", "w").write(build(extra_empty=int(sys.argv[1])))
```

```python
import struct
from asmlib import Asm
from layout import *

def f32(x):
    return "0x%08x" % struct.unpack("<I", struct.pack("<f", x))[0]

def srd(a, d, base, off, size):
    if off:
        a(f"s_add_u32 s{d}, s{base}, {off}\ns_addc_u32 s{d+1}, s{base+1}, 0")
    else:
        a(f"s_mov_b32 s{d}, s{base}\ns_mov_b32 s{d+1}, s{base+1}")
    a(f"s_mov_b32 s{d+2}, {size}\ns_mov_b32 s{d+3}, 0x20000")

def srd_dyn(a, d, base, off, sreg, size):
    a(f"s_add_u32 s{d}, s{base}, {off}\ns_addc_u32 s{d+1}, s{base+1}, 0")
    a(f"s_add_u32 s{d}, s{d}, s{sreg}\ns_addc_u32 s{d+1}, s{d+1}, 0")
    a(f"s_mov_b32 s{d+2}, {size}\ns_mov_b32 s{d+3}, 0x20000")

STAMPS = False
NMARK = 10
def stamp_begin(a):
    a.nmark = 0
    if STAMPS:
        a("s_memrealtime s[96:97]\ns_mov_b32 s74, 0")
def mark(a):
    if STAMPS:
        assert a.nmark < NMARK
        a(f"s_memrealtime s[{72+2*a.nmark}:{73+2*a.nmark}]")
        a.nmark += 1
def stamp_end(a, kidx, ws):
    if not STAMPS: return
    a("s_waitcnt vmcnt(0) lgkmcnt(0)")
    a("s_memrealtime s[98:99]")
    a("s_mov_b64 exec, 1")
    a("s_waitcnt lgkmcnt(0)")
    a(f"""
    s_lshl_b32 s94, s2, 3
    s_add_u32 s94, s94, s95
    s_lshl_b32 s94, s94, 6
    s_add_u32 s94, s94, {STAMP_OFF + kidx * 0x80000}
    v_mov_b32 v1, s94
    v_mov_b32 v4, s96
    v_mov_b32 v5, s98
    """)
    for i in range(NMARK):
        a(f"v_mov_b32 v{6+i}, " + (f"s{72+2*i}" if i < a.nmark else "0"))
    for q in range(3):
        a(f"global_store_dwordx4 v1, v[{4+4*q}:{7+4*q}], s[{ws}:{ws+1}] offset:{16*q}")

def kernel_text(name, a, vgpr=None, agpr=None):
    nv = a.maxreg('v') + 1
    na = a.maxreg('a') + 1
    ns = a.maxreg('s') + 1
    acc = (nv + 3) // 4 * 4
    nfv = acc + na if na > 0 else nv
    body = f".globl {name}\n.p2align 8\n.type {name},@function\n{name}:\n" + a.text()
    desc = f""".amdhsa_kernel {name}
  .amdhsa_next_free_vgpr {nfv}
  .amdhsa_next_free_sgpr {max(ns, 8)}
  .amdhsa_accum_offset {acc}
  .amdhsa_group_segment_fixed_size 0
  .amdhsa_kernarg_size 88
  .amdhsa_user_sgpr_count 2
  .amdhsa_user_sgpr_kernarg_segment_ptr 1
  .amdhsa_system_sgpr_workgroup_id_x 1
  .amdhsa_float_denorm_mode_32 3
.end_amdhsa_kernel
"""
    return body, desc

class Loads:
    def __init__(self, a, lim):
        self.a, self.lim, self.q, self.t = a, lim, [], {}
    def add(self, text, tag=None, pre=None, post=None, gate=None):
        self.q.append((text, tag, pre, post, gate))
    def paced(self, gate=None):
        a = self.a
        if not self.q: return
        if a.vm_issued - a.vm_done >= 56: a.wait(vm=a.vm_issued - 32)
        old = self.lim; self.lim = 63; self.pump(1, gate); self.lim = old
    def pump(self, k=1, gate=None):
        a = self.a
        while k > 0 and self.q and a.vm_issued - a.vm_done < self.lim:
            text, tag, pre, post, g = self.q[0]
            if g is not None and (gate is None or g > gate): break
            self.q.pop(0)
            if pre: a(pre)
            t = a.vm(text)
            if post: a(post)
            if tag is not None: self.t[tag] = t
            k -= 1
    def need(self, tag, gate=None):
        while tag not in self.t:
            old = self.lim; self.lim = 63
            n = len(self.q); self.pump(1, gate); self.lim = old
            assert len(self.q) < n, "load gated but needed: %s" % str(tag)
        self.a.wait(vm=self.t[tag])

SV = 23
def mstamp_begin(a):
    a.nmark = 0; a.nspill = 0; a.mnames = []
    if STAMPS:
        a(f"v_mov_b32 v{SV}, 0")
        mmark(a, "start")
def mmark(a, name):
    if STAMPS:
        if a.nmark == NMARK: mspill(a)
        a(f"s_memrealtime s[{72+2*a.nmark}:{73+2*a.nmark}]")
        a.nmark += 1; a.mnames.append(name)
def mspill(a):
    if STAMPS and a.nmark:
        a.wait_all_lg()
        for i in range(a.nmark):
            a(f"v_writelane_b32 v{SV}, s{72+2*i}, {a.nspill}"); a.nspill += 1
        a.nmark = 0
def mstamp_end(a, kidx, ws):
    if not STAMPS: return
    a("s_waitcnt vmcnt(0) lgkmcnt(0)")
    mmark(a, "end")
    mspill(a)
    a(f"""
    s_mov_b64 exec, -1
    s_lshl_b32 s94, s2, 2
    s_add_u32 s94, s94, s95
    s_lshl_b32 s94, s94, 8
    s_add_u32 s94, s94, {STAMP_OFF + kidx * 0x80000}
    v_lshl_add_u32 v1, v2, 2, s94
    global_store_dword v1, v{SV}, s[{ws}:{ws+1}]
    """)
    open("marks.txt", "w").write("\n".join(a.mnames))
```

```python
from common import *
import common

N_W1, N_LN, N_W3, N_W4, N_WO = 192, 256, 216, 135, 40
K0_GRID = N_W1 + N_LN + N_W3 + N_W4 + N_WO
ROLES = [("W1", N_W1), ("LN", N_LN), ("W3", N_W3), ("W4", N_W4), ("WO", N_WO)]
K0_LDS = 20480

def reduce32(a, v, t):
    a(f"v_add_f32_dpp v{v}, v{v}, v{v} quad_perm:[1,0,3,2] row_mask:0xf bank_mask:0xf")
    a(f"v_add_f32_dpp v{v}, v{v}, v{v} quad_perm:[2,3,0,1] row_mask:0xf bank_mask:0xf")
    a(f"v_add_f32_dpp v{v}, v{v}, v{v} row_half_mirror row_mask:0xf bank_mask:0xf")
    a(f"v_add_f32_dpp v{v}, v{v}, v{v} row_mirror row_mask:0xf bank_mask:0xf")
    a(f"v_mov_b32 v{t}, v{v}")
    a(f"v_permlane16_swap_b32 v{v}, v{t}")
    a(f"v_add_f32 v{v}, v{v}, v{t}")

def gen_k0(npf):
    a = Asm()
    stamp_begin(a)
    a(f"""
    s_load_dwordx16 s[4:19], s[0:1], 0
    s_load_dwordx2 s[20:21], s[0:1], 80
    v_lshrrev_b32 v1, 6, v0
    v_and_b32 v2, 63, v0
    v_readfirstlane_b32 s95, v1
    s_cmp_ge_u32 s2, {K0_GRID}
    s_cbranch_scc1 K0_exit
    s_cmp_ge_u32 s2, 16
    s_cbranch_scc1 K0_nopf
    s_getpc_b64 s[22:23]
K0_pc:
    v_lshlrev_b32 v8, 7, v0
    v_mov_b32 v11, s23
    """)
    for n in range(npf):
        a(f"""
        v_cmp_gt_u32 vcc, CODE_END-K0_pc, v8
        s_and_saveexec_b64 s[40:41], vcc
        s_cbranch_execz K0_pf{n}
        v_add_co_u32 v10, vcc, s22, v8
        v_addc_co_u32 v11, vcc, 0, v11, vcc
        global_load_dword v120, v[10:11], off
K0_pf{n}:
        s_mov_b64 exec, s[40:41]
        v_mov_b32 v11, s23
        v_add_u32 v8, 0x8000, v8
        """)
    a.reset_counters()
    a(f"""
K0_nopf:
    s_waitcnt lgkmcnt(0)
    """)
    mark(a)
    a(f"""
    s_cmp_lt_u32 s2, {N_W1}
    s_cbranch_scc1 K0_W1
    s_sub_u32 s3, s2, {N_W1}
    s_cmp_lt_u32 s3, {N_LN}
    s_cbranch_scc1 K0_LN
    s_sub_u32 s3, s3, {N_LN}
    s_cmp_lt_u32 s3, {N_W3}
    s_cbranch_scc1 K0_W3
    s_sub_u32 s3, s3, {N_W3}
    s_cmp_lt_u32 s3, {N_W4}
    s_cbranch_scc1 K0_W4
    s_sub_u32 s3, s3, {N_W4}
    s_branch K0_WO
    """)
    a("K0_LN:")
    srd(a, 24, 4, 0, 2621440)
    a(f"""
    v_lshrrev_b32 v3, 5, v0
    v_and_b32 v4, 31, v0
    v_mul_u32_u24 v5, 1280, v3
    v_lshl_add_u32 v5, v4, 3, v5
    s_mul_i32 s40, s3, 10240
    """)
    for i in range(5):
        a(f"buffer_load_dwordx2 v[{10+2*i}:{11+2*i}], v5, s[24:27], s40 offen offset:{256*i} nt")
    srd(a, 28, 20, XN_OFF, XN_SZ)
    srd(a, 32, 20, KV_OFF, KV_SZ)
    a(f"""
    v_mov_b32 v44, 0
    v_mov_b32 v45, 0
    v_mov_b32 v46, 0
    v_mov_b32 v47, 0
    v_lshlrev_b32 v6, 4, v0
    s_mul_i32 s41, s3, 480
    v_cmp_gt_u32 vcc, 30, v0
    s_and_saveexec_b64 s[42:43], vcc
    s_cbranch_execz K0_LN_z
    buffer_store_dwordx4 v[44:47], v6, s[32:35], s41 offen
K0_LN_z:
    s_mov_b64 exec, s[42:43]
    """)
    srd(a, 36, 20, FL_OFF, FL_SZ)
    a(f"""
    s_mul_i32 s41, s3, 192
    v_cmp_gt_u32 vcc, 12, v0
    s_and_saveexec_b64 s[42:43], vcc
    s_cbranch_execz K0_LN_z2
    buffer_store_dwordx4 v[44:47], v6, s[36:39], s41 offen
K0_LN_z2:
    s_mov_b64 exec, s[42:43]
    """)
    a(f"""
    v_lshrrev_b32 v6, 1, v4
    v_xor_b32 v7, v3, v6
    v_and_b32 v7, 7, v7
    v_lshlrev_b32 v7, 4, v7
    v_lshl_add_u32 v7, v6, 7, v7
    v_and_b32 v6, 1, v4
    v_lshl_add_u32 v7, v6, 3, v7
    v_lshrrev_b32 v6, 3, v0
    v_xor_b32 v8, v0, v6
    v_and_b32 v8, 7, v8
    v_lshlrev_b32 v8, 4, v8
    v_lshl_add_u32 v8, v6, 7, v8
    v_and_b32 v9, 7, v0
    v_lshlrev_b32 v9, 4, v9
    v_lshl_add_u32 v9, v6, 9, v9
    s_lshr_b32 s44, s3, 2
    s_mul_i32 s44, s44, 40960
    s_and_b32 s45, s3, 3
    s_lshl_b32 s45, s45, 7
    s_add_u32 s44, s44, s45
    s_add_u32 s45, s44, 16384
    s_add_u32 s46, s44, 32768
    s_mov_b32 s47, 0xffff0000
    s_waitcnt vmcnt(0)
    """)
    a.nmark = 1; mark(a)
    F = 20
    for i in range(10):
        a(f"v_lshlrev_b32 v{F+2*i}, 16, v{10+i}")
        a(f"v_and_b32 v{F+2*i+1}, s47, v{10+i}")
    a(f"v_pk_add_f32 v[40:41], v[{F}:{F+1}], v[{F+2}:{F+3}]")
    for i in range(2, 10):
        a(f"v_pk_add_f32 v[40:41], v[40:41], v[{F+2*i}:{F+2*i+1}]")
    a("v_add_f32 v40, v40, v41")
    reduce32(a, 40, 41)
    a(f"v_mul_f32 v40, {f32(1.0/640)}, v40")
    for i in range(10):
        a(f"v_pk_add_f32 v[{F+2*i}:{F+2*i+1}], v[{F+2*i}:{F+2*i+1}], v[40:41] op_sel_hi:[1,0] neg_lo:[0,1] neg_hi:[0,1]")
    a(f"v_pk_mul_f32 v[42:43], v[{F}:{F+1}], v[{F}:{F+1}]")
    for i in range(1, 10):
        a(f"v_pk_fma_f32 v[42:43], v[{F+2*i}:{F+2*i+1}], v[{F+2*i}:{F+2*i+1}], v[42:43]")
    a("v_add_f32 v42, v42, v43")
    reduce32(a, 42, 43)
    a(f"v_mov_b32 v43, {f32(1e-5)}")
    a(f"v_fmac_f32 v43, {f32(1.0/640)}, v42")
    a("v_rsq_f32 v42, v43")
    for i in range(10):
        a(f"v_pk_mul_f32 v[{F+2*i}:{F+2*i+1}], v[{F+2*i}:{F+2*i+1}], v[42:43] op_sel_hi:[1,0]")
    for i in range(10):
        a(f"v_cvt_pk_bf16_f32 v{10+i}, v{F+2*i}, v{F+2*i+1}")
    for i in range(5):
        a(f"ds_write_b64 v7, v[{10+2*i}:{11+2*i}] offset:{2048*i}")
    a(f"""
    s_waitcnt lgkmcnt(0)
    s_barrier
    ds_read_b128 v[20:23], v8
    ds_read_b128 v[24:27], v8 offset:4096
    ds_read_b128 v[28:31], v8 offset:8192
    s_waitcnt lgkmcnt(2)
    buffer_store_dwordx4 v[20:23], v9, s[28:31], s44 offen
    s_waitcnt lgkmcnt(1)
    buffer_store_dwordx4 v[24:27], v9, s[28:31], s45 offen
    s_cmp_ge_u32 s95, 2
    s_cbranch_scc1 K0_end
    s_waitcnt lgkmcnt(0)
    buffer_store_dwordx4 v[28:31], v9, s[28:31], s46 offen
    s_branch K0_end
    """)
    a.reset_counters()
    a("K0_W1:")
    srd(a, 24, 6, 0, 640 * 3840)
    srd(a, 28, 8, 0, 32 * 800)
    a(f"""
    s_and_b32 s41, s2, 7
    s_lshr_b32 s40, s2, 6
    s_lshl_b32 s40, s40, 3
    s_add_u32 s41, s41, s40
    s_cmp_ge_u32 s41, 20
    s_cbranch_scc1 K0_end
    s_bfe_u32 s40, s2, 0x30003
    s_lshl_b32 s40, s40, 2
    s_add_u32 s40, s40, s95
    v_and_b32 v3, 31, v0
    v_bfe_u32 v4, v0, 5, 1
    v_and_b32 v5, 0x13, v3
    v_lshrrev_b32 v6, 1, v3
    v_and_b32 v6, 4, v6
    v_lshlrev_b32 v7, 1, v3
    v_and_b32 v7, 8, v7
    v_or3_b32 v5, v5, v6, v7
    v_mul_u32_u24 v5, 3840, v5
    v_lshl_add_u32 v6, v4, 4, v5
    v_lshl_add_u32 v7, v4, 28, v5
    s_mul_i32 s42, s41, {32*3840}
    s_mul_i32 s43, s40, 40
    s_add_u32 s42, s42, s43
    s_mul_i32 s43, s40, 800
    v_mul_u32_u24 v8, 320, v4
    v_lshl_add_u32 v8, v3, 1, v8
    """)
    U = 48
    for j in range(8):
        a(f"buffer_load_ushort v{U+j}, v8, s[28:31], s43 offen offset:{40*j}")
    for j in range(4):
        a(f"buffer_load_ushort v{U+8+j}, v8, s[28:31], s43 offen offset:{640+40*j}")
    tB = a.vm_issued
    A0 = [12, 20, 28]; A1 = [16, 24, 32]
    tA = []
    for sg in range(3):
        a(f"buffer_load_dwordx4 v[{A0[sg]}:{A0[sg]+3}], v6, s[24:27], s42 offen offset:{1280*sg}")
        tA.append(a.vm(f"buffer_load_dwordx2 v[{A1[sg]}:{A1[sg]+1}], v7, s[24:27], s42 offen offset:{1280*sg+32}"))
    for sg in range(3):
        a(f"v_mov_b32 v{A1[sg]+2}, 0\nv_mov_b32 v{A1[sg]+3}, 0")
    a(f"""
    v_add_u32 v9, 2, v3
    v_cmp_gt_u32 vcc, 18, v3
    v_cndmask_b32 v9, v9, v3, vcc
    v_bfe_u32 v10, v9, 2, 1
    v_mul_u32_u24 v10, 10, v10
    v_lshrrev_b32 v11, 3, v9
    v_lshl_add_u32 v10, v11, 2, v10
    v_and_b32 v11, 3, v9
    v_add_u32 v10, v10, v11
    v_lshlrev_b32 v11, 3, v4
    v_sub_u32 v10, v10, v11
    v_and_b32 v11, 1, v10
    v_lshlrev_b32 v11, 4, v11
    v_mov_b32 v9, 0x3f80
    v_lshlrev_b32 v11, v11, v9
    v_lshrrev_b32 v10, 1, v10
    """)
    for jj, cmpv in enumerate([0, 1, 2, 3, 8, 9]):
        a(f"v_cmp_eq_u32 vcc, {cmpv}, v10\nv_cndmask_b32 v{60+jj}, 0, v11, vcc")
    a("v_mov_b32 v66, 0\nv_mov_b32 v67, 0\nv_mov_b32 v42, 0\nv_mov_b32 v43, 0")
    for sg, sb in enumerate([40, 0, 20]):
        d = 68 + sg
        a(f"""
        v_add_u32 v9, {sb}, v3
        v_lshrrev_b32 v10, 4, v9
        v_lshlrev_b32 v{d}, 10, v10
        v_bfe_u32 v11, v9, 2, 2
        v_lshl_add_u32 v{d}, v11, 7, v{d}
        v_and_b32 v11, 3, v9
        v_lshl_add_u32 v{d}, v11, 4, v{d}
        v_lshl_add_u32 v{d}, v4, 9, v{d}
        """)
        if sg == 0:
            a(f"""
            v_cmp_eq_u32 vcc, 3, v10
            v_lshlrev_b32 v11, 7, v4
            v_cndmask_b32 v11, 0, v11, vcc
            v_sub_u32 v{d}, v{d}, v11
            """)
    srd(a, 32, 20, W1_OFF, W1_SZ)
    a(f"""
    s_lshr_b32 s44, s40, 1
    s_mul_i32 s44, s44, 153600
    s_mul_i32 s45, s41, 7680
    s_add_u32 s44, s44, s45
    s_and_b32 s45, s40, 1
    s_lshl_b32 s45, s45, 6
    s_add_u32 s44, s44, s45
    s_mov_b32 s46, {f32(LOG2E)}
    """)
    a.wait(vm=tB)
    for jj in range(6):
        a(f"v_lshl_or_b32 v{36+jj}, v{U+2*jj+1}, 16, v{U+2*jj}")
    a.nmark = 1; mark(a)
    Dr = [72, 88, 104]
    for sg in range(3):
        a.wait(vm=tA[sg])
        b0, b1 = (36, 40) if sg < 2 else (60, 64)
        a(f"v_mfma_f32_32x32x16_bf16 v[{Dr[sg]}:{Dr[sg]+15}], v[{A0[sg]}:{A0[sg]+3}], v[{b0}:{b0+3}], 0")
        a(f"v_mfma_f32_32x32x16_bf16 v[{Dr[sg]}:{Dr[sg]+15}], v[{A1[sg]}:{A1[sg]+3}], v[{b1}:{b1+3}], v[{Dr[sg]}:{Dr[sg]+15}]")
    a("v_cmp_gt_u32 vcc, 20, v3\ns_and_saveexec_b64 s[48:49], vcc")
    for sg in range(3):
        d = Dr[sg]
        if sg < 2:
            for r in range(0, 16, 2):
                a(f"v_pk_mul_f32 v[{d+r}:{d+r+1}], v[{d+r}:{d+r+1}], s[46:47] op_sel_hi:[1,0]")
        o = 12 + 8 * sg
        for r in range(8):
            a(f"v_cvt_pk_bf16_f32 v{o+r}, v{d+2*r}, v{d+2*r+1}")
        a(f"buffer_store_dwordx4 v[{o}:{o+3}], v{68+sg}, s[32:35], s44 offen")
        a(f"buffer_store_dwordx4 v[{o+4}:{o+7}], v{68+sg}, s[32:35], s44 offen offset:3840")
    a("s_branch K0_end")
    a.reset_counters()
    a("K0_W3:")
    a(f"""
    s_cmp_ge_u32 s3, 108
    s_cselect_b32 s40, 1, 0
    s_cselect_b32 s24, s16, s14
    s_cselect_b32 s25, s17, s15
    s_mov_b32 s26, {640*3456}
    s_mov_b32 s27, 0x20000
    s_mul_i32 s41, s40, 108
    s_sub_u32 s41, s3, s41
    s_and_b32 s42, s41, 3
    s_lshr_b32 s41, s41, 2
    v_lshrrev_b32 v3, 3, v2
    v_mul_u32_u24 v3, 3456, v3
    v_and_b32 v4, 7, v2
    v_lshl_add_u32 v3, v4, 4, v3
    s_mul_i32 s43, s42, 160
    s_mul_i32 s44, s95, 40
    s_add_u32 s43, s43, s44
    s_mul_i32 s43, s43, 3456
    s_lshl_b32 s44, s41, 7
    s_add_u32 s43, s43, s44
    s_mul_i32 s44, s95, 5120
    """)
    for n in range(5):
        a(f"s_add_u32 m0, s44, {1024*n}")
        a(f"buffer_load_dwordx4 v3, s[24:27], s43 offen nt lds")
        if n < 4: a(f"s_add_u32 s43, s43, {8*3456}")
    srd(a, 28, 20, W3_OFF, W3_SZ)
    srd(a, 32, 20, CS_OFF, CS_SZ)
    a(f"""
    v_lshrrev_b32 v5, 4, v2
    v_bfe_u32 v6, v2, 2, 2
    v_lshl_add_u32 v6, v5, 3, v6
    v_lshlrev_b32 v6, 7, v6
    v_and_b32 v7, 3, v2
    v_lshl_add_u32 v6, v7, 3, v6
    s_lshl_b32 s45, s95, 5
    v_add_u32 v6, s45, v6
    v_bfe_u32 v7, v2, 3, 1
    v_mul_u32_u24 v8, 20480, v7
    v_lshlrev_b32 v9, 9, v7
    v_lshl_add_u32 v9, v4, 4, v9
    v_lshl_add_u32 v8, v4, 4, v8
    v_lshrrev_b32 v7, 5, v2
    v_lshl_add_u32 v8, v7, 9, v8
    v_xor_b32 v7, s40, v5
    v_and_b32 v7, 1, v7
    v_lshl_add_u32 v8, v7, 7, v8
    s_lshl_b32 s45, s41, 3
    s_lshl_b32 s46, s95, 1
    s_add_u32 s45, s45, s46
    s_mul_i32 s46, s45, 20480
    s_mul_i32 s47, s42, 5120
    s_add_u32 s46, s46, s47
    s_lshl_b32 s47, s40, 8
    s_add_u32 s46, s46, s47
    s_add_u32 s48, s46, 4096
    s_lshl_b32 s45, s45, 9
    s_add_u32 s45, s45, s47
    s_lshr_b32 s47, s42, 1
    s_xor_b32 s47, s47, s40
    s_lshl_b32 s47, s47, 7
    s_add_u32 s45, s45, s47
    s_and_b32 s47, s42, 1
    s_lshl_b32 s47, s47, 3
    s_add_u32 s45, s45, s47
    v_mov_b32 v40, 0x3f803f80
    v_mov_b32 v41, 0x3f803f80
    v_mov_b32 v42, 0x3f803f80
    v_mov_b32 v43, 0x3f803f80
    s_waitcnt vmcnt(0)
    s_barrier
    """)
    a.nmark = 1; mark(a)
    a.reset_counters()
    t = []
    for ss in range(5):
        a(f"ds_read_b64_tr_b16 v[{12+4*ss}:{13+4*ss}], v6 offset:{4096*ss}")
        t.append(a.ds(f"ds_read_b64_tr_b16 v[{14+4*ss}:{15+4*ss}], v6 offset:{4096*ss+512}"))
    for ss in range(5):
        a.wait(lg=t[ss])
        a(f"v_mfma_f32_16x16x32_bf16 v[44:47], v[40:43], v[{12+4*ss}:{15+4*ss}], " + ("0" if ss == 0 else "v[44:47]"))
        if ss < 4:
            a(f"buffer_store_dwordx4 v[{12+4*ss}:{15+4*ss}], v8, s[28:31], s46 offen offset:{1024*ss}")
        else:
            a(f"buffer_store_dwordx4 v[{12+4*ss}:{15+4*ss}], v8, s[28:31], s48 offen")
    a(f"""
    v_cvt_pk_bf16_f32 v48, v44, v44
    v_lshlrev_b32 v50, 16, v48
    v_sub_f32 v50, v44, v50
    v_cvt_pk_bf16_f32 v49, v50, v50
    s_mov_b64 exec, 0xffff
    buffer_store_dwordx2 v[48:49], v9, s[32:35], s45 offen
    s_branch K0_end
    """)
    a.reset_counters()
    a("K0_W4:")
    srd(a, 24, 18, 0, 1728 * 1280)
    a(f"""
    s_lshl_b32 s40, s3, 2
    s_add_u32 s40, s40, s95
    s_mul_i32 s41, s40, 1214
    s_lshr_b32 s41, s41, 16
    s_mul_i32 s42, s41, 54
    s_sub_u32 s42, s40, s42
    v_lshrrev_b32 v3, 3, v2
    v_mul_u32_u24 v3, 1280, v3
    v_and_b32 v4, 7, v2
    v_lshl_add_u32 v3, v4, 4, v3
    s_mul_i32 s43, s42, {32*1280}
    s_lshl_b32 s44, s41, 7
    s_add_u32 s43, s43, s44
    s_lshl_b32 s44, s95, 12
    """)
    for n in range(4):
        a(f"s_add_u32 m0, s44, {1024*n}")
        a(f"buffer_load_dwordx4 v3, s[24:27], s43 offen nt lds")
        if n < 3: a(f"s_add_u32 s43, s43, {8*1280}")
    srd(a, 28, 20, W4_OFF, W4_SZ)
    a(f"""
    v_lshrrev_b32 v5, 4, v2
    v_bfe_u32 v6, v2, 2, 2
    v_lshl_add_u32 v6, v5, 3, v6
    v_lshlrev_b32 v6, 7, v6
    v_and_b32 v7, 3, v2
    v_lshl_add_u32 v6, v7, 3, v6
    v_add_u32 v6, s44, v6
    v_lshlrev_b32 v8, 4, v2
    s_mul_i32 s45, s41, 216
    s_add_u32 s45, s45, s42
    s_lshl_b32 s45, s45, 10
    s_waitcnt vmcnt(0)
    """)
    a.nmark = 1; mark(a)
    a.reset_counters()
    t = []
    for f in range(4):
        a(f"ds_read_b64_tr_b16 v[{12+4*f}:{13+4*f}], v6 offset:{32*f}")
        t.append(a.ds(f"ds_read_b64_tr_b16 v[{14+4*f}:{15+4*f}], v6 offset:{32*f+512}"))
    for f in range(4):
        a.wait(lg=t[f])
        a(f"buffer_store_dwordx4 v[{12+4*f}:{15+4*f}], v8, s[28:31], s45 offen")
        if f < 3: a(f"s_add_u32 s45, s45, {54*1024}")
    a("s_branch K0_end")
    a.reset_counters()
    a("K0_WO:")
    srd(a, 24, 10, 0, 640 * 1280)
    a(f"""
    s_and_b32 s42, s3, 3
    s_lshr_b32 s41, s3, 2
    v_lshrrev_b32 v3, 3, v2
    v_mul_u32_u24 v3, 1280, v3
    v_and_b32 v4, 7, v2
    v_lshl_add_u32 v3, v4, 4, v3
    s_mul_i32 s43, s42, 160
    s_mul_i32 s44, s95, 40
    s_add_u32 s43, s43, s44
    s_mul_i32 s43, s43, 1280
    s_lshl_b32 s44, s41, 7
    s_add_u32 s43, s43, s44
    s_mul_i32 s44, s95, 5120
    """)
    for n in range(5):
        a(f"s_add_u32 m0, s44, {1024*n}")
        a(f"buffer_load_dwordx4 v3, s[24:27], s43 offen nt lds")
        if n < 4: a(f"s_add_u32 s43, s43, {8*1280}")
    srd(a, 28, 20, WO_OFF, WO_SZ)
    a(f"""
    s_lshr_b32 s45, s95, 1
    s_and_b32 s46, s95, 1
    v_lshrrev_b32 v5, 5, v2
    v_mul_u32_u24 v5, 10, v5
    v_bfe_u32 v6, v2, 2, 2
    v_add_u32 v5, v5, v6
    v_lshlrev_b32 v5, 7, v5
    v_bfe_u32 v7, v2, 4, 1
    v_lshl_add_u32 v5, v7, 5, v5
    v_and_b32 v7, 1, v2
    v_lshl_add_u32 v5, v7, 4, v5
    v_bfe_u32 v7, v2, 1, 1
    v_lshl_add_u32 v5, v7, 3, v5
    s_mul_i32 s47, s45, {80*128}
    s_lshl_b32 s48, s46, 6
    s_add_u32 s47, s47, s48
    v_add_u32 v5, s47, v5
    v_lshrrev_b32 v6, 1, v6
    v_mul_u32_u24 v6, 1280, v6
    v_add_u32 v6, v5, v6
    v_lshlrev_b32 v8, 4, v2
    s_lshl_b32 s47, s41, 1
    s_add_u32 s47, s47, s46
    s_mul_i32 s48, s47, 205
    s_lshr_b32 s48, s48, 10
    s_mul_i32 s49, s48, 5
    s_sub_u32 s49, s47, s49
    s_lshl_b32 s48, s48, 2
    s_add_u32 s48, s48, s42
    s_mul_i32 s48, s48, 50
    s_mul_i32 s49, s49, 10
    s_add_u32 s48, s48, s49
    s_mul_i32 s49, s45, 5
    s_add_u32 s48, s48, s49
    s_lshl_b32 s48, s48, 10
    s_add_u32 s49, s48, 4096
    s_waitcnt vmcnt(0)
    s_barrier
    """)
    a.nmark = 1; mark(a)
    a.reset_counters()
    t = []
    for sp in range(5):
        for rho in range(2):
            p0 = 8 * sp + 4 * rho
            av = 6 if p0 in (8, 28) else 5
            tk = a.ds(f"ds_read_b64_tr_b16 v[{12+4*sp+2*rho}:{13+4*sp+2*rho}], v{av} offset:{(p0 + 10*(p0//10))*128}")
        t.append(tk)
    for sp in range(5):
        a.wait(lg=t[sp])
        if sp < 4:
            a(f"buffer_store_dwordx4 v[{12+4*sp}:{15+4*sp}], v8, s[28:31], s48 offen offset:{1024*sp}")
        else:
            a(f"buffer_store_dwordx4 v[{12+4*sp}:{15+4*sp}], v8, s[28:31], s49 offen")
    a("K0_end:")
    a.nmark = 2; mark(a)
    stamp_end(a, 0, 20)
    a("K0_exit:\ns_endpgm")
    return a
```

```python
S, D, H, DH, DF = 2048, 640, 32, 20, 1728
XN_OFF, XN_SZ = 0x0, 2621440
W1_OFF, W1_SZ = 0x280000, 16 * 153600
KV_OFF, KV_SZ = 0x4E0000, 32 * 3840
PQ_OFF, PQ_SZ = 0x500000, 64 * 16 * 5120
WO_OFF, WO_SZ = 0xA00000, 819200
H_OFF, H_SZ = 0xB00000, 2621440
ST_OFF, ST_SZ = 0xD80000, 64 * 16 * 32 * 8
CS_OFF, CS_SZ = 0xDC0000, 216 * 512
RS_OFF, RS_SZ = 0xDE0000, 4 * 2048 * 4
FL_OFF, FL_SZ = 0xDF0000, 4 * 16384
F2_O, F3_O, F4_O = 0, 16384, 32768
F1A_O, F1B_O, F5_O, F6_O = 49152, 53248, 57344, 58368
W3_OFF, W3_SZ = 0xE00000, 216 * 20480
W4_OFF, W4_SZ = 0x1240000, 40 * 54 * 1024
HH_OFF, HH_SZ = 0x1480000, 128 * 54 * 1024
STAMP_OFF = 0x2000000
LOG2E = 1.4426950408889634
```

```python
from common import *
from asmlib import Ins, need
import common, math, p0

GRID = 256
LDS = 160 * 1024
C0 = -2.0 * math.sqrt(2.0 / math.pi) * LOG2E
C1 = C0 * 0.044715
SC = "sc1"
POLL_MAX = 20000
P1_PACE = 7

class Paced:
    def __init__(self, a, L, n, gate=None):
        self.a, self.L, self.n, self.c, self.gate = a, L, n, 0, gate
    def __call__(self, text):
        for line in text.strip().split("\n"):
            if not line.strip(): continue
            self.a(line)
            self.c += 1
            if self.c % self.n == 0: self.L.paced(self.gate)

def poll(a, name, voff, soff, tmp):
    a(f"""
    s_mov_b32 s92, 0
{name}:
    buffer_load_dword v{tmp}, v{voff}, s[8:11], {soff} offen sc1
    s_add_u32 s92, s92, 1
    s_cmp_gt_u32 s92, {POLL_MAX}
    s_cbranch_scc1 {name}_go
    s_waitcnt vmcnt(0)
    v_cmp_ne_u32 vcc, s93, v{tmp}
    s_nop 4
    s_cbranch_vccnz {name}
{name}_go:
    s_waitcnt vmcnt(0)
    """)
    a.vm_done = a.vm_issued

def signal(a, soff, tmp):
    a(f"""
    s_mov_b64 exec, 1
    v_mov_b32 v{tmp}, s93
    v_mov_b32 v{tmp+1}, 0
    buffer_store_dword v{tmp}, v{tmp+1}, s[8:11], {soff} offen sc0 sc1
    s_mov_b64 exec, -1
    """)

def softmax_pair(a, P, E, O, tmp):
    mx, mn = tmp, tmp + 2
    a(f"v_max3_f32 v{mx}, v{P}, v{P+1}, v{P+2}")
    a(f"v_min3_f32 v{mn}, v{P}, v{P+1}, v{P+2}")
    for i in range(3, 19, 2):
        a(f"v_max3_f32 v{mx}, v{mx}, v{P+i}, v{P+i+1}")
        a(f"v_min3_f32 v{mn}, v{mn}, v{P+i}, v{P+i+1}")
    a(f"v_max_f32 v{mx}, v{mx}, v{P+19}")
    a(f"v_min_f32 v{mn}, v{mn}, v{P+19}")
    for i in range(0, 20, 2):
        a(f"v_pk_add_f32 v[{E+i}:{E+i+1}], v[{P+i}:{P+i+1}], v[{mx}:{mx+1}] op_sel_hi:[1,0] neg_lo:[0,1] neg_hi:[0,1]")
        a(f"v_pk_add_f32 v[{E+20+i}:{E+21+i}], v[{P+i}:{P+i+1}], v[{mn}:{mn+1}] op_sel_hi:[1,0] neg_lo:[1,0] neg_hi:[1,0]")
    for i in range(40):
        a(f"v_exp_f32 v{E+i}, v{E+i}")
    sp, sn = tmp, tmp + 2
    a(f"v_pk_add_f32 v[{sp}:{sp+1}], v[{E}:{E+1}], v[{E+2}:{E+3}]")
    a(f"v_pk_add_f32 v[{sn}:{sn+1}], v[{E+20}:{E+21}], v[{E+22}:{E+23}]")
    for i in range(4, 20, 2):
        a(f"v_pk_add_f32 v[{sp}:{sp+1}], v[{sp}:{sp+1}], v[{E+i}:{E+i+1}]")
        a(f"v_pk_add_f32 v[{sn}:{sn+1}], v[{sn}:{sn+1}], v[{E+20+i}:{E+21+i}]")
    a(f"v_add_f32 v{sp}, v{sp}, v{sp+1}")
    a(f"v_add_f32 v{sn}, v{sn}, v{sn+1}")
    a(f"v_rcp_f32 v{sp}, v{sp}")
    a(f"v_rcp_f32 v{sn}, v{sn}")
    for i in range(0, 20, 2):
        a(f"v_pk_mul_f32 v[{E+i}:{E+i+1}], v[{E+i}:{E+i+1}], v[{sp}:{sp+1}] op_sel_hi:[1,0]")
        a(f"v_pk_mul_f32 v[{E+20+i}:{E+21+i}], v[{E+20+i}:{E+21+i}], v[{sn}:{sn+1}] op_sel_hi:[1,0]")
    for i in range(20):
        a(f"v_cvt_pk_bf16_f32 v{O+i}, v{E+2*i}, v{E+2*i+1}")

def map_p1(a, rb, hp, t):
    a(f"""
    s_bfe_u32 s{rb}, s2, 0x20001
    s_lshl_b32 s{rb}, s{rb}, 2
    s_bfe_u32 s{t}, s2, 0x20003
    s_add_u32 s{rb}, s{rb}, s{t}
    s_and_b32 s{hp}, s2, 1
    s_lshl_b32 s{hp}, s{hp}, 3
    s_lshr_b32 s{t}, s2, 5
    s_add_u32 s{hp}, s{hp}, s{t}
    """)
def map_p2(a, tb, nb, t):
    a(f"""
    s_and_b32 s{tb}, s2, 7
    s_lshl_b32 s{tb}, s{tb}, 3
    s_bfe_u32 s{t}, s2, 0x30003
    s_add_u32 s{tb}, s{tb}, s{t}
    s_lshr_b32 s{nb}, s2, 6
    """)
def map_p3(a, rb, cb, t):
    a(f"""
    s_bfe_u32 s{rb}, s2, 0x10002
    s_lshl_b32 s{rb}, s{rb}, 3
    s_bfe_u32 s{t}, s2, 0x30003
    s_add_u32 s{rb}, s{rb}, s{t}
    s_and_b32 s{cb}, s2, 3
    s_lshl_b32 s{cb}, s{cb}, 2
    s_lshr_b32 s{t}, s2, 6
    s_add_u32 s{cb}, s{cb}, s{t}
    """)
def map_p4(a, rb, nb, t):
    a(f"""
    s_bfe_u32 s{rb}, s2, 0x20001
    s_lshl_b32 s{rb}, s{rb}, 3
    s_bfe_u32 s{t}, s2, 0x30003
    s_add_u32 s{rb}, s{rb}, s{t}
    s_and_b32 s{nb}, s2, 1
    s_lshl_b32 s{nb}, s{nb}, 2
    s_lshr_b32 s{t}, s2, 6
    s_add_u32 s{nb}, s{nb}, s{t}
    """)

def w3_dma(L, T, gate=None):
    reg = [81920, 122880, 0, 40960, 81920, 122880, 0][T]
    sr = 12 if T < 2 else (16 if T < 6 else 68)
    for c in range(10):
        grp = 0 if c < 4 else (4 if c < 8 else 8)
        L.add(f"buffer_load_dwordx4 v3, s[{sr}:{sr+3}], m0 offen offset:{1024*(c-grp)} {SC} lds", gate=gate,
              pre=f"s_add_u32 m0, s3, {reg + 1024*c}" if c == grp else None, tag=('W3', T) if c == 9 else None)

def check_flags(a, name, regs, voff, soff, wide):
    def test(x):
        if wide:
            x(f"v_xor_b32 v{regs}, s93, v{regs}\nv_xor_b32 v{regs+1}, s93, v{regs+1}\nv_xor_b32 v{regs+2}, s93, v{regs+2}\nv_xor_b32 v{regs+3}, s93, v{regs+3}")
            x(f"v_or3_b32 v{regs}, v{regs}, v{regs+1}, v{regs+2}\nv_or_b32 v{regs}, v{regs}, v{regs+3}\nv_cmp_ne_u32 vcc, 0, v{regs}")
        else:
            x(f"v_cmp_ne_u32 vcc, s93, v{regs}")
    test(a)
    a(f"s_mov_b32 s92, 0\ns_nop 3\ns_cbranch_vccz {name}_ok")
    b = Asm()
    b(f"{name}:")
    b(f"buffer_load_dwordx4 v[{regs}:{regs+3}], v{voff}, s[8:11], {soff} offen sc1" if wide else f"buffer_load_dword v{regs}, v{voff}, s[8:11], {soff} offen sc1")
    b(f"s_add_u32 s92, s92, 1\ns_waitcnt vmcnt(0)\ns_cmp_gt_u32 s92, {POLL_MAX}\ns_cbranch_scc1 {name}_ok")
    test(b)
    b(f"s_nop 4\ns_cbranch_vccnz {name}")
    a.ins += b.ins
    a(f"{name}_ok:")

def gen_mega():
    a = Asm()
    a(f"""
    s_memrealtime s[98:99]
    s_load_dwordx2 s[20:21], s[0:1], 80
    s_load_dwordx2 s[4:5], s[0:1], 0
    s_load_dwordx4 s[12:15], s[0:1], 8
    s_load_dwordx2 s[16:17], s[0:1], 24
    s_load_dwordx2 s[6:7], s[0:1], 64
    s_load_dwordx2 s[18:19], s[0:1], 72
    v_lshrrev_b32 v1, 6, v0
    v_and_b32 v2, 63, v0
    v_readfirstlane_b32 s95, v1
    s_cmp_ge_u32 s2, {GRID}
    s_cbranch_scc1 M_exit
    """)
    mstamp_begin(a)
    a(f"""
    v_lshlrev_b32 v3, 4, v2
    v_lshrrev_b32 v4, 5, v2
    v_and_b32 v5, 31, v2
    s_mul_i32 s3, s95, 10240
    """)
    map_p1(a, 42, 43, 40)
    p0.p0(a, None, None, 2)
    a(f"""
    s_load_dwordx4 s[12:15], s[0:1], 40
    s_load_dwordx2 s[16:17], s[0:1], 56
    s_lshl_b32 s44, s42, 2
    s_add_u32 s44, s44, s95
    s_mul_i32 s45, s44, 40960
    s_mul_i32 s46, s43, 153600
    s_lshl_b32 s47, s95, 12
    s_lshl_b32 s48, s95, 11
    """)
    srd(a, 24, 20, XN_OFF, XN_SZ)
    srd_dyn(a, 28, 20, W1_OFF, 46, 153600)
    a("s_waitcnt lgkmcnt(0)")
    mspill(a)
    poll(a, "M_poll1", 12, "0", 9)
    mmark(a, "p1_sync")
    L = Loads(a, 24)
    for n in range(10):
        cnt = 4 if n < 9 else 2
        L.add(f"buffer_load_dwordx4 a[{16*n}:{16*n+3}], v3, s[24:27], s45 offen {SC}", pre=f"s_add_u32 m0, s{47 if n < 9 else 48}, {16384*n}")
        for c in range(cnt):
            L.add(f"buffer_load_dwordx4 v3, s[28:31], m0 offen offset:{1024*c} {SC} lds")
        for c in range(1, 4):
            L.add(f"buffer_load_dwordx4 a[{16*n+4*c}:{16*n+4*c+3}], v3, s[24:27], s45 offen offset:{1024*c} {SC}",
                  tag=n if c == 3 else None, post="s_add_u32 s45, s45, 4096" if c == 3 and n < 9 else None)
    L.pump(16)
    a(f"""
    v_min_u32 v62, 39, v2
    v_lshlrev_b32 v62, 2, v62
    s_mov_b32 s49, {F6_O}
    s_lshl_b32 s40, s2, 2
    s_add_u32 s40, s40, {F6_O - 4*216}
    s_cmp_lt_u32 s2, 216
    s_cselect_b32 s40, 0x1000000, s40
    s_cmp_lg_u32 s95, 0
    s_cselect_b32 s50, 0x1000000, s40
    """)
    L.add("buffer_load_dword v63, v62, s[8:11], s49 offen sc1", tag='f6')
    srd(a, 64, 20, WO_OFF, WO_SZ)
    map_p2(a, 100, 101, 40)
    a(f"""
    s_lshl_b32 s22, s101, 2
    s_add_u32 s22, s22, s95
    s_mul_i32 s22, s22, 51200
    """)
    for sl in (4, 0, 1, 2, 3):
        for k in range(10):
            i = 10 * sl + k
            pre = None
            if k == 0:
                pre = f"""s_add_u32 s23, s95, {sl}
                s_sub_u32 s63, s23, 5
                s_cmp_ge_u32 s23, 5
                s_cselect_b32 s23, s63, s23
                s_mul_i32 s23, s23, 10240
                s_add_u32 s23, s23, s22"""
            elif k % 4 == 0:
                pre = "s_add_u32 s23, s23, 4096"
            L.add(f"buffer_load_dwordx4 a[{4*i}:{4*i+3}], v3, s[64:67], s23 offen offset:{1024*(k%4)} {SC}", pre=pre,
                  gate=(i if i < 40 else 0), tag=('WO', i))
    a(f"""
    v_lshlrev_b32 v6, 7, v4
    v_sub_u32 v6, v3, v6
    v_add_u32 v7, {16*3840}, v3
    v_add_u32 v8, {16*3840}, v6
    v_add_u32 v9, {32*3840}, v3
    v_add_u32 v10, {32*3840}, v6
    """)
    ACC = 64; WF = 24
    def rd(s, T):
        win = s // 16
        base = [(3, 6), (7, 8), (9, 10)][win][1 if T == 3 else 0]
        off = (s - 16 * win) * 3840 + T * 1024
        r = WF + 4 * ((s % 2) * 4 + T)
        return a.ds(f"ds_read_b128 v[{r}:{r+3}], v{base} offset:{off}")
    tR = {}
    L.need(0)
    a("s_barrier")
    mmark(a, "p1_first")
    signal(a, "s50", 12)
    for T in range(4): tR[(0, T)] = rd(0, T)
    for s in range(40):
        nxt = s + 1
        if nxt < 40 and nxt % 4 == 0:
            L.need(nxt // 4)
            a("s_barrier")
        if s == 36:
            L.need('f6')
            check_flags(a, "M_f6", 63, 62, "s49", False)
        for T in range(4):
            if nxt < 40: tR[(nxt, T)] = rd(nxt, T)
            if T % 2 == 0: a.wait(lg=tR[(s, T + 1)])
            r = WF + 4 * ((s % 2) * 4 + T)
            d = ACC + 16 * T
            a(f"v_mfma_f32_32x32x16_bf16 v[{d}:{d+15}], v[{r}:{r+3}], a[{4*s}:{4*s+3}], " + ("0" if s == 0 else f"v[{d}:{d+15}]"))
            if T % 2 == 0:
                if s >= 36: L.paced(gate=s - 1)
                else: L.pump(1, gate=-1)
    srd(a, 32, 20, KV_OFF, KV_SZ)
    srd(a, 36, 20, PQ_OFF, PQ_SZ)
    a(f"""
    s_lshl_b32 s50, s95, 5
    v_add_u32 v11, s50, v5
    v_mul_u32_u24 v11, 272, v11
    v_lshl_add_u32 v11, v4, 7, v11
    s_barrier
    """)
    mmark(a, "p1_loop")
    LB3, LB4 = 81920, 102400
    p0.rt_issue(a, LB3, LB4)
    XL = 65536
    srd(a, 68, 4, 0, 2621440)
    a(f"""
    s_mul_i32 s40, s100, {32*1280}
    s_mul_i32 s41, s101, 320
    s_add_u32 s40, s40, s41
    s_lshl_b32 s41, s95, 10
    s_mov_b32 s45, 3277
    """)
    for n in range(3):
        a(f"""
        v_add_u32 v8, {256*n}, v0
        v_min_u32 v8, 639, v8
        v_mul_u32_u24 v9, s45, v8
        v_lshrrev_b32 v9, 16, v9
        v_mul_u32_u24 v9, {1280-320}, v9
        v_lshl_add_u32 v8, v8, 4, v9
        s_add_u32 m0, s41, {XL + 4096*n}
        buffer_load_dwordx4 v8, s[68:71], s40 offen nt lds
        """)
    pa = Paced(a, L, P1_PACE, gate=99)
    E, O, TMP, VP = 128, 168, 12, 188
    for i in range(9):
        a(f"v_cvt_pk_bf16_f32 v{VP+i}, v{84+2*i}, v{85+2*i}")
    a(f"v_mov_b32 v{VP+9}, 0x3f80\nv_cvt_pk_bf16_f32 v{VP+10}, v102, v103\nv_mov_b32 v{VP+11}, 0x3f80")
    for c in range(3):
        a(f"ds_write_b128 v11, v[{VP+4*c}:{VP+4*c+3}] offset:{80+16*c}")
    softmax_pair(pa, 64, E, O, TMP)
    for c in range(5):
        a(f"ds_write_b128 v11, v[{O+4*c}:{O+4*c+3}] offset:{16*c}")
    a(f"""
    v_bfe_u32 v56, v2, 2, 2
    v_lshlrev_b32 v56, 2, v56
    v_lshl_add_u32 v56, v4, 1, v56
    v_mul_u32_u24 v56, 272, v56
    v_bfe_u32 v57, v2, 4, 1
    v_lshl_add_u32 v56, v57, 5, v56
    v_and_b32 v57, 3, v2
    v_lshl_add_u32 v56, v57, 3, v56
    s_lshr_b32 s51, s95, 1
    s_and_b32 s52, s95, 1
    s_lshl_b32 s53, s51, 7
    v_add_u32 v56, s53, v56
    s_mul_i32 s53, s52, 40
    v_add_u32 v57, s53, v56
    """)
    a.wait_all_lg()
    a("s_barrier")
    mmark(a, "p1_ksm")
    tk = []
    FA, FB, KD = 128, 200, 24
    def kvm(k2):
        a.wait(lg=tk[k2])
        a(f"v_mfma_f32_32x32x16_bf16 v[{KD}:{KD+15}], v[{FA+4*k2}:{FA+4*k2+3}], v[{FB+4*k2}:{FB+4*k2+3}], " + ("0" if k2 == 0 else f"v[{KD}:{KD+15}]"))
    for ks in range(8):
        for rho in range(2):
            off = (16 * ks + rho) * 272
            a(f"ds_read_b64_tr_b16 v[{FA+4*ks+2*rho}:{FA+4*ks+2*rho+1}], v57 offset:{off}")
            t = a.ds(f"ds_read_b64_tr_b16 v[{FB+4*ks+2*rho}:{FB+4*ks+2*rho+1}], v56 offset:{off+80}")
        tk.append(t)
        if ks >= 2: kvm(ks - 2)
    kvm(6); kvm(7)
    a(f"""
    s_add_u32 s53, s47, 40960
    v_mul_u32_u24 v58, 384, v4
    v_lshl_add_u32 v58, v5, 4, v58
    v_add_u32 v58, s53, v58
    v_lshl_add_u32 v59, v2, 2, s53
    v_lshlrev_b32 v60, 2, v2
    s_lshl_b32 s54, s43, 1
    s_add_u32 s54, s54, s51
    s_mul_i32 s54, s54, 3840
    s_mul_i32 s55, s52, 1920
    s_add_u32 s54, s54, s55
    v_cmp_gt_u32 vcc, 24, v5
    s_and_saveexec_b64 s[56:57], vcc
    """)
    for c in range(3):
        a(f"ds_write_b128 v58, v[{KD+4*c}:{KD+3+4*c}] offset:{768*c}")
    a("s_mov_b64 exec, s[56:57]")
    a.wait_all_lg()
    tk = [a.ds(f"ds_read_b32 v{40+i}, v59 offset:{256*i}") for i in range(8)]
    if a.vm_issued - a.vm_done > 40: a.wait(vm=a.vm_issued - 24)
    for i in range(8):
        a.wait(lg=tk[i])
        if i == 7: a("s_mov_b32 exec_hi, 0")
        a(f"buffer_atomic_add_f32 v{40+i}, v60, s[32:35], s54 offen offset:{256*i}")
    a("s_mov_b64 exec, -1")
    mmark(a, "p1_atom")
    softmax_pair(a, 104, E, O, TMP)
    a(f"""
    v_lshlrev_b32 v61, 4, v5
    v_lshl_add_u32 v61, v4, 11, v61
    s_lshl_b32 s58, s44, 4
    s_add_u32 s58, s58, s43
    s_mul_i32 s58, s58, 5120
    s_add_u32 s59, s58, 4096
    """)
    for c in range(4):
        a(f"buffer_store_dwordx4 v[{O+4*c}:{O+4*c+3}], v61, s[36:39], s58 offen offset:{512*c} {SC}")
    tst = a.vm(f"buffer_store_dwordx4 v[{O+16}:{O+19}], v3, s[36:39], s59 offen {SC}")
    mmark(a, "p1_qst")
    a(f"""
    s_lshl_b32 s40, s43, 4
    s_add_u32 s40, s40, s42
    s_lshl_b32 s40, s40, 6
    """)
    a.wait(vm=tst)
    a("s_barrier")
    a("s_cmp_lg_u32 s95, 0\ns_cbranch_scc1 M_s2")
    signal(a, "s40", 8)
    a("M_s2:")
    mmark(a, "p1_sig")
    a.vm_done = a.vm_issued
    L.lim = 60; L.pump(99, gate=99); assert not L.q
    p0.rt_finish(a, LB3, LB4)
    mmark(a, "p1_rt")
    map_p3(a, 60, 61, 40)
    a(f"""
    s_mul_i32 s62, s61, 27
    s_lshr_b32 s62, s62, 1
    s_mul_i32 s40, s62, 20480
    """)
    srd_dyn(a, 12, 20, W3_OFF - 81920, 40, 163840)
    srd_dyn(a, 16, 20, W3_OFF + 81920, 40, 163840)
    srd_dyn(a, 68, 20, W3_OFF + 245760, 40, 40960)
    srd(a, 24, 20, KV_OFF, KV_SZ)
    srd(a, 28, 20, PQ_OFF, PQ_SZ)
    a(f"""
    v_min_u32 v6, 23, v5
    v_lshlrev_b32 v6, 4, v6
    v_mul_u32_u24 v7, 3840, v4
    v_add_u32 v7, v7, v6
    v_mul_u32_u24 v8, 768, v4
    v_add_u32 v6, v8, v6
    s_mul_i32 s44, s95, {8*3840}
    s_lshl_b32 s45, s100, 4
    s_lshl_b32 s46, s95, 2
    s_add_u32 s45, s45, s46
    s_mul_i32 s45, s45, 5120
    v_lshlrev_b32 v8, 6, v2
    s_lshl_b32 s46, s95, 12
    """)
    for r in range(12, 20): a(f"v_mov_b32 v{r}, 0")
    mspill(a)
    poll(a, "M_poll2", 8, "s46", 9)
    mmark(a, "p2_sync")
    KVB = [176, 216, 96, 136]
    def pq(p, f):
        if p == 0: return f"v[{76+4*f}:{79+4*f}]"
        i = 5 * (p - 1) + f
        return f"a[{200+4*i}:{203+4*i}]" if i < 14 else "v[8:11]"
    L = Loads(a, 30)
    for p in range(4):
        b = KVB[p]
        for hh in range(2):
            for u in range(2):
                for e in range(2):
                    r = b + 16 * hh + 8 * u + 4 * e
                    L.add(f"buffer_load_dwordx4 v[{r}:{r+3}], v6, s[24:27], s44 offen offset:{(4*u+e)*384} {SC}",
                          post="s_add_u32 s44, s44, 3840" if hh == 1 and u == 1 and e == 1 else None)
            if hh == 0:
                for e in range(2):
                    r = b + 32 + 4 * e
                    L.add(f"buffer_load_dwordx4 v[{r}:{r+3}], v7, s[24:27], s44 offen offset:{(8+e)*384} {SC}",
                          post="s_add_u32 s44, s44, 3840" if e == 1 else None)
        for f in range(4):
            L.add(f"buffer_load_dwordx4 {pq(p, f)}, v3, s[28:31], s45 offen offset:{1024*f} {SC}", post="s_add_u32 s45, s45, 4096" if f == 3 else None)
        L.add(f"buffer_load_dwordx4 {pq(p, 4)}, v3, s[28:31], s45 offen {SC}", post="s_add_u32 s45, s45, 1024", tag=p)
    L.add(f"buffer_load_dwordx4 v[128:131], v3, s[8:11], s49 offen sc1", tag='f5', gate=2)
    w3_dma(L, 0, 3); w3_dma(L, 1, 3)
    L.pump(16)
    a(f"""
    s_mov_b32 s49, {F5_O}
    s_lshl_b32 s40, s2, 2
    s_add_u32 s40, s40, {F5_O}
    s_cmp_lg_u32 s95, 0
    s_cselect_b32 s40, 0x1000000, s40
    """)
    a("s_barrier")
    signal(a, "s40", 24)
    L.pump(99)
    a(f"""
    v_mul_u32_u24 v20, 320, v5
    v_lshl_add_u32 v20, v4, 4, v20
    s_lshl_b32 s47, s95, 6
    s_add_u32 s47, s47, {XL}
    v_add_u32 v21, s47, v20
    v_mul_u32_u24 v20, 320, v5
    v_lshl_add_u32 v20, v4, 3, v20
    s_lshl_b32 s47, s95, 4
    s_add_u32 s47, s47, {XL + 256}
    v_add_u32 v20, s47, v20
    s_mov_b32 s54, 0xffff0000
    """)
    OB, OD, AC = 56, [24, 40], 176
    def mainmm(sl, k, first):
        d = AC + 16 * sl
        i = 10 * sl + k
        a(f"v_mfma_f32_32x32x16_bf16 v[{d}:{d+15}], a[{4*i}:{4*i+3}], v[{OB+4*k}:{OB+4*k+3}], " + ("0" if first else f"v[{d}:{d+15}]"))
    for p in range(4):
        L.need(p)
        if p in (0, 3): mmark(a, f"p2_pair{p}")
        pa = Paced(a, L, 3)
        b = KVB[p]
        for hh in range(2):
            for u in range(2):
                r = b + 16 * hh + 8 * u
                for j in range(4):
                    pa(f"v_cvt_pk_bf16_f32 v{r+j}, v{r+2*j}, v{r+2*j+1}")
        a("s_mov_b32 exec_hi, 0")
        for j in range(4): a(f"v_cvt_pk_bf16_f32 v{12+j}, v{b+32+2*j}, v{b+33+2*j}")
        a("s_mov_b32 exec_hi, -1\ns_mov_b32 exec_lo, 0")
        for j in range(4): a(f"v_cvt_pk_bf16_f32 v{16+j}, v{b+32+2*j}, v{b+33+2*j}")
        a("s_mov_b32 exec_lo, -1")
        if p == 2:
            L.lim = 60; L.pump(99, gate=2)
        for hh in range(2):
            d = OD[hh]
            for u in range(2):
                r = b + 16 * hh + 8 * u
                a(f"v_mfma_f32_32x32x16_bf16 v[{d}:{d+15}], v[{r}:{r+3}], {pq(p, 2*hh+u)}, " + ("0" if u == 0 else f"v[{d}:{d+15}]"))
                L.pump(2)
            a(f"v_mfma_f32_32x32x16_bf16 v[{d}:{d+15}], v[{12+4*hh}:{15+4*hh}], {pq(p, 4)}, v[{d}:{d+15}]")
            L.pump(2)
        if p == 3:
            L.need('f5', gate=2)
            check_flags(a, "M_f5", 128, 3, "s49", True)
            for k in (5, 6):
                for sl in range(5):
                    mainmm(sl, k, False); L.paced(gate=3)
        for hh in range(2):
            d = OD[hh]
            a(f"v_add_f32 v{d+10}, {f32(1e-6)}, v{d+10}")
            a(f"v_rcp_f32 v{d+10}, v{d+10}")
            for j in range(0, 10, 2):
                a(f"v_pk_mul_f32 v[{d+j}:{d+j+1}], v[{d+j}:{d+j+1}], v[{d+10}:{d+11}] op_sel_hi:[1,0]")
            o = OB + 10 * p + 5 * hh
            for j in range(5):
                a(f"v_cvt_pk_bf16_f32 v{o+j}, v{d+2*j}, v{d+2*j+1}")
        L.pump(99)
        if p == 1:
            t0 = a.ds("ds_read_b128 v[24:27], v21")
            t1 = a.ds("ds_read_b128 v[28:31], v21 offset:32")
            t2 = a.ds("ds_read_b64 v[20:21], v20")
            for k in range(2):
                for sl in range(1, 5): mainmm(sl, k, k == 0)
            a.wait(lg=t2)
            for j in range(8):
                a(f"v_lshlrev_b32 v{AC+2*j}, 16, v{24+j}")
                a(f"v_and_b32 v{AC+2*j+1}, s54, v{24+j}")
            for k in range(2): mainmm(0, k, False)
            for k in range(2, 5):
                for sl in range(5): mainmm(sl, k, False)
    mmark(a, "p2_o")
    srd(a, 24, 20, H_OFF, H_SZ)
    srd(a, 28, 20, ST_OFF, ST_SZ)
    a(f"s_lshl_b32 s50, s95, 14\nv_add_u32 v6, s50, v3")
    for j in range(1, 4):
        a(f"""
        s_add_u32 s50, s95, {j}
        s_and_b32 s50, s50, 3
        s_sub_u32 s51, s95, s50
        s_add_u32 s52, s51, 5
        s_cmp_lt_u32 s95, s50
        s_cselect_b32 s51, s52, s51
        s_lshl_b32 s50, s50, 2
        s_add_u32 s50, s50, s51
        s_sub_u32 s50, s50, 1
        s_lshl_b32 s50, s50, 12
        v_add_u32 v{6+j}, s50, v3
        """)
    a(f"""
    s_lshr_b32 s50, s95, 1
    s_lshl_b32 s50, s50, 11
    s_and_b32 s51, s95, 1
    s_lshl_b32 s51, s51, 9
    s_add_u32 s50, s50, s51
    v_lshlrev_b32 v10, 4, v5
    v_lshl_add_u32 v10, v4, 10, v10
    v_add_u32 v10, s50, v10
    s_mul_i32 s52, s100, 40
    s_mul_i32 s53, s101, 10
    s_add_u32 s52, s52, s53
    s_lshl_b32 s53, s95, 1
    s_add_u32 s53, s53, s52
    s_lshl_b32 s53, s53, 10
    s_add_u32 s52, s52, 8
    s_lshl_b32 s52, s52, 10
    s_lshl_b32 s55, s95, 9
    s_add_u32 s52, s52, s55
    v_mov_b32 v11, 0x3f803f80
    v_mov_b32 v12, 0
    v_mov_b32 v13, 0
    v_lshlrev_b32 v16, 16, v20
    v_and_b32 v17, s54, v20
    v_lshlrev_b32 v18, 16, v21
    v_and_b32 v19, s54, v21
    """)
    def flush2(sl):
        d = AC + 16 * sl
        for q in range(4):
            a(f"ds_write_b128 v6, v[{d+4*q}:{d+4*q+3}] offset:{(sl-1)*4096 + q*1024}")
    prev = None
    for sl in (1, 2, 3, 4, 0):
        for k in (7, 8, 9):
            mainmm(sl, k, False); L.paced(gate=3)
        if prev is not None: flush2(prev)
        prev = sl
    a.wait_all_lg()
    a("s_barrier")
    mmark(a, "p2_bar")
    R = 96
    tk = []
    for j in range(3):
        for q in range(4):
            t = a.ds(f"ds_read_b128 v[{R+16*j+4*q}:{R+16*j+4*q+3}], v{7+j} offset:{1024*q}")
        tk.append(t)
    for w in range(4):
        t4 = a.ds(f"ds_read_b128 v[{R+48+4*w}:{R+51+4*w}], v10 offset:{w*16384 + (3-w)*4096}")
    P = lambda r: f"v[{r}:{r+1}]"
    for j in range(3):
        a.wait(lg=tk[j])
        for r in range(0, 16, 2):
            a(f"v_pk_add_f32 {P(AC+r)}, {P(AC+r)}, {P(R+16*j+r)}")
    HO = 24
    for j in range(8):
        a(f"v_cvt_pk_bf16_f32 v{HO+j}, v{AC+2*j}, v{AC+2*j+1}")
    a(f"buffer_store_dwordx4 v[{HO}:{HO+3}], v3, s[24:27], s53 offen {SC}")
    a(f"buffer_store_dwordx4 v[{HO+4}:{HO+7}], v3, s[24:27], s53 offen offset:1024 {SC}")
    a.wait(lg=t4)
    for w in range(4):
        for r in (0, 2):
            a(f"v_pk_add_f32 {P(16+r)}, {P(16+r)}, {P(R+48+4*w+r)}")
    a(f"v_cvt_pk_bf16_f32 v{HO+8}, v16, v17\nv_cvt_pk_bf16_f32 v{HO+9}, v18, v19")
    for j in range(10):
        a(f"v_dot2c_f32_bf16 v12, v{HO+j}, v11")
        a(f"v_dot2c_f32_bf16 v13, v{HO+j}, v{HO+j}")
    a(f"""
    s_lshl_b32 s55, s100, 4
    s_lshl_b32 s56, s101, 2
    s_add_u32 s55, s55, s56
    s_add_u32 s55, s55, s95
    v_permlane32_swap_b32 v{HO+8}, v{HO+10}
    v_permlane32_swap_b32 v{HO+9}, v{HO+11}
    v_mov_b32 v14, v12
    v_mov_b32 v15, v13
    s_lshl_b32 s56, s55, 4
    s_lshl_b32 s55, s55, 8
    v_permlane32_swap_b32 v12, v14
    v_permlane32_swap_b32 v13, v15
    v_add_f32 v12, v12, v14
    v_add_f32 v13, v13, v15
    v_lshlrev_b32 v14, 3, v5
    s_mov_b32 exec_hi, 0
    buffer_store_dwordx4 v[{HO+8}:{HO+11}], v3, s[24:27], s52 offen {SC}
    """)
    tst = a.vm(f"buffer_store_dwordx2 v[12:13], v14, s[28:31], s55 offen {SC}")
    a(f"s_mov_b32 exec_hi, -1\ns_add_u32 s56, s56, {F3_O}")
    mmark(a, "p2_st")
    assert not L.q
    a.wait(vm=tst)
    signal(a, "s56", 8)
    mmark(a, "p2_sig")
    a("s_barrier")
    w3_dma(L, 2); L.pump(99)
    a(f"""
    s_lshl_b32 s44, s60, 2
    s_add_u32 s44, s44, s95
    s_mul_i32 s45, s44, 40960
    v_bfe_u32 v7, v2, 2, 1
    v_bfe_u32 v8, v2, 4, 1
    v_xor_b32 v9, v8, v4
    v_lshlrev_b32 v9, 7, v9
    v_lshl_add_u32 v9, v8, 8, v9
    v_bfe_u32 v8, v2, 3, 1
    v_lshl_add_u32 v9, v8, 6, v9
    v_and_b32 v8, 3, v2
    v_lshl_add_u32 v9, v8, 4, v9
    v_lshl_add_u32 v8, v7, 9, v9
    v_mul_u32_u24 v7, 20480, v7
    v_add_u32 v10, v7, v9
    v_add_u32 v11, 40960, v10
    v_add_u32 v12, 81920, v10
    v_add_u32 v13, 122880, v10
    """)
    srd(a, 36, 20, CS_OFF, CS_SZ)
    a("s_lshl_b32 s48, s62, 9\ns_add_u32 s49, s48, 4096")
    for T in range(7):
        a(f"buffer_load_dwordx4 a[{160+4*T}:{163+4*T}], v8, s[36:39], s{48 if T < 4 else 49} offen offset:{1024*(T%4)} {SC}")
    srd(a, 36, 20, HH_OFF, HH_SZ)
    srd(a, 32, 20, RS_OFF, RS_SZ)
    a(f"""
    v_lshlrev_b32 v6, 3, v5
    v_lshl_add_u32 v6, v4, 11, v6
    s_lshl_b32 s48, s44, 12
    v_lshrrev_b32 v20, 4, v5
    v_mul_u32_u24 v20, 55296, v20
    v_and_b32 v21, 15, v2
    v_lshlrev_b32 v7, 4, v21
    v_add_u32 v20, v7, v20
    v_lshl_add_u32 v20, v4, 8, v20
    s_mul_i32 s50, s44, 110592
    s_lshl_b32 s51, s62, 8
    s_add_u32 s50, s50, s51
    s_lshl_b32 s51, s44, 8
    s_add_u32 s51, s51, {F3_O}
    s_lshr_b32 s52, s61, 2
    s_lshl_b32 s52, s52, 13
    s_lshl_b32 s53, s44, 7
    s_add_u32 s52, s52, s53
    s_and_b32 s53, s61, 3
    s_cmp_eq_u32 s53, 1
    s_cselect_b32 s52, s52, 0x1000000
    """)
    mspill(a)
    poll(a, "M_poll3", 7, "s51", 9)
    mmark(a, "p3_sync")
    L = Loads(a, 28)
    SR = 112
    for n in range(40):
        L.add(f"buffer_load_dwordx4 a[{4*n}:{4*n+3}], v3, s[24:27], s45 offen offset:{1024*(n%4)} {SC}", tag=n,
              post="s_add_u32 s45, s45, 4096" if n % 4 == 3 else None)
        if n == 11:
            for p in range(8):
                L.add(f"buffer_load_dwordx2 v[{SR+2*p}:{SR+2*p+1}], v6, s[28:31], s48 offen offset:{256*p} {SC}", tag='st' if p == 7 else None)
    w3_dma(L, 3)
    L.pump(12)
    ACB = [80, 96, 112, 128]
    WF, NB, TMP, OUT = 24, 10, 64, [72, 76]
    REG = [12, 13, 10, 11, 12, 13, 10]
    seq = [(T, s) for s in range(40) for T in (0, 1)] + [(T, s) for T in range(2, 7) for s in range(40)]
    frs = {}
    nrd = [0]
    def rd3():
        i = nrd[0]
        if i >= len(seq): return
        T, s = seq[i]
        r = WF + 4 * (i % NB)
        frs[i] = (r, a.ds(f"ds_read_b128 v[{r}:{r+3}], v{REG[T]} offset:{512*s}"))
        nrd[0] += 1
    def epi(T, pk):
        d, out, tmp = ACB[T % 4], OUT[T % 2], TMP
        Lx = []
        if pk:
            for j in range(0, 8, 2): Lx.append(f"v_pk_mul_f32 {P(tmp+j)}, {P(d+j)}, {P(d+j)}")
            for j in range(0, 8, 2): Lx.append(f"v_pk_fma_f32 {P(tmp+j)}, {P(tmp+j)}, v[14:15], v[14:15] op_sel:[0,1,0] op_sel_hi:[1,1,0]")
            for j in range(0, 8, 2): Lx.append(f"v_pk_mul_f32 {P(tmp+j)}, {P(tmp+j)}, {P(d+j)}")
            for j in range(8): Lx.append(f"v_exp_f32 v{tmp+j}, v{tmp+j}")
            for j in range(0, 8, 2): Lx.append(f"v_pk_mul_f32 {P(d+j)}, {P(d+j)}, {P(d+8+j)}")
            for j in range(0, 8, 2): Lx.append(f"v_pk_add_f32 {P(tmp+j)}, {P(tmp+j)}, 1.0 op_sel_hi:[1,0]")
            for j in range(8): Lx.append(f"v_rcp_f32 v{tmp+j}, v{tmp+j}")
            for j in range(0, 8, 2): Lx.append(f"v_pk_mul_f32 {P(d+j)}, {P(d+j)}, {P(tmp+j)}")
        else:
            for j in range(8): Lx.append(f"v_mul_f32 v{tmp+j}, v{d+j}, v{d+j}")
            for j in range(8): Lx.append(f"v_fma_f32 v{tmp+j}, v{tmp+j}, v15, v14")
            for j in range(8): Lx.append(f"v_mul_f32 v{tmp+j}, v{tmp+j}, v{d+j}")
            for j in range(8):
                Lx.append(f"v_exp_f32 v{tmp+j}, v{tmp+j}")
                Lx.append(f"v_mul_f32 v{d+j}, v{d+j}, v{d+8+j}")
            for j in range(8): Lx.append(f"v_add_f32 v{tmp+j}, 1.0, v{tmp+j}")
            for j in range(8):
                Lx.append(f"v_rcp_f32 v{tmp+j}, v{tmp+j}")
                if j >= 1: Lx.append(f"v_mul_f32 v{d+j-1}, v{d+j-1}, v{tmp+j-1}")
            Lx.append(f"v_cvt_pk_bf16_f32 v{out}, v{d}, v{d+1}")
            Lx.append(f"v_mul_f32 v{d+7}, v{d+7}, v{tmp+7}")
        for j in range(0 if pk else 1, 4): Lx.append(f"v_cvt_pk_bf16_f32 v{out+j}, v{d+2*j}, v{d+2*j+1}")
        Lx.append(f"buffer_store_dwordx4 v[{out}:{out+3}], v20, s[36:39], s50 offen offset:{512*T} {SC}")
        return [(T, x) for x in Lx]
    stats = f"""
    v_add_f32 v{SR+0}, v{SR+0}, v{SR+2}
    v_add_f32 v{SR+1}, v{SR+1}, v{SR+3}
    v_add_f32 v{SR+4}, v{SR+4}, v{SR+6}
    v_add_f32 v{SR+5}, v{SR+5}, v{SR+7}
    v_add_f32 v{SR+8}, v{SR+8}, v{SR+10}
    v_add_f32 v{SR+9}, v{SR+9}, v{SR+11}
    v_add_f32 v{SR+12}, v{SR+12}, v{SR+14}
    v_add_f32 v{SR+13}, v{SR+13}, v{SR+15}
    v_add_f32 v{SR+0}, v{SR+0}, v{SR+4}
    v_add_f32 v{SR+1}, v{SR+1}, v{SR+5}
    v_add_f32 v{SR+8}, v{SR+8}, v{SR+12}
    v_add_f32 v{SR+9}, v{SR+9}, v{SR+13}
    v_add_f32 v{SR+0}, v{SR+0}, v{SR+8}
    v_add_f32 v{SR+1}, v{SR+1}, v{SR+9}
    v_mov_b32 v{SR+2}, v{SR}
    v_mov_b32 v{SR+3}, v{SR+1}
    v_permlane32_swap_b32 v{SR}, v{SR+2}
    v_permlane32_swap_b32 v{SR+1}, v{SR+3}
    v_add_f32 v{SR}, v{SR}, v{SR+2}
    v_add_f32 v{SR+1}, v{SR+1}, v{SR+3}
    v_mul_f32 v{SR}, {f32(-1.0/640)}, v{SR}
    v_mul_f32 v{SR+1}, {f32(1.0/640)}, v{SR+1}
    v_fma_f32 v{SR+1}, -v{SR}, v{SR}, v{SR+1}
    v_max_f32 v{SR+1}, 0, v{SR+1}
    v_add_f32 v{SR+1}, {f32(1e-5)}, v{SR+1}
    v_rsq_f32 v{SR+1}, v{SR+1}
    v_cvt_pk_bf16_f32 v{SR+2}, v{SR}, v{SR}
    v_lshlrev_b32 v{SR+2}, 16, v{SR+2}
    v_sub_f32 v{SR+3}, v{SR}, v{SR+2}
    v_cvt_pk_bf16_f32 v16, v{SR+2}, v{SR+3}
    v_mul_f32 v22, v{SR+1}, v{SR+1}
    v_mov_b32 v17, v16
    v_mov_b32 v18, v16
    v_mov_b32 v19, v16
    v_mul_f32 v14, {f32(C0)}, v{SR+1}
    v_mul_f32 v15, {f32(C1)}, v{SR+1}
    v_mul_f32 v15, v15, v22
    v_lshlrev_b32 v21, 2, v5
    buffer_store_dword v22, v21, s[32:35], s52 offen {SC}
    """.strip().split("\n")
    pending = []
    def w4reg(i):
        if i < 28: return f"v[{144+4*i}:{147+4*i}]"
        if i < 45: return f"a[{188+4*(i-28)}:{191+4*(i-28)}]"
        if i < 68: return f"a[{96+4*(i-45)}:{99+4*(i-45)}]"
        return f"v[{128+4*(i-68)}:{131+4*(i-68)}]"
    def w4_queue(L, lo, hi):
        for i in range(lo, hi):
            T, k = divmod(i, 14)
            L.add(f"buffer_load_dwordx4 {w4reg(i)}, v{1 if k >= 12 else 3}, s[64:67], s23 offen offset:{1024*(k%4)} {SC}",
                  pre=f"s_add_u32 s23, s22, {T*55296 + 4096*(k//4)}" if (k % 4 == 0 or i == lo) else None, tag=('W4', i))
    DIST = 8
    def cost(x):
        x = x.strip()
        return 2 if x.startswith(("v_exp", "v_rcp", "v_rsq", "buffer_")) else 1
    def fill(budget, hold=None):
        while budget > 0 and pending:
            pick = None
            blockW, blockR = set(), set()
            for n, (t, x) in enumerate(pending[:14]):
                ins = Ins(x)
                ok = cost(x) <= budget and t != hold and not (set(ins.r) & blockW) and not (set(ins.w) & (blockW | blockR))
                if ok and any(need(p, ins) > dd for dd, p in enumerate(reversed(a.ins[-2:]))): ok = False
                if ok: pick = n; break
                blockW |= set(ins.w); blockR |= set(ins.r)
            if pick is None: break
            x = pending.pop(pick)[1]
            a(x); budget -= cost(x)
    for _ in range(DIST): rd3()
    for i, (T, s) in enumerate(seq):
        nx = nrd[0]
        if nx < len(seq) and seq[nx][1] == 0 and seq[nx][0] in (2, 3, 4, 6):
            if seq[nx][0] > 2: L.need(('W3', {3: 3, 4: 5, 6: 6}[seq[nx][0]]))
            a("s_barrier")
        rd3()
        budget = 3
        nxt_wait = (i + 1) % 4 == 0
        if T == 0: L.need(s)
        if i == 0: mmark(a, "p3_first")
        if i % 4 == 0: a.wait(lg=frs[min(i + 3, len(seq) - 1)][1])
        r = frs[i][0]
        d = ACB[T % 4]
        if s == 0: assert all(t % 4 != T % 4 for t, _ in pending if t >= 0), "accumulator still pending"
        a(f"v_mfma_f32_32x32x16_bf16 v[{d}:{d+15}], v[{r}:{r+3}], a[{4*s}:{4*s+3}], " + ("0" if s == 0 else f"v[{d}:{d+15}]"))
        if nxt_wait: budget -= 1
        n0 = a.vm_issued
        if T < 2:
            L.pump(1)
            if T == 1: budget -= 1
            if s == 14 and T == 0:
                L.need('st'); pending += [(-1, x) for x in stats]
        elif i % 8 in (1, 3, 6):
            L.paced()
        budget -= 2 * (a.vm_issued - n0)
        fill(budget, hold=(T - 1 if s < 3 else None) if T > 2 else None)
        if s == 39 and T != 0:
            for t in ((0, 1) if T == 1 else (T,)):
                dd = ACB[t % 4]
                assert not any(p[0] == -1 for p in pending)
                a(f"v_mfma_f32_32x32x16_bf16 v[{dd}:{dd+15}], a[{160+4*t}:{163+4*t}], v[16:19], v[{dd}:{dd+15}]")
                if t < 6: pending += epi(t, False)
            mmark(a, f"p3_t{T}")
            if T == 1:
                a("s_barrier")
                w3_dma(L, 4); w3_dma(L, 5)
            if T == 2:
                a("s_barrier")
                w3_dma(L, 6)
                map_p4(a, 100, 101, 40)
                srd(a, 64, 20, W4_OFF, W4_SZ)
                a(f"""
                s_mul_i32 s40, s95, 14
                s_mul_i32 s22, s101, {5*54}
                s_add_u32 s22, s22, s40
                s_lshl_b32 s22, s22, 10
                s_cmp_eq_u32 s95, 3
                s_cselect_b32 s41, 0x10000000, 0
                v_add_u32 v1, s41, v3
                """)
                w4_queue(L, 0, 45)
    for _, ins in pending: a(ins)
    for _, ins in epi(6, True): a(ins)
    tst = a.vm_issued
    mmark(a, "p3_st")
    a(f"""
    s_lshl_b32 s51, s44, 4
    s_add_u32 s51, s51, s61
    s_lshl_b32 s51, s51, 4
    s_add_u32 s51, s51, {F4_O}
    """)
    w4_queue(L, 45, 70)
    for _ in range(6): L.paced()
    a.wait(vm=tst)
    signal(a, "s51", 8)
    mmark(a, "p3_sig")
    while L.q: L.paced()
    PB, TB = 40960, 40960 + 61440
    srd(a, 12, 6, 0, 2621440)
    a(f"""
    s_mul_i32 s44, s95, 14
    s_mul_i32 s45, s100, {4*54}
    s_add_u32 s45, s45, s44
    s_lshl_b32 s45, s45, 10
    v_lshlrev_b32 v7, 4, v5
    s_lshl_b32 s46, s100, 9
    s_add_u32 s46, s46, {F4_O}
    s_mul_i32 s47, s95, 15360
    s_add_u32 s47, s47, {PB}
    v_add_u32 v6, s47, v3
    """)
    for j in range(1, 4):
        a(f"""
        s_add_u32 s47, s95, {j}
        s_and_b32 s47, s47, 3
        s_mul_i32 s47, s47, 15360
        s_add_u32 s47, s47, {PB + (3-j)*5120}
        v_add_u32 v{9+j}, s47, v3
        """)
    a(f"""
    v_and_b32 v13, 15, v2
    v_lshrrev_b32 v14, 4, v2
    v_lshlrev_b32 v15, 4, v13
    v_lshl_add_u32 v15, v4, 9, v15
    v_and_b32 v16, 1, v14
    v_lshl_add_u32 v15, v16, 3, v15
    s_lshl_b32 s48, s100, 1
    s_lshr_b32 s49, s95, 1
    s_add_u32 s48, s48, s49
    s_mul_i32 s48, s48, 40960
    s_mul_i32 s49, s101, 5120
    s_add_u32 s48, s48, s49
    s_and_b32 s49, s95, 1
    s_lshl_b32 s49, s49, 8
    s_add_u32 s48, s48, s49
    s_add_u32 s49, s48, 4096
    v_lshlrev_b32 v16, 2, v13
    s_lshl_b32 s50, s95, 13
    s_lshl_b32 s51, s100, 8
    s_add_u32 s50, s50, s51
    s_lshl_b32 s51, s95, 6
    s_add_u32 s50, s50, s51
    v_mul_u32_u24 v17, 160, v13
    v_lshl_add_u32 v17, v14, 3, v17
    s_mul_i32 s51, s95, 2560
    s_add_u32 s51, s51, {TB}
    v_add_u32 v17, s51, v17
    v_add_u32 v18, s51, v3
    s_mov_b32 s52, 6554
    """)
    for it in range(3):
        a(f"""
        v_add_u32 v8, {64*it}, v2
        v_mul_u32_u24 v9, s52, v8
        v_lshrrev_b32 v9, 16, v9
        v_mul_u32_u24 v9, {1280-160}, v9
        v_lshl_add_u32 v{19+it}, v8, 4, v9
        """)
    a(f"""
    s_lshl_b32 s52, s100, 2
    s_add_u32 s52, s52, s95
    s_mul_i32 s52, s52, {16*1280}
    s_mul_i32 s53, s101, 160
    s_add_u32 s52, s52, s53
    s_mov_b32 s54, 0xffff0000
    """)
    mspill(a)
    poll(a, "M_poll4", 7, "s46", 9)
    mmark(a, "p4_sync")
    L = Loads(a, 24)
    order = [(sl, k) for sl in (1, 2, 3, 0) for k in range(14)]
    for i, (sl, k) in enumerate(order):
        pre = None
        if k == 0:
            pre = f"s_add_u32 s55, s95, {sl}\ns_and_b32 s55, s55, 3\ns_mul_i32 s55, s55, 55296\ns_add_u32 s55, s55, s45"
        elif k % 4 == 0:
            pre = "s_add_u32 s55, s55, 4096"
        r = 4 * (i % 24)
        L.add(f"buffer_load_dwordx4 a[{r}:{r+3}], v{1 if k >= 12 else 3}, s[36:39], s55 offen offset:{1024*(k%4)} {SC}", pre=pre, tag=i, gate=max(i - 24, -1))
        if i == 30:
            for T in range(5):
                L.add(f"buffer_load_dwordx2 v[{112+2*T}:{113+2*T}], v15, s[24:27], s{48 if T < 4 else 49} offen offset:{1024*(T%4)} {SC}")
            L.add(f"buffer_load_dword v122, v16, s[32:35], s50 offen {SC}", tag='res')
    L.pump(12, gate=-1)
    A4 = [72, 92]
    RS_, PS = 24, 44
    todo = []
    for i, (sl, k) in enumerate(order):
        ph = i // 14
        d = A4[ph % 2]
        L.need(i, gate=i - 1)
        if i == 0: mmark(a, "p4_first")
        r = 4 * (i % 24)
        for T in range(5):
            a(f"v_mfma_f32_16x16x32_bf16 v[{d+4*T}:{d+4*T+3}], {w4reg(14*T+k)}, a[{r}:{r+3}], " + ("0" if k == 0 else f"v[{d+4*T}:{d+4*T+3}]"))
            if T in (1, 3): L.pump(1, gate=i - 1)
            if todo and T != 4: a(todo.pop(0))
        if k == 1 and ph > 0:
            dp = A4[(ph - 1) % 2]
            for T in range(5):
                a(f"ds_write_b128 v6, v[{dp+4*T}:{dp+4*T+3}] offset:{(ph-1)*5120 + T*1024}")
        if ph == 3 and k == 3:
            a.wait_all_lg()
            a("s_barrier")
            tk = []
            for j, rb in enumerate((RS_, PS, A4[0])):
                for T in range(5):
                    t = a.ds(f"ds_read_b128 v[{rb+4*T}:{rb+4*T+3}], v{10+j} offset:{1024*T}")
                tk.append(t)
        if ph == 3 and k == 5:
            a.wait(lg=tk[2])
            L.need('res', gate=99)
            todo = [f"v_add_f32 v{RS_+j}, v{RS_+j}, v{PS+j}" for j in range(20)]
            todo += [f"v_add_f32 v{RS_+j}, v{RS_+j}, v{A4[0]+j}" for j in range(20)]
    for ins in todo: a(ins)
    for j in range(10):
        a(f"v_lshlrev_b32 v{PS+2*j}, 16, v{112+j}")
        a(f"v_and_b32 v{PS+2*j+1}, s54, v{112+j}")
    for j in range(0, 20, 2):
        a(f"v_pk_fma_f32 {P(PS+j)}, {P(RS_+j)}, v[122:123], {P(PS+j)} op_sel_hi:[1,0,1]")
    mmark(a, "p4_mm")
    d = A4[1]
    for j in range(0, 20, 2):
        a(f"v_pk_fma_f32 {P(PS+j)}, {P(d+j)}, v[122:123], {P(PS+j)} op_sel_hi:[1,0,1]")
    for j in range(10):
        a(f"v_cvt_pk_bf16_f32 v{RS_+j}, v{PS+2*j}, v{PS+2*j+1}")
    for T in range(5):
        a(f"ds_write_b64 v17, v[{RS_+2*T}:{RS_+2*T+1}] offset:{32*T}")
    a.wait_all_lg()
    tk = [a.ds(f"ds_read_b128 v[{PS+4*it}:{PS+4*it+3}], v18 offset:{1024*it}") for it in range(3)]
    for it in range(3):
        a.wait(lg=tk[it])
        if it == 2: a("s_mov_b32 exec_hi, 0")
        a(f"buffer_store_dwordx4 v[{PS+4*it}:{PS+4*it+3}], v{19+it}, s[12:15], s52 offen")
    mstamp_end(a, 1, 20)
    a("M_exit:\ns_endpgm")
    return a
```

```python
from common import *
from k0 import reduce32
SC = "sc1"

def rt_dma_block(a, srd, pitch, row0_expr, col_s, lds_base, n, vtmp, s1, s2, nt="nt"):
    pass

def wo_issue(a, ptr, task, LB):
    srd(a, 68, ptr, 0, 640 * 1280)
    a(f"""
    s_and_b32 s57, s{task}, 3
    s_lshr_b32 s56, s{task}, 2
    v_lshrrev_b32 v6, 3, v2
    v_mul_u32_u24 v6, 1280, v6
    v_and_b32 v7, 7, v2
    v_lshl_add_u32 v6, v7, 4, v6
    s_mul_i32 s58, s57, 160
    s_mul_i32 s59, s95, 40
    s_add_u32 s58, s58, s59
    s_mul_i32 s58, s58, 1280
    s_lshl_b32 s59, s56, 7
    s_add_u32 s58, s58, s59
    s_mul_i32 s59, s95, 5120
    """)
    for n in range(5):
        a(f"s_add_u32 m0, s59, {LB + 1024*n}")
        a(f"buffer_load_dwordx4 v6, s[68:71], s58 offen nt lds")
        if n < 4: a(f"s_add_u32 s58, s58, {8*1280}")

def wo_finish(a, LB):
    srd(a, 68, 20, WO_OFF, WO_SZ)
    a(f"""
    s_lshr_b32 s45, s95, 1
    s_and_b32 s46, s95, 1
    v_mul_u32_u24 v6, 10, v4
    v_bfe_u32 v7, v2, 2, 2
    v_add_u32 v6, v6, v7
    v_lshlrev_b32 v6, 7, v6
    v_bfe_u32 v8, v2, 4, 1
    v_lshl_add_u32 v6, v8, 5, v6
    v_and_b32 v8, 1, v2
    v_lshl_add_u32 v6, v8, 4, v6
    v_bfe_u32 v8, v2, 1, 1
    v_lshl_add_u32 v6, v8, 3, v6
    s_mul_i32 s47, s45, {80*128}
    s_lshl_b32 s48, s46, 6
    s_add_u32 s47, s47, s48
    s_add_u32 s47, s47, {LB}
    v_add_u32 v6, s47, v6
    v_lshrrev_b32 v7, 1, v7
    v_mul_u32_u24 v7, 1280, v7
    v_add_u32 v7, v6, v7
    s_lshl_b32 s47, s56, 1
    s_add_u32 s47, s47, s46
    s_mul_i32 s48, s47, 205
    s_lshr_b32 s48, s48, 10
    s_mul_i32 s49, s48, 5
    s_sub_u32 s49, s47, s49
    s_lshl_b32 s48, s48, 2
    s_add_u32 s48, s48, s57
    s_mul_i32 s48, s48, 50
    s_mul_i32 s49, s49, 10
    s_add_u32 s48, s48, s49
    s_mul_i32 s49, s45, 5
    s_add_u32 s48, s48, s49
    s_lshl_b32 s48, s48, 10
    s_add_u32 s49, s48, 4096
    """)
    t = []
    for sp in range(5):
        for rho in range(2):
            p0 = 8 * sp + 4 * rho
            av = 7 if p0 in (8, 28) else 6
            tk = a.ds(f"ds_read_b64_tr_b16 v[{24+4*sp+2*rho}:{25+4*sp+2*rho}], v{av} offset:{(p0 + 10*(p0//10))*128}")
        t.append(tk)
    for sp in range(5):
        a.wait(lg=t[sp])
        so, off = ("s48", 1024 * sp) if sp < 4 else ("s49", 0)
        a(f"buffer_store_dwordx4 v[{24+4*sp}:{27+4*sp}], v3, s[68:71], {so} offen offset:{off} {SC}")

def p0(a, signal2, poll, npf):
    WOL = 16384
    a(f"""
    s_cmp_ge_u32 s2, 16
    s_cbranch_scc1 P0_nopf
    s_getpc_b64 s[22:23]
P0_pc:
    v_lshlrev_b32 v8, 7, v0
    """)
    for n in range(npf):
        a(f"""
        v_mov_b32 v11, s23
        v_cmp_gt_u32 vcc, CODE_END-P0_pc, v8
        s_and_saveexec_b64 s[40:41], vcc
        s_cbranch_execz P0_pf{n}
        v_add_co_u32 v10, vcc, s22, v8
        v_addc_co_u32 v11, vcc, 0, v11, vcc
        global_load_dword v255, v[10:11], off
P0_pf{n}:
        s_mov_b64 exec, s[40:41]
        v_add_u32 v8, 0x8000, v8
        """)
    a("P0_nopf:\ns_waitcnt lgkmcnt(0)")
    srd(a, 64, 18, 0, 256)
    srd(a, 8, 20, FL_OFF, FL_SZ)
    a(f"""
    s_or_b32 s40, s2, s95
    s_cmp_lg_u32 s40, 0
    s_cbranch_scc1 P0_non
    s_or_b32 s40, s98, 1
    s_mov_b64 exec, 1
    v_mov_b32 v8, s40
    v_mov_b32 v9, 0
    buffer_store_dword v8, v9, s[64:67], 0 offen sc0 sc1
    s_mov_b64 exec, -1
P0_non:
    """)
    srd(a, 24, 4, 0, 2621440)
    a(f"""
    v_lshrrev_b32 v6, 5, v0
    v_mul_u32_u24 v7, 1280, v6
    v_lshl_add_u32 v7, v5, 3, v7
    s_lshl_b32 s44, s42, 4
    s_add_u32 s44, s44, s43
    s_mul_i32 s40, s44, 10240
    """)
    a.reset_counters()
    X = 24
    for i in range(5):
        tX = a.vm(f"buffer_load_dwordx2 v[{X+2*i}:{X+1+2*i}], v7, s[24:27], s40 offen offset:{256*i} nt")
    srd(a, 28, 12, 0, 640 * 3840)
    srd(a, 32, 14, 0, 32 * 800)
    a(f"""
    s_and_b32 s45, s95, 1
    s_lshr_b32 s46, s95, 1
    s_lshl_b32 s47, s43, 1
    s_add_u32 s47, s47, s45
    v_and_b32 v8, 0x13, v5
    v_lshrrev_b32 v9, 1, v5
    v_and_b32 v9, 4, v9
    v_lshlrev_b32 v10, 1, v5
    v_and_b32 v10, 8, v10
    v_or3_b32 v8, v8, v9, v10
    s_cmp_eq_u32 s46, 0
    s_cselect_b32 s48, 31, 7
    v_min_u32 v8, s48, v8
    v_mul_u32_u24 v8, 3840, v8
    v_lshl_add_u32 v9, v4, 4, v8
    v_lshl_add_u32 v10, v4, 28, v8
    s_mul_i32 s48, s42, 40
    s_lshl_b32 s49, s46, 5
    s_add_u32 s48, s48, s49
    s_mul_i32 s48, s48, 3840
    s_mul_i32 s49, s47, 40
    s_add_u32 s48, s48, s49
    s_mul_i32 s49, s47, 800
    v_mul_u32_u24 v11, 320, v4
    v_lshl_add_u32 v11, v5, 1, v11
    """)
    A0 = [64, 72, 80]; A1 = [68, 76, 84]
    for sg in range(3):
        a(f"buffer_load_dwordx4 v[{A0[sg]}:{A0[sg]+3}], v9, s[28:31], s48 offen offset:{1280*sg}")
        a(f"buffer_load_dwordx2 v[{A1[sg]}:{A1[sg]+1}], v10, s[28:31], s48 offen offset:{1280*sg+32}")
    U = 100
    for j in range(8):
        a(f"buffer_load_ushort v{U+j}, v11, s[32:35], s49 offen offset:{40*j}")
    for j in range(4):
        a(f"buffer_load_ushort v{U+8+j}, v11, s[32:35], s49 offen offset:{640+40*j}")
    a.wait(vm=tX) if False else None
    nW = a.vm_issued
    a(f"s_cmp_lt_u32 s2, 216\ns_cbranch_scc1 P0_nowo\ns_sub_u32 s55, s2, 216")
    b = Asm(); wo_issue(b, 16, 55, WOL); a.ins += b.ins
    a("v_lshrrev_b32 v6, 5, v0\nP0_nowo:")
    srd(a, 32, 20, KV_OFF, KV_SZ)
    a(f"""
    v_mov_b32 v12, 0
    v_mov_b32 v13, 0
    v_mov_b32 v14, 0
    v_mov_b32 v15, 0
    s_mul_i32 s40, s43, 7680
    s_mul_i32 s41, s42, 480
    s_add_u32 s40, s40, s41
    v_lshlrev_b32 v7, 4, v0
    v_cmp_gt_u32 vcc, 30, v0
    s_and_saveexec_b64 s[50:51], vcc
    s_cbranch_execz P0_z
    buffer_store_dwordx4 v[12:15], v7, s[32:35], s40 offen {SC}
P0_z:
    s_mov_b64 exec, s[50:51]
    """)
    for sg in range(3):
        a(f"v_mov_b32 v{A1[sg]+2}, 0\nv_mov_b32 v{A1[sg]+3}, 0")
    a(f"""
    v_add_u32 v8, 2, v5
    v_cmp_gt_u32 vcc, 18, v5
    v_cndmask_b32 v8, v8, v5, vcc
    v_bfe_u32 v9, v8, 2, 1
    v_mul_u32_u24 v9, 10, v9
    v_lshrrev_b32 v10, 3, v8
    v_lshl_add_u32 v9, v10, 2, v9
    v_and_b32 v10, 3, v8
    v_add_u32 v9, v9, v10
    v_lshlrev_b32 v10, 3, v4
    v_sub_u32 v9, v9, v10
    v_and_b32 v10, 1, v9
    v_lshlrev_b32 v10, 4, v10
    v_mov_b32 v8, 0x3f80
    v_lshlrev_b32 v10, v10, v8
    v_lshrrev_b32 v9, 1, v9
    """)
    for jj, cmpv in enumerate([0, 1, 2, 3, 8, 9]):
        a(f"v_cmp_eq_u32 vcc, {cmpv}, v9\nv_cndmask_b32 v{112+jj}, 0, v10, vcc")
    a("v_mov_b32 v118, 0\nv_mov_b32 v119, 0\nv_mov_b32 v94, 0\nv_mov_b32 v95, 0")
    a(f"""
    s_mul_i32 s40, s42, 5
    s_lshl_b32 s41, s46, 2
    s_add_u32 s40, s40, s41
    v_add_u32 v12, s40, v4
    v_lshrrev_b32 v11, 1, v12
    v_mul_u32_u24 v11, 3840, v11
    v_and_b32 v12, 1, v12
    v_lshl_add_u32 v11, v12, 9, v11
    """)
    for sg, sb in enumerate([40, 0, 20]):
        d = 120 + sg
        a(f"""
        v_add_u32 v8, {sb}, v5
        v_lshrrev_b32 v9, 4, v8
        v_lshl_add_u32 v{d}, v9, 10, v11
        v_bfe_u32 v10, v8, 2, 2
        v_lshl_add_u32 v{d}, v10, 7, v{d}
        v_and_b32 v10, 3, v8
        v_lshl_add_u32 v{d}, v10, 4, v{d}
        """)
        if sg == 0:
            a(f"""
            v_cmp_eq_u32 vcc, 3, v9
            v_lshlrev_b32 v10, 7, v12
            v_cndmask_b32 v10, 0, v10, vcc
            v_sub_u32 v{d}, v{d}, v10
            """)
    srd(a, 28, 20, XN_OFF, XN_SZ)
    srd(a, 32, 20, W1_OFF, W1_SZ)
    a(f"""
    s_mul_i32 s48, s43, 153600
    s_lshl_b32 s49, s45, 6
    s_add_u32 s48, s48, s49
    s_mov_b32 s50, {f32(LOG2E)}
    v_lshrrev_b32 v8, 1, v5
    v_xor_b32 v7, v6, v8
    v_and_b32 v7, 7, v7
    v_lshlrev_b32 v7, 4, v7
    v_lshl_add_u32 v7, v8, 7, v7
    v_and_b32 v8, 1, v5
    v_lshl_add_u32 v7, v8, 3, v7
    v_lshrrev_b32 v10, 3, v0
    v_xor_b32 v8, v0, v10
    v_and_b32 v8, 7, v8
    v_lshlrev_b32 v8, 4, v8
    v_lshl_add_u32 v8, v10, 7, v8
    v_and_b32 v9, 7, v0
    v_lshlrev_b32 v9, 4, v9
    v_lshl_add_u32 v9, v10, 9, v9
    s_lshr_b32 s52, s44, 2
    s_mul_i32 s52, s52, 40960
    s_and_b32 s53, s44, 3
    s_lshl_b32 s53, s53, 7
    s_add_u32 s52, s52, s53
    s_add_u32 s53, s52, 16384
    s_add_u32 s54, s52, 32768
    s_mov_b32 s41, 0xffff0000
    v_mov_b32 v16, 0
    """)
    a(f"s_waitcnt vmcnt({nW - tX})")
    mmark(a, "p0_x")
    a("buffer_load_dword v17, v16, s[64:67], 0 offen sc1")
    F = 36
    P = lambda r: f"v[{r}:{r+1}]"
    for i in range(10):
        a(f"v_lshlrev_b32 v{F+2*i}, 16, v{X+i}")
        a(f"v_and_b32 v{F+2*i+1}, s41, v{X+i}")
    a(f"v_pk_add_f32 v[56:57], {P(F)}, {P(F+2)}")
    a(f"v_pk_add_f32 v[58:59], {P(F+4)}, {P(F+6)}")
    for i in range(4, 10):
        a(f"v_pk_add_f32 {P(56+2*(i%2))}, {P(56+2*(i%2))}, {P(F+2*i)}")
    a("v_pk_add_f32 v[56:57], v[56:57], v[58:59]")
    a("v_add_f32 v56, v56, v57")
    reduce32(a, 56, 57)
    a(f"v_mul_f32 v56, {f32(1.0/640)}, v56")
    for i in range(10):
        a(f"v_pk_add_f32 {P(F+2*i)}, {P(F+2*i)}, v[56:57] op_sel_hi:[1,0] neg_lo:[0,1] neg_hi:[0,1]")
    a(f"v_pk_mul_f32 v[58:59], {P(F)}, {P(F)}")
    for i in range(1, 10):
        a(f"v_pk_fma_f32 v[58:59], {P(F+2*i)}, {P(F+2*i)}, v[58:59]")
    a("v_add_f32 v58, v58, v59")
    reduce32(a, 58, 59)
    a(f"v_mov_b32 v59, {f32(1e-5)}")
    a(f"v_fmac_f32 v59, {f32(1.0/640)}, v58")
    a("v_rsq_f32 v58, v59")
    for i in range(10):
        a(f"v_pk_mul_f32 {P(F+2*i)}, {P(F+2*i)}, v[58:59] op_sel_hi:[1,0]")
    for i in range(10):
        a(f"v_cvt_pk_bf16_f32 v{X+i}, v{F+2*i}, v{F+2*i+1}")
    for i in range(5):
        a(f"ds_write_b64 v7, v[{X+2*i}:{X+1+2*i}] offset:{2048*i}")
    a("s_waitcnt vmcnt(0)")
    mmark(a, "p0_w")
    for jj in range(6):
        a(f"v_lshl_or_b32 v{88+jj}, v{U+2*jj+1}, 16, v{U+2*jj}")
    Dr = [128, 144, 160]
    for sg in range(3):
        b0, b1 = (88, 92) if sg < 2 else (112, 116)
        a(f"v_mfma_f32_32x32x16_bf16 v[{Dr[sg]}:{Dr[sg]+15}], v[{A0[sg]}:{A0[sg]+3}], v[{b0}:{b0+3}], 0")
        a(f"v_mfma_f32_32x32x16_bf16 v[{Dr[sg]}:{Dr[sg]+15}], v[{A1[sg]}:{A1[sg]+3}], v[{b1}:{b1+3}], v[{Dr[sg]}:{Dr[sg]+15}]")
    a(f"""
    v_readfirstlane_b32 s93, v17
    s_waitcnt lgkmcnt(0)
    s_barrier
    ds_read_b128 v[36:39], v8
    ds_read_b128 v[40:43], v8 offset:4096
    ds_read_b128 v[44:47], v8 offset:8192
    s_cmp_ge_u32 s95, 2
    s_cselect_b32 s54, 0x10000000, s54
    s_cselect_b32 s49, 0x10000000, s48
    s_cselect_b32 s40, 0, -1
    s_waitcnt lgkmcnt(2)
    buffer_store_dwordx4 v[36:39], v9, s[28:31], s52 offen {SC}
    s_waitcnt lgkmcnt(1)
    buffer_store_dwordx4 v[40:43], v9, s[28:31], s53 offen {SC}
    s_waitcnt lgkmcnt(0)
    buffer_store_dwordx4 v[44:47], v9, s[28:31], s54 offen {SC}
    s_mov_b32 exec_lo, 0xfffff
    s_and_b32 exec_hi, s40, 0xfffff
    """)
    for sg in range(3):
        d = Dr[sg]
        if sg < 2:
            for r in range(0, 16, 2):
                a(f"v_pk_mul_f32 {P(d+r)}, {P(d+r)}, s[50:51] op_sel_hi:[1,0]")
        o = 64 + 8 * sg
        for r in range(8):
            a(f"v_cvt_pk_bf16_f32 v{o+r}, v{d+2*r}, v{d+2*r+1}")
        a(f"buffer_store_dwordx4 v[{o}:{o+3}], v{120+sg}, s[32:35], s48 offen {SC}")
        a(f"buffer_store_dwordx4 v[{o+4}:{o+7}], v{120+sg}, s[32:35], s49 offen offset:3840 {SC}")
    a("s_mov_b64 exec, -1")
    mmark(a, "p0_st")
    a(f"""
    s_mov_b32 s92, 0
P0_nspin:
    s_cmp_lg_u32 s93, 0
    s_cbranch_scc1 P0_ngo
    s_add_u32 s92, s92, 1
    s_cmp_gt_u32 s92, 20000
    s_cbranch_scc1 P0_ngo
    buffer_load_dword v17, v16, s[64:67], 0 offen sc1
    s_waitcnt vmcnt(0)
    v_readfirstlane_b32 s93, v17
    s_nop 3
    s_branch P0_nspin
P0_ngo:
    """)
    a(f"""
    s_lshl_b32 s40, s44, 4
    s_add_u32 s40, s40, {F1A_O}
    s_lshl_b32 s41, s43, 8
    s_add_u32 s41, s41, {F1B_O}
    s_lshl_b32 s50, s42, 4
    s_add_u32 s50, s50, s41
    v_mov_b32 v10, s50
    v_writelane_b32 v10, s40, 0
    v_mov_b32 v11, s93
    s_lshl_b32 s40, s42, 8
    s_lshl_b32 s50, s95, 6
    s_add_u32 s40, s40, s50
    s_add_u32 s40, s40, {F1A_O}
    v_and_b32 v12, 3, v2
    v_lshl_add_u32 v12, v12, 4, s40
    v_add_u32 v13, s41, v3
    v_cmp_gt_u32 vcc, 16, v2
    v_cndmask_b32 v12, v12, v13, vcc
    s_waitcnt vmcnt(0)
    s_barrier
    s_cmp_lg_u32 s95, 0
    s_cbranch_scc1 P0_sig
    s_mov_b64 exec, 3
    buffer_store_dword v11, v10, s[8:11], 0 offen sc0 sc1
    s_mov_b64 exec, -1
P0_sig:
    """)
    mmark(a, "p0_sig")
    a("s_cmp_lt_u32 s2, 216\ns_cbranch_scc1 P0_nowo2")
    a.reset_counters()
    wo_finish(a, WOL)
    a("s_barrier\nP0_nowo2:")
    a.reset_counters()

def rt_issue(a, LB3, LB4):
    a(f"""
    v_lshrrev_b32 v6, 3, v2
    v_and_b32 v7, 7, v2
    s_cmp_ge_u32 s2, 216
    s_cbranch_scc1 RT_n3
    s_cmp_ge_u32 s2, 108
    s_cselect_b32 s60, 1, 0
    s_cselect_b32 s68, s14, s12
    s_cselect_b32 s69, s15, s13
    s_mov_b32 s70, {640*3456}
    s_mov_b32 s71, 0x20000
    s_mul_i32 s61, s60, 108
    s_sub_u32 s61, s2, s61
    s_and_b32 s62, s61, 3
    s_lshr_b32 s61, s61, 2
    v_mul_u32_u24 v8, 3456, v6
    v_lshl_add_u32 v8, v7, 4, v8
    s_mul_i32 s40, s62, 160
    s_mul_i32 s41, s95, 40
    s_add_u32 s40, s40, s41
    s_mul_i32 s40, s40, 3456
    s_lshl_b32 s41, s61, 7
    s_add_u32 s40, s40, s41
    s_mul_i32 s41, s95, 5120
    """)
    for n in range(5):
        a(f"s_add_u32 m0, s41, {LB3 + 1024*n}")
        a(f"buffer_load_dwordx4 v8, s[68:71], s40 offen nt lds")
        if n < 4: a(f"s_add_u32 s40, s40, {8*3456}")
    a(f"""
RT_n3:
    s_lshl_b32 s40, s2, 1
    s_add_u32 s40, s40, s95
    s_add_u32 s41, s2, {512 - 216}
    s_cmp_lt_u32 s2, 216
    s_cselect_b32 s41, 999, s41
    s_cmp_eq_u32 s95, 2
    s_cselect_b32 s40, s41, s40
    s_cmp_eq_u32 s95, 3
    s_cselect_b32 s40, 999, s40
    s_mov_b32 s18, -1
    s_cmp_ge_u32 s40, 540
    s_cbranch_scc1 RT_n4
    s_mul_i32 s18, s40, 1214
    s_lshr_b32 s18, s18, 16
    s_mul_i32 s19, s18, 54
    s_sub_u32 s19, s40, s19
    """)
    srd(a, 68, 16, 0, 1728 * 1280)
    a(f"""
    v_mul_u32_u24 v8, 1280, v6
    v_lshl_add_u32 v8, v7, 4, v8
    s_mul_i32 s40, s19, {32*1280}
    s_lshl_b32 s41, s18, 7
    s_add_u32 s40, s40, s41
    s_lshl_b32 s41, s95, 12
    """)
    for n in range(4):
        a(f"s_add_u32 m0, s41, {LB4 + 1024*n}")
        a(f"buffer_load_dwordx4 v8, s[68:71], s40 offen nt lds")
        if n < 3: a(f"s_add_u32 s40, s40, {8*1280}")
    a("RT_n4:")

def rt_finish(a, LB3, LB4):
    a(f"""
    v_lshrrev_b32 v6, 4, v2
    v_bfe_u32 v7, v2, 2, 2
    v_lshl_add_u32 v7, v6, 3, v7
    v_lshlrev_b32 v7, 7, v7
    v_and_b32 v8, 3, v2
    v_lshl_add_u32 v7, v8, 3, v7
    s_cmp_ge_u32 s2, 216
    s_cbranch_scc1 RF_n3
    s_lshl_b32 s45, s95, 5
    s_add_u32 s45, s45, {LB3}
    v_add_u32 v8, s45, v7
    """)
    t = []
    for ss in range(5):
        a(f"ds_read_b64_tr_b16 v[{24+4*ss}:{25+4*ss}], v8 offset:{4096*ss}")
        t.append(a.ds(f"ds_read_b64_tr_b16 v[{26+4*ss}:{27+4*ss}], v8 offset:{4096*ss+512}"))
    srd(a, 68, 20, W3_OFF, W3_SZ)
    srd(a, 32, 20, CS_OFF, CS_SZ)
    a(f"""
    v_bfe_u32 v9, v2, 3, 1
    v_and_b32 v12, 7, v2
    v_mul_u32_u24 v10, 20480, v9
    v_lshlrev_b32 v11, 9, v9
    v_lshl_add_u32 v11, v12, 4, v11
    v_lshl_add_u32 v10, v12, 4, v10
    v_lshl_add_u32 v10, v4, 9, v10
    v_xor_b32 v9, s60, v6
    v_and_b32 v9, 1, v9
    v_lshl_add_u32 v10, v9, 7, v10
    s_lshl_b32 s45, s61, 3
    s_lshl_b32 s46, s95, 1
    s_add_u32 s45, s45, s46
    s_mul_i32 s46, s45, 20480
    s_mul_i32 s47, s62, 5120
    s_add_u32 s46, s46, s47
    s_lshl_b32 s47, s60, 8
    s_add_u32 s46, s46, s47
    s_add_u32 s48, s46, 4096
    s_lshl_b32 s45, s45, 9
    s_add_u32 s45, s45, s47
    s_lshr_b32 s47, s62, 1
    s_xor_b32 s47, s47, s60
    s_lshl_b32 s47, s47, 7
    s_add_u32 s45, s45, s47
    s_and_b32 s47, s62, 1
    s_lshl_b32 s47, s47, 3
    s_add_u32 s45, s45, s47
    v_mov_b32 v44, 0x3f803f80
    v_mov_b32 v45, 0x3f803f80
    v_mov_b32 v46, 0x3f803f80
    v_mov_b32 v47, 0x3f803f80
    """)
    for ss in range(5):
        a.wait(lg=t[ss])
        a(f"v_mfma_f32_16x16x32_bf16 v[48:51], v[44:47], v[{24+4*ss}:{27+4*ss}], " + ("0" if ss == 0 else "v[48:51]"))
        so, off = ("s46", 1024 * ss) if ss < 4 else ("s48", 0)
        a(f"buffer_store_dwordx4 v[{24+4*ss}:{27+4*ss}], v10, s[68:71], {so} offen offset:{off} {SC}")
    a(f"""
    v_cvt_pk_bf16_f32 v52, v48, v48
    v_lshlrev_b32 v54, 16, v52
    v_sub_f32 v54, v48, v54
    v_cvt_pk_bf16_f32 v53, v54, v54
    s_mov_b64 exec, 0xffff
    buffer_store_dwordx2 v[52:53], v11, s[32:35], s45 offen {SC}
    s_mov_b64 exec, -1
RF_n3:
    s_cmp_eq_u32 s18, -1
    s_cbranch_scc1 RF_n4
    s_lshl_b32 s45, s95, 12
    s_add_u32 s45, s45, {LB4}
    v_add_u32 v8, s45, v7
    """)
    a.lg_done = a.lg_issued
    t = []
    for f in range(4):
        a(f"ds_read_b64_tr_b16 v[{56+4*f}:{57+4*f}], v8 offset:{32*f}")
        t.append(a.ds(f"ds_read_b64_tr_b16 v[{58+4*f}:{59+4*f}], v8 offset:{32*f+512}"))
    srd(a, 68, 20, W4_OFF, W4_SZ)
    a(f"""
    s_mul_i32 s45, s18, 216
    s_add_u32 s45, s45, s19
    s_lshl_b32 s45, s45, 10
    """)
    for f in range(4):
        a.wait(lg=t[f])
        a(f"buffer_store_dwordx4 v[{56+4*f}:{59+4*f}], v3, s[68:71], s45 offen {SC}")
        if f < 3: a(f"s_add_u32 s45, s45, {54*1024}")
    a("RF_n4:")
    a.lg_done = a.lg_issued
```

```python
import sys, os
sys.path.insert(0, os.path.dirname(os.path.abspath(__file__)))
import common
from common import *
import k0
import mega5 as mega
NAME = "sequential_preLN__linear_kernel_hedgehog__glu_gated_geglu__prompt"
def build(stamps=False, LIST=False):
    common.STAMPS = stamps
    ks = [(NAME + "_kernel", mega.gen_mega(), mega.GRID, mega.LDS)]
    head = open("cdna_kernels/" + NAME + ".s.ref").read().split("; Override launch")[0]
    out = head
    for n, a, g, l in ks:
        out += (f"; @launch kernel={n} " if stamps or LIST else "; @launch ") + f"grid=({g},1,1) block=(256,1,1) lds={l}\n"
    out += ("; One persistent launch, 256 co-resident workgroups. Phases hand data over through d_ws with write-through stores and\n"
            "; flag words that carry a per-launch tag (published in d_debug[0]); every wait is a bounded poll. Generated by gen/*.py.\n")
    out += '.amdgcn_target "amdgcn-amd-amdhsa--gfx950"\n.text\n'
    descs = ""
    for n, a, g, l in ks:
        b, d = kernel_text(n, a)
        out += b
        descs += ".p2align 6\n" + d
    out += "CODE_END:\n  s_endpgm\n"
    if stamps: out += ''.join(f'; mark {n}\n' for n in ks[0][1].mnames)
    out += '.section .rodata,"a"\n' + descs
    return out
if __name__ == "__main__":
    open("cdna_kernels/" + NAME + ".s", "w").write(build())
    open("stamped.s", "w").write(build(stamps=True))
    open("cur.s", "w").write(build(LIST=True))
```

```python
S, D, H, DH, DF = 2048, 640, 32, 20, 1728
XN_OFF, XN_SZ = 0x0, 2621440
W1_OFF, W1_SZ = 0x280000, 16 * 153600
KV_OFF, KV_SZ = 0x4E0000, 32 * 3840
PQ_OFF, PQ_SZ = 0x500000, 64 * 16 * 5120
O_OFF, O_SZ = 0x500000, 128 * 20480
WO_OFF, WO_SZ = 0xA00000, 819200
H_OFF, H_SZ = 0xB00000, 2621440
ST_OFF, ST_SZ = 0xD80000, 64 * 8 * 32 * 8
CS_OFF, CS_SZ = 0xDC0000, 216 * 512
RS_OFF, RS_SZ = 0xDE0000, 4 * 2048 * 4
FL_OFF, FL_SZ = 0xDF0000, 4 * 16384
FO_O = 0
F2_O, F3_O, F4_O = 0, 16384, 32768
F1A_O, F1B_O, F5_O, F2A_O = 49152, 53248, 57344, 61440
W3_OFF, W3_SZ = 0xE00000, 216 * 20480
W4_OFF, W4_SZ = 0x1240000, 40 * 54 * 1024
HH_OFF, HH_SZ = 0x1480000, 128 * 54 * 1024
STAMP_OFF = 0x2000000
LOG2E = 1.4426950408889634
```

```python
from common import *
from asmlib import Ins, need
import common, math, p0, p0b

GRID = 256
LDS = 160 * 1024
C0 = -2.0 * math.sqrt(2.0 / math.pi) * LOG2E
C1 = C0 * 0.044715
SC = "sc1"
POLL_MAX = 20000
P1_PACE = 7

class Paced:
    def __init__(self, a, L, n, gate=None):
        self.a, self.L, self.n, self.c, self.gate = a, L, n, 0, gate
    def __call__(self, text):
        for line in text.strip().split("\n"):
            if not line.strip(): continue
            self.a(line)
            self.c += 1
            if self.c % self.n == 0: self.L.paced(self.gate)

def poll(a, name, voff, soff, tmp):
    a(f"""
    s_mov_b32 s92, 0
{name}:
    buffer_load_dword v{tmp}, v{voff}, s[8:11], {soff} offen sc1
    s_add_u32 s92, s92, 1
    s_cmp_gt_u32 s92, {POLL_MAX}
    s_cbranch_scc1 {name}_go
    s_waitcnt vmcnt(0)
    v_cmp_ne_u32 vcc, s93, v{tmp}
    s_nop 4
    s_cbranch_vccnz {name}
{name}_go:
    s_waitcnt vmcnt(0)
    """)
    a.vm_done = a.vm_issued

def signal(a, soff, tmp):
    a(f"""
    s_mov_b64 exec, 1
    v_mov_b32 v{tmp}, s93
    v_mov_b32 v{tmp+1}, 0
    buffer_store_dword v{tmp}, v{tmp+1}, s[8:11], {soff} offen sc0 sc1
    s_mov_b64 exec, -1
    """)

def softmax_pair(a, P, E, O, tmp):
    mx, mn = tmp, tmp + 2
    a(f"v_max3_f32 v{mx}, v{P}, v{P+1}, v{P+2}")
    a(f"v_min3_f32 v{mn}, v{P}, v{P+1}, v{P+2}")
    for i in range(3, 19, 2):
        a(f"v_max3_f32 v{mx}, v{mx}, v{P+i}, v{P+i+1}")
        a(f"v_min3_f32 v{mn}, v{mn}, v{P+i}, v{P+i+1}")
    a(f"v_max_f32 v{mx}, v{mx}, v{P+19}")
    a(f"v_min_f32 v{mn}, v{mn}, v{P+19}")
    for i in range(0, 20, 2):
        a(f"v_pk_add_f32 v[{E+i}:{E+i+1}], v[{P+i}:{P+i+1}], v[{mx}:{mx+1}] op_sel_hi:[1,0] neg_lo:[0,1] neg_hi:[0,1]")
        a(f"v_pk_add_f32 v[{E+20+i}:{E+21+i}], v[{P+i}:{P+i+1}], v[{mn}:{mn+1}] op_sel_hi:[1,0] neg_lo:[1,0] neg_hi:[1,0]")
    for i in range(40):
        a(f"v_exp_f32 v{E+i}, v{E+i}")
    sp, sn = tmp, tmp + 2
    a(f"v_pk_add_f32 v[{sp}:{sp+1}], v[{E}:{E+1}], v[{E+2}:{E+3}]")
    a(f"v_pk_add_f32 v[{sn}:{sn+1}], v[{E+20}:{E+21}], v[{E+22}:{E+23}]")
    for i in range(4, 20, 2):
        a(f"v_pk_add_f32 v[{sp}:{sp+1}], v[{sp}:{sp+1}], v[{E+i}:{E+i+1}]")
        a(f"v_pk_add_f32 v[{sn}:{sn+1}], v[{sn}:{sn+1}], v[{E+20+i}:{E+21+i}]")
    a(f"v_add_f32 v{sp}, v{sp}, v{sp+1}")
    a(f"v_add_f32 v{sn}, v{sn}, v{sn+1}")
    a(f"v_rcp_f32 v{sp}, v{sp}")
    a(f"v_rcp_f32 v{sn}, v{sn}")
    for i in range(0, 20, 2):
        a(f"v_pk_mul_f32 v[{E+i}:{E+i+1}], v[{E+i}:{E+i+1}], v[{sp}:{sp+1}] op_sel_hi:[1,0]")
        a(f"v_pk_mul_f32 v[{E+20+i}:{E+21+i}], v[{E+20+i}:{E+21+i}], v[{sn}:{sn+1}] op_sel_hi:[1,0]")
    for i in range(20):
        a(f"v_cvt_pk_bf16_f32 v{O+i}, v{E+2*i}, v{E+2*i+1}")

def map_p1(a, rb, hp, t):
    a(f"""
    s_bfe_u32 s{rb}, s2, 0x20001
    s_lshl_b32 s{rb}, s{rb}, 2
    s_bfe_u32 s{t}, s2, 0x20003
    s_add_u32 s{rb}, s{rb}, s{t}
    s_and_b32 s{hp}, s2, 1
    s_lshl_b32 s{hp}, s{hp}, 3
    s_lshr_b32 s{t}, s2, 5
    s_add_u32 s{hp}, s{hp}, s{t}
    """)
def map_p2(a, tb, nb, t):
    a(f"""
    s_and_b32 s{tb}, s2, 7
    s_lshl_b32 s{tb}, s{tb}, 3
    s_bfe_u32 s{t}, s2, 0x30003
    s_add_u32 s{tb}, s{tb}, s{t}
    s_lshr_b32 s{nb}, s2, 6
    """)
def map_p3(a, rb, cb, t):
    a(f"""
    s_bfe_u32 s{rb}, s2, 0x10002
    s_lshl_b32 s{rb}, s{rb}, 3
    s_bfe_u32 s{t}, s2, 0x30003
    s_add_u32 s{rb}, s{rb}, s{t}
    s_and_b32 s{cb}, s2, 3
    s_lshl_b32 s{cb}, s{cb}, 2
    s_lshr_b32 s{t}, s2, 6
    s_add_u32 s{cb}, s{cb}, s{t}
    """)
def map_p4(a, rb, nb, t):
    a(f"""
    s_bfe_u32 s{rb}, s2, 0x20001
    s_lshl_b32 s{rb}, s{rb}, 3
    s_bfe_u32 s{t}, s2, 0x30003
    s_add_u32 s{rb}, s{rb}, s{t}
    s_and_b32 s{nb}, s2, 1
    s_lshl_b32 s{nb}, s{nb}, 2
    s_lshr_b32 s{t}, s2, 6
    s_add_u32 s{nb}, s{nb}, s{t}
    """)

def w3_dma(L, T, gate=None):
    reg = [81920, 122880, 0, 40960, 81920, 122880, 0][T]
    sr = 12 if T < 2 else (16 if T < 6 else 68)
    for c in range(10):
        grp = 0 if c < 4 else (4 if c < 8 else 8)
        L.add(f"buffer_load_dwordx4 v3, s[{sr}:{sr+3}], m0 offen offset:{1024*(c-grp)} {SC} lds", gate=gate,
              pre=f"s_add_u32 m0, s3, {reg + 1024*c}" if c == grp else None, tag=('W3', T) if c == 9 else None)

def check_flags(a, name, regs, voff, soff, wide):
    def test(x):
        if wide:
            x(f"v_xor_b32 v{regs}, s93, v{regs}\nv_xor_b32 v{regs+1}, s93, v{regs+1}\nv_xor_b32 v{regs+2}, s93, v{regs+2}\nv_xor_b32 v{regs+3}, s93, v{regs+3}")
            x(f"v_or3_b32 v{regs}, v{regs}, v{regs+1}, v{regs+2}\nv_or_b32 v{regs}, v{regs}, v{regs+3}\nv_cmp_ne_u32 vcc, 0, v{regs}")
        else:
            x(f"v_cmp_ne_u32 vcc, s93, v{regs}")
    test(a)
    a(f"s_mov_b32 s92, 0\ns_nop 3\ns_cbranch_vccz {name}_ok")
    b = Asm()
    b(f"{name}:")
    b(f"buffer_load_dwordx4 v[{regs}:{regs+3}], v{voff}, s[8:11], {soff} offen sc1" if wide else f"buffer_load_dword v{regs}, v{voff}, s[8:11], {soff} offen sc1")
    b(f"s_add_u32 s92, s92, 1\ns_waitcnt vmcnt(0)\ns_cmp_gt_u32 s92, {POLL_MAX}\ns_cbranch_scc1 {name}_ok")
    test(b)
    b(f"s_nop 4\ns_cbranch_vccnz {name}")
    a.ins += b.ins
    a(f"{name}_ok:")

def gen_mega():
    a = Asm()
    a(f"""
    s_memrealtime s[98:99]
    s_load_dwordx2 s[20:21], s[0:1], 80
    s_load_dwordx2 s[4:5], s[0:1], 0
    s_load_dwordx4 s[12:15], s[0:1], 8
    s_load_dwordx2 s[16:17], s[0:1], 24
    s_load_dwordx2 s[6:7], s[0:1], 64
    s_load_dwordx2 s[18:19], s[0:1], 72
    s_load_dwordx4 s[56:59], s[0:1], 40
    s_load_dwordx2 s[62:63], s[0:1], 56
    v_lshrrev_b32 v1, 6, v0
    v_and_b32 v2, 63, v0
    v_readfirstlane_b32 s95, v1
    s_cmp_ge_u32 s2, {GRID}
    s_cbranch_scc1 M_exit
    """)
    mstamp_begin(a)
    a(f"""
    v_lshlrev_b32 v3, 4, v2
    v_lshrrev_b32 v4, 5, v2
    v_and_b32 v5, 31, v2
    s_mul_i32 s3, s95, 10240
    """)
    map_p1(a, 42, 43, 40)
    p0b.p0(a, 2)
    rt_ld, rt_rd, rt_cs, rt_cs2, rt_st = p0b.rt_setup(a)
    a(f"""
    s_lshl_b32 s44, s42, 2
    s_add_u32 s44, s44, s95
    s_mul_i32 s45, s44, 40960
    s_mul_i32 s46, s43, 153600
    s_lshl_b32 s47, s95, 12
    s_lshl_b32 s48, s95, 11
    """)
    srd(a, 24, 20, XN_OFF, XN_SZ)
    srd_dyn(a, 28, 20, W1_OFF, 46, 153600)
    mspill(a)
    poll(a, "M_poll1", 12, "0", 9)
    mmark(a, "p1_sync")
    L = Loads(a, 28)
    for n in range(10):
        cnt = 4 if n < 9 else 2
        g = 15 if n >= 7 else None
        L.add(f"buffer_load_dwordx4 a[{16*n}:{16*n+3}], v3, s[24:27], s45 offen {SC}", pre=f"s_add_u32 m0, s{47 if n < 9 else 48}, {16384*n}", gate=g)
        for c in range(cnt):
            L.add(f"buffer_load_dwordx4 v3, s[28:31], m0 offen offset:{1024*c} {SC} lds", gate=g)
        for c in range(1, 4):
            L.add(f"buffer_load_dwordx4 a[{16*n+4*c}:{16*n+4*c+3}], v3, s[24:27], s45 offen offset:{1024*c} {SC}",
                  tag=n if c == 3 else None, post="s_add_u32 s45, s45, 4096" if c == 3 and n < 9 else None, gate=g)
        if n == 2:
            for pr, tx_, po in rt_ld: L.add(tx_, pre=pr, post=po)
    L.pump(16)
    srd(a, 64, 20, WO_OFF, WO_SZ)
    map_p4(a, 100, 101, 40)
    a(f"""
    s_mul_i32 s40, s101, 5
    s_lshr_b32 s40, s40, 2
    s_mul_i32 s40, s40, 20
    s_mul_i32 s41, s95, 5
    s_add_u32 s40, s40, s41
    s_lshl_b32 s40, s40, 4
    s_add_u32 s40, s40, {F1A_O}
    v_and_b32 v62, 7, v2
    v_min_u32 v62, 4, v62
    v_lshl_add_u32 v62, v62, 4, s40
    v_bfe_u32 v63, v2, 3, 1
    v_mul_u32_u24 v63, 320, v63
    v_add_u32 v62, v62, v63
    s_mul_i32 s22, s101, 100
    s_add_u32 s22, s22, s41
    s_lshl_b32 s22, s22, 10
    """)
    L.add("buffer_load_dword v63, v62, s[8:11], 0 offen sc1", tag='f6')
    for n_, (tx_, po) in enumerate(rt_st): L.add(tx_, post=po, gate=22, tag='rts' if n_ == 9 else None)
    def woreg(T, k):
        r = 156 + 4 * ((5 * T + k + 1) % 25)
        return f"a[{r}:{r+3}]"
    for T in range(5):
        for k in range(5):
            L.add(f"buffer_load_dwordx4 {woreg(T, k)}, v3, s[64:67], s23 offen offset:{1024*(k%4)} {SC}",
                  pre=f"s_add_u32 s23, s22, {T*20480 + 4096*(k//4)}" if k % 4 == 0 else None, gate=(50 if (T, k) == (4, 4) else 36))
    a(f"""
    v_lshlrev_b32 v6, 7, v4
    v_sub_u32 v6, v3, v6
    v_add_u32 v7, {16*3840}, v3
    v_add_u32 v8, {16*3840}, v6
    v_add_u32 v9, {32*3840}, v3
    v_add_u32 v10, {32*3840}, v6
    """)
    ACC = 64; WF = 24
    def rd(s, T):
        win = s // 16
        base = [(3, 6), (7, 8), (9, 10)][win][1 if T == 3 else 0]
        off = (s - 16 * win) * 3840 + T * 1024
        r = WF + 4 * ((s % 2) * 4 + T)
        return a.ds(f"ds_read_b128 v[{r}:{r+3}], v{base} offset:{off}")
    tR = {}
    L.need(0)
    a("s_barrier")
    mmark(a, "p1_first")
    for T in range(4): tR[(0, T)] = rd(0, T)
    for s in range(40):
        nxt = s + 1
        if nxt < 40 and nxt % 4 == 0:
            L.need(nxt // 4, gate=s - 1)
            a("s_barrier")
        if s == 36:
            L.need('f6', gate=s - 1)
            check_flags(a, "M_f6", 63, 62, "0", False)
        for T in range(4):
            if nxt < 40: tR[(nxt, T)] = rd(nxt, T)
            if T % 2 == 0: a.wait(lg=tR[(s, T + 1)])
            r = WF + 4 * ((s % 2) * 4 + T)
            d = ACC + 16 * T
            a(f"v_mfma_f32_32x32x16_bf16 v[{d}:{d+15}], v[{r}:{r+3}], a[{4*s}:{4*s+3}], " + ("0" if s == 0 else f"v[{d}:{d+15}]"))
            if 11 <= s < 14 and rt_rd:
                a(rt_rd.pop(0))
                if T % 2: a(rt_rd.pop(0))
            elif s == 17 and T == 0:
                for x_ in rt_cs: a(x_)
            elif s == 20:
                a(rt_cs2.pop(0))
            if T % 2 == 0 or (T == 3 and s < 12):
                if s >= 28: L.paced(gate=s)
                else: L.pump(1, gate=s)
    assert not rt_rd and 'rts' in L.t
    srd(a, 32, 20, KV_OFF, KV_SZ)
    a(f"""
    s_lshl_b32 s50, s95, 5
    v_add_u32 v11, s50, v5
    v_mul_u32_u24 v11, 272, v11
    v_lshl_add_u32 v11, v4, 7, v11
    s_barrier
    """)
    mmark(a, "p1_loop")
    XL = 61440
    srd(a, 68, 4, 0, 2621440)
    a(f"""
    s_lshl_b32 s40, s100, 2
    s_add_u32 s40, s40, s95
    s_mul_i32 s40, s40, {16*1280}
    s_mul_i32 s41, s101, 160
    s_add_u32 s40, s40, s41
    s_mul_i32 s41, s95, 2560
    s_movk_i32 s45, 6554
    """)
    for n in range(3):
        a(f"""
        v_add_u32 v8, {64*n}, v2
        v_mul_u32_u24 v9, s45, v8
        v_lshrrev_b32 v9, 16, v9
        v_mul_u32_u24 v9, {1280-160}, v9
        v_lshl_add_u32 v8, v8, 4, v9
        s_add_u32 m0, s41, {XL + 1024*n}
        """)
        if n == 2: a("s_mov_b32 exec_hi, 0")
        tRT = a.vm("buffer_load_dwordx4 v8, s[68:71], s40 offen nt lds")
    a("s_mov_b32 exec_hi, -1")
    pa = Paced(a, L, P1_PACE, gate=99)
    E, O, TMP, VP = 128, 168, 12, 188
    for i in range(9):
        a(f"v_cvt_pk_bf16_f32 v{VP+i}, v{84+2*i}, v{85+2*i}")
    a(f"v_mov_b32 v{VP+9}, 0x3f80\nv_cvt_pk_bf16_f32 v{VP+10}, v102, v103\nv_mov_b32 v{VP+11}, 0x3f80")
    for c in range(3):
        a(f"ds_write_b128 v11, v[{VP+4*c}:{VP+4*c+3}] offset:{80+16*c}")
    softmax_pair(pa, 64, E, O, TMP)
    for c in range(5):
        a(f"ds_write_b128 v11, v[{O+4*c}:{O+4*c+3}] offset:{16*c}")
    a(f"""
    v_bfe_u32 v56, v2, 2, 2
    v_lshlrev_b32 v56, 2, v56
    v_lshl_add_u32 v56, v4, 1, v56
    v_mul_u32_u24 v56, 272, v56
    v_bfe_u32 v57, v2, 4, 1
    v_lshl_add_u32 v56, v57, 5, v56
    v_and_b32 v57, 3, v2
    v_lshl_add_u32 v56, v57, 3, v56
    s_lshr_b32 s51, s95, 1
    s_and_b32 s52, s95, 1
    s_lshl_b32 s53, s51, 7
    v_add_u32 v56, s53, v56
    s_mul_i32 s53, s52, 40
    v_add_u32 v57, s53, v56
    """)
    a.wait_all_lg()
    L.need('rts')
    a("s_barrier")
    mmark(a, "p1_ksm")
    a(f"""
    s_lshl_b32 s40, s2, 4
    s_add_u32 s40, s40, {F5_O}
    s_cmp_lg_u32 s95, 3
    s_cselect_b32 s40, 0x1000000, s40
    """)
    signal(a, "s40", 8)
    tk = []
    FA, FB, KD = 128, 200, 24
    def kvm(k2):
        a.wait(lg=tk[k2])
        a(f"v_mfma_f32_32x32x16_bf16 v[{KD}:{KD+15}], v[{FA+4*k2}:{FA+4*k2+3}], v[{FB+4*k2}:{FB+4*k2+3}], " + ("0" if k2 == 0 else f"v[{KD}:{KD+15}]"))
    for ks in range(8):
        for rho in range(2):
            off = (16 * ks + rho) * 272
            a(f"ds_read_b64_tr_b16 v[{FA+4*ks+2*rho}:{FA+4*ks+2*rho+1}], v57 offset:{off}")
            t = a.ds(f"ds_read_b64_tr_b16 v[{FB+4*ks+2*rho}:{FB+4*ks+2*rho+1}], v56 offset:{off+80}")
        tk.append(t)
        if ks >= 2: kvm(ks - 2)
    kvm(6); kvm(7)
    a(f"""
    s_add_u32 s53, s47, 40960
    v_mul_u32_u24 v58, 384, v4
    v_lshl_add_u32 v58, v5, 4, v58
    v_add_u32 v58, s53, v58
    v_lshl_add_u32 v59, v2, 2, s53
    v_lshlrev_b32 v60, 2, v2
    s_lshl_b32 s54, s43, 1
    s_add_u32 s54, s54, s51
    s_mul_i32 s54, s54, 3840
    s_mul_i32 s55, s52, 1920
    s_add_u32 s54, s54, s55
    v_cmp_gt_u32 vcc, 24, v5
    s_and_saveexec_b64 s[56:57], vcc
    """)
    for c in range(3):
        a(f"ds_write_b128 v58, v[{KD+4*c}:{KD+3+4*c}] offset:{768*c}")
    a("s_mov_b64 exec, s[56:57]")
    a.wait_all_lg()
    tk = [a.ds(f"ds_read_b32 v{40+i}, v59 offset:{256*i}") for i in range(8)]
    if a.vm_issued - a.vm_done > 40: a.wait(vm=a.vm_issued - 24)
    for i in range(8):
        a.wait(lg=tk[i])
        if i == 7: a("s_mov_b32 exec_hi, 0")
        a(f"buffer_atomic_add_f32 v{40+i}, v60, s[32:35], s54 offen offset:{256*i}")
    a("s_mov_b64 exec, -1")
    mmark(a, "p1_atom")
    tat = a.vm_issued
    softmax_pair(a, 104, E, O, TMP)
    P = lambda r: f"v[{r}:{r+1}]"
    for c in (0, 2):
        for j in range(4):
            a(f"v_permlane32_swap_b32 v{O+4*c+j}, v{O+4*c+4+j}")
    mmark(a, "p1_qsm")
    a(f"""
    s_lshl_b32 s40, s43, 4
    s_add_u32 s40, s40, s42
    s_lshl_b32 s40, s40, 4
    s_add_u32 s40, s40, {F2A_O}
    """)
    a.wait(vm=tat)
    a("s_barrier")
    a("s_cmp_lg_u32 s95, 0\ns_cbranch_scc1 M_s2")
    signal(a, "s40", 8)
    a("M_s2:")
    mmark(a, "p1_sig")
    a.vm_done = a.vm_issued
    srd(a, 24, 20, KV_OFF, KV_SZ)
    srd(a, 28, 20, O_OFF, O_SZ)
    a(f"""
    v_min_u32 v6, 23, v5
    v_lshlrev_b32 v6, 4, v6
    v_mul_u32_u24 v7, 3840, v4
    v_add_u32 v7, v7, v6
    v_mul_u32_u24 v8, 768, v4
    v_add_u32 v6, v8, v6
    s_mul_i32 s45, s43, 7680
    s_add_u32 s46, s45, 3840
    v_and_b32 v8, 15, v2
    v_lshlrev_b32 v8, 4, v8
    s_lshl_b32 s47, s43, 8
    s_add_u32 s47, s47, {F2A_O}
    v_lshrrev_b32 v10, 4, v5
    v_mul_u32_u24 v10, 20480, v10
    v_add_u32 v10, v10, v8
    v_lshl_add_u32 v11, v4, 8, v10
    s_mul_i32 s48, s44, 40960
    s_mul_i32 s49, s43, 1280
    s_add_u32 s48, s48, s49
    s_lshl_b32 s49, s44, 4
    s_add_u32 s49, s49, s43
    s_lshl_b32 s49, s49, 4
    s_add_u32 s49, s49, {FO_O}
    """)
    for r in range(12, 20): a(f"v_mov_b32 v{r}, 0")
    mspill(a)
    poll(a, "M_poll2a", 8, "s47", 9)
    mmark(a, "p1b_sync")
    b = 64
    for hh in range(2):
        for u in range(2):
            for e in range(2):
                r = b + 16 * hh + 8 * u + 4 * e
                a(f"buffer_load_dwordx4 v[{r}:{r+3}], v6, s[24:27], s{45+hh} offen offset:{(4*u+e)*384} {SC}")
        if hh == 0:
            for e in range(2):
                r = b + 32 + 4 * e
                t0 = a.vm(f"buffer_load_dwordx4 v[{r}:{r+3}], v7, s[24:27], s45 offen offset:{(8+e)*384} {SC}")
    t1 = a.vm_issued
    OD, OB = [24, 40], 56
    for hh in range(2):
        a.wait(vm=t0 if hh == 0 else t1)
        if hh == 0: mmark(a, "p1b_kv")
        for u in range(2):
            r = b + 16 * hh + 8 * u
            for j in range(4):
                a(f"v_cvt_pk_bf16_f32 v{r+j}, v{r+2*j}, v{r+2*j+1}")
        a("s_mov_b32 exec_hi, 0" if hh == 0 else "s_mov_b32 exec_lo, 0")
        for j in range(4): a(f"v_cvt_pk_bf16_f32 v{12+4*hh+j}, v{b+32+2*j}, v{b+33+2*j}")
        a("s_mov_b64 exec, -1")
        d = OD[hh]
        for u in range(2):
            r = b + 16 * hh + 8 * u
            q = O + 8 * u + 4 * hh
            a(f"v_mfma_f32_32x32x16_bf16 v[{d}:{d+15}], v[{r}:{r+3}], v[{q}:{q+3}], " + ("0" if u == 0 else f"v[{d}:{d+15}]"))
        a(f"v_mfma_f32_32x32x16_bf16 v[{d}:{d+15}], v[{12+4*hh}:{15+4*hh}], v[{O+16}:{O+19}], v[{d}:{d+15}]")
    OB = 104
    for hh in range(2):
        d = OD[hh]
        a(f"v_add_f32 v{d+10}, {f32(1e-6)}, v{d+10}")
        a(f"v_rcp_f32 v{d+10}, v{d+10}")
        for j in range(0, 10, 2):
            a(f"v_pk_mul_f32 {P(d+j)}, {P(d+j)}, {P(d+10)} op_sel_hi:[1,0]")
        for j in range(5):
            a(f"v_cvt_pk_bf16_f32 v{OB+5*hh+j}, v{d+2*j}, v{d+2*j+1}")
        if hh == 0:
            a(f"buffer_store_dwordx4 v[{OB}:{OB+3}], v11, s[28:31], s48 offen {SC}")
    a(f"""
    buffer_store_dwordx4 v[{OB+4}:{OB+7}], v11, s[28:31], s48 offen offset:512 {SC}
    v_permlane32_swap_b32 v{OB+8}, v{OB+10}
    v_permlane32_swap_b32 v{OB+9}, v{OB+11}
    s_mov_b32 exec_hi, 0
    """)
    tst = a.vm(f"buffer_store_dwordx4 v[{OB+8}:{OB+11}], v10, s[28:31], s48 offen offset:1024 {SC}")
    a("s_mov_b32 exec_hi, -1")
    mmark(a, "p1b_st")
    map_p3(a, 60, 61, 40)
    a(f"""
    s_mul_i32 s62, s61, 27
    s_lshr_b32 s62, s62, 1
    s_mul_i32 s40, s62, 20480
    """)
    srd_dyn(a, 12, 20, W3_OFF - 81920, 40, 163840)
    srd_dyn(a, 16, 20, W3_OFF + 81920, 40, 163840)
    srd_dyn(a, 68, 20, W3_OFF + 245760, 40, 40960)
    a.wait(vm=tst)
    signal(a, "s49", 8)
    mmark(a, "p1b_sig")
    L.lim = 60; L.pump(99, gate=99); assert not L.q
    PB2, TB2 = 0, 71680
    srd(a, 24, 20, H_OFF, H_SZ)
    srd(a, 32, 20, ST_OFF, ST_SZ)
    a(f"""
    s_mul_i32 s44, s95, 5
    s_mul_i32 s45, s100, 80
    s_add_u32 s45, s45, s44
    s_lshl_b32 s45, s45, 10
    v_and_b32 v7, 3, v2
    v_lshlrev_b32 v7, 4, v7
    v_bfe_u32 v8, v2, 2, 1
    v_lshl_add_u32 v7, v8, 8, v7
    s_lshl_b32 s46, s100, 9
    s_lshl_b32 s47, s95, 6
    s_add_u32 s46, s46, s47
    s_add_u32 s46, s46, {FO_O}
    s_mul_i32 s47, s95, 15360
    v_add_u32 v6, s47, v3
    """)
    for j in range(1, 4):
        a(f"""
        s_add_u32 s47, s95, {j}
        s_and_b32 s47, s47, 3
        s_mul_i32 s47, s47, 15360
        s_add_u32 s47, s47, {PB2 + (3-j)*5120}
        v_add_u32 v{9+j}, s47, v3
        """)
    a(f"""
    v_and_b32 v13, 15, v2
    v_lshrrev_b32 v14, 4, v2
    v_mul_u32_u24 v17, 160, v13
    v_lshl_add_u32 v17, v14, 3, v17
    s_mul_i32 s51, s95, 2560
    s_add_u32 s52, s51, {XL}
    v_add_u32 v15, s52, v17
    s_add_u32 s51, s51, {TB2}
    v_add_u32 v17, s51, v17
    v_mul_u32_u24 v18, 160, v13
    v_lshl_add_u32 v18, v14, 4, v18
    v_add_u32 v18, s51, v18
    v_lshlrev_b32 v19, 4, v13
    v_lshl_add_u32 v19, v14, 9, v19
    s_lshl_b32 s48, s100, 1
    s_lshr_b32 s49, s95, 1
    s_add_u32 s48, s48, s49
    s_lshl_b32 s53, s48, 3
    s_add_u32 s53, s53, s101
    s_lshl_b32 s53, s53, 8
    s_mul_i32 s48, s48, 40960
    s_mul_i32 s49, s101, 5120
    s_add_u32 s48, s48, s49
    s_and_b32 s49, s95, 1
    s_lshl_b32 s50, s49, 7
    s_add_u32 s53, s53, s50
    s_lshl_b32 s49, s49, 8
    s_add_u32 s48, s48, s49
    s_add_u32 s49, s48, 4096
    s_lshl_b32 s56, s100, 2
    s_add_u32 s56, s56, s95
    s_lshl_b32 s56, s56, 3
    s_add_u32 s56, s56, s101
    s_lshl_b32 s56, s56, 4
    s_add_u32 s56, s56, {F3_O}
    s_mov_b32 s54, 0xffff0000
    s_lshr_b32 s50, s62, 3
    s_lshl_b32 s50, s50, 2
    v_min_u32 v20, 11, v13
    v_add_u32 v20, s50, v20
    v_min_u32 v20, 107, v20
    v_and_b32 v21, 1, v14
    v_mul_u32_u24 v16, 108, v21
    v_add_u32 v20, v20, v16
    s_mul_i32 s50, s101, 5
    s_lshr_b32 s50, s50, 2
    s_mul_i32 s50, s50, 54
    s_mul_i32 s51, s95, 14
    s_add_u32 s50, s50, s51
    v_min_u32 v16, 13, v13
    v_mul_u32_u24 v21, 54, v21
    v_add3_u32 v16, v16, v21, s50
    v_min_u32 v16, 539, v16
    v_lshrrev_b32 v21, 1, v16
    v_subrev_u32 v22, {512-216}, v16
    v_cmp_le_u32 vcc, 512, v16
    v_cndmask_b32 v16, v21, v22, vcc
    v_cmp_le_u32 vcc, 32, v2
    v_cndmask_b32 v20, v20, v16, vcc
    v_lshlrev_b32 v20, 4, v20
    s_mov_b32 s57, {F5_O}
    """)
    tx = [a.ds(f"ds_read_b64 v[{112+2*T}:{113+2*T}], v15 offset:{32*T}") for T in range(5)]
    A4 = [72, 92]; RS_, PS = 24, 44
    a.wait(lg=tx[4])
    for j in range(10):
        a(f"v_lshlrev_b32 v{128+2*j}, 16, v{112+j}")
        a(f"v_and_b32 v{129+2*j}, s54, v{112+j}")
    mspill(a)
    poll(a, "M_poll2b", 7, "s46", 9)
    mmark(a, "p2_sync")
    L = Loads(a, 40)
    order = [(sl, k) for sl in (1, 2, 3, 0) for k in range(5)]
    for i, (sl, k) in enumerate(order):
        pre = None
        if k == 0:
            pre = f"s_add_u32 s55, s95, {sl}\ns_and_b32 s55, s55, 3\ns_mul_i32 s55, s55, 20480\ns_add_u32 s55, s55, s45"
        elif k == 4:
            pre = "s_add_u32 s55, s55, 4096"
        L.add(f"buffer_load_dwordx4 a[{4*i}:{4*i+3}], v3, s[28:31], s55 offen offset:{1024*(k%4)} {SC}", pre=pre, tag=i)
        if i == 9: L.add("buffer_load_dword v21, v20, s[8:11], s57 offen sc1", tag='f5')
    w3_dma(L, 0, 3); w3_dma(L, 1, 3)
    L.pump(12)
    ACC2 = [72, 92, 72, 128]
    def flush_p(ph):
        dp = ACC2[ph]
        for T in range(5):
            a(f"ds_write_b128 v6, v[{dp+4*T}:{dp+4*T+3}] offset:{ph*5120 + T*1024}")
    gate = None
    for i, (sl, k) in enumerate(order):
        ph = i // 5
        d = ACC2[ph]
        L.need(i)
        if i == 0: mmark(a, "p2_first")
        if i == 11:
            check_flags(a, "M_f5", 21, 20, "s57", False); gate = 3
        for T in range(5):
            a(f"v_mfma_f32_16x16x32_bf16 v[{d+4*T}:{d+4*T+3}], {woreg(T, k)}, a[{4*i}:{4*i+3}], " + ("0" if k == 0 and ph < 3 else f"v[{d+4*T}:{d+4*T+3}]"))
            if T in (1, 3): L.pump(1, gate=gate)
        if k == 1 and ph > 0: flush_p(ph - 1)
    a.wait_all_lg()
    a("s_barrier")
    mmark(a, "p2_bar")
    tk = []
    for j, rb in enumerate((RS_, PS, A4[0])):
        for T in range(5):
            t = a.ds(f"ds_read_b128 v[{rb+4*T}:{rb+4*T+3}], v{10+j} offset:{1024*T}")
        tk.append(t)
    L.pump(99, gate=3)
    assert not L.q
    a("v_mov_b32 v14, 0x3f803f80\nv_mov_b32 v112, 0\nv_mov_b32 v113, 0")
    for j, rb in enumerate((RS_, PS, A4[0])):
        a.wait(lg=tk[j])
        for r in range(0, 20, 2):
            a(f"v_pk_add_f32 {P(128+r)}, {P(128+r)}, {P(rb+r)}")
    for j in range(10):
        a(f"v_cvt_pk_bf16_f32 v{RS_+j}, v{128+2*j}, v{129+2*j}")
    for T in range(5):
        a(f"ds_write_b64 v17, v[{RS_+2*T}:{RS_+2*T+1}] offset:{32*T}")
    for j in range(10):
        a(f"v_dot2c_f32_bf16 v112, v{RS_+j}, v14")
        a(f"v_dot2c_f32_bf16 v113, v{RS_+j}, v{RS_+j}")
    a.wait_all_lg()
    tk = [a.ds(f"ds_read_b128 v[{PS+4*it}:{PS+4*it+3}], v18 offset:{64*it}") for it in range(3)]
    a(f"""
    v_mov_b32 v114, v112
    v_mov_b32 v115, v113
    v_permlane32_swap_b32 v112, v114
    v_permlane32_swap_b32 v113, v115
    v_pk_add_f32 v[112:113], v[112:113], v[114:115]
    """)
    for it in range(3):
        a.wait(lg=tk[it])
        if it == 2: a("s_mov_b32 exec_hi, 0")
        a(f"buffer_store_dwordx4 v[{PS+4*it}:{PS+4*it+3}], v19, s[24:27], s{48 if it < 2 else 49} offen offset:{2048*(it%2)} {SC}")
    a(f"""
    s_mov_b32 exec_hi, -1
    v_mov_b32 v114, v112
    v_mov_b32 v115, v113
    v_lshlrev_b32 v13, 3, v13
    v_permlane16_swap_b32 v112, v114
    v_permlane16_swap_b32 v113, v115
    v_pk_add_f32 v[112:113], v[112:113], v[114:115]
    s_mov_b64 exec, 0xffff
    """)
    tst = a.vm(f"buffer_store_dwordx2 v[112:113], v13, s[32:35], s53 offen {SC}")
    a("s_mov_b64 exec, -1")
    mmark(a, "p2_st")
    srd(a, 28, 20, ST_OFF, ST_SZ)
    a.wait(vm=tst)
    signal(a, "s56", 8)
    mmark(a, "p2_sig")
    a("s_barrier")
    w3_dma(L, 2); L.pump(99)
    a(f"""
    s_lshl_b32 s44, s60, 2
    s_add_u32 s44, s44, s95
    s_mul_i32 s45, s44, 40960
    v_bfe_u32 v7, v2, 2, 1
    v_bfe_u32 v8, v2, 4, 1
    v_xor_b32 v9, v8, v4
    v_lshlrev_b32 v9, 7, v9
    v_lshl_add_u32 v9, v8, 8, v9
    v_bfe_u32 v8, v2, 3, 1
    v_lshl_add_u32 v9, v8, 6, v9
    v_and_b32 v8, 3, v2
    v_lshl_add_u32 v9, v8, 4, v9
    v_lshl_add_u32 v8, v7, 9, v9
    v_mul_u32_u24 v7, 20480, v7
    v_add_u32 v10, v7, v9
    v_add_u32 v11, 40960, v10
    v_add_u32 v12, 81920, v10
    v_add_u32 v13, 122880, v10
    """)
    srd(a, 36, 20, CS_OFF, CS_SZ)
    a("s_lshl_b32 s48, s62, 9\ns_add_u32 s49, s48, 4096")
    for T in range(7):
        a(f"buffer_load_dwordx4 a[{160+4*T}:{163+4*T}], v8, s[36:39], s{48 if T < 4 else 49} offen offset:{1024*(T%4)} {SC}")
    srd(a, 36, 20, HH_OFF, HH_SZ)
    srd(a, 32, 20, RS_OFF, RS_SZ)
    a(f"""
    v_lshlrev_b32 v6, 3, v5
    v_lshl_add_u32 v6, v4, 10, v6
    s_lshl_b32 s48, s44, 11
    v_lshrrev_b32 v20, 4, v5
    v_mul_u32_u24 v20, 55296, v20
    v_and_b32 v21, 15, v2
    v_lshlrev_b32 v7, 4, v21
    v_add_u32 v20, v7, v20
    v_lshl_add_u32 v20, v4, 8, v20
    s_mul_i32 s50, s44, 110592
    s_lshl_b32 s51, s62, 8
    s_add_u32 s50, s50, s51
    s_lshl_b32 s51, s44, 8
    s_add_u32 s51, s51, {F3_O}
    s_lshr_b32 s52, s61, 2
    s_lshl_b32 s52, s52, 13
    s_lshl_b32 s53, s44, 7
    s_add_u32 s52, s52, s53
    s_and_b32 s53, s61, 3
    s_cmp_eq_u32 s53, 1
    s_cselect_b32 s52, s52, 0x1000000
    """)
    mspill(a)
    poll(a, "M_poll3", 7, "s51", 9)
    mmark(a, "p3_sync")
    L = Loads(a, 28)
    SR = 112
    for n in range(40):
        L.add(f"buffer_load_dwordx4 a[{4*n}:{4*n+3}], v3, s[24:27], s45 offen offset:{1024*(n%4)} {SC}", tag=n,
              post="s_add_u32 s45, s45, 4096" if n % 4 == 3 else None)
        if n == 11:
            for p in range(4):
                L.add(f"buffer_load_dwordx2 v[{SR+2*p}:{SR+2*p+1}], v6, s[28:31], s48 offen offset:{256*p} {SC}", tag='st' if p == 3 else None)
    w3_dma(L, 3)
    L.pump(12)
    ACB = [80, 96, 112, 128]
    WF, NB, TMP, OUT = 24, 10, 64, [72, 76]
    REG = [12, 13, 10, 11, 12, 13, 10]
    seq = [(T, s) for s in range(40) for T in (0, 1)] + [(T, s) for T in range(2, 7) for s in range(40)]
    frs = {}
    nrd = [0]
    def rd3():
        i = nrd[0]
        if i >= len(seq): return
        T, s = seq[i]
        r = WF + 4 * (i % NB)
        frs[i] = (r, a.ds(f"ds_read_b128 v[{r}:{r+3}], v{REG[T]} offset:{512*s}"))
        nrd[0] += 1
    def epi(T, pk):
        d, out, tmp = ACB[T % 4], OUT[T % 2], TMP
        Lx = []
        if pk:
            for j in range(0, 8, 2): Lx.append(f"v_pk_mul_f32 {P(tmp+j)}, {P(d+j)}, {P(d+j)}")
            for j in range(0, 8, 2): Lx.append(f"v_pk_fma_f32 {P(tmp+j)}, {P(tmp+j)}, v[14:15], v[14:15] op_sel:[0,1,0] op_sel_hi:[1,1,0]")
            for j in range(0, 8, 2): Lx.append(f"v_pk_mul_f32 {P(tmp+j)}, {P(tmp+j)}, {P(d+j)}")
            for j in range(8): Lx.append(f"v_exp_f32 v{tmp+j}, v{tmp+j}")
            for j in range(0, 8, 2): Lx.append(f"v_pk_mul_f32 {P(d+j)}, {P(d+j)}, {P(d+8+j)}")
            for j in range(0, 8, 2): Lx.append(f"v_pk_add_f32 {P(tmp+j)}, {P(tmp+j)}, 1.0 op_sel_hi:[1,0]")
            for j in range(8): Lx.append(f"v_rcp_f32 v{tmp+j}, v{tmp+j}")
            for j in range(0, 8, 2): Lx.append(f"v_pk_mul_f32 {P(d+j)}, {P(d+j)}, {P(tmp+j)}")
        else:
            for j in range(8): Lx.append(f"v_mul_f32 v{tmp+j}, v{d+j}, v{d+j}")
            for j in range(8): Lx.append(f"v_fma_f32 v{tmp+j}, v{tmp+j}, v15, v14")
            for j in range(8): Lx.append(f"v_mul_f32 v{tmp+j}, v{tmp+j}, v{d+j}")
            for j in range(8):
                Lx.append(f"v_exp_f32 v{tmp+j}, v{tmp+j}")
                Lx.append(f"v_mul_f32 v{d+j}, v{d+j}, v{d+8+j}")
            for j in range(8): Lx.append(f"v_add_f32 v{tmp+j}, 1.0, v{tmp+j}")
            for j in range(8):
                Lx.append(f"v_rcp_f32 v{tmp+j}, v{tmp+j}")
                if j >= 1: Lx.append(f"v_mul_f32 v{d+j-1}, v{d+j-1}, v{tmp+j-1}")
            Lx.append(f"v_cvt_pk_bf16_f32 v{out}, v{d}, v{d+1}")
            Lx.append(f"v_mul_f32 v{d+7}, v{d+7}, v{tmp+7}")
        for j in range(0 if pk else 1, 4): Lx.append(f"v_cvt_pk_bf16_f32 v{out+j}, v{d+2*j}, v{d+2*j+1}")
        Lx.append(f"buffer_store_dwordx4 v[{out}:{out+3}], v20, s[36:39], s50 offen offset:{512*T} {SC}")
        return [(T, x) for x in Lx]
    stats = f"""
    v_add_f32 v{SR+0}, v{SR+0}, v{SR+2}
    v_add_f32 v{SR+1}, v{SR+1}, v{SR+3}
    v_add_f32 v{SR+4}, v{SR+4}, v{SR+6}
    v_add_f32 v{SR+5}, v{SR+5}, v{SR+7}
    v_add_f32 v{SR+0}, v{SR+0}, v{SR+4}
    v_add_f32 v{SR+1}, v{SR+1}, v{SR+5}
    v_mov_b32 v{SR+2}, v{SR}
    v_mov_b32 v{SR+3}, v{SR+1}
    v_permlane32_swap_b32 v{SR}, v{SR+2}
    v_permlane32_swap_b32 v{SR+1}, v{SR+3}
    v_add_f32 v{SR}, v{SR}, v{SR+2}
    v_add_f32 v{SR+1}, v{SR+1}, v{SR+3}
    v_mul_f32 v{SR}, {f32(-1.0/640)}, v{SR}
    v_mul_f32 v{SR+1}, {f32(1.0/640)}, v{SR+1}
    v_fma_f32 v{SR+1}, -v{SR}, v{SR}, v{SR+1}
    v_max_f32 v{SR+1}, 0, v{SR+1}
    v_add_f32 v{SR+1}, {f32(1e-5)}, v{SR+1}
    v_rsq_f32 v{SR+1}, v{SR+1}
    v_cvt_pk_bf16_f32 v{SR+2}, v{SR}, v{SR}
    v_lshlrev_b32 v{SR+2}, 16, v{SR+2}
    v_sub_f32 v{SR+3}, v{SR}, v{SR+2}
    v_cvt_pk_bf16_f32 v16, v{SR+2}, v{SR+3}
    v_mul_f32 v22, v{SR+1}, v{SR+1}
    v_mov_b32 v17, v16
    v_mov_b32 v18, v16
    v_mov_b32 v19, v16
    v_mul_f32 v14, {f32(C0)}, v{SR+1}
    v_mul_f32 v15, {f32(C1)}, v{SR+1}
    v_mul_f32 v15, v15, v22
    v_lshlrev_b32 v21, 2, v5
    buffer_store_dword v22, v21, s[32:35], s52 offen {SC}
    """.strip().split("\n")
    pending = []
    def w4reg(i):
        if i < 28: return f"v[{144+4*i}:{147+4*i}]"
        if i < 45: return f"a[{188+4*(i-28)}:{191+4*(i-28)}]"
        if i < 68: return f"a[{96+4*(i-45)}:{99+4*(i-45)}]"
        return f"v[{128+4*(i-68)}:{131+4*(i-68)}]"
    def w4_queue(L, lo, hi):
        for i in range(lo, hi):
            T, k = divmod(i, 14)
            L.add(f"buffer_load_dwordx4 {w4reg(i)}, v{1 if k >= 12 else 3}, s[64:67], s23 offen offset:{1024*(k%4)} {SC}",
                  pre=f"s_add_u32 s23, s22, {T*55296 + 4096*(k//4)}" if (k % 4 == 0 or i == lo) else None, tag=('W4', i))
    DIST = 8
    def cost(x):
        x = x.strip()
        return 2 if x.startswith(("v_exp", "v_rcp", "v_rsq", "buffer_")) else 1
    def fill(budget, hold=None):
        while budget > 0 and pending:
            pick = None
            blockW, blockR = set(), set()
            for n, (t, x) in enumerate(pending[:14]):
                ins = Ins(x)
                ok = cost(x) <= budget and t != hold and not (set(ins.r) & blockW) and not (set(ins.w) & (blockW | blockR))
                if ok and any(need(p, ins) > dd for dd, p in enumerate(reversed(a.ins[-2:]))): ok = False
                if ok: pick = n; break
                blockW |= set(ins.w); blockR |= set(ins.r)
            if pick is None: break
            x = pending.pop(pick)[1]
            a(x); budget -= cost(x)
    for _ in range(DIST): rd3()
    for i, (T, s) in enumerate(seq):
        nx = nrd[0]
        if nx < len(seq) and seq[nx][1] == 0 and seq[nx][0] in (2, 3, 4, 6):
            if seq[nx][0] > 2: L.need(('W3', {3: 3, 4: 5, 6: 6}[seq[nx][0]]))
            a("s_barrier")
        rd3()
        budget = 3
        nxt_wait = (i + 1) % 4 == 0
        if T == 0: L.need(s)
        if i == 0: mmark(a, "p3_first")
        if i % 4 == 0: a.wait(lg=frs[min(i + 3, len(seq) - 1)][1])
        r = frs[i][0]
        d = ACB[T % 4]
        if s == 0: assert all(t % 4 != T % 4 for t, _ in pending if t >= 0), "accumulator still pending"
        a(f"v_mfma_f32_32x32x16_bf16 v[{d}:{d+15}], v[{r}:{r+3}], a[{4*s}:{4*s+3}], " + ("0" if s == 0 else f"v[{d}:{d+15}]"))
        if nxt_wait: budget -= 1
        n0 = a.vm_issued
        if T < 2:
            L.pump(1)
            if T == 1: budget -= 1
            if s == 14 and T == 0:
                L.need('st'); pending += [(-1, x) for x in stats]
        elif i % 8 in (1, 3, 6):
            L.paced()
        budget -= 2 * (a.vm_issued - n0)
        fill(budget, hold=(T - 1 if s < 3 else None) if T > 2 else None)
        if s == 39 and T != 0:
            for t in ((0, 1) if T == 1 else (T,)):
                dd = ACB[t % 4]
                assert not any(p[0] == -1 for p in pending)
                a(f"v_mfma_f32_32x32x16_bf16 v[{dd}:{dd+15}], a[{160+4*t}:{163+4*t}], v[16:19], v[{dd}:{dd+15}]")
                if t < 6: pending += epi(t, False)
            mmark(a, f"p3_t{T}")
            if T == 1:
                a("s_barrier")
                w3_dma(L, 4); w3_dma(L, 5)
            if T == 2:
                a("s_barrier")
                w3_dma(L, 6)
                srd(a, 64, 20, W4_OFF, W4_SZ)
                a(f"""
                s_mul_i32 s40, s95, 14
                s_mul_i32 s22, s101, {5*54}
                s_add_u32 s22, s22, s40
                s_lshl_b32 s22, s22, 10
                s_cmp_eq_u32 s95, 3
                s_cselect_b32 s41, 0x10000000, 0
                v_add_u32 v1, s41, v3
                """)
                w4_queue(L, 0, 45)
    for _, ins in pending: a(ins)
    for _, ins in epi(6, True): a(ins)
    tst = a.vm_issued
    mmark(a, "p3_st")
    a(f"""
    s_lshl_b32 s51, s44, 4
    s_add_u32 s51, s51, s61
    s_lshl_b32 s51, s51, 4
    s_add_u32 s51, s51, {F4_O}
    """)
    w4_queue(L, 45, 70)
    for _ in range(6): L.paced()
    a.wait(vm=tst)
    signal(a, "s51", 8)
    mmark(a, "p3_sig")
    while L.q: L.paced()
    PB, TB = 40960, 40960 + 61440
    srd(a, 12, 6, 0, 2621440)
    a(f"""
    s_mul_i32 s44, s95, 14
    s_mul_i32 s45, s100, {4*54}
    s_add_u32 s45, s45, s44
    s_lshl_b32 s45, s45, 10
    v_lshlrev_b32 v7, 4, v5
    s_lshl_b32 s46, s100, 9
    s_add_u32 s46, s46, {F4_O}
    s_mul_i32 s47, s95, 15360
    s_add_u32 s47, s47, {PB}
    v_add_u32 v6, s47, v3
    """)
    for j in range(1, 4):
        a(f"""
        s_add_u32 s47, s95, {j}
        s_and_b32 s47, s47, 3
        s_mul_i32 s47, s47, 15360
        s_add_u32 s47, s47, {PB + (3-j)*5120}
        v_add_u32 v{9+j}, s47, v3
        """)
    a(f"""
    v_and_b32 v13, 15, v2
    v_lshrrev_b32 v14, 4, v2
    v_lshlrev_b32 v15, 4, v13
    v_lshl_add_u32 v15, v4, 9, v15
    v_and_b32 v16, 1, v14
    v_lshl_add_u32 v15, v16, 3, v15
    s_lshl_b32 s48, s100, 1
    s_lshr_b32 s49, s95, 1
    s_add_u32 s48, s48, s49
    s_mul_i32 s48, s48, 40960
    s_mul_i32 s49, s101, 5120
    s_add_u32 s48, s48, s49
    s_and_b32 s49, s95, 1
    s_lshl_b32 s49, s49, 8
    s_add_u32 s48, s48, s49
    s_add_u32 s49, s48, 4096
    v_lshlrev_b32 v16, 2, v13
    s_lshl_b32 s50, s95, 13
    s_lshl_b32 s51, s100, 8
    s_add_u32 s50, s50, s51
    s_lshl_b32 s51, s95, 6
    s_add_u32 s50, s50, s51
    v_mul_u32_u24 v17, 160, v13
    v_lshl_add_u32 v17, v14, 3, v17
    s_mul_i32 s51, s95, 2560
    s_add_u32 s51, s51, {TB}
    v_add_u32 v17, s51, v17
    v_add_u32 v18, s51, v3
    s_mov_b32 s52, 6554
    """)
    for it in range(3):
        a(f"""
        v_add_u32 v8, {64*it}, v2
        v_mul_u32_u24 v9, s52, v8
        v_lshrrev_b32 v9, 16, v9
        v_mul_u32_u24 v9, {1280-160}, v9
        v_lshl_add_u32 v{19+it}, v8, 4, v9
        """)
    a(f"""
    s_lshl_b32 s52, s100, 2
    s_add_u32 s52, s52, s95
    s_mul_i32 s52, s52, {16*1280}
    s_mul_i32 s53, s101, 160
    s_add_u32 s52, s52, s53
    s_mov_b32 s54, 0xffff0000
    """)
    mspill(a)
    poll(a, "M_poll4", 7, "s46", 9)
    mmark(a, "p4_sync")
    L = Loads(a, 24)
    order = [(sl, k) for sl in (1, 2, 3, 0) for k in range(14)]
    for i, (sl, k) in enumerate(order):
        pre = None
        if k == 0:
            pre = f"s_add_u32 s55, s95, {sl}\ns_and_b32 s55, s55, 3\ns_mul_i32 s55, s55, 55296\ns_add_u32 s55, s55, s45"
        elif k % 4 == 0:
            pre = "s_add_u32 s55, s55, 4096"
        r = 4 * (i % 24)
        L.add(f"buffer_load_dwordx4 a[{r}:{r+3}], v{1 if k >= 12 else 3}, s[36:39], s55 offen offset:{1024*(k%4)} {SC}", pre=pre, tag=i, gate=max(i - 24, -1))
        if i == 30:
            for T in range(5):
                L.add(f"buffer_load_dwordx2 v[{112+2*T}:{113+2*T}], v15, s[24:27], s{48 if T < 4 else 49} offen offset:{1024*(T%4)} {SC}")
            L.add(f"buffer_load_dword v122, v16, s[32:35], s50 offen {SC}", tag='res')
    L.pump(12, gate=-1)
    A4 = [72, 92]
    RS_, PS = 24, 44
    todo = []
    for i, (sl, k) in enumerate(order):
        ph = i // 14
        d = A4[ph % 2]
        L.need(i, gate=i - 1)
        if i == 0: mmark(a, "p4_first")
        r = 4 * (i % 24)
        for T in range(5):
            a(f"v_mfma_f32_16x16x32_bf16 v[{d+4*T}:{d+4*T+3}], {w4reg(14*T+k)}, a[{r}:{r+3}], " + ("0" if k == 0 else f"v[{d+4*T}:{d+4*T+3}]"))
            if T in (1, 3): L.pump(1, gate=i - 1)
            if todo and T != 4: a(todo.pop(0))
        if k == 1 and ph > 0:
            dp = A4[(ph - 1) % 2]
            for T in range(5):
                a(f"ds_write_b128 v6, v[{dp+4*T}:{dp+4*T+3}] offset:{(ph-1)*5120 + T*1024}")
        if ph == 3 and k == 3:
            a.wait_all_lg()
            a("s_barrier")
            tk = []
            for j, rb in enumerate((RS_, PS, A4[0])):
                for T in range(5):
                    t = a.ds(f"ds_read_b128 v[{rb+4*T}:{rb+4*T+3}], v{10+j} offset:{1024*T}")
                tk.append(t)
        if ph == 3 and k == 5:
            a.wait(lg=tk[2])
            L.need('res', gate=99)
            todo = [f"v_add_f32 v{RS_+j}, v{RS_+j}, v{PS+j}" for j in range(20)]
            todo += [f"v_add_f32 v{RS_+j}, v{RS_+j}, v{A4[0]+j}" for j in range(20)]
    for ins in todo: a(ins)
    for j in range(10):
        a(f"v_lshlrev_b32 v{PS+2*j}, 16, v{112+j}")
        a(f"v_and_b32 v{PS+2*j+1}, s54, v{112+j}")
    for j in range(0, 20, 2):
        a(f"v_pk_fma_f32 {P(PS+j)}, {P(RS_+j)}, v[122:123], {P(PS+j)} op_sel_hi:[1,0,1]")
    mmark(a, "p4_mm")
    d = A4[1]
    for j in range(0, 20, 2):
        a(f"v_pk_fma_f32 {P(PS+j)}, {P(d+j)}, v[122:123], {P(PS+j)} op_sel_hi:[1,0,1]")
    for j in range(10):
        a(f"v_cvt_pk_bf16_f32 v{RS_+j}, v{PS+2*j}, v{PS+2*j+1}")
    for T in range(5):
        a(f"ds_write_b64 v17, v[{RS_+2*T}:{RS_+2*T+1}] offset:{32*T}")
    a.wait_all_lg()
    tk = [a.ds(f"ds_read_b128 v[{PS+4*it}:{PS+4*it+3}], v18 offset:{1024*it}") for it in range(3)]
    for it in range(3):
        a.wait(lg=tk[it])
        if it == 2: a("s_mov_b32 exec_hi, 0")
        a(f"buffer_store_dwordx4 v[{PS+4*it}:{PS+4*it+3}], v{19+it}, s[12:15], s52 offen")
    mstamp_end(a, 1, 20)
    a("M_exit:\ns_endpgm")
    return a
```

```python
from common import *
from k0 import reduce32
SC = "sc1"

def rt_dma_block(a, srd, pitch, row0_expr, col_s, lds_base, n, vtmp, s1, s2, nt="nt"):
    pass

def wo_issue(a, ptr, task, LB):
    srd(a, 68, ptr, 0, 640 * 1280)
    a(f"""
    s_and_b32 s57, s{task}, 3
    s_lshr_b32 s56, s{task}, 2
    v_lshrrev_b32 v6, 3, v2
    v_mul_u32_u24 v6, 1280, v6
    v_and_b32 v7, 7, v2
    v_lshl_add_u32 v6, v7, 4, v6
    s_mul_i32 s58, s57, 160
    s_mul_i32 s59, s95, 40
    s_add_u32 s58, s58, s59
    s_mul_i32 s58, s58, 1280
    s_lshl_b32 s59, s56, 7
    s_add_u32 s58, s58, s59
    s_mul_i32 s59, s95, 5120
    """)
    for n in range(5):
        a(f"s_add_u32 m0, s59, {LB + 1024*n}")
        a(f"buffer_load_dwordx4 v6, s[68:71], s58 offen nt lds")
        if n < 4: a(f"s_add_u32 s58, s58, {8*1280}")

def wo_finish(a, LB):
    srd(a, 68, 20, WO_OFF, WO_SZ)
    a(f"""
    s_lshr_b32 s45, s95, 1
    s_and_b32 s46, s95, 1
    v_mul_u32_u24 v6, 10, v4
    v_bfe_u32 v7, v2, 2, 2
    v_add_u32 v6, v6, v7
    v_lshlrev_b32 v6, 7, v6
    v_bfe_u32 v8, v2, 4, 1
    v_lshl_add_u32 v6, v8, 5, v6
    v_and_b32 v8, 1, v2
    v_lshl_add_u32 v6, v8, 4, v6
    v_bfe_u32 v8, v2, 1, 1
    v_lshl_add_u32 v6, v8, 3, v6
    s_mul_i32 s47, s45, {80*128}
    s_lshl_b32 s48, s46, 6
    s_add_u32 s47, s47, s48
    s_add_u32 s47, s47, {LB}
    v_add_u32 v6, s47, v6
    v_lshrrev_b32 v7, 1, v7
    v_mul_u32_u24 v7, 1280, v7
    v_add_u32 v7, v6, v7
    s_lshl_b32 s47, s56, 1
    s_add_u32 s47, s47, s46
    s_mul_i32 s48, s47, 205
    s_lshr_b32 s48, s48, 10
    s_mul_i32 s49, s48, 5
    s_sub_u32 s49, s47, s49
    s_lshl_b32 s48, s48, 2
    s_add_u32 s48, s48, s57
    s_mul_i32 s48, s48, 50
    s_mul_i32 s49, s49, 10
    s_add_u32 s48, s48, s49
    s_mul_i32 s49, s45, 5
    s_add_u32 s48, s48, s49
    s_lshl_b32 s48, s48, 10
    s_add_u32 s49, s48, 4096
    """)
    t = []
    for sp in range(5):
        for rho in range(2):
            p0 = 8 * sp + 4 * rho
            av = 7 if p0 in (8, 28) else 6
            tk = a.ds(f"ds_read_b64_tr_b16 v[{24+4*sp+2*rho}:{25+4*sp+2*rho}], v{av} offset:{(p0 + 10*(p0//10))*128}")
        t.append(tk)
    for sp in range(5):
        a.wait(lg=t[sp])
        so, off = ("s48", 1024 * sp) if sp < 4 else ("s49", 0)
        a(f"buffer_store_dwordx4 v[{24+4*sp}:{27+4*sp}], v3, s[68:71], {so} offen offset:{off} {SC}")

def p0(a, signal2, poll, npf):
    WOL = 16384
    a(f"""
    s_cmp_ge_u32 s2, 16
    s_cbranch_scc1 P0_nopf
    s_getpc_b64 s[22:23]
P0_pc:
    v_lshlrev_b32 v8, 7, v0
    """)
    for n in range(npf):
        a(f"""
        v_mov_b32 v11, s23
        v_cmp_gt_u32 vcc, CODE_END-P0_pc, v8
        s_and_saveexec_b64 s[40:41], vcc
        s_cbranch_execz P0_pf{n}
        v_add_co_u32 v10, vcc, s22, v8
        v_addc_co_u32 v11, vcc, 0, v11, vcc
        global_load_dword v255, v[10:11], off
P0_pf{n}:
        s_mov_b64 exec, s[40:41]
        v_add_u32 v8, 0x8000, v8
        """)
    a("P0_nopf:\ns_waitcnt lgkmcnt(0)")
    mmark(a, "p0_karg")
    srd(a, 64, 18, 0, 256)
    srd(a, 8, 20, FL_OFF, FL_SZ)
    a(f"""
    s_or_b32 s40, s2, s95
    s_cmp_lg_u32 s40, 0
    s_cbranch_scc1 P0_non
    s_or_b32 s40, s98, 1
    s_mov_b64 exec, 1
    v_mov_b32 v8, s40
    v_mov_b32 v9, 0
    buffer_store_dword v8, v9, s[64:67], 0 offen sc0 sc1
    s_mov_b64 exec, -1
P0_non:
    """)
    srd(a, 24, 4, 0, 2621440)
    a(f"""
    v_lshrrev_b32 v6, 5, v0
    v_mul_u32_u24 v7, 1280, v6
    v_lshl_add_u32 v7, v5, 3, v7
    s_lshl_b32 s44, s42, 4
    s_add_u32 s44, s44, s43
    s_mul_i32 s40, s44, 10240
    """)
    a.reset_counters()
    X = 24
    for i in range(5):
        tX = a.vm(f"buffer_load_dwordx2 v[{X+2*i}:{X+1+2*i}], v7, s[24:27], s40 offen offset:{256*i} nt")
    srd(a, 28, 12, 0, 640 * 3840)
    srd(a, 32, 14, 0, 32 * 800)
    a(f"""
    s_and_b32 s45, s95, 1
    s_lshr_b32 s46, s95, 1
    s_lshl_b32 s47, s43, 1
    s_add_u32 s47, s47, s45
    v_and_b32 v8, 0x13, v5
    v_lshrrev_b32 v9, 1, v5
    v_and_b32 v9, 4, v9
    v_lshlrev_b32 v10, 1, v5
    v_and_b32 v10, 8, v10
    v_or3_b32 v8, v8, v9, v10
    s_cmp_eq_u32 s46, 0
    s_cselect_b32 s48, 31, 7
    v_min_u32 v8, s48, v8
    v_mul_u32_u24 v8, 3840, v8
    v_lshl_add_u32 v9, v4, 4, v8
    v_lshl_add_u32 v10, v4, 28, v8
    s_mul_i32 s48, s42, 40
    s_lshl_b32 s49, s46, 5
    s_add_u32 s48, s48, s49
    s_mul_i32 s48, s48, 3840
    s_mul_i32 s49, s47, 40
    s_add_u32 s48, s48, s49
    s_mul_i32 s49, s47, 800
    v_mul_u32_u24 v11, 320, v4
    v_lshl_add_u32 v11, v5, 1, v11
    """)
    A0 = [64, 72, 80]; A1 = [68, 76, 84]
    for sg in range(3):
        a(f"buffer_load_dwordx4 v[{A0[sg]}:{A0[sg]+3}], v9, s[28:31], s48 offen offset:{1280*sg}")
        a(f"buffer_load_dwordx2 v[{A1[sg]}:{A1[sg]+1}], v10, s[28:31], s48 offen offset:{1280*sg+32}")
    U = 100
    for j in range(8):
        a(f"buffer_load_ushort v{U+j}, v11, s[32:35], s49 offen offset:{40*j}")
    for j in range(4):
        a(f"buffer_load_ushort v{U+8+j}, v11, s[32:35], s49 offen offset:{640+40*j}")
    a.wait(vm=tX) if False else None
    nW = a.vm_issued
    mmark(a, "p0_iss")
    a(f"s_cmp_lt_u32 s2, 216\ns_cbranch_scc1 P0_nowo\ns_sub_u32 s55, s2, 216")
    b = Asm(); wo_issue(b, 16, 55, WOL); a.ins += b.ins
    a("v_lshrrev_b32 v6, 5, v0\nP0_nowo:")
    srd(a, 32, 20, KV_OFF, KV_SZ)
    a(f"""
    v_mov_b32 v12, 0
    v_mov_b32 v13, 0
    v_mov_b32 v14, 0
    v_mov_b32 v15, 0
    s_mul_i32 s40, s43, 7680
    s_mul_i32 s41, s42, 480
    s_add_u32 s40, s40, s41
    v_lshlrev_b32 v7, 4, v0
    v_cmp_gt_u32 vcc, 30, v0
    s_and_saveexec_b64 s[50:51], vcc
    s_cbranch_execz P0_z
    buffer_store_dwordx4 v[12:15], v7, s[32:35], s40 offen {SC}
P0_z:
    s_mov_b64 exec, s[50:51]
    """)
    for sg in range(3):
        a(f"v_mov_b32 v{A1[sg]+2}, 0\nv_mov_b32 v{A1[sg]+3}, 0")
    a(f"""
    v_add_u32 v8, 2, v5
    v_cmp_gt_u32 vcc, 18, v5
    v_cndmask_b32 v8, v8, v5, vcc
    v_bfe_u32 v9, v8, 2, 1
    v_mul_u32_u24 v9, 10, v9
    v_lshrrev_b32 v10, 3, v8
    v_lshl_add_u32 v9, v10, 2, v9
    v_and_b32 v10, 3, v8
    v_add_u32 v9, v9, v10
    v_lshlrev_b32 v10, 3, v4
    v_sub_u32 v9, v9, v10
    v_and_b32 v10, 1, v9
    v_lshlrev_b32 v10, 4, v10
    v_mov_b32 v8, 0x3f80
    v_lshlrev_b32 v10, v10, v8
    v_lshrrev_b32 v9, 1, v9
    """)
    for jj, cmpv in enumerate([0, 1, 2, 3, 8, 9]):
        a(f"v_cmp_eq_u32 vcc, {cmpv}, v9\nv_cndmask_b32 v{112+jj}, 0, v10, vcc")
    a("v_mov_b32 v118, 0\nv_mov_b32 v119, 0\nv_mov_b32 v94, 0\nv_mov_b32 v95, 0")
    a(f"""
    s_mul_i32 s40, s42, 5
    s_lshl_b32 s41, s46, 2
    s_add_u32 s40, s40, s41
    v_add_u32 v12, s40, v4
    v_lshrrev_b32 v11, 1, v12
    v_mul_u32_u24 v11, 3840, v11
    v_and_b32 v12, 1, v12
    v_lshl_add_u32 v11, v12, 9, v11
    """)
    for sg, sb in enumerate([40, 0, 20]):
        d = 120 + sg
        a(f"""
        v_add_u32 v8, {sb}, v5
        v_lshrrev_b32 v9, 4, v8
        v_lshl_add_u32 v{d}, v9, 10, v11
        v_bfe_u32 v10, v8, 2, 2
        v_lshl_add_u32 v{d}, v10, 7, v{d}
        v_and_b32 v10, 3, v8
        v_lshl_add_u32 v{d}, v10, 4, v{d}
        """)
        if sg == 0:
            a(f"""
            v_cmp_eq_u32 vcc, 3, v9
            v_lshlrev_b32 v10, 7, v12
            v_cndmask_b32 v10, 0, v10, vcc
            v_sub_u32 v{d}, v{d}, v10
            """)
    srd(a, 28, 20, XN_OFF, XN_SZ)
    srd(a, 32, 20, W1_OFF, W1_SZ)
    a(f"""
    s_mul_i32 s48, s43, 153600
    s_lshl_b32 s49, s45, 6
    s_add_u32 s48, s48, s49
    s_mov_b32 s50, {f32(LOG2E)}
    v_lshrrev_b32 v8, 1, v5
    v_xor_b32 v7, v6, v8
    v_and_b32 v7, 7, v7
    v_lshlrev_b32 v7, 4, v7
    v_lshl_add_u32 v7, v8, 7, v7
    v_and_b32 v8, 1, v5
    v_lshl_add_u32 v7, v8, 3, v7
    v_lshrrev_b32 v10, 3, v0
    v_xor_b32 v8, v0, v10
    v_and_b32 v8, 7, v8
    v_lshlrev_b32 v8, 4, v8
    v_lshl_add_u32 v8, v10, 7, v8
    v_and_b32 v9, 7, v0
    v_lshlrev_b32 v9, 4, v9
    v_lshl_add_u32 v9, v10, 9, v9
    s_lshr_b32 s52, s44, 2
    s_mul_i32 s52, s52, 40960
    s_and_b32 s53, s44, 3
    s_lshl_b32 s53, s53, 7
    s_add_u32 s52, s52, s53
    s_add_u32 s53, s52, 16384
    s_add_u32 s54, s52, 32768
    s_mov_b32 s41, 0xffff0000
    v_mov_b32 v16, 0
    """)
    mmark(a, "p0_pre")
    a(f"s_waitcnt vmcnt({nW - tX})")
    mmark(a, "p0_x")
    a("buffer_load_dword v17, v16, s[64:67], 0 offen sc1")
    F = 36
    P = lambda r: f"v[{r}:{r+1}]"
    for i in range(10):
        a(f"v_lshlrev_b32 v{F+2*i}, 16, v{X+i}")
        a(f"v_and_b32 v{F+2*i+1}, s41, v{X+i}")
    a(f"v_pk_add_f32 v[56:57], {P(F)}, {P(F+2)}")
    a(f"v_pk_add_f32 v[58:59], {P(F+4)}, {P(F+6)}")
    for i in range(4, 10):
        a(f"v_pk_add_f32 {P(56+2*(i%2))}, {P(56+2*(i%2))}, {P(F+2*i)}")
    a("v_pk_add_f32 v[56:57], v[56:57], v[58:59]")
    a("v_add_f32 v56, v56, v57")
    reduce32(a, 56, 57)
    a(f"v_mul_f32 v56, {f32(1.0/640)}, v56")
    for i in range(10):
        a(f"v_pk_add_f32 {P(F+2*i)}, {P(F+2*i)}, v[56:57] op_sel_hi:[1,0] neg_lo:[0,1] neg_hi:[0,1]")
    a(f"v_pk_mul_f32 v[58:59], {P(F)}, {P(F)}")
    for i in range(1, 10):
        a(f"v_pk_fma_f32 v[58:59], {P(F+2*i)}, {P(F+2*i)}, v[58:59]")
    a("v_add_f32 v58, v58, v59")
    reduce32(a, 58, 59)
    a(f"v_mov_b32 v59, {f32(1e-5)}")
    a(f"v_fmac_f32 v59, {f32(1.0/640)}, v58")
    a("v_rsq_f32 v58, v59")
    for i in range(10):
        a(f"v_pk_mul_f32 {P(F+2*i)}, {P(F+2*i)}, v[58:59] op_sel_hi:[1,0]")
    for i in range(10):
        a(f"v_cvt_pk_bf16_f32 v{X+i}, v{F+2*i}, v{F+2*i+1}")
    for i in range(5):
        a(f"ds_write_b64 v7, v[{X+2*i}:{X+1+2*i}] offset:{2048*i}")
    mmark(a, "p0_ln")
    a("s_waitcnt vmcnt(0)")
    mmark(a, "p0_w")
    for jj in range(6):
        a(f"v_lshl_or_b32 v{88+jj}, v{U+2*jj+1}, 16, v{U+2*jj}")
    Dr = [128, 144, 160]
    for sg in range(3):
        b0, b1 = (88, 92) if sg < 2 else (112, 116)
        a(f"v_mfma_f32_32x32x16_bf16 v[{Dr[sg]}:{Dr[sg]+15}], v[{A0[sg]}:{A0[sg]+3}], v[{b0}:{b0+3}], 0")
        a(f"v_mfma_f32_32x32x16_bf16 v[{Dr[sg]}:{Dr[sg]+15}], v[{A1[sg]}:{A1[sg]+3}], v[{b1}:{b1+3}], v[{Dr[sg]}:{Dr[sg]+15}]")
    a(f"""
    v_readfirstlane_b32 s93, v17
    s_waitcnt lgkmcnt(0)
    s_barrier
    ds_read_b128 v[36:39], v8
    ds_read_b128 v[40:43], v8 offset:4096
    ds_read_b128 v[44:47], v8 offset:8192
    s_cmp_ge_u32 s95, 2
    s_cselect_b32 s54, 0x10000000, s54
    s_cselect_b32 s49, 0x10000000, s48
    s_cselect_b32 s40, 0, -1
    s_waitcnt lgkmcnt(2)
    buffer_store_dwordx4 v[36:39], v9, s[28:31], s52 offen {SC}
    s_waitcnt lgkmcnt(1)
    buffer_store_dwordx4 v[40:43], v9, s[28:31], s53 offen {SC}
    s_waitcnt lgkmcnt(0)
    buffer_store_dwordx4 v[44:47], v9, s[28:31], s54 offen {SC}
    s_mov_b32 exec_lo, 0xfffff
    s_and_b32 exec_hi, s40, 0xfffff
    """)
    for sg in range(3):
        d = Dr[sg]
        if sg < 2:
            for r in range(0, 16, 2):
                a(f"v_pk_mul_f32 {P(d+r)}, {P(d+r)}, s[50:51] op_sel_hi:[1,0]")
        o = 64 + 8 * sg
        for r in range(8):
            a(f"v_cvt_pk_bf16_f32 v{o+r}, v{d+2*r}, v{d+2*r+1}")
        a(f"buffer_store_dwordx4 v[{o}:{o+3}], v{120+sg}, s[32:35], s48 offen {SC}")
        a(f"buffer_store_dwordx4 v[{o+4}:{o+7}], v{120+sg}, s[32:35], s49 offen offset:3840 {SC}")
    a("s_mov_b64 exec, -1")
    mmark(a, "p0_st")
    a(f"""
    s_mov_b32 s92, 0
P0_nspin:
    s_cmp_lg_u32 s93, 0
    s_cbranch_scc1 P0_ngo
    s_add_u32 s92, s92, 1
    s_cmp_gt_u32 s92, 20000
    s_cbranch_scc1 P0_ngo
    buffer_load_dword v17, v16, s[64:67], 0 offen sc1
    s_waitcnt vmcnt(0)
    v_readfirstlane_b32 s93, v17
    s_nop 3
    s_branch P0_nspin
P0_ngo:
    """)
    a(f"""
    s_lshl_b32 s40, s44, 4
    s_add_u32 s40, s40, {F1A_O}
    s_lshl_b32 s41, s43, 8
    s_add_u32 s41, s41, {F1B_O}
    s_lshl_b32 s50, s42, 4
    s_add_u32 s50, s50, s41
    v_mov_b32 v10, s50
    v_writelane_b32 v10, s40, 0
    v_mov_b32 v11, s93
    s_lshl_b32 s40, s42, 8
    s_lshl_b32 s50, s95, 6
    s_add_u32 s40, s40, s50
    s_add_u32 s40, s40, {F1A_O}
    v_and_b32 v12, 3, v2
    v_lshl_add_u32 v12, v12, 4, s40
    v_add_u32 v13, s41, v3
    v_cmp_gt_u32 vcc, 16, v2
    v_cndmask_b32 v12, v12, v13, vcc
    s_waitcnt vmcnt(0)
    s_barrier
    s_cmp_lg_u32 s95, 0
    s_cbranch_scc1 P0_sig
    s_mov_b64 exec, 3
    buffer_store_dword v11, v10, s[8:11], 0 offen sc0 sc1
    s_mov_b64 exec, -1
P0_sig:
    """)
    mmark(a, "p0_sig")
    a("s_cmp_lt_u32 s2, 216\ns_cbranch_scc1 P0_nowo2")
    a.reset_counters()
    wo_finish(a, WOL)
    a("s_barrier\nP0_nowo2:")
    a.reset_counters()

def rt_issue(a, LB3, LB4):
    a(f"""
    v_lshrrev_b32 v6, 3, v2
    v_and_b32 v7, 7, v2
    s_cmp_ge_u32 s2, 216
    s_cbranch_scc1 RT_n3
    s_cmp_ge_u32 s2, 108
    s_cselect_b32 s60, 1, 0
    s_cselect_b32 s68, s14, s12
    s_cselect_b32 s69, s15, s13
    s_mov_b32 s70, {640*3456}
    s_mov_b32 s71, 0x20000
    s_mul_i32 s61, s60, 108
    s_sub_u32 s61, s2, s61
    s_and_b32 s62, s61, 3
    s_lshr_b32 s61, s61, 2
    v_mul_u32_u24 v8, 3456, v6
    v_lshl_add_u32 v8, v7, 4, v8
    s_mul_i32 s40, s62, 160
    s_mul_i32 s41, s95, 40
    s_add_u32 s40, s40, s41
    s_mul_i32 s40, s40, 3456
    s_lshl_b32 s41, s61, 7
    s_add_u32 s40, s40, s41
    s_mul_i32 s41, s95, 5120
    """)
    for n in range(5):
        a(f"s_add_u32 m0, s41, {LB3 + 1024*n}")
        a(f"buffer_load_dwordx4 v8, s[68:71], s40 offen nt lds")
        if n < 4: a(f"s_add_u32 s40, s40, {8*3456}")
    a(f"""
RT_n3:
    s_lshl_b32 s40, s2, 1
    s_add_u32 s40, s40, s95
    s_add_u32 s41, s2, {512 - 216}
    s_cmp_lt_u32 s2, 216
    s_cselect_b32 s41, 999, s41
    s_cmp_eq_u32 s95, 2
    s_cselect_b32 s40, s41, s40
    s_cmp_eq_u32 s95, 3
    s_cselect_b32 s40, 999, s40
    s_mov_b32 s18, -1
    s_cmp_ge_u32 s40, 540
    s_cbranch_scc1 RT_n4
    s_mul_i32 s18, s40, 1214
    s_lshr_b32 s18, s18, 16
    s_mul_i32 s19, s18, 54
    s_sub_u32 s19, s40, s19
    """)
    srd(a, 68, 16, 0, 1728 * 1280)
    a(f"""
    v_mul_u32_u24 v8, 1280, v6
    v_lshl_add_u32 v8, v7, 4, v8
    s_mul_i32 s40, s19, {32*1280}
    s_lshl_b32 s41, s18, 7
    s_add_u32 s40, s40, s41
    s_lshl_b32 s41, s95, 12
    """)
    for n in range(4):
        a(f"s_add_u32 m0, s41, {LB4 + 1024*n}")
        a(f"buffer_load_dwordx4 v8, s[68:71], s40 offen nt lds")
        if n < 3: a(f"s_add_u32 s40, s40, {8*1280}")
    a("RT_n4:")

def rt_finish(a, LB3, LB4):
    a(f"""
    v_lshrrev_b32 v6, 4, v2
    v_bfe_u32 v7, v2, 2, 2
    v_lshl_add_u32 v7, v6, 3, v7
    v_lshlrev_b32 v7, 7, v7
    v_and_b32 v8, 3, v2
    v_lshl_add_u32 v7, v8, 3, v7
    s_cmp_ge_u32 s2, 216
    s_cbranch_scc1 RF_n3
    s_lshl_b32 s45, s95, 5
    s_add_u32 s45, s45, {LB3}
    v_add_u32 v8, s45, v7
    """)
    t = []
    for ss in range(5):
        a(f"ds_read_b64_tr_b16 v[{24+4*ss}:{25+4*ss}], v8 offset:{4096*ss}")
        t.append(a.ds(f"ds_read_b64_tr_b16 v[{26+4*ss}:{27+4*ss}], v8 offset:{4096*ss+512}"))
    srd(a, 68, 20, W3_OFF, W3_SZ)
    srd(a, 32, 20, CS_OFF, CS_SZ)
    a(f"""
    v_bfe_u32 v9, v2, 3, 1
    v_and_b32 v12, 7, v2
    v_mul_u32_u24 v10, 20480, v9
    v_lshlrev_b32 v11, 9, v9
    v_lshl_add_u32 v11, v12, 4, v11
    v_lshl_add_u32 v10, v12, 4, v10
    v_lshl_add_u32 v10, v4, 9, v10
    v_xor_b32 v9, s60, v6
    v_and_b32 v9, 1, v9
    v_lshl_add_u32 v10, v9, 7, v10
    s_lshl_b32 s45, s61, 3
    s_lshl_b32 s46, s95, 1
    s_add_u32 s45, s45, s46
    s_mul_i32 s46, s45, 20480
    s_mul_i32 s47, s62, 5120
    s_add_u32 s46, s46, s47
    s_lshl_b32 s47, s60, 8
    s_add_u32 s46, s46, s47
    s_add_u32 s48, s46, 4096
    s_lshl_b32 s45, s45, 9
    s_add_u32 s45, s45, s47
    s_lshr_b32 s47, s62, 1
    s_xor_b32 s47, s47, s60
    s_lshl_b32 s47, s47, 7
    s_add_u32 s45, s45, s47
    s_and_b32 s47, s62, 1
    s_lshl_b32 s47, s47, 3
    s_add_u32 s45, s45, s47
    v_mov_b32 v44, 0x3f803f80
    v_mov_b32 v45, 0x3f803f80
    v_mov_b32 v46, 0x3f803f80
    v_mov_b32 v47, 0x3f803f80
    """)
    for ss in range(5):
        a.wait(lg=t[ss])
        a(f"v_mfma_f32_16x16x32_bf16 v[48:51], v[44:47], v[{24+4*ss}:{27+4*ss}], " + ("0" if ss == 0 else "v[48:51]"))
        so, off = ("s46", 1024 * ss) if ss < 4 else ("s48", 0)
        a(f"buffer_store_dwordx4 v[{24+4*ss}:{27+4*ss}], v10, s[68:71], {so} offen offset:{off} {SC}")
    a(f"""
    v_cvt_pk_bf16_f32 v52, v48, v48
    v_lshlrev_b32 v54, 16, v52
    v_sub_f32 v54, v48, v54
    v_cvt_pk_bf16_f32 v53, v54, v54
    s_mov_b64 exec, 0xffff
    buffer_store_dwordx2 v[52:53], v11, s[32:35], s45 offen {SC}
    s_mov_b64 exec, -1
RF_n3:
    s_cmp_eq_u32 s18, -1
    s_cbranch_scc1 RF_n4
    s_lshl_b32 s45, s95, 12
    s_add_u32 s45, s45, {LB4}
    v_add_u32 v8, s45, v7
    """)
    a.lg_done = a.lg_issued
    t = []
    for f in range(4):
        a(f"ds_read_b64_tr_b16 v[{56+4*f}:{57+4*f}], v8 offset:{32*f}")
        t.append(a.ds(f"ds_read_b64_tr_b16 v[{58+4*f}:{59+4*f}], v8 offset:{32*f+512}"))
    srd(a, 68, 20, W4_OFF, W4_SZ)
    a(f"""
    s_mul_i32 s45, s18, 216
    s_add_u32 s45, s45, s19
    s_lshl_b32 s45, s45, 10
    """)
    for f in range(4):
        a.wait(lg=t[f])
        a(f"buffer_store_dwordx4 v[{56+4*f}:{59+4*f}], v3, s[68:71], s45 offen {SC}")
        if f < 3: a(f"s_add_u32 s45, s45, {54*1024}")
    a("RF_n4:")
    a.lg_done = a.lg_issued
```

```python
from common import *
from k0 import reduce32
SC = "sc1"
WL, PL, WOL, LB3, LB4 = 10240, 20480, 24576, 114688, 135168

def p0(a, npf):
    P = lambda r: f"v[{r}:{r+1}]"
    a(f"""
    s_cmp_ge_u32 s2, 16
    s_cbranch_scc1 P0_nopf
    s_getpc_b64 s[22:23]
P0_pc:
    v_lshlrev_b32 v8, 7, v0
    """)
    for n in range(npf):
        a(f"""
        v_mov_b32 v11, s23
        v_cmp_gt_u32 vcc, CODE_END-P0_pc, v8
        s_and_saveexec_b64 s[40:41], vcc
        s_cbranch_execz P0_pf{n}
        v_add_co_u32 v10, vcc, s22, v8
        v_addc_co_u32 v11, vcc, 0, v11, vcc
        global_load_dword v255, v[10:11], off
P0_pf{n}:
        s_mov_b64 exec, s[40:41]
        v_add_u32 v8, 0x8000, v8
        """)
    a(f"""
P0_nopf:
    v_lshrrev_b32 v6, 5, v0
    v_mul_u32_u24 v7, 1280, v6
    v_lshl_add_u32 v7, v5, 3, v7
    s_lshl_b32 s44, s42, 4
    s_add_u32 s44, s44, s43
    s_mul_i32 s40, s44, 10240
    s_mov_b32 s26, 2621440
    s_mov_b32 s27, 0x20000
    s_mov_b32 s30, {640*3840}
    s_mov_b32 s31, 0x20000
    s_mov_b32 s35, 0x20000
    s_movk_i32 s45, 13108
    s_mul_i32 s46, s42, {40*3840}
    s_mul_i32 s47, s43, 80
    s_add_u32 s46, s46, s47
    s_mul_i32 s47, s43, 1600
    s_lshl_b32 s48, s95, 10
    """)
    for n in range(3):
        a(f"""
        v_add_u32 v{8+n}, {256*n}, v0
        v_min_u32 v{8+n}, 599, v{8+n}
        v_mul_u32_u24 v11, s45, v{8+n}
        v_lshrrev_b32 v11, 16, v11
        v_mul_u32_u24 v11, 1200, v11
        v_lshl_add_u32 v{8+n}, v{8+n}, 4, v11
        """)
    a(f"""
    v_subrev_u32 v11, 128, v0
    v_min_u32 v11, 99, v11
    v_lshlrev_b32 v11, 4, v11
    s_cmp_ge_u32 s95, 2
    s_cselect_b64 vcc, -1, 0
    s_cselect_b32 s34, {32*800}, s30
    s_cselect_b32 s47, s47, s46
    v_cndmask_b32 v10, v10, v11, vcc
    s_waitcnt lgkmcnt(0)
    s_cselect_b32 s32, s14, s12
    s_cselect_b32 s33, s15, s13
    s_mov_b32 s24, s4
    s_mov_b32 s25, s5
    s_mov_b32 s28, s12
    s_mov_b32 s29, s13
    """)
    mmark(a, "p0_karg")
    a.reset_counters()
    X = 24
    for i in range(5):
        tX = a.vm(f"buffer_load_dwordx2 v[{X+2*i}:{X+1+2*i}], v7, s[24:27], s40 offen offset:{256*i} nt")
    for n in (2, 0, 1):
        a(f"s_add_u32 m0, s48, {WL + 4096*n}")
        a(f"buffer_load_dwordx4 v{8+n}, s[{28 if n < 2 else 32}:{31 if n < 2 else 35}], s{46 if n < 2 else 47} offen {'nt' if n < 2 else ''} lds")
    nW = a.vm_issued
    mmark(a, "p0_iss")
    srd(a, 64, 18, 0, 256)
    srd(a, 8, 20, FL_OFF, FL_SZ)
    a(f"""
    v_mov_b32 v16, 0
    s_or_b32 s40, s2, s95
    s_cmp_lg_u32 s40, 0
    s_cbranch_scc1 P0_non
    s_or_b32 s40, s98, 1
    s_mov_b64 exec, 1
    v_mov_b32 v8, s40
    buffer_store_dword v8, v16, s[64:67], 0 offen sc0 sc1
    s_mov_b64 exec, -1
P0_non:
    s_mov_b32 s96, -1
    s_cmp_lg_u32 s95, 3
    s_cbranch_scc1 P0_nowo
    s_cmp_ge_u32 s44, 200
    s_cbranch_scc1 P0_nowo
    """)
    srd(a, 68, 16, 0, 640 * 1280)
    a(f"""
    s_mul_i32 s96, s44, 205
    s_lshr_b32 s96, s96, 12
    s_mul_i32 s97, s96, 20
    s_sub_u32 s97, s44, s97
    v_lshrrev_b32 v8, 3, v2
    v_cmp_le_u32 vcc, 2, v8
    v_cndmask_b32 v9, 8, 18, vcc
    v_add_u32 v9, v9, v8
    v_lshrrev_b32 v10, 2, v8
    v_mul_u32_u24 v10, 6, v10
    v_add3_u32 v10, v10, v8, 26
    v_and_b32 v11, 7, v2
    v_lshlrev_b32 v11, 4, v11
    v_mul_u32_u24 v8, 1280, v8
    v_mul_u32_u24 v9, 1280, v9
    v_mul_u32_u24 v10, 1280, v10
    v_add_u32 v8, v8, v11
    v_add_u32 v9, v9, v11
    v_add_u32 v10, v10, v11
    """)
    for n in range(4):
        a(f"""
        s_lshl_b32 s40, s97, 2
        s_add_u32 s40, s40, {n}
        s_mul_i32 s41, s40, 205
        s_lshr_b32 s41, s41, 10
        s_mul_i32 s49, s41, 5
        s_sub_u32 s40, s40, s49
        s_mul_i32 s41, s41, 40
        s_and_b32 s49, s40, 1
        s_mul_i32 s49, s49, 10
        s_add_u32 s41, s41, s49
        s_mul_i32 s41, s41, 1280
        s_lshl_b32 s49, s96, 7
        s_add_u32 s41, s41, s49
        s_cmp_ge_u32 s40, 2
        s_cselect_b64 vcc, -1, 0
        v_cndmask_b32 v11, v8, v9, vcc
        s_cmp_eq_u32 s40, 4
        s_cselect_b64 vcc, -1, 0
        v_cndmask_b32 v11, v11, v10, vcc
        s_mov_b32 m0, {WOL + 1024*n}
        buffer_load_dwordx4 v11, s[68:71], s41 offen nt lds
        """)
    a("P0_nowo:")
    srd(a, 32, 20, KV_OFF, KV_SZ)
    a(f"""
    v_mov_b32 v12, 0
    v_mov_b32 v13, 0
    v_mov_b32 v14, 0
    v_mov_b32 v15, 0
    s_mul_i32 s40, s43, 7680
    s_mul_i32 s41, s42, 480
    s_add_u32 s40, s40, s41
    v_cmp_gt_u32 vcc, 30, v0
    s_and_saveexec_b64 s[50:51], vcc
    s_cbranch_execz P0_z
    buffer_store_dwordx4 v[12:15], v3, s[32:35], s40 offen {SC}
P0_z:
    s_mov_b64 exec, s[50:51]
    """)
    srd(a, 28, 20, XN_OFF, XN_SZ)
    srd(a, 32, 20, W1_OFF, W1_SZ)
    a(f"""
    v_lshrrev_b32 v8, 1, v5
    v_xor_b32 v7, v6, v8
    v_and_b32 v7, 7, v7
    v_lshlrev_b32 v7, 4, v7
    v_lshl_add_u32 v7, v8, 7, v7
    v_and_b32 v8, 1, v5
    v_lshl_add_u32 v7, v8, 3, v7
    v_lshrrev_b32 v10, 3, v0
    v_xor_b32 v18, v0, v10
    v_and_b32 v18, 7, v18
    v_lshlrev_b32 v18, 4, v18
    v_lshl_add_u32 v18, v10, 7, v18
    v_and_b32 v19, 7, v0
    v_lshlrev_b32 v19, 4, v19
    v_lshl_add_u32 v19, v10, 9, v19
    s_lshr_b32 s52, s44, 2
    s_mul_i32 s52, s52, 40960
    s_and_b32 s53, s44, 3
    s_lshl_b32 s53, s53, 7
    s_add_u32 s52, s52, s53
    s_add_u32 s53, s52, 16384
    s_add_u32 s54, s52, 32768
    s_mov_b32 s41, 0xffff0000
    s_and_b32 s45, s95, 1
    s_lshr_b32 s46, s95, 1
    """)
    A0 = [64, 72, 80]; A1 = [68, 76, 84]
    a(f"""
    v_and_b32 v8, 0x13, v5
    v_lshrrev_b32 v9, 1, v5
    v_and_b32 v9, 4, v9
    v_lshlrev_b32 v10, 1, v5
    v_and_b32 v10, 8, v10
    v_or3_b32 v8, v8, v9, v10
    s_lshl_b32 s47, s46, 5
    v_add_u32 v8, s47, v8
    v_min_u32 v8, 39, v8
    v_mul_u32_u24 v8, 240, v8
    s_mul_i32 s47, s45, 40
    s_add_u32 s47, s47, {WL}
    v_add_u32 v21, s47, v8
    v_lshl_add_u32 v20, v4, 4, v21
    v_bfe_u32 v8, v2, 2, 2
    v_lshl_add_u32 v8, v4, 3, v8
    v_mul_u32_u24 v8, 40, v8
    v_bfe_u32 v9, v2, 4, 1
    v_lshl_add_u32 v8, v9, 5, v8
    v_and_b32 v9, 3, v2
    v_lshl_add_u32 v8, v9, 3, v8
    s_mul_i32 s47, s45, 800
    s_add_u32 s47, s47, {PL}
    v_add_u32 v22, s47, v8
    """)
    for sg in range(3):
        a(f"v_mov_b32 v{A1[sg]+2}, 0\nv_mov_b32 v{A1[sg]+3}, 0")
    a(f"""
    v_add_u32 v8, 2, v5
    v_cmp_gt_u32 vcc, 18, v5
    v_cndmask_b32 v8, v8, v5, vcc
    v_bfe_u32 v9, v8, 2, 1
    v_mul_u32_u24 v9, 10, v9
    v_lshrrev_b32 v10, 3, v8
    v_lshl_add_u32 v9, v10, 2, v9
    v_and_b32 v10, 3, v8
    v_add_u32 v9, v9, v10
    v_lshlrev_b32 v10, 3, v4
    v_sub_u32 v9, v9, v10
    v_and_b32 v10, 1, v9
    v_lshlrev_b32 v10, 4, v10
    v_mov_b32 v8, 0x3f80
    v_lshlrev_b32 v10, v10, v8
    v_lshrrev_b32 v9, 1, v9
    """)
    for jj, cmpv in enumerate([0, 1, 2, 3, 8, 9]):
        a(f"v_cmp_eq_u32 vcc, {cmpv}, v9\nv_cndmask_b32 v{112+jj}, 0, v10, vcc")
    a("v_mov_b32 v118, 0\nv_mov_b32 v119, 0\nv_mov_b32 v94, 0\nv_mov_b32 v95, 0")
    a(f"""
    s_mul_i32 s40, s42, 5
    s_lshl_b32 s47, s46, 2
    s_add_u32 s40, s40, s47
    v_add_u32 v12, s40, v4
    v_lshrrev_b32 v11, 1, v12
    v_mul_u32_u24 v11, 3840, v11
    v_and_b32 v12, 1, v12
    v_lshl_add_u32 v11, v12, 9, v11
    """)
    for sg, sb in enumerate([40, 0, 20]):
        d = 120 + sg
        a(f"""
        v_add_u32 v8, {sb}, v5
        v_lshrrev_b32 v9, 4, v8
        v_lshl_add_u32 v{d}, v9, 10, v11
        v_bfe_u32 v10, v8, 2, 2
        v_lshl_add_u32 v{d}, v10, 7, v{d}
        v_and_b32 v10, 3, v8
        v_lshl_add_u32 v{d}, v10, 4, v{d}
        """)
        if sg == 0:
            a(f"""
            v_cmp_eq_u32 vcc, 3, v9
            v_lshlrev_b32 v10, 7, v12
            v_cndmask_b32 v10, 0, v10, vcc
            v_sub_u32 v{d}, v{d}, v10
            """)
    a(f"""
    s_mul_i32 s48, s43, 153600
    s_lshl_b32 s49, s45, 6
    s_add_u32 s48, s48, s49
    s_mov_b32 s50, {f32(LOG2E)}
    """)
    mmark(a, "p0_pre")
    a(f"s_waitcnt vmcnt({nW - tX})")
    mmark(a, "p0_x")
    a("buffer_load_dword v17, v16, s[64:67], 0 offen sc1")
    F = 36
    for i in range(10):
        a(f"v_lshlrev_b32 v{F+2*i}, 16, v{X+i}")
        a(f"v_and_b32 v{F+2*i+1}, s41, v{X+i}")
    a(f"v_pk_add_f32 v[56:57], {P(F)}, {P(F+2)}")
    a(f"v_pk_add_f32 v[58:59], {P(F+4)}, {P(F+6)}")
    for i in range(4, 10):
        a(f"v_pk_add_f32 {P(56+2*(i%2))}, {P(56+2*(i%2))}, {P(F+2*i)}")
    a("v_pk_add_f32 v[56:57], v[56:57], v[58:59]")
    a("v_add_f32 v56, v56, v57")
    reduce32(a, 56, 57)
    a(f"v_mul_f32 v56, {f32(1.0/640)}, v56")
    for i in range(10):
        a(f"v_pk_add_f32 {P(F+2*i)}, {P(F+2*i)}, v[56:57] op_sel_hi:[1,0] neg_lo:[0,1] neg_hi:[0,1]")
    a(f"v_pk_mul_f32 v[58:59], {P(F)}, {P(F)}")
    for i in range(1, 10):
        a(f"v_pk_fma_f32 v[58:59], {P(F+2*i)}, {P(F+2*i)}, v[58:59]")
    a("v_add_f32 v58, v58, v59")
    reduce32(a, 58, 59)
    a(f"v_mov_b32 v59, {f32(1e-5)}")
    a(f"v_fmac_f32 v59, {f32(1.0/640)}, v58")
    a("v_rsq_f32 v58, v59")
    for i in range(10):
        a(f"v_pk_mul_f32 {P(F+2*i)}, {P(F+2*i)}, v[58:59] op_sel_hi:[1,0]")
    for i in range(10):
        a(f"v_cvt_pk_bf16_f32 v{X+i}, v{F+2*i}, v{F+2*i+1}")
    for i in range(5):
        a(f"ds_write_b64 v7, v[{X+2*i}:{X+1+2*i}] offset:{2048*i}")
    mmark(a, "p0_ln")
    a("s_waitcnt vmcnt(1) lgkmcnt(0)\ns_barrier")
    mmark(a, "p0_w")
    a.reset_counters()
    a("ds_read_b64_tr_b16 v[88:89], v22\nds_read_b64_tr_b16 v[90:91], v22 offset:160")
    tb = a.ds("ds_read_b64_tr_b16 v[92:93], v22 offset:640")
    tA = []
    for sg in range(3):
        a(f"ds_read2_b64 v[{A0[sg]}:{A0[sg]+3}], v20 offset0:{10*sg} offset1:{10*sg+1}")
        tA.append(a.ds(f"ds_read_b64 v[{A1[sg]}:{A1[sg]+1}], v21 offset:{80*sg+32}"))
    tx = [a.ds(f"ds_read_b128 v[{36+4*n}:{39+4*n}], v18 offset:{4096*n}") for n in range(3)]
    a(f"""
    s_cmp_ge_u32 s95, 2
    s_cselect_b32 s54, 0x10000000, s54
    s_cselect_b32 s49, 0x10000000, s48
    s_cselect_b32 s40, 0, 0xfffff
    """)
    a.wait(lg=tb)
    a("s_mov_b32 exec_lo, 0\nv_mov_b32 v92, 0\nv_mov_b32 v93, 0\ns_mov_b32 exec_lo, -1")
    Dr = [128, 144, 160]
    for sg in range(3):
        a.wait(lg=tA[sg])
        b0, b1 = (88, 92) if sg < 2 else (112, 116)
        a(f"v_mfma_f32_32x32x16_bf16 v[{Dr[sg]}:{Dr[sg]+15}], v[{A0[sg]}:{A0[sg]+3}], v[{b0}:{b0+3}], 0")
        a(f"v_mfma_f32_32x32x16_bf16 v[{Dr[sg]}:{Dr[sg]+15}], v[{A1[sg]}:{A1[sg]+3}], v[{b1}:{b1+3}], v[{Dr[sg]}:{Dr[sg]+15}]")
    for n in range(3):
        a.wait(lg=tx[n])
        a(f"buffer_store_dwordx4 v[{36+4*n}:{39+4*n}], v19, s[28:31], s{52+n} offen {SC}")
    a("s_mov_b32 exec_lo, 0xfffff\ns_mov_b32 exec_hi, s40")
    for sg in range(3):
        d = Dr[sg]
        if sg < 2:
            for r in range(0, 16, 2):
                a(f"v_pk_mul_f32 {P(d+r)}, {P(d+r)}, s[50:51] op_sel_hi:[1,0]")
        o = 64 + 8 * sg
        for r in range(8):
            a(f"v_cvt_pk_bf16_f32 v{o+r}, v{d+2*r}, v{d+2*r+1}")
        a(f"buffer_store_dwordx4 v[{o}:{o+3}], v{120+sg}, s[32:35], s48 offen {SC}")
        a(f"buffer_store_dwordx4 v[{o+4}:{o+7}], v{120+sg}, s[32:35], s49 offen offset:3840 {SC}")
    a(f"""
    s_mov_b64 exec, -1
    s_cmp_eq_u32 s96, -1
    s_cbranch_scc1 P0_nowo2
    v_lshrrev_b32 v6, 4, v2
    v_bfe_u32 v7, v2, 2, 2
    v_lshl_add_u32 v7, v6, 3, v7
    v_lshlrev_b32 v7, 7, v7
    v_and_b32 v8, 3, v2
    v_lshl_add_u32 v7, v8, 3, v7
    """)
    t = []
    for f in range(4):
        a(f"ds_read_b64_tr_b16 v[{96+4*f}:{97+4*f}], v7 offset:{WOL+32*f}")
        t.append(a.ds(f"ds_read_b64_tr_b16 v[{98+4*f}:{99+4*f}], v7 offset:{WOL+32*f+512}"))
    srd(a, 68, 20, WO_OFF, WO_SZ)
    a(f"""
    s_mul_i32 s45, s96, 80
    s_add_u32 s45, s45, s97
    s_lshl_b32 s45, s45, 10
    """)
    for f in range(4):
        a.wait(lg=t[f])
        a(f"buffer_store_dwordx4 v[{96+4*f}:{99+4*f}], v3, s[68:71], s45 offen {SC}")
        if f < 3: a(f"s_add_u32 s45, s45, {20*1024}")
    a("P0_nowo2:")
    mmark(a, "p0_st")
    a(f"""
    s_lshl_b32 s40, s44, 4
    s_add_u32 s40, s40, {F1A_O}
    s_lshl_b32 s41, s43, 8
    s_add_u32 s41, s41, {F1B_O}
    s_lshl_b32 s50, s42, 4
    s_add_u32 s50, s50, s41
    v_mov_b32 v10, s50
    v_writelane_b32 v10, s40, 0
    s_lshl_b32 s40, s42, 8
    s_lshl_b32 s50, s95, 6
    s_add_u32 s40, s40, s50
    s_add_u32 s40, s40, {F1A_O}
    v_and_b32 v12, 3, v2
    v_lshl_add_u32 v12, v12, 4, s40
    v_add_u32 v13, s41, v3
    v_cmp_gt_u32 vcc, 16, v2
    v_cndmask_b32 v12, v12, v13, vcc
    s_mov_b32 s92, 0
P0_nspin:
    s_waitcnt vmcnt(0)
    v_readfirstlane_b32 s93, v17
    s_add_u32 s92, s92, 1
    s_nop 2
    s_cmp_lg_u32 s93, 0
    s_cbranch_scc1 P0_ngo
    s_cmp_gt_u32 s92, 20000
    s_cbranch_scc1 P0_ngo
    buffer_load_dword v17, v16, s[64:67], 0 offen sc1
    s_branch P0_nspin
P0_ngo:
    s_barrier
    s_cmp_lg_u32 s95, 0
    s_cbranch_scc1 P0_sig
    s_mov_b64 exec, 3
    buffer_store_dword v17, v10, s[8:11], 0 offen sc0 sc1
    s_mov_b64 exec, -1
P0_sig:
    """)
    mmark(a, "p0_sig")
    a.reset_counters()


def rt_setup(a):
    srd(a, 68, 62, 0, 1728 * 1280)
    a(f"""
    s_cmp_ge_u32 s2, 108
    s_cselect_b32 s36, s58, s56
    s_cselect_b32 s37, s59, s57
    s_cselect_b32 s56, 1, 0
    s_mov_b32 s38, {640*3456}
    s_mov_b32 s39, 0x20000
    s_mul_i32 s57, s56, 108
    s_sub_u32 s57, s2, s57
    s_and_b32 s58, s57, 3
    s_lshr_b32 s57, s57, 2
    v_lshrrev_b32 v8, 3, v2
    v_and_b32 v9, 7, v2
    v_mul_u32_u24 v216, 3456, v8
    v_lshl_add_u32 v216, v9, 4, v216
    v_mul_u32_u24 v217, 1280, v8
    v_lshl_add_u32 v217, v9, 4, v217
    s_mul_i32 s60, s58, 160
    s_mul_i32 s40, s95, 40
    s_add_u32 s60, s60, s40
    s_mul_i32 s60, s60, 3456
    s_lshl_b32 s40, s57, 7
    s_add_u32 s60, s60, s40
    s_cmp_ge_u32 s2, 216
    s_cselect_b32 s60, 0x10000000, s60
    s_mul_i32 s55, s95, 5120
    s_lshl_b32 s40, s2, 1
    s_add_u32 s40, s40, s95
    s_add_u32 s47, s2, {512 - 216}
    s_cmp_lt_u32 s2, 216
    s_cselect_b32 s47, 999, s47
    s_cmp_eq_u32 s95, 2
    s_cselect_b32 s40, s47, s40
    s_cmp_eq_u32 s95, 3
    s_cselect_b32 s40, 999, s40
    s_mul_i32 s59, s40, 1214
    s_lshr_b32 s59, s59, 16
    s_mul_i32 s62, s59, 54
    s_sub_u32 s62, s40, s62
    s_mul_i32 s61, s62, {32*1280}
    s_lshl_b32 s47, s59, 7
    s_add_u32 s61, s61, s47
    s_cmp_ge_u32 s40, 540
    s_cselect_b32 s61, 0x10000000, s61
    s_cselect_b32 s59, 0x400, s59
    s_lshl_b32 s51, s95, 12
    """)

    srd(a, 12, 20, W3_OFF, W3_SZ)
    srd(a, 32, 20, CS_OFF, CS_SZ)
    srd(a, 16, 20, W4_OFF, W4_SZ)
    a(f"""
    v_lshrrev_b32 v6, 4, v2
    v_bfe_u32 v7, v2, 2, 2
    v_lshl_add_u32 v7, v6, 3, v7
    v_lshlrev_b32 v7, 7, v7
    v_and_b32 v8, 3, v2
    v_lshl_add_u32 v7, v8, 3, v7
    s_lshl_b32 s45, s95, 5
    s_add_u32 s45, s45, {LB3}
    v_add_u32 v218, s45, v7
    s_add_u32 s45, s51, {LB4}
    v_add_u32 v219, s45, v7
    v_bfe_u32 v9, v2, 3, 1
    v_and_b32 v10, 7, v2
    v_mul_u32_u24 v214, 20480, v9
    v_lshlrev_b32 v215, 9, v9
    v_lshl_add_u32 v215, v10, 4, v215
    v_lshl_add_u32 v215, v6, 26, v215
    v_lshl_add_u32 v214, v10, 4, v214
    v_lshl_add_u32 v214, v4, 9, v214
    v_xor_b32 v9, s56, v6
    v_and_b32 v9, 1, v9
    v_lshl_add_u32 v214, v9, 7, v214
    s_lshl_b32 s45, s57, 3
    s_lshl_b32 s46, s95, 1
    s_add_u32 s45, s45, s46
    s_mul_i32 s52, s45, 20480
    s_mul_i32 s47, s58, 5120
    s_add_u32 s52, s52, s47
    s_lshl_b32 s47, s56, 8
    s_add_u32 s52, s52, s47
    s_lshl_b32 s45, s45, 9
    s_add_u32 s45, s45, s47
    s_lshr_b32 s47, s58, 1
    s_xor_b32 s47, s47, s56
    s_lshl_b32 s47, s47, 7
    s_add_u32 s45, s45, s47
    s_and_b32 s47, s58, 1
    s_lshl_b32 s47, s47, 3
    s_add_u32 s58, s45, s47
    s_cmp_ge_u32 s2, 216
    s_cselect_b32 s52, 0x10000000, s52
    s_cselect_b32 s58, 0x10000000, s58
    s_add_u32 s53, s52, 4096
    s_mul_i32 s59, s59, 216
    s_add_u32 s59, s59, s62
    s_lshl_b32 s59, s59, 10
    v_mov_b32 v220, 0x3f803f80
    v_mov_b32 v221, 0x3f803f80
    v_mov_b32 v222, 0x3f803f80
    v_mov_b32 v223, 0x3f803f80
    """)
    ld = []
    for n in range(5):
        ld.append((f"s_add_u32 m0, s55, {LB3 + 1024*n}\ns_nop 0", "buffer_load_dwordx4 v216, s[36:39], s60 offen nt lds", f"s_add_u32 s60, s60, {8*3456}"))
    for n in range(4):
        ld.append((f"s_add_u32 m0, s51, {LB4 + 1024*n}\ns_nop 0", "buffer_load_dwordx4 v217, s[68:71], s61 offen nt lds", f"s_add_u32 s61, s61, {8*1280}"))
    rd = []
    for ss in range(5):
        rd.append(f"ds_read_b64_tr_b16 v[{176+4*ss}:{177+4*ss}], v218 offset:{4096*ss}")
        rd.append(f"ds_read_b64_tr_b16 v[{178+4*ss}:{179+4*ss}], v218 offset:{4096*ss+512}")
    for f in range(4):
        rd.append(f"ds_read_b64_tr_b16 v[{196+4*f}:{197+4*f}], v219 offset:{32*f}")
        rd.append(f"ds_read_b64_tr_b16 v[{198+4*f}:{199+4*f}], v219 offset:{32*f+512}")
    cs = [f"v_mfma_f32_16x16x32_bf16 v[224:227], v[220:223], v[{176+4*ss}:{179+4*ss}], " + ("0" if ss == 0 else "v[224:227]") for ss in range(5)]
    cs2 = ["v_cvt_pk_bf16_f32 v212, v224, v224", "v_lshlrev_b32 v225, 16, v212", "v_sub_f32 v225, v224, v225", "v_cvt_pk_bf16_f32 v213, v225, v225"]
    st = []
    for ss in range(5):
        so, off = ("s52", 1024 * ss) if ss < 4 else ("s53", 0)
        st.append((f"buffer_store_dwordx4 v[{176+4*ss}:{179+4*ss}], v214, s[12:15], {so} offen offset:{off} {SC}", None))
    st.append((f"buffer_store_dwordx2 v[212:213], v215, s[32:35], s58 offen {SC}", None))
    for f in range(4):
        st.append((f"buffer_store_dwordx4 v[{196+4*f}:{199+4*f}], v3, s[16:19], s59 offen {SC}", f"s_add_u32 s59, s59, {54*1024}"))
    return ld, rd, cs, cs2, st
```

```python
S, D, H, DH, DF = 2048, 640, 32, 20, 1728
XN_OFF, XN_SZ = 0x0, 2621440
W1_OFF, W1_SZ = 0x280000, 16 * 153600
KV_OFF, KV_SZ = 0x4E0000, 32 * 3840
PQ_OFF, PQ_SZ = 0x500000, 64 * 16 * 5120
O_OFF, O_SZ = 0x500000, 128 * 20480
WO_OFF, WO_SZ = 0xA00000, 819200
H_OFF, H_SZ = 0xB00000, 2621440
ST_OFF, ST_SZ = 0xD80000, 64 * 8 * 32 * 8
CS_OFF, CS_SZ = 0xDC0000, 216 * 512
RS_OFF, RS_SZ = 0xDE0000, 4 * 2048 * 4
FL_OFF, FL_SZ = 0xDA0000, 6 * 16384
F4E_O, F6_O = 65536, 81920
FO_O = 0
F2_O, F3_O, F4_O = 0, 16384, 32768
F1A_O, F1B_O, F5_O, F2A_O = 49152, 53248, 57344, 61440
W3_OFF, W3_SZ = 0xE00000, 216 * 20480
W4_OFF, W4_SZ = 0x1240000, 40 * 56 * 1024
HH_OFF, HH_SZ = 0x1480000, 128 * 56 * 1024
STAMP_OFF = 0x2000000
LOG2E = 1.4426950408889634
```

```python
from common import *
from asmlib import Ins, need
import common, math, p0, p0b

GRID = 256
LDS = 160 * 1024
C0 = -2.0 * math.sqrt(2.0 / math.pi) * LOG2E
C1 = C0 * 0.044715
SC = "sc1"
POLL_MAX = 20000
P1_PACE = 12
import os
MAP4 = os.environ.get('MAP4', 'x'); MAP3 = os.environ.get('MAP3', 'x'); NT4 = os.environ.get('NT4', ''); NT3 = os.environ.get('NT3', ''); PACE3 = eval(os.environ.get('PACE3', '(1,3,7)')); NPK = int(os.environ.get('NPK', 2)); ACKD = int(os.environ.get('ACKD', 20)); CHK = int(os.environ.get('CHK', 8)); H0 = int(os.environ.get('H0', 14)); SIGI = int(os.environ.get('SIGI', 0)); W3EARLY = int(os.environ.get('W3EARLY', 0)); LAG = int(os.environ.get('LAG', 8)); EARLY = int(os.environ.get('EARLY', 5)); WO1 = int(os.environ.get('WO1', 12)); RTSG = int(os.environ.get('RTSG', 36)); RTS0 = int(os.environ.get('RTS0', 99)); RTSN = int(os.environ.get('RTSN', 3))

class Paced:
    def __init__(self, a, L, n, gate=None):
        self.a, self.L, self.n, self.c, self.gate = a, L, n, 0, gate
    def __call__(self, text):
        for line in text.strip().split("\n"):
            if not line.strip(): continue
            self.a(line)
            self.c += 1
            if self.c % self.n == 0: self.L.paced(self.gate)

def poll(a, name, voff, soff, tmp):
    a(f"""
    s_mov_b32 s92, 0
{name}:
    buffer_load_dword v{tmp}, v{voff}, s[8:11], {soff} offen sc1
    s_add_u32 s92, s92, 1
    s_cmp_gt_u32 s92, {POLL_MAX}
    s_cbranch_scc1 {name}_go
    s_waitcnt vmcnt(0)
    v_cmp_ne_u32 vcc, s93, v{tmp}
    s_nop 4
    s_cbranch_vccnz {name}
{name}_go:
    s_waitcnt vmcnt(0)
    """)
    a.vm_done = a.vm_issued

def signal(a, soff, tmp):
    a(f"""
    s_mov_b64 exec, 1
    v_mov_b32 v{tmp}, s93
    v_mov_b32 v{tmp+1}, 0
    buffer_store_dword v{tmp}, v{tmp+1}, s[8:11], {soff} offen sc0 sc1
    s_mov_b64 exec, -1
    """)

def softmax_pair(a, P, E, O, tmp):
    mx, mn = tmp, tmp + 2
    a(f"v_max3_f32 v{mx}, v{P}, v{P+1}, v{P+2}")
    a(f"v_min3_f32 v{mn}, v{P}, v{P+1}, v{P+2}")
    for i in range(3, 19, 2):
        a(f"v_max3_f32 v{mx}, v{mx}, v{P+i}, v{P+i+1}")
        a(f"v_min3_f32 v{mn}, v{mn}, v{P+i}, v{P+i+1}")
    a(f"v_max_f32 v{mx}, v{mx}, v{P+19}")
    a(f"v_min_f32 v{mn}, v{mn}, v{P+19}")
    for i in range(0, 20, 2):
        a(f"v_pk_add_f32 v[{E+i}:{E+i+1}], v[{P+i}:{P+i+1}], v[{mx}:{mx+1}] op_sel_hi:[1,0] neg_lo:[0,1] neg_hi:[0,1]")
        a(f"v_pk_add_f32 v[{E+20+i}:{E+21+i}], v[{P+i}:{P+i+1}], v[{mn}:{mn+1}] op_sel_hi:[1,0] neg_lo:[1,0] neg_hi:[1,0]")
    for i in range(40):
        a(f"v_exp_f32 v{E+i}, v{E+i}")
    sp, sn = tmp, tmp + 2
    a(f"v_pk_add_f32 v[{sp}:{sp+1}], v[{E}:{E+1}], v[{E+2}:{E+3}]")
    a(f"v_pk_add_f32 v[{sn}:{sn+1}], v[{E+20}:{E+21}], v[{E+22}:{E+23}]")
    for i in range(4, 20, 2):
        a(f"v_pk_add_f32 v[{sp}:{sp+1}], v[{sp}:{sp+1}], v[{E+i}:{E+i+1}]")
        a(f"v_pk_add_f32 v[{sn}:{sn+1}], v[{sn}:{sn+1}], v[{E+20+i}:{E+21+i}]")
    a(f"v_add_f32 v{sp}, v{sp}, v{sp+1}")
    a(f"v_add_f32 v{sn}, v{sn}, v{sn+1}")
    a(f"v_rcp_f32 v{sp}, v{sp}")
    a(f"v_rcp_f32 v{sn}, v{sn}")
    for i in range(0, 20, 2):
        a(f"v_pk_mul_f32 v[{E+i}:{E+i+1}], v[{E+i}:{E+i+1}], v[{sp}:{sp+1}] op_sel_hi:[1,0]")
        a(f"v_pk_mul_f32 v[{E+20+i}:{E+21+i}], v[{E+20+i}:{E+21+i}], v[{sn}:{sn+1}] op_sel_hi:[1,0]")
    for i in range(20):
        a(f"v_cvt_pk_bf16_f32 v{O+i}, v{E+2*i}, v{E+2*i+1}")

def map_p1(a, rb, hp, t):
    a(f"""
    s_bfe_u32 s{rb}, s2, 0x20001
    s_lshl_b32 s{rb}, s{rb}, 2
    s_bfe_u32 s{t}, s2, 0x20003
    s_add_u32 s{rb}, s{rb}, s{t}
    s_and_b32 s{hp}, s2, 1
    s_lshl_b32 s{hp}, s{hp}, 3
    s_lshr_b32 s{t}, s2, 5
    s_add_u32 s{hp}, s{hp}, s{t}
    """)
def map_p2(a, tb, nb, t):
    a(f"""
    s_and_b32 s{tb}, s2, 7
    s_lshl_b32 s{tb}, s{tb}, 3
    s_bfe_u32 s{t}, s2, 0x30003
    s_add_u32 s{tb}, s{tb}, s{t}
    s_lshr_b32 s{nb}, s2, 6
    """)
def map_p3(a, rb, cb, t):
    if MAP3 == 'row':
        a(f"""
        s_and_b32 s{rb}, s2, 7
        s_lshl_b32 s{rb}, s{rb}, 1
        s_bfe_u32 s{t}, s2, 0x10003
        s_add_u32 s{rb}, s{rb}, s{t}
        s_lshr_b32 s{cb}, s2, 4
        """)
        return
    if MAP3 == 'mid':
        map_p1(a, rb, cb, t)
        return
    a(f"""
    s_bfe_u32 s{rb}, s2, 0x10002
    s_lshl_b32 s{rb}, s{rb}, 3
    s_bfe_u32 s{t}, s2, 0x30003
    s_add_u32 s{rb}, s{rb}, s{t}
    s_and_b32 s{cb}, s2, 3
    s_lshl_b32 s{cb}, s{cb}, 2
    s_lshr_b32 s{t}, s2, 6
    s_add_u32 s{cb}, s{cb}, s{t}
    """)
def map_p4(a, rb, nb, t):
    if MAP4 == 'row':
        a(f"""
        s_and_b32 s{rb}, s2, 7
        s_lshl_b32 s{rb}, s{rb}, 2
        s_bfe_u32 s{t}, s2, 0x20003
        s_add_u32 s{rb}, s{rb}, s{t}
        s_lshr_b32 s{nb}, s2, 5
        """)
        return
    a(f"""
    s_bfe_u32 s{rb}, s2, 0x20001
    s_lshl_b32 s{rb}, s{rb}, 3
    s_bfe_u32 s{t}, s2, 0x30003
    s_add_u32 s{rb}, s{rb}, s{t}
    s_and_b32 s{nb}, s2, 1
    s_lshl_b32 s{nb}, s{nb}, 2
    s_lshr_b32 s{t}, s2, 6
    s_add_u32 s{nb}, s{nb}, s{t}
    """)

def w3_dma(L, T, gate=None):
    reg = [81920, 122880, 0, 40960, 81920, 122880, 0][T]
    sr = 12 if T < 2 else (16 if T < 6 else 68)
    for c in range(10):
        grp = 0 if c < 4 else (4 if c < 8 else 8)
        L.add(f"buffer_load_dwordx4 v3, s[{sr}:{sr+3}], m0 offen offset:{1024*(c-grp)} {SC} lds", gate=gate,
              pre=f"s_add_u32 m0, s3, {reg + 1024*c}" if c == grp else None, tag=('W3', T) if c == 9 else None)

def check_flags(a, name, regs, voff, soff, wide):
    def test(x):
        if wide:
            x(f"v_xor_b32 v{regs}, s93, v{regs}\nv_xor_b32 v{regs+1}, s93, v{regs+1}\nv_xor_b32 v{regs+2}, s93, v{regs+2}\nv_xor_b32 v{regs+3}, s93, v{regs+3}")
            x(f"v_or3_b32 v{regs}, v{regs}, v{regs+1}, v{regs+2}\nv_or_b32 v{regs}, v{regs}, v{regs+3}\nv_cmp_ne_u32 vcc, 0, v{regs}")
        else:
            x(f"v_cmp_ne_u32 vcc, s93, v{regs}")
    test(a)
    a(f"s_mov_b32 s92, 0\ns_nop 3\ns_cbranch_vccz {name}_ok")
    b = Asm()
    b(f"{name}:")
    b(f"buffer_load_dwordx4 v[{regs}:{regs+3}], v{voff}, s[8:11], {soff} offen sc1" if wide else f"buffer_load_dword v{regs}, v{voff}, s[8:11], {soff} offen sc1")
    b(f"s_add_u32 s92, s92, 1\ns_waitcnt vmcnt(0)\ns_cmp_gt_u32 s92, {POLL_MAX}\ns_cbranch_scc1 {name}_ok")
    test(b)
    b(f"s_nop 4\ns_cbranch_vccnz {name}")
    a.ins += b.ins
    a(f"{name}_ok:")

def gen_mega():
    a = Asm()
    a(f"""
    s_memrealtime s[98:99]
    s_load_dwordx2 s[20:21], s[0:1], 80
    s_load_dwordx2 s[4:5], s[0:1], 0
    s_load_dwordx4 s[12:15], s[0:1], 8
    s_load_dwordx2 s[16:17], s[0:1], 24
    s_load_dwordx2 s[6:7], s[0:1], 64
    s_load_dwordx2 s[18:19], s[0:1], 72
    s_load_dwordx4 s[56:59], s[0:1], 40
    s_load_dwordx2 s[62:63], s[0:1], 56
    v_lshrrev_b32 v1, 6, v0
    v_and_b32 v2, 63, v0
    v_readfirstlane_b32 s95, v1
    s_cmp_ge_u32 s2, {GRID}
    s_cbranch_scc1 M_exit
    """)
    mstamp_begin(a)
    a(f"""
    v_lshlrev_b32 v3, 4, v2
    v_lshrrev_b32 v4, 5, v2
    v_and_b32 v5, 31, v2
    s_mul_i32 s3, s95, 10240
    """)
    map_p1(a, 42, 43, 40)
    p0b.p0(a, 2)
    rt_ld, rt_rd, rt_cs, rt_cs2, rt_st, rt_se = p0b.rt_setup(a)
    assert not rt_ld
    a(f"""
    s_lshl_b32 s44, s42, 2
    s_add_u32 s44, s44, s95
    s_mul_i32 s45, s44, 40960
    s_mul_i32 s46, s43, 153600
    s_lshl_b32 s47, s95, 12
    s_lshl_b32 s48, s95, 11
    """)
    srd(a, 24, 20, XN_OFF, XN_SZ)
    srd_dyn(a, 28, 20, W1_OFF, 46, 153600)
    mspill(a)
    poll(a, "M_poll1", 12, "0", 9)
    mmark(a, "p1_sync")
    L = Loads(a, 28 if rt_ld else 24)
    for n in range(10):
        cnt = 4 if n < 9 else 2
        g = 15 if n >= 7 else None
        L.add(f"buffer_load_dwordx4 a[{16*n}:{16*n+3}], v3, s[24:27], s45 offen {SC}", pre=f"s_add_u32 m0, s{47 if n < 9 else 48}, {16384*n}", gate=g)
        for c in range(cnt):
            L.add(f"buffer_load_dwordx4 v3, s[28:31], m0 offen offset:{1024*c} {SC} lds", gate=g)
        for c in range(1, 4):
            L.add(f"buffer_load_dwordx4 a[{16*n+4*c}:{16*n+4*c+3}], v3, s[24:27], s45 offen offset:{1024*c} {SC}",
                  tag=n if c == 3 else None, post="s_add_u32 s45, s45, 4096" if c == 3 and n < 9 else None, gate=g)
        if n == 2:
            for pr, tx_, po in rt_ld: L.add(tx_, pre=pr, post=po or None)
        if RTS0 <= n < 9:
            for _ in range(RTSN):
                if len(rt_st) > 1:
                    tx_, po = rt_st.pop(0); L.add(tx_, post=po, gate=22)
    L.pump(16)
    srd(a, 64, 20, WO_OFF, WO_SZ)
    map_p4(a, 100, 101, 40)
    a(f"""
    s_mul_i32 s40, s101, 5
    s_lshr_b32 s40, s40, 2
    s_mul_i32 s40, s40, 20
    s_mul_i32 s41, s95, 5
    s_add_u32 s40, s40, s41
    s_lshl_b32 s40, s40, 4
    s_add_u32 s40, s40, {F5_O}
    v_and_b32 v62, 7, v2
    v_min_u32 v62, 4, v62
    v_lshl_add_u32 v62, v62, 4, s40
    v_bfe_u32 v63, v2, 3, 1
    v_mul_u32_u24 v63, 320, v63
    v_add_u32 v62, v62, v63
    s_mul_i32 s22, s101, 100
    s_add_u32 s22, s22, s41
    s_lshl_b32 s22, s22, 10
    """)
    for n_, (tx_, po) in enumerate(rt_st): L.add(tx_, post=po, gate=RTSG, tag='rts' if n_ == len(rt_st) - 1 else None)
    L.add("buffer_load_dword v63, v62, s[8:11], 0 offen sc1", tag='f6', gate=60)
    def woreg(T, k):
        r = 156 + 4 * ((5 * T + k + 1) % 25)
        return f"a[{r}:{r+3}]"
    for T in range(5):
        for k in range(5):
            L.add(f"buffer_load_dwordx4 {woreg(T, k)}, v3, s[64:67], s23 offen offset:{1024*(k%4)} {SC}",
                  pre=f"s_add_u32 s23, s22, {T*20480 + 4096*(k//4)}" if k % 4 == 0 else None, gate=70)
    a(f"""
    v_lshlrev_b32 v6, 7, v4
    v_sub_u32 v6, v3, v6
    v_add_u32 v7, {16*3840}, v3
    v_add_u32 v8, {16*3840}, v6
    v_add_u32 v9, {32*3840}, v3
    v_add_u32 v10, {32*3840}, v6
    """)
    ACC = 64; WF = 24
    R0 = 11 if rt_ld else 1
    def rd(s, T):
        win = s // 16
        base = [(3, 6), (7, 8), (9, 10)][win][1 if T == 3 else 0]
        off = (s - 16 * win) * 3840 + T * 1024
        r = WF + 4 * ((s % 2) * 4 + T)
        return a.ds(f"ds_read_b128 v[{r}:{r+3}], v{base} offset:{off}")
    tR = {}
    L.need(0)
    a("s_barrier")
    mmark(a, "p1_first")
    for T in range(4): tR[(0, T)] = rd(0, T)
    for s in range(40):
        nxt = s + 1
        if nxt < 40 and nxt % 4 == 0:
            L.need(nxt // 4, gate=s - 1)
            a("s_barrier")
        for T in range(4):
            if nxt < 40: tR[(nxt, T)] = rd(nxt, T)
            if T % 2 == 0: a.wait(lg=tR[(s, T + 1)])
            r = WF + 4 * ((s % 2) * 4 + T)
            d = ACC + 16 * T
            a(f"v_mfma_f32_32x32x16_bf16 v[{d}:{d+15}], v[{r}:{r+3}], a[{4*s}:{4*s+3}], " + ("0" if s == 0 else f"v[{d}:{d+15}]"))
            if R0 <= s < R0 + 3 and rt_rd:
                a(rt_rd.pop(0))
                if T % 2: a(rt_rd.pop(0))
            elif s == R0 + 5 and T == 0:
                for x_ in rt_cs: a(x_)
            elif s == R0 + 8:
                a(rt_cs2.pop(0))
            if T % 2 == 0 or (T == 3 and ((rt_ld and s < 12) or s >= 36)):
                if s >= 28: L.paced(gate=s)
                else: L.pump(1, gate=s)
    EB = 86016
    a(f"""
    s_lshl_b32 s50, s95, 5
    v_add_u32 v11, s50, v5
    v_mul_u32_u24 v11, 272, v11
    v_lshl_add_u32 v11, v4, 7, v11
    v_add_u32 v11, {EB}, v11
    """)
    assert 'rts' in L.t and not rt_rd
    a("s_barrier")
    mmark(a, "p1_loop")
    XL = 61440
    srd(a, 68, 4, 0, 2621440)
    a(f"""
    s_lshl_b32 s40, s100, 2
    s_add_u32 s40, s40, s95
    s_mul_i32 s40, s40, {16*1280}
    s_mul_i32 s41, s101, 160
    s_add_u32 s40, s40, s41
    s_mul_i32 s41, s95, 2560
    s_movk_i32 s45, 6554
    """)
    for n in range(3):
        a(f"""
        v_add_u32 v8, {64*n}, v2
        v_mul_u32_u24 v9, s45, v8
        v_lshrrev_b32 v9, 16, v9
        v_mul_u32_u24 v9, {1280-160}, v9
        v_lshl_add_u32 v8, v8, 4, v9
        s_add_u32 m0, s41, {XL + 1024*n}
        """)
        if n == 2: a("s_mov_b32 exec_hi, 0")
        tRT = a.vm("buffer_load_dwordx4 v8, s[68:71], s40 offen nt lds")
    a("s_mov_b32 exec_hi, -1")
    pa = Paced(a, L, P1_PACE, gate=99)
    E, O, TMP, VP = 128, 168, 12, 188
    for i in range(9):
        a(f"v_cvt_pk_bf16_f32 v{VP+i}, v{84+2*i}, v{85+2*i}")
    a(f"v_mov_b32 v{VP+9}, 0x3f80\nv_cvt_pk_bf16_f32 v{VP+10}, v102, v103\nv_mov_b32 v{VP+11}, 0x3f80")
    for c in range(3):
        a(f"ds_write_b128 v11, v[{VP+4*c}:{VP+4*c+3}] offset:{80+16*c}")
    softmax_pair(a, 64, E, O, TMP)
    srd(a, 32, 20, KV_OFF, KV_SZ)
    for c in range(5):
        a(f"ds_write_b128 v11, v[{O+4*c}:{O+4*c+3}] offset:{16*c}")
    a(f"""
    v_bfe_u32 v56, v2, 2, 2
    v_lshlrev_b32 v56, 2, v56
    v_lshl_add_u32 v56, v4, 1, v56
    v_mul_u32_u24 v56, 272, v56
    v_bfe_u32 v57, v2, 4, 1
    v_lshl_add_u32 v56, v57, 5, v56
    v_and_b32 v57, 3, v2
    v_lshl_add_u32 v56, v57, 3, v56
    s_lshr_b32 s51, s95, 1
    s_and_b32 s52, s95, 1
    s_lshl_b32 s53, s51, 7
    s_add_u32 s53, s53, {EB}
    v_add_u32 v56, s53, v56
    s_mul_i32 s53, s52, 40
    v_add_u32 v57, s53, v56
    """)
    a.wait_all_lg()
    a("s_barrier")
    mmark(a, "p1_ksm")
    tk = []
    FA, FB, KD = 128, 200, 24
    def kvm(k2):
        a.wait(lg=tk[k2])
        a(f"v_mfma_f32_32x32x16_bf16 v[{KD}:{KD+15}], v[{FA+4*k2}:{FA+4*k2+3}], v[{FB+4*k2}:{FB+4*k2+3}], " + ("0" if k2 == 0 else f"v[{KD}:{KD+15}]"))
    for ks in range(8):
        for rho in range(2):
            off = (16 * ks + rho) * 272
            a(f"ds_read_b64_tr_b16 v[{FA+4*ks+2*rho}:{FA+4*ks+2*rho+1}], v57 offset:{off}")
            t = a.ds(f"ds_read_b64_tr_b16 v[{FB+4*ks+2*rho}:{FB+4*ks+2*rho+1}], v56 offset:{off+80}")
        tk.append(t)
        if ks >= 2: kvm(ks - 2)
    kvm(6); kvm(7)
    a(f"""
    s_add_u32 s53, s47, {EB + 40960}
    v_mul_u32_u24 v58, 384, v4
    v_lshl_add_u32 v58, v5, 4, v58
    v_add_u32 v58, s53, v58
    v_lshl_add_u32 v59, v2, 2, s53
    v_lshlrev_b32 v60, 2, v2
    s_lshl_b32 s54, s43, 1
    s_add_u32 s54, s54, s51
    s_mul_i32 s54, s54, 3840
    s_mul_i32 s55, s52, 1920
    s_add_u32 s54, s54, s55
    v_cmp_gt_u32 vcc, 24, v5
    s_and_saveexec_b64 s[56:57], vcc
    """)
    for c in range(3):
        a(f"ds_write_b128 v58, v[{KD+4*c}:{KD+3+4*c}] offset:{768*c}")
    a("s_mov_b64 exec, s[56:57]")
    a.wait_all_lg()
    tk = [a.ds(f"ds_read_b32 v{40+i}, v59 offset:{256*i}") for i in range(8)]
    if a.vm_issued - a.vm_done > 40: a.wait(vm=a.vm_issued - 24)
    for i in range(8):
        a.wait(lg=tk[i])
        if i == 7: a("s_mov_b32 exec_hi, 0")
        a(f"buffer_atomic_add_f32 v{40+i}, v60, s[32:35], s54 offen offset:{256*i}")
    a("s_mov_b64 exec, -1")
    mmark(a, "p1_atom")
    tat = a.vm_issued
    softmax_pair(a, 104, E, O, TMP)
    P = lambda r: f"v[{r}:{r+1}]"
    for c in (0, 2):
        for j in range(4):
            a(f"v_permlane32_swap_b32 v{O+4*c+j}, v{O+4*c+4+j}")
    mmark(a, "p1_qsm")
    a(f"""
    s_lshl_b32 s40, s43, 4
    s_add_u32 s40, s40, s42
    s_lshl_b32 s40, s40, 4
    s_add_u32 s40, s40, {F2A_O}
    """)
    a.wait(vm=tat)
    a("s_barrier")
    a("s_cmp_lg_u32 s95, 0\ns_cbranch_scc1 M_s2")
    signal(a, "s40", 8)
    a("M_s2:")
    mmark(a, "p1_sig")
    a(f"""
    s_lshl_b32 s40, s2, 4
    s_add_u32 s40, s40, {F5_O}
    s_cmp_lg_u32 s95, 3
    s_cselect_b32 s40, 0x1000000, s40
    """)
    signal(a, "s40", 8)
    a.vm_done = a.vm_issued
    srd(a, 24, 20, KV_OFF, KV_SZ)
    srd(a, 28, 20, O_OFF, O_SZ)
    a(f"""
    v_min_u32 v6, 23, v5
    v_lshlrev_b32 v6, 4, v6
    v_mul_u32_u24 v7, 3840, v4
    v_add_u32 v7, v7, v6
    v_mul_u32_u24 v8, 768, v4
    v_add_u32 v6, v8, v6
    s_mul_i32 s45, s43, 7680
    s_add_u32 s46, s45, 3840
    v_and_b32 v8, 15, v2
    v_lshlrev_b32 v8, 4, v8
    s_lshl_b32 s47, s43, 8
    s_add_u32 s47, s47, {F2A_O}
    v_lshrrev_b32 v10, 4, v5
    v_mul_u32_u24 v10, 20480, v10
    v_add_u32 v10, v10, v8
    v_lshl_add_u32 v11, v4, 8, v10
    s_mul_i32 s48, s44, 40960
    s_mul_i32 s49, s43, 1280
    s_add_u32 s48, s48, s49
    s_lshl_b32 s49, s44, 4
    s_add_u32 s49, s49, s43
    s_lshl_b32 s49, s49, 4
    s_add_u32 s49, s49, {FO_O}
    """)
    for r in range(12, 20): a(f"v_mov_b32 v{r}, 0")
    mspill(a)
    poll(a, "M_poll2a", 8, "s47", 9)
    mmark(a, "p1b_sync")
    b = 64
    for hh in range(2):
        for u in range(2):
            for e in range(2):
                r = b + 16 * hh + 8 * u + 4 * e
                a(f"buffer_load_dwordx4 v[{r}:{r+3}], v6, s[24:27], s{45+hh} offen offset:{(4*u+e)*384} {SC}")
        if hh == 0:
            for e in range(2):
                r = b + 32 + 4 * e
                t0 = a.vm(f"buffer_load_dwordx4 v[{r}:{r+3}], v7, s[24:27], s45 offen offset:{(8+e)*384} {SC}")
    t1 = a.vm_issued
    OD, OB = [24, 40], 56
    for hh in range(2):
        a.wait(vm=t0 if hh == 0 else t1)
        if hh == 0: mmark(a, "p1b_kv")
        for u in range(2):
            r = b + 16 * hh + 8 * u
            for j in range(4):
                a(f"v_cvt_pk_bf16_f32 v{r+j}, v{r+2*j}, v{r+2*j+1}")
        a("s_mov_b32 exec_hi, 0" if hh == 0 else "s_mov_b32 exec_lo, 0")
        for j in range(4): a(f"v_cvt_pk_bf16_f32 v{12+4*hh+j}, v{b+32+2*j}, v{b+33+2*j}")
        a("s_mov_b64 exec, -1")
        d = OD[hh]
        for u in range(2):
            r = b + 16 * hh + 8 * u
            q = O + 8 * u + 4 * hh
            a(f"v_mfma_f32_32x32x16_bf16 v[{d}:{d+15}], v[{r}:{r+3}], v[{q}:{q+3}], " + ("0" if u == 0 else f"v[{d}:{d+15}]"))
        a(f"v_mfma_f32_32x32x16_bf16 v[{d}:{d+15}], v[{12+4*hh}:{15+4*hh}], v[{O+16}:{O+19}], v[{d}:{d+15}]")
    OB = 104
    for hh in range(2):
        d = OD[hh]
        a(f"v_add_f32 v{d+10}, {f32(1e-6)}, v{d+10}")
        a(f"v_rcp_f32 v{d+10}, v{d+10}")
        for j in range(0, 10, 2):
            a(f"v_pk_mul_f32 {P(d+j)}, {P(d+j)}, {P(d+10)} op_sel_hi:[1,0]")
        for j in range(5):
            a(f"v_cvt_pk_bf16_f32 v{OB+5*hh+j}, v{d+2*j}, v{d+2*j+1}")
        if hh == 0:
            a(f"buffer_store_dwordx4 v[{OB}:{OB+3}], v11, s[28:31], s48 offen {SC}")
    a(f"""
    buffer_store_dwordx4 v[{OB+4}:{OB+7}], v11, s[28:31], s48 offen offset:512 {SC}
    v_permlane32_swap_b32 v{OB+8}, v{OB+10}
    v_permlane32_swap_b32 v{OB+9}, v{OB+11}
    s_mov_b32 exec_hi, 0
    """)
    tst = a.vm(f"buffer_store_dwordx4 v[{OB+8}:{OB+11}], v10, s[28:31], s48 offen offset:1024 {SC}")
    a("s_mov_b32 exec_hi, -1")
    L.lim = 60; L.pump(1, gate=60)
    mmark(a, "p1b_st")
    map_p3(a, 60, 61, 40)
    a(f"""
    s_mul_i32 s62, s61, 27
    s_lshr_b32 s62, s62, 1
    s_mul_i32 s40, s62, 20480
    """)
    srd_dyn(a, 12, 20, W3_OFF - 81920, 40, 163840)
    srd_dyn(a, 16, 20, W3_OFF + 81920, 40, 163840)
    srd_dyn(a, 68, 20, W3_OFF + 245760, 40, 40960)
    a.wait(vm=tst)
    signal(a, "s49", 8)
    mmark(a, "p1b_sig")
    L.need('f6')
    check_flags(a, "M_f6", 63, 62, "0", False)
    L.pump(99, gate=99); assert not L.q
    PB2, TB2 = 0, 71680
    srd(a, 24, 20, H_OFF, H_SZ)
    srd(a, 32, 20, ST_OFF, ST_SZ)
    a(f"""
    s_mul_i32 s44, s95, 5
    s_mul_i32 s45, s100, 80
    s_add_u32 s45, s45, s44
    s_lshl_b32 s45, s45, 10
    v_and_b32 v7, 3, v2
    v_lshlrev_b32 v7, 4, v7
    v_bfe_u32 v8, v2, 2, 1
    v_lshl_add_u32 v7, v8, 8, v7
    s_lshl_b32 s46, s100, 9
    s_lshl_b32 s47, s95, 6
    s_add_u32 s46, s46, s47
    s_add_u32 s46, s46, {FO_O}
    s_mul_i32 s47, s95, 15360
    v_add_u32 v6, s47, v3
    """)
    for j in range(1, 4):
        a(f"""
        s_add_u32 s47, s95, {j}
        s_and_b32 s47, s47, 3
        s_mul_i32 s47, s47, 15360
        s_add_u32 s47, s47, {PB2 + (3-j)*5120}
        v_add_u32 v{9+j}, s47, v3
        """)
    a(f"""
    v_and_b32 v13, 15, v2
    v_lshrrev_b32 v14, 4, v2
    v_mul_u32_u24 v17, 160, v13
    v_lshl_add_u32 v17, v14, 3, v17
    s_mul_i32 s51, s95, 2560
    s_add_u32 s52, s51, {XL}
    v_add_u32 v15, s52, v17
    s_add_u32 s51, s51, {TB2}
    v_add_u32 v17, s51, v17
    v_mul_u32_u24 v18, 160, v13
    v_lshl_add_u32 v18, v14, 4, v18
    v_add_u32 v18, s51, v18
    v_lshlrev_b32 v19, 4, v13
    v_lshl_add_u32 v19, v14, 9, v19
    s_lshl_b32 s48, s100, 1
    s_lshr_b32 s49, s95, 1
    s_add_u32 s48, s48, s49
    s_lshl_b32 s53, s48, 3
    s_add_u32 s53, s53, s101
    s_lshl_b32 s53, s53, 8
    s_mul_i32 s48, s48, 40960
    s_mul_i32 s49, s101, 5120
    s_add_u32 s48, s48, s49
    s_and_b32 s49, s95, 1
    s_lshl_b32 s50, s49, 7
    s_add_u32 s53, s53, s50
    s_lshl_b32 s49, s49, 8
    s_add_u32 s48, s48, s49
    s_add_u32 s49, s48, 4096
    s_lshl_b32 s56, s100, 2
    s_add_u32 s56, s56, s95
    s_lshl_b32 s56, s56, 3
    s_add_u32 s56, s56, s101
    s_lshl_b32 s56, s56, 4
    s_add_u32 s56, s56, {F3_O}
    s_mov_b32 s54, 0xffff0000
    s_lshr_b32 s50, s62, 3
    s_lshl_b32 s50, s50, 2
    v_min_u32 v20, 11, v13
    v_add_u32 v20, s50, v20
    v_min_u32 v20, 107, v20
    v_and_b32 v21, 1, v14
    v_mul_u32_u24 v16, 108, v21
    v_add_u32 v20, v20, v16
    s_mul_i32 s50, s101, 5
    s_lshr_b32 s50, s50, 2
    s_mul_i32 s50, s50, 56
    s_mul_i32 s51, s95, 14
    s_add_u32 s50, s50, s51
    v_min_u32 v16, 13, v13
    v_mul_u32_u24 v21, 56, v21
    v_add3_u32 v16, v16, v21, s50
    v_min_u32 v16, 559, v16
    v_lshrrev_b32 v21, 1, v16
    v_subrev_u32 v22, {512-208}, v16
    v_cmp_le_u32 vcc, 512, v16
    v_cndmask_b32 v16, v21, v22, vcc
    v_cmp_le_u32 vcc, 32, v2
    v_cndmask_b32 v20, v20, v16, vcc
    v_lshlrev_b32 v20, 4, v20
    s_mov_b32 s57, {F5_O}
    """)
    tf = a.vm("buffer_load_dword v21, v20, s[8:11], s57 offen sc1")
    tx = [a.ds(f"ds_read_b64 v[{112+2*T}:{113+2*T}], v15 offset:{32*T}") for T in range(5)]
    A4 = [72, 92]; RS_, PS = 24, 44
    a.wait(lg=tx[4])
    for j in range(10):
        a(f"v_lshlrev_b32 v{128+2*j}, 16, v{112+j}")
        a(f"v_and_b32 v{129+2*j}, s54, v{112+j}")
    a.wait(vm=tf)
    check_flags(a, "M_f5", 21, 20, "s57", False)
    L0 = Loads(a, 60); w3_dma(L0, 0); w3_dma(L0, 1); L0.pump(W3EARLY)
    mspill(a)
    poll(a, "M_poll2b", 7, "s46", 9)
    mmark(a, "p2_sync")
    L = Loads(a, 40)
    order = [(sl, k) for sl in (1, 2, 3, 0) for k in range(5)]
    for i, (sl, k) in enumerate(order):
        pre = None
        if k == 0:
            pre = f"s_add_u32 s55, s95, {sl}\ns_and_b32 s55, s55, 3\ns_mul_i32 s55, s55, 20480\ns_add_u32 s55, s55, s45"
        elif k == 4:
            pre = "s_add_u32 s55, s55, 4096"
        L.add(f"buffer_load_dwordx4 a[{4*i}:{4*i+3}], v3, s[28:31], s55 offen offset:{1024*(k%4)} {SC} {NT4}", pre=pre, tag=i)
    L.q += L0.q
    L.pump(12)
    ACC2 = [72, 92, 72, 128]
    def flush_p(ph):
        dp = ACC2[ph]
        for T in range(5):
            a(f"ds_write_b128 v6, v[{dp+4*T}:{dp+4*T+3}] offset:{ph*5120 + T*1024}")
    gate = None
    for i, (sl, k) in enumerate(order):
        ph = i // 5
        d = ACC2[ph]
        L.need(i)
        if i == 0: mmark(a, "p2_first")
        for T in range(5):
            a(f"v_mfma_f32_16x16x32_bf16 v[{d+4*T}:{d+4*T+3}], {woreg(T, k)}, a[{4*i}:{4*i+3}], " + ("0" if k == 0 and ph < 3 else f"v[{d+4*T}:{d+4*T+3}]"))
            if T in (1, 3): L.pump(1, gate=gate)
        if k == 1 and ph > 0: flush_p(ph - 1)
    a.wait_all_lg()
    a("s_barrier")
    mmark(a, "p2_bar")
    tk = []
    for j, rb in enumerate((RS_, PS, A4[0])):
        for T in range(5):
            t = a.ds(f"ds_read_b128 v[{rb+4*T}:{rb+4*T+3}], v{10+j} offset:{1024*T}")
        tk.append(t)
    L.pump(99, gate=3)
    assert not L.q
    a("v_mov_b32 v14, 0x3f803f80\nv_mov_b32 v112, 0\nv_mov_b32 v113, 0")
    for j, rb in enumerate((RS_, PS, A4[0])):
        a.wait(lg=tk[j])
        for r in range(0, 20, 2):
            a(f"v_pk_add_f32 {P(128+r)}, {P(128+r)}, {P(rb+r)}")
    for j in range(10):
        a(f"v_cvt_pk_bf16_f32 v{RS_+j}, v{128+2*j}, v{129+2*j}")
    for T in range(5):
        a(f"ds_write_b64 v17, v[{RS_+2*T}:{RS_+2*T+1}] offset:{32*T}")
    for j in range(10):
        a(f"v_dot2c_f32_bf16 v112, v{RS_+j}, v14")
        a(f"v_dot2c_f32_bf16 v113, v{RS_+j}, v{RS_+j}")
    a.wait_all_lg()
    tk = [a.ds(f"ds_read_b128 v[{PS+4*it}:{PS+4*it+3}], v18 offset:{64*it}") for it in range(3)]
    a(f"""
    v_mov_b32 v114, v112
    v_mov_b32 v115, v113
    v_permlane32_swap_b32 v112, v114
    v_permlane32_swap_b32 v113, v115
    v_pk_add_f32 v[112:113], v[112:113], v[114:115]
    """)
    for it in range(3):
        a.wait(lg=tk[it])
        if it == 2: a("s_mov_b32 exec_hi, 0")
        a(f"buffer_store_dwordx4 v[{PS+4*it}:{PS+4*it+3}], v19, s[24:27], s{48 if it < 2 else 49} offen offset:{2048*(it%2)} {SC}")
    a(f"""
    s_mov_b32 exec_hi, -1
    v_mov_b32 v114, v112
    v_mov_b32 v115, v113
    v_lshlrev_b32 v13, 3, v13
    v_permlane16_swap_b32 v112, v114
    v_permlane16_swap_b32 v113, v115
    v_pk_add_f32 v[112:113], v[112:113], v[114:115]
    s_mov_b64 exec, 0xffff
    """)
    tst = a.vm(f"buffer_store_dwordx2 v[112:113], v13, s[32:35], s53 offen {SC}")
    a("s_mov_b64 exec, -1")
    mmark(a, "p2_st")
    srd(a, 28, 20, ST_OFF, ST_SZ)
    a.wait(vm=tst)
    signal(a, "s56", 8)
    mmark(a, "p2_sig")
    a("s_barrier")
    w3_dma(L, 2); L.pump(99)
    a(f"""
    s_lshl_b32 s44, s60, 2
    s_add_u32 s44, s44, s95
    s_mul_i32 s45, s44, 40960
    v_bfe_u32 v7, v2, 2, 1
    v_bfe_u32 v8, v2, 4, 1
    v_xor_b32 v9, v8, v4
    v_lshlrev_b32 v9, 7, v9
    v_lshl_add_u32 v9, v8, 8, v9
    v_bfe_u32 v8, v2, 3, 1
    v_lshl_add_u32 v9, v8, 6, v9
    v_and_b32 v8, 3, v2
    v_lshl_add_u32 v9, v8, 4, v9
    v_lshl_add_u32 v8, v7, 9, v9
    v_mul_u32_u24 v7, 20480, v7
    v_add_u32 v10, v7, v9
    v_add_u32 v11, 40960, v10
    v_add_u32 v12, 81920, v10
    v_add_u32 v13, 122880, v10
    """)
    srd(a, 36, 20, CS_OFF, CS_SZ)
    a("s_lshl_b32 s48, s62, 9\ns_add_u32 s49, s48, 4096")
    for T in range(7):
        a(f"buffer_load_dwordx4 a[{160+4*T}:{163+4*T}], v8, s[36:39], s{48 if T < 4 else 49} offen offset:{1024*(T%4)} {SC}")
    srd(a, 36, 20, HH_OFF, HH_SZ)
    srd(a, 32, 20, RS_OFF, RS_SZ)
    a(f"""
    v_lshlrev_b32 v6, 3, v5
    v_lshl_add_u32 v6, v4, 10, v6
    s_lshl_b32 s48, s44, 11
    v_lshrrev_b32 v20, 4, v5
    v_mul_u32_u24 v20, 57344, v20
    v_and_b32 v21, 15, v2
    v_lshlrev_b32 v7, 4, v21
    v_add_u32 v20, v7, v20
    v_lshl_add_u32 v20, v4, 8, v20
    s_mul_i32 s50, s44, 114688
    s_lshr_b32 s51, s61, 2
    s_mul_i32 s51, s51, 14336
    s_add_u32 s50, s50, s51
    s_and_b32 s51, s61, 3
    s_lshl_b32 s51, s51, 9
    s_add_u32 s50, s50, s51
    s_lshl_b32 s51, s44, 4
    s_add_u32 s51, s51, s61
    s_lshl_b32 s51, s51, 4
    v_mov_b32 v8, 0x1000000
    v_writelane_b32 v8, s51, 0
    v_mov_b32 v1, s93
    s_mov_b32 s58, {F4E_O}
    s_mov_b32 s59, {F4_O}
    s_lshl_b32 s51, s44, 8
    s_add_u32 s51, s51, {F3_O}
    s_lshr_b32 s52, s61, 2
    s_lshl_b32 s52, s52, 13
    s_lshl_b32 s53, s44, 7
    s_add_u32 s52, s52, s53
    s_and_b32 s53, s61, 3
    s_cmp_eq_u32 s53, 1
    s_cselect_b32 s52, s52, 0x1000000
    """)
    mspill(a)
    poll(a, "M_poll3", 7, "s51", 9)
    mmark(a, "p3_sync")
    L = Loads(a, 28)
    SR = 144
    for n in range(40):
        L.add(f"buffer_load_dwordx4 a[{4*n}:{4*n+3}], v3, s[24:27], s45 offen offset:{1024*(n%4)} {SC} {NT3}", tag=n,
              post="s_add_u32 s45, s45, 4096" if n % 4 == 3 else None)
        if n == 11:
            for p in range(4):
                L.add(f"buffer_load_dwordx2 v[{SR+2*p}:{SR+2*p+1}], v6, s[28:31], s48 offen offset:{256*p} {SC}", tag='st' if p == 3 else None)
    w3_dma(L, 3)
    L.pump(12)
    ACB = [80, 96, 112, 128, 144]
    NA = 5
    WF, NB, TMP, OUT = 24, 10, 64, [72, 76]
    REG = [12, 13, 10, 11, 12, 13, 10]
    seq = []
    for s in range(40):
        seq += [(0, s), (1, s)]
        if s >= LAG: seq.append((2, s - LAG))
    seq += [(2, s) for s in range(max(40 - LAG, 0), 40)] + [(T, s) for T in range(3, 7) for s in range(40)]
    frs = {}
    nrd = [0]
    def rd3():
        i = nrd[0]
        if i >= len(seq): return
        T, s = seq[i]
        r = WF + 4 * (i % NB)
        frs[i] = (r, a.ds(f"ds_read_b128 v[{r}:{r+3}], v{REG[T]} offset:{512*s}"))
        nrd[0] += 1
    def epi(T, pk):
        d, out, tmp = ACB[T % NA], OUT[T % 2], TMP
        Lx = []
        if pk:
            for j in range(0, 8, 2): Lx.append(f"v_pk_mul_f32 {P(tmp+j)}, {P(d+j)}, {P(d+j)}")
            for j in range(0, 8, 2): Lx.append(f"v_pk_fma_f32 {P(tmp+j)}, {P(tmp+j)}, v[14:15], v[14:15] op_sel:[0,1,0] op_sel_hi:[1,1,0]")
            for j in range(0, 8, 2): Lx.append(f"v_pk_mul_f32 {P(tmp+j)}, {P(tmp+j)}, {P(d+j)}")
            for j in range(8): Lx.append(f"v_exp_f32 v{tmp+j}, v{tmp+j}")
            for j in range(0, 8, 2): Lx.append(f"v_pk_mul_f32 {P(d+j)}, {P(d+j)}, {P(d+8+j)}")
            for j in range(0, 8, 2): Lx.append(f"v_pk_add_f32 {P(tmp+j)}, {P(tmp+j)}, 1.0 op_sel_hi:[1,0]")
            for j in range(8): Lx.append(f"v_rcp_f32 v{tmp+j}, v{tmp+j}")
            for j in range(0, 8, 2): Lx.append(f"v_pk_mul_f32 {P(d+j)}, {P(d+j)}, {P(tmp+j)}")
        else:
            for j in range(8): Lx.append(f"v_mul_f32 v{tmp+j}, v{d+j}, v{d+j}")
            for j in range(8): Lx.append(f"v_fma_f32 v{tmp+j}, v{tmp+j}, v15, v14")
            for j in range(8): Lx.append(f"v_mul_f32 v{tmp+j}, v{tmp+j}, v{d+j}")
            for j in range(8):
                Lx.append(f"v_exp_f32 v{tmp+j}, v{tmp+j}")
                Lx.append(f"v_mul_f32 v{d+j}, v{d+j}, v{d+8+j}")
            for j in range(8): Lx.append(f"v_add_f32 v{tmp+j}, 1.0, v{tmp+j}")
            for j in range(8):
                Lx.append(f"v_rcp_f32 v{tmp+j}, v{tmp+j}")
                if j >= 1: Lx.append(f"v_mul_f32 v{d+j-1}, v{d+j-1}, v{tmp+j-1}")
            Lx.append(f"v_cvt_pk_bf16_f32 v{out}, v{d}, v{d+1}")
            Lx.append(f"v_mul_f32 v{d+7}, v{d+7}, v{tmp+7}")
        for j in range(0 if pk else 1, 4): Lx.append(f"v_cvt_pk_bf16_f32 v{out+j}, v{d+2*j}, v{d+2*j+1}")
        Lx.append(f"buffer_store_dwordx4 v[{out}:{out+3}], v20, s[36:39], s50 offen offset:{2048*(T%2)} {SC}" + ("\ns_add_u32 s50, s50, 4096" if T % 2 else ""))
        return [(T, x) for x in Lx]
    stats = f"""
    v_add_f32 v{SR+0}, v{SR+0}, v{SR+2}
    v_add_f32 v{SR+1}, v{SR+1}, v{SR+3}
    v_add_f32 v{SR+4}, v{SR+4}, v{SR+6}
    v_add_f32 v{SR+5}, v{SR+5}, v{SR+7}
    v_add_f32 v{SR+0}, v{SR+0}, v{SR+4}
    v_add_f32 v{SR+1}, v{SR+1}, v{SR+5}
    v_mov_b32 v{SR+2}, v{SR}
    v_mov_b32 v{SR+3}, v{SR+1}
    v_permlane32_swap_b32 v{SR}, v{SR+2}
    v_permlane32_swap_b32 v{SR+1}, v{SR+3}
    v_add_f32 v{SR}, v{SR}, v{SR+2}
    v_add_f32 v{SR+1}, v{SR+1}, v{SR+3}
    v_mul_f32 v{SR}, {f32(-1.0/640)}, v{SR}
    v_mul_f32 v{SR+1}, {f32(1.0/640)}, v{SR+1}
    v_fma_f32 v{SR+1}, -v{SR}, v{SR}, v{SR+1}
    v_max_f32 v{SR+1}, 0, v{SR+1}
    v_add_f32 v{SR+1}, {f32(1e-5)}, v{SR+1}
    v_rsq_f32 v{SR+1}, v{SR+1}
    v_cvt_pk_bf16_f32 v{SR+2}, v{SR}, v{SR}
    v_lshlrev_b32 v{SR+2}, 16, v{SR+2}
    v_sub_f32 v{SR+3}, v{SR}, v{SR+2}
    v_cvt_pk_bf16_f32 v16, v{SR+2}, v{SR+3}
    v_mul_f32 v22, v{SR+1}, v{SR+1}
    v_mov_b32 v17, v16
    v_mov_b32 v18, v16
    v_mov_b32 v19, v16
    v_mul_f32 v14, {f32(C0)}, v{SR+1}
    v_mul_f32 v15, {f32(C1)}, v{SR+1}
    v_mul_f32 v15, v15, v22
    v_lshlrev_b32 v21, 2, v5
    buffer_store_dword v22, v21, s[32:35], s52 offen {SC}
    """.strip().split("\n")
    pending = []
    def w4reg(i):
        if i < 24: return f"v[{160+4*i}:{163+4*i}]"
        if i < 41: return f"a[{188+4*(i-24)}:{191+4*(i-24)}]"
        if i < 64: return f"a[{4*(i-41)}:{3+4*(i-41)}]"
        return f"v[{136+4*(i-64)}:{139+4*(i-64)}]"
    def w4_item(i):
        k, T = divmod(i, 5)
        return dict(text=f"buffer_load_dwordx4 {w4reg(i)}, v3, s[64:67], s23 offen {SC}", pre=f"s_add_u32 s23, s22, {T*57344 + 1024*k}", tag=('W4', i))
    srd(a, 64, 20, W4_OFF, W4_SZ)
    a(f"""
    s_mul_i32 s40, s95, 14
    s_mul_i32 s22, s101, {5*56}
    s_add_u32 s22, s22, s40
    s_lshl_b32 s22, s22, 10
    v_and_b32 v7, 3, v2
    v_lshlrev_b32 v7, 4, v7
    v_bfe_u32 v9, v2, 2, 1
    v_lshl_add_u32 v7, v9, 8, v7
    s_lshl_b32 s40, s100, 9
    s_lshl_b32 s41, s95, 6
    s_add_u32 s40, s40, s41
    v_add_u32 v7, s40, v7
    s_mul_i32 s40, s95, 14
    s_mul_i32 s57, s100, {4*56}
    s_add_u32 s57, s57, s40
    s_lshl_b32 s57, s57, 10
    """)
    DIST = 8
    def cost(x):
        x = x.strip()
        return 2 if x.startswith(("v_exp", "v_rcp", "v_rsq", "buffer_")) else 1
    def fill(budget, hold=None):
        while budget > 0 and pending:
            pick = None
            blockW, blockR = set(), set()
            for n, (t, x) in enumerate(pending[:14]):
                ins = Ins(x.split("\n")[0])
                if ins.kind == 'vmem' and n > 0 and any(Ins(y.split("\n")[0]).kind == 'vmem' for _, y in pending[:n]): break
                ok = cost(x) <= budget and t != hold and not (set(ins.r) & blockW) and not (set(ins.w) & (blockW | blockR))
                if ok and any(need(p, ins) > dd for dd, p in enumerate(reversed(a.ins[-2:]))): ok = False
                if ok: pick = n; break
                blockW |= set(ins.w); blockR |= set(ins.r)
            if pick is None: break
            t_, x = pending.pop(pick)
            a(x); budget -= cost(x)
            if x.startswith("buffer_store"): stored[t_] = (a.vm_issued, cur[0])
    stored = {}; cur = [0]; posted = False
    for q in range(41): L.add(**w4_item(q))
    for q in range(41, 64): L.add(**w4_item(q), gate=q - 41)
    done01 = False
    for _ in range(DIST): rd3()
    for i, (T, s) in enumerate(seq):
        cur[0] = i
        nx = nrd[0]
        if nx < len(seq) and seq[nx][1] == 0 and seq[nx][0] >= 2:
            Tn = seq[nx][0]
            if Tn > 2: L.need(('W3', Tn))
            a("s_barrier")
            if Tn == 3:
                assert done01
                q0 = L.q; L.q = []; w3_dma(L, 4); w3_dma(L, 5); L.q += q0
            if Tn == 4:
                q0 = [x for x in L.q if 'lds' not in x[0]]; L.q = [x for x in L.q if 'lds' in x[0]]; w3_dma(L, 6); L.q += q0
        rd3()
        budget = 3
        nxt_wait = (i + 1) % 4 == 0
        if T == 0: L.need(s)
        if i == 0: mmark(a, "p3_first")
        if i % 4 == 0: a.wait(lg=frs[min(i + 3, len(seq) - 1)][1])
        r = frs[i][0]
        d = ACB[T % NA]
        if s == 0: assert all(t % NA != T % NA for t, _ in pending if t >= 0), "accumulator still pending"
        a(f"v_mfma_f32_32x32x16_bf16 v[{d}:{d+15}], v[{r}:{r+3}], a[{4*s}:{4*s+3}], " + ("0" if s == 0 else f"v[{d}:{d+15}]"))
        if nxt_wait: budget -= 1
        n0 = a.vm_issued
        if not done01:
            L.pump(1)
            if i + 1 < len(seq) and seq[i + 1][0] == 0: budget -= 1
            if s == 14 and T == 0:
                L.need('st'); pending += [(-1, x) for x in stats]
        elif not posted and EARLY - 1 in stored and i >= stored[EARLY - 1][1] + ACKD:
            a.wait(vm=stored[EARLY - 1][0])
            a("buffer_store_dword v1, v8, s[8:11], s58 offen sc0 sc1")
            posted = True; budget -= 1
            mmark(a, "p3_early")
        elif (i % 2 == 1 and ((T == 3 and s < 24) or T == 6)) or i % 8 in PACE3:
            L.paced(gate=s - 1 if T == 6 else None)
        budget -= 2 * (a.vm_issued - n0)
        fill(budget, hold=(T - 1 if s < 3 else None) if T > 2 else None)
        if s == 39 and T != 0:
            for t in ((0, 1) if T == 1 else (T,)):
                dd = ACB[t % NA]
                assert not any(p[0] == -1 for p in pending)
                a(f"v_mfma_f32_32x32x16_bf16 v[{dd}:{dd+15}], a[{160+4*t}:{163+4*t}], v[16:19], v[{dd}:{dd+15}]")
                if NPK <= t < 6: pending += epi(t, False)
            if T == (1 if NPK < 2 or LAG >= 40 else 2) or (T == 1 and False):
                pass
            if T == 1:
                for t in range(NPK):
                    for _, ins in epi(t, True): a(ins)
                    stored[t] = (a.vm_issued, i)
            mmark(a, f"p3_t{T}")
            if T == 1: done01 = True
    print('stores at', {k: v[1] for k, v in stored.items()}, 'of', len(seq), 'left loads', len(L.q), 'pending', len(pending))
    assert posted
    leftW = L.q; tW4 = L.t
    tfe = a.vm("buffer_load_dword v9, v7, s[8:11], s58 offen sc1")
    KE = 2 * EARLY
    order = [(sl, k) for sl in (1, 2, 3, 0) for k in range(KE)] + [(sl, k) for sl in (1, 2, 3, 0) for k in range(KE, 14)]
    L = Loads(a, 26)
    L.t.update({k_: v_ for k_, v_ in tW4.items() if isinstance(k_, tuple)})
    L.q += [(x[0], x[1], x[2], x[3], None) for x in leftW]
    lateW = list(range(64, 70))
    for i, (sl, k) in enumerate(order):
        pre = None
        if k in (0, KE):
            pre = f"s_add_u32 s55, s95, {sl}\ns_and_b32 s55, s55, 3\ns_mul_i32 s55, s55, 57344\ns_add_u32 s55, s55, s57"
            if k: pre += f"\ns_add_u32 s55, s55, {1024*k}"
            k0 = k
        elif (k - k0) % 4 == 0:
            pre = "s_add_u32 s55, s55, 4096"
        r = 92 + 4 * (i % 24)
        g = max(i - 24, -1)
        if i >= 4 * KE: g = max(g, 4 * KE - CHK)
        L.add(f"buffer_load_dwordx4 a[{r}:{r+3}], v3, s[36:39], s55 offen offset:{1024*((k-k0)%4)} {SC} {NT4}", pre=pre, tag=i, gate=g)
        if i == 4 * KE - 1:
            while lateW: L.add(**w4_item(lateW.pop(0)), gate=0)
        if i == 4 * KE - 1:
            for T in range(5):
                L.add(f"buffer_load_dwordx2 v[{112+2*T}:{113+2*T}], v15, s[24:27], s{48 if T < 4 else 49} offen offset:{1024*(T%4)} {SC}", gate=0)
            L.add(f"buffer_load_dword v122, v16, s[32:35], s50 offen {SC}", tag='res', gate=0)
    pa = Paced(a, L, 5, gate=-2)
    started = {t for t, _ in pending if sum(1 for u, _ in pending if u == t) < len(epi(t, False))}
    rest = sorted({t for t, _ in pending} - started)
    for t, ins in pending:
        if t in started: pa(ins)
    for t in rest + [6]:
        for _, ins in epi(t, True): pa(ins)
    tst = a.vm_issued
    mmark(a, "p3_st")
    a.wait(vm=tfe)
    check_flags(a, "M_f4e", 9, 7, "s58", False)
    mmark(a, "p3_chk")
    for _ in range(H0): L.paced(gate=-1)
    PB, TB = 40960, 40960 + 61440
    srd(a, 12, 6, 0, 2621440)
    a(f"""
    s_mul_i32 s47, s95, 15360
    s_add_u32 s47, s47, {PB}
    v_add_u32 v6, s47, v3
    """)
    for j in range(1, 4):
        a(f"""
        s_add_u32 s47, s95, {j}
        s_and_b32 s47, s47, 3
        s_mul_i32 s47, s47, 15360
        s_add_u32 s47, s47, {PB + (3-j)*5120}
        v_add_u32 v{9+j}, s47, v3
        """)
    a(f"""
    v_and_b32 v13, 15, v2
    v_lshrrev_b32 v14, 4, v2
    v_lshlrev_b32 v15, 4, v13
    v_lshl_add_u32 v15, v4, 9, v15
    v_and_b32 v16, 1, v14
    v_lshl_add_u32 v15, v16, 3, v15
    s_lshl_b32 s48, s100, 1
    s_lshr_b32 s49, s95, 1
    s_add_u32 s48, s48, s49
    s_mul_i32 s48, s48, 40960
    s_mul_i32 s49, s101, 5120
    s_add_u32 s48, s48, s49
    s_and_b32 s49, s95, 1
    s_lshl_b32 s49, s49, 8
    s_add_u32 s48, s48, s49
    s_add_u32 s49, s48, 4096
    v_lshlrev_b32 v16, 2, v13
    s_lshl_b32 s50, s95, 13
    s_lshl_b32 s51, s100, 8
    s_add_u32 s50, s50, s51
    s_lshl_b32 s51, s95, 6
    s_add_u32 s50, s50, s51
    v_mul_u32_u24 v17, 160, v13
    v_lshl_add_u32 v17, v14, 3, v17
    s_mul_i32 s51, s95, 2560
    s_add_u32 s51, s51, {TB}
    v_add_u32 v17, s51, v17
    v_add_u32 v18, s51, v3
    s_mov_b32 s52, 6554
    """)
    for it in range(3):
        a(f"""
        v_add_u32 v13, {64*it}, v2
        v_mul_u32_u24 v14, s52, v13
        v_lshrrev_b32 v14, 16, v14
        v_mul_u32_u24 v14, {1280-160}, v14
        v_lshl_add_u32 v{19+it}, v13, 4, v14
        """)
    a(f"""
    s_lshl_b32 s52, s100, 2
    s_add_u32 s52, s52, s95
    s_mul_i32 s52, s52, {16*1280}
    s_mul_i32 s53, s101, 160
    s_add_u32 s52, s52, s53
    s_mov_b32 s54, 0xffff0000
    """)
    mspill(a)
    A4 = {1: 24, 2: 44, 3: 64, 0: 84}
    RS_, PS = 24, 44
    todo = []; wr = []
    NL = 14 - KE
    for i, (sl, k) in enumerate(order):
        d = A4[sl]
        if i == SIGI:
            a.wait(vm=tst)
            a("buffer_store_dword v1, v8, s[8:11], s59 offen sc0 sc1")
            mmark(a, "p3_sig")
        if i == 4 * KE - CHK - 3:
            tf4 = a.vm("buffer_load_dword v9, v7, s[8:11], s59 offen sc1")
        if i == 4 * KE - CHK + 1:
            a.wait(vm=tf4)
            check_flags(a, "M_f4", 9, 7, "s59", False)
            mmark(a, "p4_sync")
        L.need(i, gate=i - 1)
        for T in range(5):
            L.need(('W4', 5 * k + T), gate=i - 1)
        if i == 0: mmark(a, "p4_first")
        if i == 4 * KE: mmark(a, "p4_late")
        r = 92 + 4 * (i % 24)
        for T in range(5):
            a(f"v_mfma_f32_16x16x32_bf16 v[{d+4*T}:{d+4*T+3}], {w4reg(5*k+T)}, a[{r}:{r+3}], " + ("0" if k == 0 else f"v[{d+4*T}:{d+4*T+3}]"))
            if wr and T in (1, 3, 4): a(wr.pop(0))
            elif T in (0, 2, 3): L.pump(1, gate=i - 1)
            elif todo:
                a(todo.pop(0));
                if todo: a(todo.pop(0))
        if i >= 4 * KE:
            ph, kk = divmod(i - 4 * KE, NL)
            if kk == 0 and ph > 0:
                dp = A4[ph]
                wr = [f"ds_write_b128 v6, v[{dp+4*T}:{dp+4*T+3}] offset:{(ph-1)*5120 + T*1024}" for T in range(5)]
            if ph == 3 and kk == min(3, NL - 1):
                assert not wr
                a.wait_all_lg()
                a("s_barrier")
                tk = []
                for j, rb in enumerate((24, 44, 64)):
                    for T in range(5):
                        t = a.ds(f"ds_read_b128 v[{rb+4*T}:{rb+4*T+3}], v{10+j} offset:{1024*T}")
                    tk.append(t)
            if ph == 1 and kk == 2:
                L.need('res', gate=i - 1)
                for j in range(0, 10):
                    todo += [f"v_lshlrev_b32 v{124+j}, 16, v{112+j}", f"v_and_b32 v{112+j}, s54, v{112+j}"]
    for ins in todo: a(ins)
    a.wait(lg=tk[1])
    for j in range(0, 20, 2):
        a(f"v_pk_add_f32 {P(24+j)}, {P(24+j)}, {P(44+j)}")
    a.wait(lg=tk[2])
    for j in range(0, 20, 2):
        a(f"v_pk_add_f32 {P(64+j)}, {P(64+j)}, {P(84+j)}")
    mmark(a, "p4_mm")
    for j in range(0, 20, 2):
        a(f"v_pk_add_f32 {P(24+j)}, {P(24+j)}, {P(64+j)}")
    for j in range(10):
        a(f"v_fma_f32 v{PS+2*j}, v{24+2*j}, v122, v{124+j}")
        a(f"v_fma_f32 v{PS+2*j+1}, v{25+2*j}, v122, v{112+j}")
    for j in range(10):
        a(f"v_cvt_pk_bf16_f32 v{RS_+j}, v{PS+2*j}, v{PS+2*j+1}")
    for T in range(5):
        a(f"ds_write_b64 v17, v[{RS_+2*T}:{RS_+2*T+1}] offset:{32*T}")
    a.wait_all_lg()
    tk = [a.ds(f"ds_read_b128 v[{PS+4*it}:{PS+4*it+3}], v18 offset:{1024*it}") for it in range(3)]
    for it in range(3):
        a.wait(lg=tk[it])
        if it == 2: a("s_mov_b32 exec_hi, 0")
        a(f"buffer_store_dwordx4 v[{PS+4*it}:{PS+4*it+3}], v{19+it}, s[12:15], s52 offen")
    a(f"""
    s_or_b32 s40, s2, s95
    s_cmp_lg_u32 s40, 0
    s_cbranch_scc1 M_noclr
    s_load_dwordx2 s[40:41], s[0:1], 72
    s_mov_b64 exec, 1
    v_mov_b32 v8, 0
    s_waitcnt lgkmcnt(0)
    global_store_dword v8, v8, s[40:41] sc0 sc1
M_noclr:
    """)
    mstamp_end(a, 1, 20)
    a("M_exit:\ns_endpgm")
    return a
```

```python
from common import *
from k0 import reduce32
SC = "sc1"
WL, PL, WOL, LB3, LB4 = 10240, 20480, 24576, 114688, 135168

import os
RTL = os.environ.get('RTL', 'win')
def rt_src(a, now):
    nR0 = a.vm_issued
    a(f"""
    s_cmp_ge_u32 s2, 108
    s_cselect_b32 s36, s58, s56
    s_cselect_b32 s37, s59, s57
    s_cselect_b32 s56, 1, 0
    s_mov_b32 s38, {640*3456}
    s_mov_b32 s39, 0x20000
    s_mul_i32 s57, s56, 108
    s_sub_u32 s57, s2, s57
    s_and_b32 s58, s57, 3
    s_lshr_b32 s57, s57, 2
    v_lshrrev_b32 v8, 3, v2
    v_and_b32 v9, 7, v2
    v_lshlrev_b32 v9, 4, v9
    v_mul_u32_u24 v232, 3456, v8
    v_add_u32 v232, v232, v9
    s_mul_i32 s60, s58, 160
    s_mul_i32 s40, s95, 40
    s_add_u32 s60, s60, s40
    s_mul_i32 s60, s60, 3456
    s_lshl_b32 s40, s57, 7
    s_add_u32 s60, s60, s40
    s_cmp_ge_u32 s2, 216
    s_cselect_b32 s60, 0x10000000, s60
    s_mul_i32 s55, s95, 5120
    s_lshl_b32 s51, s95, 12
    """)
    ld = []
    for n in range(5):
        ld.append((f"s_add_u32 m0, s55, {LB3 + 1024*n}", f"buffer_load_dwordx4 v232, s[36:39], s60 offen nt lds", f"s_add_u32 s60, s60, {8*3456}"))
    if now:
        for x in ld: a("\n".join(x))
    a(f"""
    s_mov_b32 s71, 0x20000
    s_cmp_eq_u32 s95, 3
    s_cbranch_scc1 P0_wo
    s_mov_b32 s68, s62
    s_mov_b32 s69, s63
    s_mov_b32 s70, {1728*1280}
    v_mul_u32_u24 v10, 1280, v8
    v_add_u32 v10, v10, v9
    s_lshl_b32 s40, s2, 1
    s_add_u32 s40, s40, s95
    s_add_u32 s49, s2, {512 - 208}
    s_cmp_lt_u32 s2, 208
    s_cselect_b32 s49, 999, s49
    s_cmp_eq_u32 s95, 2
    s_cselect_b32 s40, s49, s40
    s_mul_i32 s59, s40, 1171
    s_lshr_b32 s59, s59, 16
    s_mul_i32 s62, s59, 56
    s_sub_u32 s62, s40, s62
    s_mul_i32 s41, s62, 147
    s_lshr_b32 s41, s41, 11
    s_mul_i32 s49, s41, 14
    s_sub_u32 s49, s62, s49
    s_lshl_b32 s41, s41, 1
    s_and_b32 s61, s49, 1
    s_add_u32 s41, s41, s61
    s_mul_i32 s41, s41, 27
    s_andn2_b32 s49, s49, 1
    s_add_u32 s41, s41, s49
    s_mul_i32 s41, s41, {8*1280}
    v_add_u32 v216, s41, v10
    v_add_u32 v218, {13*8*1280}, v216
    v_add_u32 v219, {14*8*1280}, v216
    s_movk_i32 s41, {8*1280}
    s_cmp_eq_u32 s49, 12
    s_cselect_b32 s41, 0x10000000, s41
    v_add_u32 v217, s41, v216
    s_lshl_b32 s61, s59, 7
    s_mul_i32 s59, s59, 224
    s_add_u32 s59, s59, s62
    s_lshl_b32 s59, s59, 10
    s_add_u32 s59, s59, {W4_OFF - WO_OFF}
    s_mov_b32 s96, {56*1024}
    s_cmp_ge_u32 s40, 560
    s_branch P0_wt
P0_wo:
    s_mov_b32 s68, s16
    s_mov_b32 s69, s17
    s_mov_b32 s70, {640*1280}
    s_mul_i32 s59, s2, 205
    s_lshr_b32 s59, s59, 12
    s_mul_i32 s62, s59, 20
    s_sub_u32 s62, s2, s62
    v_cmp_le_u32 vcc, 2, v8
    v_cndmask_b32 v11, 8, 18, vcc
    v_add_u32 v11, v11, v8
    v_lshrrev_b32 v10, 2, v8
    v_mul_u32_u24 v10, 6, v10
    v_add3_u32 v10, v10, v8, 26
    """)
    for n in range(4):
        a(f"""
        s_lshl_b32 s40, s62, 2
        s_add_u32 s40, s40, {n}
        s_mul_i32 s41, s40, 205
        s_lshr_b32 s41, s41, 10
        s_mul_i32 s49, s41, 5
        s_sub_u32 s40, s40, s49
        s_mul_i32 s41, s41, 40
        s_and_b32 s49, s40, 1
        s_mul_i32 s49, s49, 10
        s_add_u32 s41, s41, s49
        s_cmp_ge_u32 s40, 2
        s_cselect_b64 vcc, -1, 0
        v_cndmask_b32 v{216+n}, v8, v11, vcc
        s_cmp_eq_u32 s40, 4
        s_cselect_b64 vcc, -1, 0
        v_cndmask_b32 v{216+n}, v{216+n}, v10, vcc
        v_add_u32 v{216+n}, s41, v{216+n}
        v_mul_u32_u24 v{216+n}, 1280, v{216+n}
        v_add_u32 v{216+n}, v{216+n}, v9
        """)
    a(f"""
    s_lshl_b32 s61, s59, 7
    s_mul_i32 s59, s59, 80
    s_add_u32 s59, s59, s62
    s_lshl_b32 s59, s59, 10
    s_mov_b32 s96, {20*1024}
    s_cmp_ge_u32 s2, 200
P0_wt:
    s_cselect_b32 s61, 0x10000000, s61
    s_cselect_b32 s59, 0x10000000, s59
    """)
    for n in range(4):
        ld.append((f"s_add_u32 m0, s51, {LB4 + 1024*n}", f"buffer_load_dwordx4 v{216+n}, s[68:71], s61 offen nt lds", ""))
    if now:
        for x in ld[5:]: a("\n".join(x))
    return a.vm_issued - nR0 if now else ld

def p0(a, npf):
    P = lambda r: f"v[{r}:{r+1}]"
    a(f"""
    s_cmp_ge_u32 s2, 16
    s_cbranch_scc1 P0_nopf
    s_getpc_b64 s[22:23]
P0_pc:
    v_lshlrev_b32 v8, 7, v0
    """)
    for n in range(npf):
        a(f"""
        v_mov_b32 v11, s23
        v_cmp_gt_u32 vcc, CODE_END-P0_pc, v8
        s_and_saveexec_b64 s[40:41], vcc
        s_cbranch_execz P0_pf{n}
        v_add_co_u32 v10, vcc, s22, v8
        v_addc_co_u32 v11, vcc, 0, v11, vcc
        global_load_dword v255, v[10:11], off
P0_pf{n}:
        s_mov_b64 exec, s[40:41]
        v_add_u32 v8, 0x8000, v8
        """)
    a(f"""
P0_nopf:
    v_lshrrev_b32 v6, 5, v0
    v_mul_u32_u24 v7, 1280, v6
    v_lshl_add_u32 v7, v5, 3, v7
    s_lshl_b32 s44, s42, 4
    s_add_u32 s44, s44, s43
    s_mul_i32 s40, s44, 10240
    s_mov_b32 s26, 2621440
    s_mov_b32 s27, 0x20000
    s_mov_b32 s30, {640*3840}
    s_mov_b32 s31, 0x20000
    s_mov_b32 s35, 0x20000
    s_movk_i32 s45, 13108
    s_mul_i32 s46, s42, {40*3840}
    s_mul_i32 s47, s43, 80
    s_add_u32 s46, s46, s47
    s_mul_i32 s47, s43, 1600
    s_lshl_b32 s48, s95, 10
    """)
    for n in range(3):
        a(f"""
        v_add_u32 v{8+n}, {256*n}, v0
        v_min_u32 v{8+n}, 599, v{8+n}
        v_mul_u32_u24 v11, s45, v{8+n}
        v_lshrrev_b32 v11, 16, v11
        v_mul_u32_u24 v11, 1200, v11
        v_lshl_add_u32 v{8+n}, v{8+n}, 4, v11
        """)
    a(f"""
    v_subrev_u32 v11, 128, v0
    v_min_u32 v11, 99, v11
    v_lshlrev_b32 v11, 4, v11
    s_cmp_ge_u32 s95, 2
    s_cselect_b64 vcc, -1, 0
    s_cselect_b32 s34, {32*800}, s30
    s_cselect_b32 s47, s47, s46
    v_cndmask_b32 v10, v10, v11, vcc
    s_waitcnt lgkmcnt(0)
    s_cselect_b32 s32, s14, s12
    s_cselect_b32 s33, s15, s13
    s_mov_b32 s24, s4
    s_mov_b32 s25, s5
    s_mov_b32 s28, s12
    s_mov_b32 s29, s13
    """)
    mmark(a, "p0_karg")
    a.reset_counters()
    X = 24
    for i in range(5):
        tX = a.vm(f"buffer_load_dwordx2 v[{X+2*i}:{X+1+2*i}], v7, s[24:27], s40 offen offset:{256*i} nt")
    for n in (2, 0, 1):
        a(f"s_add_u32 m0, s48, {WL + 4096*n}")
        a(f"buffer_load_dwordx4 v{8+n}, s[{28 if n < 2 else 32}:{31 if n < 2 else 35}], s{46 if n < 2 else 47} offen {'nt' if n < 2 else ''} lds")
    nW = a.vm_issued
    mmark(a, "p0_iss")
    srd(a, 64, 18, 0, 256)
    srd(a, 8, 20, FL_OFF, FL_SZ)
    a(f"""
    v_mov_b32 v16, 0
    s_or_b32 s40, s2, s95
    s_cmp_lg_u32 s40, 0
    s_cbranch_scc1 P0_non
    s_or_b32 s40, s98, 1
    s_mov_b64 exec, 1
    v_mov_b32 v8, s40
    buffer_store_dword v8, v16, s[64:67], 0 offen sc0 sc1
    s_mov_b64 exec, -1
P0_non:
    """)
    nR = rt_src(a, True) if RTL == 'p0' else 0
    srd(a, 28, 20, XN_OFF, XN_SZ)
    srd(a, 32, 20, W1_OFF, W1_SZ)
    a(f"""
    v_lshrrev_b32 v8, 1, v5
    v_xor_b32 v7, v6, v8
    v_and_b32 v7, 7, v7
    v_lshlrev_b32 v7, 4, v7
    v_lshl_add_u32 v7, v8, 7, v7
    v_and_b32 v8, 1, v5
    v_lshl_add_u32 v7, v8, 3, v7
    v_lshrrev_b32 v10, 3, v0
    v_xor_b32 v18, v0, v10
    v_and_b32 v18, 7, v18
    v_lshlrev_b32 v18, 4, v18
    v_lshl_add_u32 v18, v10, 7, v18
    v_and_b32 v19, 7, v0
    v_lshlrev_b32 v19, 4, v19
    v_lshl_add_u32 v19, v10, 9, v19
    s_lshr_b32 s52, s44, 2
    s_mul_i32 s52, s52, 40960
    s_and_b32 s53, s44, 3
    s_lshl_b32 s53, s53, 7
    s_add_u32 s52, s52, s53
    s_add_u32 s53, s52, 16384
    s_add_u32 s54, s52, 32768
    s_mov_b32 s41, 0xffff0000
    s_and_b32 s45, s95, 1
    s_lshr_b32 s46, s95, 1
    """)
    A0 = [64, 72, 80]; A1 = [68, 76, 84]
    a(f"""
    v_and_b32 v8, 0x13, v5
    v_lshrrev_b32 v9, 1, v5
    v_and_b32 v9, 4, v9
    v_lshlrev_b32 v10, 1, v5
    v_and_b32 v10, 8, v10
    v_or3_b32 v8, v8, v9, v10
    s_lshl_b32 s47, s46, 5
    v_add_u32 v8, s47, v8
    v_min_u32 v8, 39, v8
    v_mul_u32_u24 v8, 240, v8
    s_mul_i32 s47, s45, 40
    s_add_u32 s47, s47, {WL}
    v_add_u32 v21, s47, v8
    v_lshl_add_u32 v20, v4, 4, v21
    v_bfe_u32 v8, v2, 2, 2
    v_lshl_add_u32 v8, v4, 3, v8
    v_mul_u32_u24 v8, 40, v8
    v_bfe_u32 v9, v2, 4, 1
    v_lshl_add_u32 v8, v9, 5, v8
    v_and_b32 v9, 3, v2
    v_lshl_add_u32 v8, v9, 3, v8
    s_mul_i32 s47, s45, 800
    s_add_u32 s47, s47, {PL}
    v_add_u32 v22, s47, v8
    """)
    for sg in range(3):
        a(f"v_mov_b32 v{A1[sg]+2}, 0\nv_mov_b32 v{A1[sg]+3}, 0")
    a(f"""
    v_add_u32 v8, 2, v5
    v_cmp_gt_u32 vcc, 18, v5
    v_cndmask_b32 v8, v8, v5, vcc
    v_bfe_u32 v9, v8, 2, 1
    v_mul_u32_u24 v9, 10, v9
    v_lshrrev_b32 v10, 3, v8
    v_lshl_add_u32 v9, v10, 2, v9
    v_and_b32 v10, 3, v8
    v_add_u32 v9, v9, v10
    v_lshlrev_b32 v10, 3, v4
    v_sub_u32 v9, v9, v10
    v_and_b32 v10, 1, v9
    v_lshlrev_b32 v10, 4, v10
    v_mov_b32 v8, 0x3f80
    v_lshlrev_b32 v10, v10, v8
    v_lshrrev_b32 v9, 1, v9
    """)
    for jj, cmpv in enumerate([0, 1, 2, 3, 8, 9]):
        a(f"v_cmp_eq_u32 vcc, {cmpv}, v9\nv_cndmask_b32 v{112+jj}, 0, v10, vcc")
    a("v_mov_b32 v118, 0\nv_mov_b32 v119, 0\nv_mov_b32 v94, 0\nv_mov_b32 v95, 0")
    a(f"""
    s_mul_i32 s40, s42, 5
    s_lshl_b32 s47, s46, 2
    s_add_u32 s40, s40, s47
    v_add_u32 v12, s40, v4
    v_lshrrev_b32 v11, 1, v12
    v_mul_u32_u24 v11, 3840, v11
    v_and_b32 v12, 1, v12
    v_lshl_add_u32 v11, v12, 9, v11
    """)
    for sg, sb in enumerate([40, 0, 20]):
        d = 120 + sg
        a(f"""
        v_add_u32 v8, {sb}, v5
        v_lshrrev_b32 v9, 4, v8
        v_lshl_add_u32 v{d}, v9, 10, v11
        v_bfe_u32 v10, v8, 2, 2
        v_lshl_add_u32 v{d}, v10, 7, v{d}
        v_and_b32 v10, 3, v8
        v_lshl_add_u32 v{d}, v10, 4, v{d}
        """)
        if sg == 0:
            a(f"""
            v_cmp_eq_u32 vcc, 3, v9
            v_lshlrev_b32 v10, 7, v12
            v_cndmask_b32 v10, 0, v10, vcc
            v_sub_u32 v{d}, v{d}, v10
            """)
    a(f"""
    s_mul_i32 s48, s43, 153600
    s_lshl_b32 s49, s45, 6
    s_add_u32 s48, s48, s49
    s_mov_b32 s50, {f32(LOG2E)}
    """)
    srd(a, 36, 20, KV_OFF, KV_SZ)
    a(f"""
    v_mov_b32 v60, 0
    v_mov_b32 v61, 0
    v_mov_b32 v62, 0
    v_mov_b32 v63, 0
    s_mul_i32 s22, s43, 7680
    s_mul_i32 s23, s42, 480
    s_add_u32 s22, s22, s23
    v_cmp_gt_u32 vcc, 30, v0
    v_mov_b32 v13, 0x10000000
    v_cndmask_b32 v13, v13, v3, vcc
    """)
    mmark(a, "p0_pre")
    a(f"s_waitcnt vmcnt({nW - tX + nR})")
    mmark(a, "p0_x")
    a("buffer_load_dword v17, v16, s[64:67], 0 offen sc1")
    a(f"buffer_store_dwordx4 v[60:63], v13, s[36:39], s22 offen {SC}")
    F = 36
    for i in range(10):
        a(f"v_lshlrev_b32 v{F+2*i}, 16, v{X+i}")
        a(f"v_and_b32 v{F+2*i+1}, s41, v{X+i}")
    a(f"v_pk_add_f32 v[56:57], {P(F)}, {P(F+2)}")
    a(f"v_pk_add_f32 v[58:59], {P(F+4)}, {P(F+6)}")
    for i in range(4, 10):
        a(f"v_pk_add_f32 {P(56+2*(i%2))}, {P(56+2*(i%2))}, {P(F+2*i)}")
    a("v_pk_add_f32 v[56:57], v[56:57], v[58:59]")
    a("v_add_f32 v56, v56, v57")
    reduce32(a, 56, 57)
    a(f"v_mul_f32 v56, {f32(1.0/640)}, v56")
    for i in range(10):
        a(f"v_pk_add_f32 {P(F+2*i)}, {P(F+2*i)}, v[56:57] op_sel_hi:[1,0] neg_lo:[0,1] neg_hi:[0,1]")
    a(f"v_pk_mul_f32 v[58:59], {P(F)}, {P(F)}")
    for i in range(1, 10):
        a(f"v_pk_fma_f32 v[58:59], {P(F+2*i)}, {P(F+2*i)}, v[58:59]")
    a("v_add_f32 v58, v58, v59")
    reduce32(a, 58, 59)
    a(f"v_mov_b32 v59, {f32(1e-5)}")
    a(f"v_fmac_f32 v59, {f32(1.0/640)}, v58")
    a("v_rsq_f32 v58, v59")
    for i in range(10):
        a(f"v_pk_mul_f32 {P(F+2*i)}, {P(F+2*i)}, v[58:59] op_sel_hi:[1,0]")
    for i in range(10):
        a(f"v_cvt_pk_bf16_f32 v{X+i}, v{F+2*i}, v{F+2*i+1}")
    for i in range(5):
        a(f"ds_write_b64 v7, v[{X+2*i}:{X+1+2*i}] offset:{2048*i}")
    mmark(a, "p0_ln")
    a(f"s_waitcnt vmcnt({2 + nR}) lgkmcnt(0)\ns_barrier")
    mmark(a, "p0_w")
    a.reset_counters()
    a("ds_read_b64_tr_b16 v[88:89], v22\nds_read_b64_tr_b16 v[90:91], v22 offset:160")
    tb = a.ds("ds_read_b64_tr_b16 v[92:93], v22 offset:640")
    tA = []
    for sg in range(3):
        a(f"ds_read2_b64 v[{A0[sg]}:{A0[sg]+3}], v20 offset0:{10*sg} offset1:{10*sg+1}")
        tA.append(a.ds(f"ds_read_b64 v[{A1[sg]}:{A1[sg]+1}], v21 offset:{80*sg+32}"))
    tx = [a.ds(f"ds_read_b128 v[{36+4*n}:{39+4*n}], v18 offset:{4096*n}") for n in range(3)]
    a(f"""
    s_cmp_ge_u32 s95, 2
    s_cselect_b32 s54, 0x10000000, s54
    s_cselect_b32 s49, 0x10000000, s48
    s_cselect_b32 s40, 0, 0xfffff
    """)
    a.wait(lg=tb)
    a("s_mov_b32 exec_lo, 0\nv_mov_b32 v92, 0\nv_mov_b32 v93, 0\ns_mov_b32 exec_lo, -1")
    Dr = [128, 144, 160]
    for sg in range(3):
        a.wait(lg=tA[sg])
        b0, b1 = (88, 92) if sg < 2 else (112, 116)
        a(f"v_mfma_f32_32x32x16_bf16 v[{Dr[sg]}:{Dr[sg]+15}], v[{A0[sg]}:{A0[sg]+3}], v[{b0}:{b0+3}], 0")
        a(f"v_mfma_f32_32x32x16_bf16 v[{Dr[sg]}:{Dr[sg]+15}], v[{A1[sg]}:{A1[sg]+3}], v[{b1}:{b1+3}], v[{Dr[sg]}:{Dr[sg]+15}]")
    for n in range(3):
        a.wait(lg=tx[n])
        a(f"buffer_store_dwordx4 v[{36+4*n}:{39+4*n}], v19, s[28:31], s{52+n} offen {SC}")
    a("s_mov_b32 exec_lo, 0xfffff\ns_mov_b32 exec_hi, s40")
    for sg in range(3):
        d = Dr[sg]
        if sg < 2:
            for r in range(0, 16, 2):
                a(f"v_pk_mul_f32 {P(d+r)}, {P(d+r)}, s[50:51] op_sel_hi:[1,0]")
        o = 64 + 8 * sg
        for r in range(8):
            a(f"v_cvt_pk_bf16_f32 v{o+r}, v{d+2*r}, v{d+2*r+1}")
        a(f"buffer_store_dwordx4 v[{o}:{o+3}], v{120+sg}, s[32:35], s48 offen {SC}")
        a(f"buffer_store_dwordx4 v[{o+4}:{o+7}], v{120+sg}, s[32:35], s49 offen offset:3840 {SC}")
    a(f"""
    s_mov_b64 exec, -1
    """)
    mmark(a, "p0_st")
    a(f"""
    s_lshl_b32 s40, s44, 4
    s_add_u32 s40, s40, {F1A_O}
    s_lshl_b32 s41, s43, 8
    s_add_u32 s41, s41, {F1B_O}
    s_lshl_b32 s50, s42, 4
    s_add_u32 s50, s50, s41
    v_mov_b32 v10, s50
    v_writelane_b32 v10, s40, 0
    s_lshl_b32 s40, s42, 8
    s_lshl_b32 s50, s95, 6
    s_add_u32 s40, s40, s50
    s_add_u32 s40, s40, {F1A_O}
    v_and_b32 v12, 3, v2
    v_lshl_add_u32 v12, v12, 4, s40
    v_add_u32 v13, s41, v3
    v_cmp_gt_u32 vcc, 16, v2
    v_cndmask_b32 v12, v12, v13, vcc
    s_mov_b32 s92, 0
P0_nspin:
    s_waitcnt vmcnt(0)
    v_readfirstlane_b32 s93, v17
    s_add_u32 s92, s92, 1
    s_nop 2
    s_cmp_lg_u32 s93, 0
    s_cbranch_scc1 P0_ngo
    s_cmp_gt_u32 s92, 20000
    s_cbranch_scc1 P0_ngo
    buffer_load_dword v17, v16, s[64:67], 0 offen sc1
    s_branch P0_nspin
P0_ngo:
    s_barrier
    s_cmp_lg_u32 s95, 0
    s_cbranch_scc1 P0_sig
    s_mov_b64 exec, 3
    buffer_store_dword v17, v10, s[8:11], 0 offen sc0 sc1
    s_mov_b64 exec, -1
P0_sig:
    """)
    mmark(a, "p0_sig")
    a.reset_counters()


def rt_setup(a):
    ld0 = []
    if RTL == 'loop': ld0 = rt_src(a, False)
    if RTL == 'win': rt_src(a, True)
    srd(a, 12, 20, W3_OFF, W3_SZ)
    srd(a, 32, 20, CS_OFF, CS_SZ)
    srd(a, 16, 20, WO_OFF, W4_OFF + W4_SZ - WO_OFF)
    a(f"""
    v_lshrrev_b32 v6, 4, v2
    v_bfe_u32 v7, v2, 2, 2
    v_lshl_add_u32 v7, v6, 3, v7
    v_lshlrev_b32 v7, 7, v7
    v_and_b32 v8, 3, v2
    v_lshl_add_u32 v7, v8, 3, v7
    s_lshl_b32 s45, s95, 5
    s_add_u32 s45, s45, {LB3}
    v_add_u32 v248, s45, v7
    s_add_u32 s45, s51, {LB4}
    v_add_u32 v249, s45, v7
    v_bfe_u32 v9, v2, 3, 1
    v_and_b32 v10, 7, v2
    v_mul_u32_u24 v238, 20480, v9
    v_lshlrev_b32 v239, 9, v9
    v_lshl_add_u32 v239, v10, 4, v239
    v_lshl_add_u32 v239, v6, 26, v239
    v_lshl_add_u32 v238, v10, 4, v238
    v_lshl_add_u32 v238, v4, 9, v238
    v_xor_b32 v9, s56, v6
    v_and_b32 v9, 1, v9
    v_lshl_add_u32 v238, v9, 7, v238
    s_lshl_b32 s45, s57, 3
    s_lshl_b32 s46, s95, 1
    s_add_u32 s45, s45, s46
    s_mul_i32 s52, s45, 20480
    s_mul_i32 s47, s58, 5120
    s_add_u32 s52, s52, s47
    s_lshl_b32 s47, s56, 8
    s_add_u32 s52, s52, s47
    s_lshl_b32 s45, s45, 9
    s_add_u32 s45, s45, s47
    s_lshr_b32 s47, s58, 1
    s_xor_b32 s47, s47, s56
    s_lshl_b32 s47, s47, 7
    s_add_u32 s45, s45, s47
    s_and_b32 s47, s58, 1
    s_lshl_b32 s47, s47, 3
    s_add_u32 s58, s45, s47
    s_cmp_ge_u32 s2, 216
    s_cselect_b32 s52, 0x10000000, s52
    s_cselect_b32 s58, 0x10000000, s58
    s_add_u32 s53, s52, 4096
    v_mov_b32 v240, 0x3f803f80
    v_mov_b32 v241, 0x3f803f80
    v_mov_b32 v242, 0x3f803f80
    v_mov_b32 v243, 0x3f803f80
    """)
    ld = ld0
    rd = []
    for ss in range(5):
        rd.append(f"ds_read_b64_tr_b16 a[{160+4*ss}:{161+4*ss}], v248 offset:{4096*ss}")
        rd.append(f"ds_read_b64_tr_b16 a[{162+4*ss}:{163+4*ss}], v248 offset:{4096*ss+512}")
    for f in range(4):
        rd.append(f"ds_read_b64_tr_b16 a[{180+4*f}:{181+4*f}], v249 offset:{32*f}")
        rd.append(f"ds_read_b64_tr_b16 a[{182+4*f}:{183+4*f}], v249 offset:{32*f+512}")
    cs = [f"v_mfma_f32_16x16x32_bf16 v[244:247], v[240:243], a[{160+4*ss}:{163+4*ss}], " + ("0" if ss == 0 else "v[244:247]") for ss in range(5)]
    cs2 = ["v_cvt_pk_bf16_f32 v236, v244, v244", "v_lshlrev_b32 v245, 16, v236", "v_sub_f32 v245, v244, v245", "v_cvt_pk_bf16_f32 v237, v245, v245"]
    st = []
    for ss in range(5):
        so, off = ("s52", 1024 * ss) if ss < 4 else ("s53", 0)
        st.append((f"buffer_store_dwordx4 a[{160+4*ss}:{163+4*ss}], v238, s[12:15], {so} offen offset:{off} {SC}", None))
    st.append((f"buffer_store_dwordx2 v[236:237], v239, s[32:35], s58 offen {SC}", None))
    for f in range(4):
        st.append((f"buffer_store_dwordx4 a[{180+4*f}:{183+4*f}], v3, s[16:19], s59 offen {SC}", "s_add_u32 s59, s59, s96"))
    se = [(f"buffer_store_dwordx4 a[{180+4*f}:{183+4*f}], v3, s[16:19], s97 offen {SC}", "s_add_u32 s97, s97, s96") for f in range(4)]
    return ld, rd, cs, cs2, st, se
```

```python
from common import *
from asmlib import Ins, need
import common, math, p0, p0b

GRID = 256
LDS = 160 * 1024
C0 = -2.0 * math.sqrt(2.0 / math.pi) * LOG2E
C1 = C0 * 0.044715
SC = "sc1"
POLL_MAX = 20000
P1_PACE = 12
import os
MAP1 = os.environ.get('MAP1', 'x'); MAP2 = os.environ.get('MAP2', 'x'); MAP4 = os.environ.get('MAP4', 'row'); MAP3 = os.environ.get('MAP3', 'x'); NT4 = os.environ.get('NT4', ''); NT3 = os.environ.get('NT3', ''); PACE3 = eval(os.environ.get('PACE3', '(1,3,7)')); NPK = int(os.environ.get('NPK', 3)); ACKD = int(os.environ.get('ACKD', 20)); CHK = int(os.environ.get('CHK', 8)); TOUCH = int(os.environ.get('TOUCH', 0)); FP = int(os.environ.get('FP', 999)); QS = int(os.environ.get('QS', 40)); CK0 = int(os.environ.get('CK0', 14)); CK1 = int(os.environ.get('CK1', 23)); HH1 = int(os.environ.get('HH1', 16)); SIGI = int(os.environ.get('SIGI', 6)); W3EARLY = int(os.environ.get('W3EARLY', 0)); LAG = int(os.environ.get('LAG', 8)); EARLY = int(os.environ.get('EARLY', 4)); WO1 = int(os.environ.get('WO1', 15)); RTSG = int(os.environ.get('RTSG', 36)); RTS0 = int(os.environ.get('RTS0', 99)); RTSN = int(os.environ.get('RTSN', 3))

class Paced:
    def __init__(self, a, L, n, gate=None):
        self.a, self.L, self.n, self.c, self.gate = a, L, n, 0, gate
    def __call__(self, text):
        for line in text.strip().split("\n"):
            if not line.strip(): continue
            self.a(line)
            self.c += 1
            if self.c % self.n == 0: self.L.paced(self.gate)

def poll(a, name, voff, soff, tmp):
    a(f"""
    s_mov_b32 s92, 0
{name}:
    buffer_load_dword v{tmp}, v{voff}, s[8:11], {soff} offen sc1
    s_add_u32 s92, s92, 1
    s_cmp_gt_u32 s92, {POLL_MAX}
    s_cbranch_scc1 {name}_go
    s_waitcnt vmcnt(0)
    v_cmp_ne_u32 vcc, s93, v{tmp}
    s_nop 4
    s_cbranch_vccnz {name}
{name}_go:
    s_waitcnt vmcnt(0)
    """)
    a.vm_done = a.vm_issued

def signal(a, soff, tmp):
    a(f"""
    s_mov_b64 exec, 1
    v_mov_b32 v{tmp}, s93
    v_mov_b32 v{tmp+1}, 0
    buffer_store_dword v{tmp}, v{tmp+1}, s[8:11], {soff} offen sc0 sc1
    s_mov_b64 exec, -1
    """)

def softmax_pair(a, P, E, O, tmp):
    mx, mn = tmp, tmp + 2
    a(f"v_max3_f32 v{mx}, v{P}, v{P+1}, v{P+2}")
    a(f"v_min3_f32 v{mn}, v{P}, v{P+1}, v{P+2}")
    for i in range(3, 19, 2):
        a(f"v_max3_f32 v{mx}, v{mx}, v{P+i}, v{P+i+1}")
        a(f"v_min3_f32 v{mn}, v{mn}, v{P+i}, v{P+i+1}")
    a(f"v_max_f32 v{mx}, v{mx}, v{P+19}")
    a(f"v_min_f32 v{mn}, v{mn}, v{P+19}")
    for i in range(0, 20, 2):
        a(f"v_pk_add_f32 v[{E+i}:{E+i+1}], v[{P+i}:{P+i+1}], v[{mx}:{mx+1}] op_sel_hi:[1,0] neg_lo:[0,1] neg_hi:[0,1]")
        a(f"v_pk_add_f32 v[{E+20+i}:{E+21+i}], v[{P+i}:{P+i+1}], v[{mn}:{mn+1}] op_sel_hi:[1,0] neg_lo:[1,0] neg_hi:[1,0]")
    for i in range(40):
        a(f"v_exp_f32 v{E+i}, v{E+i}")
    sp, sn = tmp, tmp + 2
    a(f"v_pk_add_f32 v[{sp}:{sp+1}], v[{E}:{E+1}], v[{E+2}:{E+3}]")
    a(f"v_pk_add_f32 v[{sn}:{sn+1}], v[{E+20}:{E+21}], v[{E+22}:{E+23}]")
    for i in range(4, 20, 2):
        a(f"v_pk_add_f32 v[{sp}:{sp+1}], v[{sp}:{sp+1}], v[{E+i}:{E+i+1}]")
        a(f"v_pk_add_f32 v[{sn}:{sn+1}], v[{sn}:{sn+1}], v[{E+20+i}:{E+21+i}]")
    a(f"v_add_f32 v{sp}, v{sp}, v{sp+1}")
    a(f"v_add_f32 v{sn}, v{sn}, v{sn+1}")
    a(f"v_rcp_f32 v{sp}, v{sp}")
    a(f"v_rcp_f32 v{sn}, v{sn}")
    for i in range(0, 20, 2):
        a(f"v_pk_mul_f32 v[{E+i}:{E+i+1}], v[{E+i}:{E+i+1}], v[{sp}:{sp+1}] op_sel_hi:[1,0]")
        a(f"v_pk_mul_f32 v[{E+20+i}:{E+21+i}], v[{E+20+i}:{E+21+i}], v[{sn}:{sn+1}] op_sel_hi:[1,0]")
    for i in range(20):
        a(f"v_cvt_pk_bf16_f32 v{O+i}, v{E+2*i}, v{E+2*i+1}")

def map_p1(a, rb, hp, t, kind='x'):
    if kind == 'h4':
        map_p3(a, rb, hp, t, 'x')
        return
    if kind == 'h2':
        map_p3(a, hp, rb, t, 'row')
        return
    a(f"""
    s_bfe_u32 s{rb}, s2, 0x20001
    s_lshl_b32 s{rb}, s{rb}, 2
    s_bfe_u32 s{t}, s2, 0x20003
    s_add_u32 s{rb}, s{rb}, s{t}
    s_and_b32 s{hp}, s2, 1
    s_lshl_b32 s{hp}, s{hp}, 3
    s_lshr_b32 s{t}, s2, 5
    s_add_u32 s{hp}, s{hp}, s{t}
    """)
def map_p2(a, tb, nb, t):
    a(f"""
    s_and_b32 s{tb}, s2, 7
    s_lshl_b32 s{tb}, s{tb}, 3
    s_bfe_u32 s{t}, s2, 0x30003
    s_add_u32 s{tb}, s{tb}, s{t}
    s_lshr_b32 s{nb}, s2, 6
    """)
def map_p3(a, rb, cb, t, kind=None):
    kind = kind or MAP3
    if kind == 'row':
        a(f"""
        s_and_b32 s{rb}, s2, 7
        s_lshl_b32 s{rb}, s{rb}, 1
        s_bfe_u32 s{t}, s2, 0x10003
        s_add_u32 s{rb}, s{rb}, s{t}
        s_lshr_b32 s{cb}, s2, 4
        """)
        return
    if kind == 'mid':
        map_p1(a, rb, cb, t)
        return
    a(f"""
    s_bfe_u32 s{rb}, s2, 0x10002
    s_lshl_b32 s{rb}, s{rb}, 3
    s_bfe_u32 s{t}, s2, 0x30003
    s_add_u32 s{rb}, s{rb}, s{t}
    s_and_b32 s{cb}, s2, 3
    s_lshl_b32 s{cb}, s{cb}, 2
    s_lshr_b32 s{t}, s2, 6
    s_add_u32 s{cb}, s{cb}, s{t}
    """)
def map_p4(a, rb, nb, t, kind=None):
    if (kind or MAP4) == 'row':
        a(f"""
        s_and_b32 s{rb}, s2, 7
        s_lshl_b32 s{rb}, s{rb}, 2
        s_bfe_u32 s{t}, s2, 0x20003
        s_add_u32 s{rb}, s{rb}, s{t}
        s_lshr_b32 s{nb}, s2, 5
        """)
        return
    a(f"""
    s_bfe_u32 s{rb}, s2, 0x20001
    s_lshl_b32 s{rb}, s{rb}, 3
    s_bfe_u32 s{t}, s2, 0x30003
    s_add_u32 s{rb}, s{rb}, s{t}
    s_and_b32 s{nb}, s2, 1
    s_lshl_b32 s{nb}, s{nb}, 2
    s_lshr_b32 s{t}, s2, 6
    s_add_u32 s{nb}, s{nb}, s{t}
    """)

def w3_dma(L, T, gate=None):
    reg = [81920, 122880, 0, 40960, 81920, 122880, 0][T]
    sr = 12 if T < 2 else (16 if T < 6 else 68)
    for c in range(10):
        grp = 0 if c < 4 else (4 if c < 8 else 8)
        L.add(f"buffer_load_dwordx4 v3, s[{sr}:{sr+3}], m0 offen offset:{1024*(c-grp)} {SC} lds", gate=gate,
              pre=f"s_add_u32 m0, s3, {reg + 1024*c}" if c == grp else None, tag=('W3', T) if c == 9 else None)

def check_flags(a, name, regs, voff, soff, wide):
    def test(x):
        if wide:
            x(f"v_xor_b32 v{regs}, s93, v{regs}\nv_xor_b32 v{regs+1}, s93, v{regs+1}\nv_xor_b32 v{regs+2}, s93, v{regs+2}\nv_xor_b32 v{regs+3}, s93, v{regs+3}")
            x(f"v_or3_b32 v{regs}, v{regs}, v{regs+1}, v{regs+2}\nv_or_b32 v{regs}, v{regs}, v{regs+3}\nv_cmp_ne_u32 vcc, 0, v{regs}")
        else:
            x(f"v_cmp_ne_u32 vcc, s93, v{regs}")
    test(a)
    a(f"s_mov_b32 s92, 0\ns_nop 3\ns_cbranch_vccz {name}_ok")
    b = Asm()
    b(f"{name}:")
    b(f"buffer_load_dwordx4 v[{regs}:{regs+3}], v{voff}, s[8:11], {soff} offen sc1" if wide else f"buffer_load_dword v{regs}, v{voff}, s[8:11], {soff} offen sc1")
    b(f"s_add_u32 s92, s92, 1\ns_waitcnt vmcnt(0)\ns_cmp_gt_u32 s92, {POLL_MAX}\ns_cbranch_scc1 {name}_ok")
    test(b)
    b(f"s_nop 4\ns_cbranch_vccnz {name}")
    a.ins += b.ins
    a(f"{name}_ok:")

def gen_mega():
    a = Asm()
    a(f"""
    s_memrealtime s[98:99]
    s_load_dwordx2 s[20:21], s[0:1], 80
    s_load_dwordx2 s[4:5], s[0:1], 0
    s_load_dwordx4 s[12:15], s[0:1], 8
    s_load_dwordx2 s[16:17], s[0:1], 24
    s_load_dwordx2 s[6:7], s[0:1], 64
    s_load_dwordx2 s[18:19], s[0:1], 72
    s_load_dwordx4 s[56:59], s[0:1], 40
    s_load_dwordx2 s[62:63], s[0:1], 56
    v_lshrrev_b32 v1, 6, v0
    v_and_b32 v2, 63, v0
    v_readfirstlane_b32 s95, v1
    s_cmp_ge_u32 s2, {GRID}
    s_cbranch_scc1 M_exit
    """)
    mstamp_begin(a)
    a(f"""
    v_lshlrev_b32 v3, 4, v2
    v_lshrrev_b32 v4, 5, v2
    v_and_b32 v5, 31, v2
    s_mul_i32 s3, s95, 10240
    """)
    map_p1(a, 42, 43, 40, MAP1)
    p0b.p0(a, 2)
    rt_ld, rt_rd, rt_cs, rt_cs2, rt_st, rt_se = p0b.rt_setup(a)
    assert not rt_ld
    a(f"""
    s_lshl_b32 s44, s42, 2
    s_add_u32 s44, s44, s95
    s_mul_i32 s45, s44, 40960
    s_mul_i32 s46, s43, 153600
    s_lshl_b32 s47, s95, 12
    s_lshl_b32 s48, s95, 11
    """)
    srd(a, 24, 20, XN_OFF, XN_SZ)
    srd_dyn(a, 28, 20, W1_OFF, 46, 153600)
    mspill(a)
    poll(a, "M_poll1", 12, "0", 9)
    mmark(a, "p1_sync")
    L = Loads(a, 28 if rt_ld else 24)
    for n in range(10):
        cnt = 4 if n < 9 else 2
        g = 15 if n >= 7 else None
        L.add(f"buffer_load_dwordx4 a[{16*n}:{16*n+3}], v3, s[24:27], s45 offen {SC}", pre=f"s_add_u32 m0, s{47 if n < 9 else 48}, {16384*n}", gate=g)
        for c in range(cnt):
            L.add(f"buffer_load_dwordx4 v3, s[28:31], m0 offen offset:{1024*c} {SC} lds", gate=g)
        for c in range(1, 4):
            L.add(f"buffer_load_dwordx4 a[{16*n+4*c}:{16*n+4*c+3}], v3, s[24:27], s45 offen offset:{1024*c} {SC}",
                  tag=n if c == 3 else None, post="s_add_u32 s45, s45, 4096" if c == 3 and n < 9 else None, gate=g)
        if n == 2:
            for pr, tx_, po in rt_ld: L.add(tx_, pre=pr, post=po or None)
        if RTS0 <= n < 9:
            for _ in range(RTSN):
                if len(rt_st) > 1:
                    tx_, po = rt_st.pop(0); L.add(tx_, post=po, gate=22)
    L.pump(16)
    srd(a, 64, 20, WO_OFF, WO_SZ)
    map_p4(a, 100, 101, 40, MAP2)
    a(f"""
    s_mul_i32 s40, s101, 5
    s_lshr_b32 s40, s40, 2
    s_mul_i32 s40, s40, 20
    s_mul_i32 s41, s95, 5
    s_add_u32 s40, s40, s41
    s_lshl_b32 s40, s40, 4
    s_add_u32 s40, s40, {F5_O}
    v_and_b32 v62, 7, v2
    v_min_u32 v62, 4, v62
    v_lshl_add_u32 v62, v62, 4, s40
    v_bfe_u32 v63, v2, 3, 1
    v_mul_u32_u24 v63, 320, v63
    v_add_u32 v62, v62, v63
    s_mul_i32 s22, s101, 100
    s_add_u32 s22, s22, s41
    s_lshl_b32 s22, s22, 10
    """)
    for n_, (tx_, po) in enumerate(rt_st): L.add(tx_, post=po, gate=RTSG, tag='rts' if n_ == len(rt_st) - 1 else None)
    L.add("buffer_load_dword v63, v62, s[8:11], 0 offen sc1", tag='f6', gate=60)
    def woreg(T, k):
        r = 156 + 4 * ((5 * T + k + 1) % 25)
        return f"a[{r}:{r+3}]"
    for k in range(5):
        for T in range(5):
            L.add(f"buffer_load_dwordx4 {woreg(T, k)}, v3, s[64:67], s23 offen {SC}", pre=f"s_add_u32 s23, s22, {T*20480 + 1024*k}", gate=70, tag=('WO', k))
    a(f"""
    v_lshlrev_b32 v6, 7, v4
    v_sub_u32 v6, v3, v6
    v_add_u32 v7, {16*3840}, v3
    v_add_u32 v8, {16*3840}, v6
    v_add_u32 v9, {32*3840}, v3
    v_add_u32 v10, {32*3840}, v6
    """)
    ACC = 64; WF = 24
    R0 = 11 if rt_ld else 1
    def rd(s, T):
        win = s // 16
        base = [(3, 6), (7, 8), (9, 10)][win][1 if T == 3 else 0]
        off = (s - 16 * win) * 3840 + T * 1024
        r = WF + 4 * ((s % 2) * 4 + T)
        return a.ds(f"ds_read_b128 v[{r}:{r+3}], v{base} offset:{off}")
    tR = {}
    L.need(0)
    a("s_barrier")
    mmark(a, "p1_first")
    for T in range(4): tR[(0, T)] = rd(0, T)
    for s in range(40):
        nxt = s + 1
        if nxt < 40 and nxt % 4 == 0:
            L.need(nxt // 4, gate=s - 1)
            a("s_barrier")
        for T in range(4):
            if nxt < 40: tR[(nxt, T)] = rd(nxt, T)
            if T % 2 == 0: a.wait(lg=tR[(s, T + 1)])
            r = WF + 4 * ((s % 2) * 4 + T)
            d = ACC + 16 * T
            a(f"v_mfma_f32_32x32x16_bf16 v[{d}:{d+15}], v[{r}:{r+3}], a[{4*s}:{4*s+3}], " + ("0" if s == 0 else f"v[{d}:{d+15}]"))
            if R0 <= s < R0 + 3 and rt_rd:
                a(rt_rd.pop(0))
                if T % 2: a(rt_rd.pop(0))
            elif s == R0 + 5 and T == 0:
                for x_ in rt_cs: a(x_)
            elif s == R0 + 8:
                a(rt_cs2.pop(0))
            if T % 2 == 0 or (T == 3 and ((rt_ld and s < 12) or s >= 36)):
                if s >= 28: L.paced(gate=s)
                else: L.pump(1, gate=s)
    EB = 86016
    a(f"""
    s_lshl_b32 s50, s95, 5
    v_add_u32 v11, s50, v5
    v_mul_u32_u24 v11, 272, v11
    v_lshl_add_u32 v11, v4, 7, v11
    v_add_u32 v11, {EB}, v11
    """)
    assert 'rts' in L.t and not rt_rd
    a("s_barrier")
    mmark(a, "p1_loop")
    XL = 61440
    srd(a, 68, 4, 0, 2621440)
    a(f"""
    s_lshl_b32 s40, s100, 2
    s_add_u32 s40, s40, s95
    s_mul_i32 s40, s40, {16*1280}
    s_mul_i32 s41, s101, 160
    s_add_u32 s40, s40, s41
    s_mul_i32 s41, s95, 2560
    s_movk_i32 s45, 6554
    """)
    for n in range(3):
        a(f"""
        v_add_u32 v8, {64*n}, v2
        v_mul_u32_u24 v9, s45, v8
        v_lshrrev_b32 v9, 16, v9
        v_mul_u32_u24 v9, {1280-160}, v9
        v_lshl_add_u32 v8, v8, 4, v9
        s_add_u32 m0, s41, {XL + 1024*n}
        """)
        if n == 2: a("s_mov_b32 exec_hi, 0")
        tRT = a.vm("buffer_load_dwordx4 v8, s[68:71], s40 offen nt lds")
    a("s_mov_b32 exec_hi, -1")
    pa = Paced(a, L, P1_PACE, gate=99)
    E, O, TMP, VP = 128, 168, 12, 188
    for i in range(9):
        a(f"v_cvt_pk_bf16_f32 v{VP+i}, v{84+2*i}, v{85+2*i}")
    a(f"v_mov_b32 v{VP+9}, 0x3f80\nv_cvt_pk_bf16_f32 v{VP+10}, v102, v103\nv_mov_b32 v{VP+11}, 0x3f80")
    for c in range(3):
        a(f"ds_write_b128 v11, v[{VP+4*c}:{VP+4*c+3}] offset:{80+16*c}")
    softmax_pair(a, 64, E, O, TMP)
    srd(a, 32, 20, KV_OFF, KV_SZ)
    for c in range(5):
        a(f"ds_write_b128 v11, v[{O+4*c}:{O+4*c+3}] offset:{16*c}")
    a(f"""
    v_bfe_u32 v56, v2, 2, 2
    v_lshlrev_b32 v56, 2, v56
    v_lshl_add_u32 v56, v4, 1, v56
    v_mul_u32_u24 v56, 272, v56
    v_bfe_u32 v57, v2, 4, 1
    v_lshl_add_u32 v56, v57, 5, v56
    v_and_b32 v57, 3, v2
    v_lshl_add_u32 v56, v57, 3, v56
    s_lshr_b32 s51, s95, 1
    s_and_b32 s52, s95, 1
    s_lshl_b32 s53, s51, 7
    s_add_u32 s53, s53, {EB}
    v_add_u32 v56, s53, v56
    s_mul_i32 s53, s52, 40
    v_add_u32 v57, s53, v56
    """)
    a.wait_all_lg()
    a("s_barrier")
    mmark(a, "p1_ksm")
    tk = []
    FA, FB, KD = 128, 200, 24
    def kvm(k2):
        a.wait(lg=tk[k2])
        a(f"v_mfma_f32_32x32x16_bf16 v[{KD}:{KD+15}], v[{FA+4*k2}:{FA+4*k2+3}], v[{FB+4*k2}:{FB+4*k2+3}], " + ("0" if k2 == 0 else f"v[{KD}:{KD+15}]"))
    for ks in range(8):
        for rho in range(2):
            off = (16 * ks + rho) * 272
            a(f"ds_read_b64_tr_b16 v[{FA+4*ks+2*rho}:{FA+4*ks+2*rho+1}], v57 offset:{off}")
            t = a.ds(f"ds_read_b64_tr_b16 v[{FB+4*ks+2*rho}:{FB+4*ks+2*rho+1}], v56 offset:{off+80}")
        tk.append(t)
        if ks >= 2: kvm(ks - 2)
    kvm(6); kvm(7)
    a(f"""
    s_add_u32 s53, s47, {EB + 40960}
    v_mul_u32_u24 v58, 384, v4
    v_lshl_add_u32 v58, v5, 4, v58
    v_add_u32 v58, s53, v58
    v_lshl_add_u32 v59, v2, 2, s53
    v_lshlrev_b32 v60, 2, v2
    s_lshl_b32 s54, s43, 1
    s_add_u32 s54, s54, s51
    s_mul_i32 s54, s54, 3840
    s_mul_i32 s55, s52, 1920
    s_add_u32 s54, s54, s55
    v_cmp_gt_u32 vcc, 24, v5
    s_and_saveexec_b64 s[56:57], vcc
    """)
    for c in range(3):
        a(f"ds_write_b128 v58, v[{KD+4*c}:{KD+3+4*c}] offset:{768*c}")
    a("s_mov_b64 exec, s[56:57]")
    a.wait_all_lg()
    tk = [a.ds(f"ds_read_b32 v{40+i}, v59 offset:{256*i}") for i in range(8)]
    if a.vm_issued - a.vm_done > 40: a.wait(vm=a.vm_issued - 24)
    for i in range(8):
        a.wait(lg=tk[i])
        if i == 7: a("s_mov_b32 exec_hi, 0")
        a(f"buffer_atomic_add_f32 v{40+i}, v60, s[32:35], s54 offen offset:{256*i}")
    a("s_mov_b64 exec, -1")
    mmark(a, "p1_atom")
    tat = a.vm_issued
    softmax_pair(a, 104, E, O, TMP)
    P = lambda r: f"v[{r}:{r+1}]"
    for c in (0, 2):
        for j in range(4):
            a(f"v_permlane32_swap_b32 v{O+4*c+j}, v{O+4*c+4+j}")
    mmark(a, "p1_qsm")
    a(f"""
    s_lshl_b32 s40, s43, 4
    s_add_u32 s40, s40, s42
    s_lshl_b32 s40, s40, 4
    s_add_u32 s40, s40, {F2A_O}
    """)
    a.wait(vm=tat)
    a("s_barrier")
    a("s_cmp_lg_u32 s95, 0\ns_cbranch_scc1 M_s2")
    signal(a, "s40", 8)
    a("M_s2:")
    mmark(a, "p1_sig")
    a(f"""
    s_lshl_b32 s40, s2, 4
    s_add_u32 s40, s40, {F5_O}
    s_cmp_lg_u32 s95, 3
    s_cselect_b32 s40, 0x1000000, s40
    """)
    signal(a, "s40", 8)
    a.vm_done = a.vm_issued
    srd(a, 24, 20, KV_OFF, KV_SZ)
    srd(a, 28, 20, O_OFF, O_SZ)
    a(f"""
    v_min_u32 v6, 23, v5
    v_lshlrev_b32 v6, 4, v6
    v_mul_u32_u24 v7, 3840, v4
    v_add_u32 v7, v7, v6
    v_mul_u32_u24 v8, 768, v4
    v_add_u32 v6, v8, v6
    s_mul_i32 s45, s43, 7680
    s_add_u32 s46, s45, 3840
    v_and_b32 v8, 15, v2
    v_lshlrev_b32 v8, 4, v8
    s_lshl_b32 s47, s43, 8
    s_add_u32 s47, s47, {F2A_O}
    v_lshrrev_b32 v10, 4, v5
    v_mul_u32_u24 v10, 20480, v10
    v_add_u32 v10, v10, v8
    v_lshl_add_u32 v11, v4, 8, v10
    s_mul_i32 s48, s44, 40960
    s_mul_i32 s49, s43, 1280
    s_add_u32 s48, s48, s49
    s_lshl_b32 s49, s44, 4
    s_add_u32 s49, s49, s43
    s_lshl_b32 s49, s49, 4
    s_add_u32 s49, s49, {FO_O}
    """)
    for r in range(12, 20): a(f"v_mov_b32 v{r}, 0")
    mspill(a)
    poll(a, "M_poll2a", 8, "s47", 9)
    mmark(a, "p1b_sync")
    b = 64
    for hh in range(2):
        for u in range(2):
            for e in range(2):
                r = b + 16 * hh + 8 * u + 4 * e
                a(f"buffer_load_dwordx4 v[{r}:{r+3}], v6, s[24:27], s{45+hh} offen offset:{(4*u+e)*384} {SC}")
        if hh == 0:
            for e in range(2):
                r = b + 32 + 4 * e
                t0 = a.vm(f"buffer_load_dwordx4 v[{r}:{r+3}], v7, s[24:27], s45 offen offset:{(8+e)*384} {SC}")
    t1 = a.vm_issued
    OD, OB = [24, 40], 56
    for hh in range(2):
        a.wait(vm=t0 if hh == 0 else t1)
        if hh == 0: mmark(a, "p1b_kv")
        for u in range(2):
            r = b + 16 * hh + 8 * u
            for j in range(4):
                a(f"v_cvt_pk_bf16_f32 v{r+j}, v{r+2*j}, v{r+2*j+1}")
        a("s_mov_b32 exec_hi, 0" if hh == 0 else "s_mov_b32 exec_lo, 0")
        for j in range(4): a(f"v_cvt_pk_bf16_f32 v{12+4*hh+j}, v{b+32+2*j}, v{b+33+2*j}")
        a("s_mov_b64 exec, -1")
        d = OD[hh]
        for u in range(2):
            r = b + 16 * hh + 8 * u
            q = O + 8 * u + 4 * hh
            a(f"v_mfma_f32_32x32x16_bf16 v[{d}:{d+15}], v[{r}:{r+3}], v[{q}:{q+3}], " + ("0" if u == 0 else f"v[{d}:{d+15}]"))
        a(f"v_mfma_f32_32x32x16_bf16 v[{d}:{d+15}], v[{12+4*hh}:{15+4*hh}], v[{O+16}:{O+19}], v[{d}:{d+15}]")
    OB = 104
    for hh in range(2):
        d = OD[hh]
        a(f"v_add_f32 v{d+10}, {f32(1e-6)}, v{d+10}")
        a(f"v_rcp_f32 v{d+10}, v{d+10}")
        for j in range(0, 10, 2):
            a(f"v_pk_mul_f32 {P(d+j)}, {P(d+j)}, {P(d+10)} op_sel_hi:[1,0]")
        for j in range(5):
            a(f"v_cvt_pk_bf16_f32 v{OB+5*hh+j}, v{d+2*j}, v{d+2*j+1}")
        if hh == 0:
            a(f"buffer_store_dwordx4 v[{OB}:{OB+3}], v11, s[28:31], s48 offen {SC}")
    a(f"""
    buffer_store_dwordx4 v[{OB+4}:{OB+7}], v11, s[28:31], s48 offen offset:512 {SC}
    v_permlane32_swap_b32 v{OB+8}, v{OB+10}
    v_permlane32_swap_b32 v{OB+9}, v{OB+11}
    s_mov_b32 exec_hi, 0
    """)
    tst = a.vm(f"buffer_store_dwordx4 v[{OB+8}:{OB+11}], v10, s[28:31], s48 offen offset:1024 {SC}")
    a("s_mov_b32 exec_hi, -1")
    L.lim = 60; L.pump(1, gate=60)
    mmark(a, "p1b_st")
    map_p3(a, 60, 61, 40)
    a(f"""
    s_mul_i32 s62, s61, 27
    s_lshr_b32 s62, s62, 1
    s_mul_i32 s40, s62, 20480
    """)
    srd_dyn(a, 12, 20, W3_OFF - 81920, 40, 163840)
    srd_dyn(a, 16, 20, W3_OFF + 81920, 40, 163840)
    srd_dyn(a, 68, 20, W3_OFF + 245760, 40, 40960)
    a.wait(vm=tst)
    signal(a, "s49", 8)
    mmark(a, "p1b_sig")
    L.need('f6')
    check_flags(a, "M_f6", 63, 62, "0", False)
    L.pump(WO1, gate=99); woq = [(x[0], x[1], x[2], x[3], None) for x in L.q]
    PB2, TB2 = 0, 71680
    srd(a, 24, 20, H_OFF, H_SZ)
    srd(a, 32, 20, ST_OFF, ST_SZ)
    a(f"""
    s_mul_i32 s44, s95, 5
    s_mul_i32 s45, s100, 80
    s_add_u32 s45, s45, s44
    s_lshl_b32 s45, s45, 10
    v_and_b32 v7, 3, v2
    v_lshlrev_b32 v7, 4, v7
    v_bfe_u32 v8, v2, 2, 1
    v_lshl_add_u32 v7, v8, 8, v7
    s_lshl_b32 s46, s100, 9
    s_lshl_b32 s47, s95, 6
    s_add_u32 s46, s46, s47
    s_add_u32 s46, s46, {FO_O}
    s_mul_i32 s47, s95, 15360
    v_add_u32 v6, s47, v3
    """)
    for j in range(1, 4):
        a(f"""
        s_add_u32 s47, s95, {j}
        s_and_b32 s47, s47, 3
        s_mul_i32 s47, s47, 15360
        s_add_u32 s47, s47, {PB2 + (3-j)*5120}
        v_add_u32 v{9+j}, s47, v3
        """)
    map_p4(a, 58, 59, 40)
    a(f"""
    v_and_b32 v13, 15, v2
    v_lshrrev_b32 v14, 4, v2
    v_mul_u32_u24 v17, 160, v13
    v_lshl_add_u32 v17, v14, 3, v17
    s_mul_i32 s51, s95, 2560
    s_add_u32 s52, s51, {XL}
    v_add_u32 v15, s52, v17
    s_add_u32 s51, s51, {TB2}
    v_add_u32 v17, s51, v17
    v_mul_u32_u24 v18, 160, v13
    v_lshl_add_u32 v18, v14, 4, v18
    v_add_u32 v18, s51, v18
    v_lshlrev_b32 v19, 4, v13
    v_lshl_add_u32 v19, v14, 9, v19
    s_lshl_b32 s48, s100, 1
    s_lshr_b32 s49, s95, 1
    s_add_u32 s48, s48, s49
    s_lshl_b32 s53, s48, 3
    s_add_u32 s53, s53, s101
    s_lshl_b32 s53, s53, 8
    s_mul_i32 s48, s48, 40960
    s_mul_i32 s49, s101, 5120
    s_add_u32 s48, s48, s49
    s_and_b32 s49, s95, 1
    s_lshl_b32 s50, s49, 7
    s_add_u32 s53, s53, s50
    s_lshl_b32 s49, s49, 8
    s_add_u32 s48, s48, s49
    s_add_u32 s49, s48, 4096
    s_lshl_b32 s56, s100, 2
    s_add_u32 s56, s56, s95
    s_lshl_b32 s56, s56, 3
    s_add_u32 s56, s56, s101
    s_lshl_b32 s56, s56, 4
    s_add_u32 s56, s56, {F3_O}
    s_mov_b32 s54, 0xffff0000
    s_lshr_b32 s50, s62, 3
    s_lshl_b32 s50, s50, 2
    v_min_u32 v20, 11, v13
    v_add_u32 v20, s50, v20
    v_min_u32 v20, 107, v20
    v_and_b32 v21, 1, v14
    v_mul_u32_u24 v16, 108, v21
    v_add_u32 v20, v20, v16
    s_mul_i32 s50, s59, 5
    s_lshr_b32 s50, s50, 2
    s_mul_i32 s50, s50, 56
    s_mul_i32 s51, s95, 14
    s_add_u32 s50, s50, s51
    v_min_u32 v16, 13, v13
    v_mul_u32_u24 v21, 56, v21
    v_add3_u32 v16, v16, v21, s50
    v_min_u32 v16, 559, v16
    v_lshrrev_b32 v21, 1, v16
    v_subrev_u32 v22, {512-208}, v16
    v_cmp_le_u32 vcc, 512, v16
    v_cndmask_b32 v16, v21, v22, vcc
    v_cmp_le_u32 vcc, 32, v2
    v_cndmask_b32 v20, v20, v16, vcc
    v_lshlrev_b32 v20, 4, v20
    s_mov_b32 s57, {F5_O}
    """)
    tf = a.vm("buffer_load_dword v21, v20, s[8:11], s57 offen sc1")
    tx = [a.ds(f"ds_read_b64 v[{112+2*T}:{113+2*T}], v15 offset:{32*T}") for T in range(5)]
    A4 = [72, 92]; RS_, PS = 24, 44
    a.wait(lg=tx[4])
    for j in range(10):
        a(f"v_lshlrev_b32 v{128+2*j}, 16, v{112+j}")
        a(f"v_and_b32 v{129+2*j}, s54, v{112+j}")
    a.wait(vm=tf)
    check_flags(a, "M_f5", 21, 20, "s57", False)
    L0 = Loads(a, 60); w3_dma(L0, 0); w3_dma(L0, 1); L0.pump(W3EARLY)
    mspill(a)
    poll(a, "M_poll2b", 7, "s46", 9)
    mmark(a, "p2_sync")
    L = Loads(a, 40)
    order = [(sl, k) for sl in (1, 2, 3, 0) for k in range(5)]
    for i, (sl, k) in enumerate(order):
        pre = None
        if k == 0:
            pre = f"s_add_u32 s55, s95, {sl}\ns_and_b32 s55, s55, 3\ns_mul_i32 s55, s55, 20480\ns_add_u32 s55, s55, s45"
        elif k == 4:
            pre = "s_add_u32 s55, s55, 4096"
        L.add(f"buffer_load_dwordx4 a[{4*i}:{4*i+3}], v3, s[28:31], s55 offen offset:{1024*(k%4)} {SC} {NT4}", pre=pre, tag=i)
        while woq and woq[0][1][1] <= i + 1: L.q.append(woq.pop(0))
    L.q += L0.q
    if TOUCH:
        nsh = 4 if MAP4 == 'row' else 8
        per = 560 // nsh
        nin = (per + 63) // 64
        srd(a, 64, 20, W4_OFF, W4_SZ)
        a(f"""
        s_mov_b32 s36, s16
        s_mov_b32 s37, s17
        s_mov_b32 s38, 204800
        s_mov_b32 s39, 0x20000
        s_and_b32 s40, s60, 7
        s_lshl_b32 s40, s40, 2
        s_add_u32 s40, s40, s95
        s_mul_i32 s22, s40, {50*128}
        v_min_u32 v148, 49, v2
        v_lshlrev_b32 v148, 7, v148
        s_and_b32 s40, s58, {nsh-1}
        s_mul_i32 s40, s40, {per}
        s_mul_i32 s41, s95, 14
        s_mul_i32 s23, s59, {5*56}
        s_add_u32 s23, s23, s41
        s_lshl_b32 s23, s23, 10
        s_movk_i32 s41, 586
        """)
        L.add("buffer_load_dword v152, v148, s[36:39], s22 offen sc1")
        for q in range(nin):
            a(f"""
            v_add_u32 v153, {64*q}, v2
            v_min_u32 v153, {per-1}, v153
            v_add_u32 v153, s40, v153
            v_mul_u32_u24 v154, s41, v153
            v_lshrrev_b32 v154, 16, v154
            v_mul_u32_u24 v154, {57344 - 112*128}, v154
            v_lshl_add_u32 v{149+q}, v153, 7, v154
            """)
            L.add(f"buffer_load_dword v152, v{149+q}, s[64:67], s23 offen sc1")
    L.pump(12)
    ACC2 = [72, 92, 72, 128]
    def flush_p(ph):
        dp = ACC2[ph]
        for T in range(5):
            a(f"ds_write_b128 v6, v[{dp+4*T}:{dp+4*T+3}] offset:{ph*5120 + T*1024}")
    wr = []
    for i, (sl, k) in enumerate(order):
        ph = i // 5
        d = ACC2[ph]
        L.need(i)
        if i == 0: mmark(a, "p2_first")
        for T in range(5):
            a(f"v_mfma_f32_16x16x32_bf16 v[{d+4*T}:{d+4*T+3}], {woreg(T, k)}, a[{4*i}:{4*i+3}], " + ("0" if k == 0 and ph < 3 else f"v[{d+4*T}:{d+4*T+3}]"))
            if wr and T in (0, 2, 4): a(wr.pop(0))
            elif T == 1 or (T == 3 and 19 not in L.t): L.pump(1)
        if k == 0 and ph > 0:
            dp = ACC2[ph - 1]
            wr = [f"ds_write_b128 v6, v[{dp+4*T}:{dp+4*T+3}] offset:{(ph-1)*5120 + T*1024}" for T in range(5)]
    assert not wr and not woq
    a.wait_all_lg()
    a("s_barrier")
    mmark(a, "p2_bar")
    tk = []
    for j, rb in enumerate((RS_, PS, A4[0])):
        for T in range(5):
            t = a.ds(f"ds_read_b128 v[{rb+4*T}:{rb+4*T+3}], v{10+j} offset:{1024*T}")
        tk.append(t)
    a("v_mov_b32 v14, 0x3f803f80\nv_mov_b32 v112, 0\nv_mov_b32 v113, 0")
    for j, rb in enumerate((RS_, PS, A4[0])):
        a.wait(lg=tk[j])
        for r in range(0, 20, 2):
            a(f"v_pk_add_f32 {P(128+r)}, {P(128+r)}, {P(rb+r)}")
    for j in range(10):
        a(f"v_cvt_pk_bf16_f32 v{RS_+j}, v{128+2*j}, v{129+2*j}")
    for T in range(5):
        a(f"ds_write_b64 v17, v[{RS_+2*T}:{RS_+2*T+1}] offset:{32*T}")
    for j in range(10):
        a(f"v_dot2c_f32_bf16 v112, v{RS_+j}, v14")
        a(f"v_dot2c_f32_bf16 v113, v{RS_+j}, v{RS_+j}")
    a.wait_all_lg()
    tk = [a.ds(f"ds_read_b128 v[{PS+4*it}:{PS+4*it+3}], v18 offset:{64*it}") for it in range(3)]
    a(f"""
    v_mov_b32 v114, v112
    v_mov_b32 v115, v113
    v_permlane32_swap_b32 v112, v114
    v_permlane32_swap_b32 v113, v115
    v_pk_add_f32 v[112:113], v[112:113], v[114:115]
    """)
    for it in range(3):
        a.wait(lg=tk[it])
        if it == 2: a("s_mov_b32 exec_hi, 0")
        a(f"buffer_store_dwordx4 v[{PS+4*it}:{PS+4*it+3}], v19, s[24:27], s{48 if it < 2 else 49} offen offset:{2048*(it%2)} {SC}")
    a(f"""
    s_mov_b32 exec_hi, -1
    v_mov_b32 v114, v112
    v_mov_b32 v115, v113
    v_lshlrev_b32 v13, 3, v13
    v_permlane16_swap_b32 v112, v114
    v_permlane16_swap_b32 v113, v115
    v_pk_add_f32 v[112:113], v[112:113], v[114:115]
    s_mov_b64 exec, 0xffff
    """)
    tst = a.vm(f"buffer_store_dwordx2 v[112:113], v13, s[32:35], s53 offen {SC}")
    a("s_mov_b64 exec, -1")
    mmark(a, "p2_st")
    L.pump(99)
    srd(a, 28, 20, ST_OFF, ST_SZ)
    a.wait(vm=tst)
    signal(a, "s56", 8)
    mmark(a, "p2_sig")
    L.need(('W3', 1))
    a("s_barrier")
    w3_dma(L, 2); L.pump(99)
    map_p4(a, 100, 101, 40)
    a(f"""
    s_lshl_b32 s44, s60, 2
    s_add_u32 s44, s44, s95
    s_mul_i32 s45, s44, 40960
    v_bfe_u32 v7, v2, 2, 1
    v_bfe_u32 v8, v2, 4, 1
    v_xor_b32 v9, v8, v4
    v_lshlrev_b32 v9, 7, v9
    v_lshl_add_u32 v9, v8, 8, v9
    v_bfe_u32 v8, v2, 3, 1
    v_lshl_add_u32 v9, v8, 6, v9
    v_and_b32 v8, 3, v2
    v_lshl_add_u32 v9, v8, 4, v9
    v_lshl_add_u32 v8, v7, 9, v9
    v_mul_u32_u24 v7, 20480, v7
    v_add_u32 v10, v7, v9
    v_add_u32 v11, 40960, v10
    v_add_u32 v12, 81920, v10
    v_add_u32 v13, 122880, v10
    """)
    srd(a, 12, 20, CS_OFF, CS_SZ)
    a("s_lshl_b32 s46, s62, 9\ns_add_u32 s47, s46, 4096\nv_mov_b32 v0, v8")
    def cs_ld(T):
        return f"buffer_load_dwordx4 a[{160+4*(T%3)}:{163+4*(T%3)}], v0, s[12:15], s{46 if T < 4 else 47} offen offset:{1024*(T%4)} {SC}"
    for T in range(3): a(cs_ld(T))
    srd(a, 36, 20, HH_OFF, HH_SZ)
    srd(a, 32, 20, RS_OFF, RS_SZ)
    a(f"""
    v_lshlrev_b32 v6, 3, v5
    v_lshl_add_u32 v6, v4, 10, v6
    s_lshl_b32 s48, s44, 11
    v_lshrrev_b32 v20, 4, v5
    v_mul_u32_u24 v20, 57344, v20
    v_and_b32 v21, 15, v2
    v_lshlrev_b32 v7, 4, v21
    v_add_u32 v20, v7, v20
    v_lshl_add_u32 v20, v4, 8, v20
    s_mul_i32 s50, s44, 114688
    s_lshr_b32 s51, s61, 2
    s_mul_i32 s51, s51, 14336
    s_add_u32 s50, s50, s51
    s_and_b32 s51, s61, 3
    s_lshl_b32 s51, s51, 9
    s_add_u32 s50, s50, s51
    s_lshl_b32 s51, s44, 4
    s_add_u32 s51, s51, s61
    s_lshl_b32 s51, s51, 4
    v_mov_b32 v8, 0x1000000
    v_writelane_b32 v8, s51, 0
    v_mov_b32 v1, s93
    s_mov_b32 s58, {F4E_O}
    s_mov_b32 s59, {F4_O}
    s_lshl_b32 s51, s44, 8
    s_add_u32 s51, s51, {F3_O}
    s_lshr_b32 s52, s61, 2
    s_lshl_b32 s52, s52, 13
    s_lshl_b32 s53, s44, 7
    s_add_u32 s52, s52, s53
    s_and_b32 s53, s61, 3
    s_cmp_eq_u32 s53, 1
    s_cselect_b32 s52, s52, 0x1000000
    """)
    mspill(a)
    poll(a, "M_poll3", 7, "s51", 9)
    mmark(a, "p3_sync")
    L = Loads(a, 28)
    SR = 64
    for n in range(40):
        L.add(f"buffer_load_dwordx4 a[{4*n}:{4*n+3}], v3, s[24:27], s45 offen offset:{1024*(n%4)} {SC} {NT3}", tag=n,
              post="s_add_u32 s45, s45, 4096" if n % 4 == 3 else None)
        if n == 11:
            for p in range(4):
                L.add(f"buffer_load_dwordx2 v[{SR+2*p}:{SR+2*p+1}], v6, s[28:31], s48 offen offset:{256*p} {SC}", tag='st' if p == 3 else None)
    w3_dma(L, 3)
    L.pump(12)
    ACB = [80, 96, 112]
    NA = 3
    WF, NB, TMP, OUT = 24, 10, 64, [72, 76]
    REG = [12, 13, 10, 11, 12, 13, 10]
    seq = []
    for s in range(40):
        seq += [(0, s), (1, s)]
        if s >= LAG: seq.append((2, s - LAG))
    seq += [(2, s) for s in range(max(40 - LAG, 0), 40)] + [(T, s) for T in range(3, 7) for s in range(40)]
    frs = {}
    nrd = [0]
    def rd3():
        i = nrd[0]
        if i >= len(seq): return
        T, s = seq[i]
        r = WF + 4 * (i % NB)
        frs[i] = (r, a.ds(f"ds_read_b128 v[{r}:{r+3}], v{REG[T]} offset:{512*s}"))
        nrd[0] += 1
    def epi(T, pk):
        d, out, tmp = ACB[T % NA], OUT[T % 2], TMP
        Lx = []
        if pk:
            for j in range(0, 8, 2): Lx.append(f"v_pk_mul_f32 {P(tmp+j)}, {P(d+j)}, {P(d+j)}")
            for j in range(0, 8, 2): Lx.append(f"v_pk_fma_f32 {P(tmp+j)}, {P(tmp+j)}, v[14:15], v[14:15] op_sel:[0,1,0] op_sel_hi:[1,1,0]")
            for j in range(0, 8, 2): Lx.append(f"v_pk_mul_f32 {P(tmp+j)}, {P(tmp+j)}, {P(d+j)}")
            for j in range(8): Lx.append(f"v_exp_f32 v{tmp+j}, v{tmp+j}")
            for j in range(0, 8, 2): Lx.append(f"v_pk_mul_f32 {P(d+j)}, {P(d+j)}, {P(d+8+j)}")
            for j in range(0, 8, 2): Lx.append(f"v_pk_add_f32 {P(tmp+j)}, {P(tmp+j)}, 1.0 op_sel_hi:[1,0]")
            for j in range(8): Lx.append(f"v_rcp_f32 v{tmp+j}, v{tmp+j}")
            for j in range(0, 8, 2): Lx.append(f"v_pk_mul_f32 {P(d+j)}, {P(d+j)}, {P(tmp+j)}")
        else:
            for j in range(8): Lx.append(f"v_mul_f32 v{tmp+j}, v{d+j}, v{d+j}")
            for j in range(8): Lx.append(f"v_fma_f32 v{tmp+j}, v{tmp+j}, v15, v14")
            for j in range(8): Lx.append(f"v_mul_f32 v{tmp+j}, v{tmp+j}, v{d+j}")
            for j in range(8):
                Lx.append(f"v_exp_f32 v{tmp+j}, v{tmp+j}")
                Lx.append(f"v_mul_f32 v{d+j}, v{d+j}, v{d+8+j}")
            for j in range(8): Lx.append(f"v_add_f32 v{tmp+j}, 1.0, v{tmp+j}")
            for j in range(8):
                Lx.append(f"v_rcp_f32 v{tmp+j}, v{tmp+j}")
                if j >= 1: Lx.append(f"v_mul_f32 v{d+j-1}, v{d+j-1}, v{tmp+j-1}")
            Lx.append(f"v_cvt_pk_bf16_f32 v{out}, v{d}, v{d+1}")
            Lx.append(f"v_mul_f32 v{d+7}, v{d+7}, v{tmp+7}")
        for j in range(0 if pk else 1, 4): Lx.append(f"v_cvt_pk_bf16_f32 v{out+j}, v{d+2*j}, v{d+2*j+1}")
        Lx.append(f"buffer_store_dwordx4 v[{out}:{out+3}], v20, s[36:39], s50 offen offset:{2048*(T%2)} {SC}" + ("\ns_add_u32 s50, s50, 4096" if T % 2 else ""))
        return [(T, x) for x in Lx]
    stats = f"""
    v_add_f32 v{SR+0}, v{SR+0}, v{SR+2}
    v_add_f32 v{SR+1}, v{SR+1}, v{SR+3}
    v_add_f32 v{SR+4}, v{SR+4}, v{SR+6}
    v_add_f32 v{SR+5}, v{SR+5}, v{SR+7}
    v_add_f32 v{SR+0}, v{SR+0}, v{SR+4}
    v_add_f32 v{SR+1}, v{SR+1}, v{SR+5}
    v_mov_b32 v{SR+2}, v{SR}
    v_mov_b32 v{SR+3}, v{SR+1}
    v_permlane32_swap_b32 v{SR}, v{SR+2}
    v_permlane32_swap_b32 v{SR+1}, v{SR+3}
    v_add_f32 v{SR}, v{SR}, v{SR+2}
    v_add_f32 v{SR+1}, v{SR+1}, v{SR+3}
    v_mul_f32 v{SR}, {f32(-1.0/640)}, v{SR}
    v_mul_f32 v{SR+1}, {f32(1.0/640)}, v{SR+1}
    v_fma_f32 v{SR+1}, -v{SR}, v{SR}, v{SR+1}
    v_max_f32 v{SR+1}, 0, v{SR+1}
    v_add_f32 v{SR+1}, {f32(1e-5)}, v{SR+1}
    v_rsq_f32 v{SR+1}, v{SR+1}
    v_cvt_pk_bf16_f32 v{SR+2}, v{SR}, v{SR}
    v_lshlrev_b32 v{SR+2}, 16, v{SR+2}
    v_sub_f32 v{SR+3}, v{SR}, v{SR+2}
    v_cvt_pk_bf16_f32 v16, v{SR+2}, v{SR+3}
    v_mul_f32 v22, v{SR+1}, v{SR+1}
    v_mov_b32 v17, v16
    v_mov_b32 v18, v16
    v_mov_b32 v19, v16
    v_mul_f32 v14, {f32(C0)}, v{SR+1}
    v_mul_f32 v15, {f32(C1)}, v{SR+1}
    v_mul_f32 v15, v15, v22
    v_lshlrev_b32 v21, 2, v5
    buffer_store_dword v22, v21, s[32:35], s52 offen {SC}
    """.strip().split("\n")
    pending = []
    def w4reg(i):
        if i < 21: return f"a[{172+4*i}:{175+4*i}]"
        if i < 53: return f"v[{252-4*(i-21)}:{255-4*(i-21)}]"
        return f"a[{4*(i-53)}:{3+4*(i-53)}]"
    def w4_item(i):
        k, T = divmod(i, 5)
        return dict(text=f"buffer_load_dwordx4 {w4reg(i)}, v3, s[64:67], s23 offen {SC}", pre=f"s_add_u32 s23, s22, {T*57344 + 1024*k}", tag=('W4', i))
    srd(a, 64, 20, W4_OFF, W4_SZ)
    a(f"""
    s_mul_i32 s40, s95, 14
    s_mul_i32 s22, s101, {5*56}
    s_add_u32 s22, s22, s40
    s_lshl_b32 s22, s22, 10
    v_and_b32 v7, 3, v2
    v_lshlrev_b32 v7, 4, v7
    v_bfe_u32 v9, v2, 2, 1
    v_lshl_add_u32 v7, v9, 8, v7
    s_lshl_b32 s40, s100, 9
    s_lshl_b32 s41, s95, 6
    s_add_u32 s40, s40, s41
    v_add_u32 v7, s40, v7
    s_mul_i32 s40, s95, 14
    s_mul_i32 s57, s100, {4*56}
    s_add_u32 s57, s57, s40
    s_lshl_b32 s57, s57, 10
    """)
    DIST = 8
    def cost(x):
        x = x.strip()
        return 2 if x.startswith(("v_exp", "v_rcp", "v_rsq", "buffer_")) else 1
    def fill(budget, hold=None):
        while budget > 0 and pending:
            pick = None
            blockW, blockR = set(), set()
            for n, (t, x) in enumerate(pending[:14]):
                ins = Ins(x.split("\n")[0])
                if ins.kind == 'vmem' and n > 0 and any(Ins(y.split("\n")[0]).kind == 'vmem' for _, y in pending[:n]): break
                ok = cost(x) <= budget and t != hold and not (set(ins.r) & blockW) and not (set(ins.w) & (blockW | blockR))
                if ok and any(need(p, ins) > dd for dd, p in enumerate(reversed(a.ins[-2:]))): ok = False
                if ok: pick = n; break
                blockW |= set(ins.w); blockR |= set(ins.r)
            if pick is None: break
            t_, x = pending.pop(pick)
            a(x); budget -= cost(x)
            if x.startswith("buffer_store"): stored[t_] = (a.vm_issued, cur[0])
    stored = {}; cur = [0]; posted = False
    KE = 2 * EARLY
    order = [(sl, k) for sl in (1, 2, 3, 0) for k in range(KE)] + [(sl, k) for sl in (1, 2, 3, 0) for k in range(KE, 14)]
    L4 = Loads(a, 26)
    for i, (sl, k) in enumerate(order):
        pre = None
        if k in (0, KE):
            pre = f"s_add_u32 s55, s95, {sl}\ns_and_b32 s55, s55, 3\ns_mul_i32 s55, s55, 57344\ns_add_u32 s55, s55, s57"
            if k: pre += f"\ns_add_u32 s55, s55, {1024*k}"
            k0 = k
        elif (k - k0) % 4 == 0:
            pre = "s_add_u32 s55, s55, 4096"
        r = 68 + 4 * (i % 24)
        g = 17 + i if i < 24 else 1000 + i - 24
        if i >= 4 * KE: g = max(g, 1000 + 4 * KE - CHK)
        L4.add(f"buffer_load_dwordx4 a[{r}:{r+3}], v3, s[36:39], s55 offen offset:{1024*((k-k0)%4)} {SC} {NT4}", pre=pre, tag=('H', i), gate=g)
        if i == 4 * KE - 1:
            for T in range(5):
                L4.add(f"buffer_load_dwordx2 v[{104+2*T}:{105+2*T}], v15, s[24:27], s{48 if T < 4 else 49} offen offset:{1024*(T%4)} {SC}", gate=1000)
            L4.add(f"buffer_load_dword v114, v16, s[32:35], s50 offen {SC}", tag='res', gate=1000)
    hh0, late4 = L4.q[:24], L4.q[24:]
    for q in range(53): L.add(**w4_item(q))
    for q in range(53, 70): L.add(**w4_item(q), gate=q - 53)
    done01 = False
    for _ in range(DIST): rd3()
    for i, (T, s) in enumerate(seq):
        cur[0] = i
        nx = nrd[0]
        if nx < len(seq) and seq[nx][1] == 0 and seq[nx][0] >= 2:
            Tn = seq[nx][0]
            if Tn > 2: L.need(('W3', Tn))
            a("s_barrier")
            if Tn == 3:
                assert done01
                q0 = L.q; L.q = []; w3_dma(L, 4); w3_dma(L, 5); L.q += q0
            if Tn == 4:
                q0 = [x for x in L.q if 'lds' not in x[0]]; L.q = [x for x in L.q if 'lds' in x[0]]; w3_dma(L, 6); L.q += q0
        if T == 6 and s == CK0:
            tfe = a.vm("buffer_load_dword v9, v7, s[8:11], s58 offen sc1")
        if T == 6 and s == CK1:
            a.wait(vm=tfe)
            check_flags(a, "M_f4e", 9, 7, "s58", False)
            mmark(a, "p3_chk")
            L.q = hh0[:HH1] + L.q + hh0[HH1:]
        rd3()
        budget = 3
        nxt_wait = (i + 1) % 4 == 0
        if T == 0: L.need(s)
        if i == 0: mmark(a, "p3_first")
        if i % 4 == 0: a.wait(lg=frs[min(i + 3, len(seq) - 1)][1])
        r = frs[i][0]
        d = ACB[T % NA]
        if s == 0: assert all(t % NA != T % NA for t, _ in pending if t >= 0), "accumulator still pending"
        a(f"v_mfma_f32_32x32x16_bf16 v[{d}:{d+15}], v[{r}:{r+3}], a[{4*s}:{4*s+3}], " + ("0" if s == 0 else f"v[{d}:{d+15}]"))
        if nxt_wait: budget -= 1
        n0 = a.vm_issued
        if not done01:
            L.pump(1)
            if i + 1 < len(seq) and seq[i + 1][0] == 0: budget -= 1
            if s == 14 and T == 0:
                L.need('st'); pending += [(-1, x) for x in stats]
        elif not posted and EARLY - 1 in stored and i >= stored[EARLY - 1][1] + ACKD:
            a.wait(vm=stored[EARLY - 1][0])
            a("buffer_store_dword v1, v8, s[8:11], s58 offen sc0 sc1")
            posted = True; budget -= 1
            mmark(a, "p3_early")
        elif T == 2 or (i % 2 == 1 and ((T == 3 and s < 24) or T == 6)) or i % 8 in PACE3 or (T == 6 and s >= CK1 and i % 4 == 0):
            if not (T == 6 and s >= QS): L.paced(gate=s - 1 if T == 6 else None)
        budget -= 2 * (a.vm_issued - n0)
        fill(budget, hold=(T - 1 if s < 3 else None) if T > 2 else None)
        if s == 39 and T != 0:
            for t in ((0, 1) if T == 1 else (T,)):
                dd = ACB[t % NA]
                assert not any(p[0] == -1 for p in pending)
                if t >= 3: L.need(('CS', t))
                a(f"v_mfma_f32_32x32x16_bf16 v[{dd}:{dd+15}], a[{160+4*(t%3)}:{163+4*(t%3)}], v[16:19], v[{dd}:{dd+15}]")
                if NPK <= t < 6: pending += epi(t, False)
                if t + 3 < 7: L.q.insert(min(len(L.q), 8) if t == 2 else 0, (cs_ld(t + 3), ('CS', t + 3), None, None, None))
            if T == (1 if NPK < 2 or LAG >= 40 else 2) or (T == 1 and False):
                pass
            if T in (1, 2):
                for t in (range(min(NPK, 2)) if T == 1 else range(2, NPK)):
                    pq_ = Paced(a, L, 5)
                    for _, ins in epi(t, True): (pq_ if T == 2 else a)(ins)
                    stored[t] = (a.vm_issued, i)
            mmark(a, f"p3_t{T}")
            if T == 1: done01 = True
    print('stores at', {k: v[1] for k, v in stored.items()}, 'of', len(seq), 'left loads', len(L.q), 'pending', len(pending))
    assert posted
    rest = [(x[0], x[1], x[2], x[3], None) for x in L.q]
    L.q = rest + late4
    L.lim = 26
    pa = Paced(a, L, FP, gate=999)
    started = {t for t, _ in pending if sum(1 for u, _ in pending if u == t) < len(epi(t, False))}
    rest = sorted({t for t, _ in pending} - started)
    for t, ins in pending:
        if t in started: pa(ins)
    for t in rest + [6]:
        for _, ins in epi(t, True): pa(ins)
    tst = a.vm_issued
    mmark(a, "p3_st")
    for _ in range(8): L.paced(gate=999)
    PB, TB = 40960, 40960 + 61440
    srd(a, 12, 6, 0, 2621440)
    a(f"""
    s_mul_i32 s47, s95, 15360
    s_add_u32 s47, s47, {PB}
    v_add_u32 v6, s47, v3
    """)
    for j in range(1, 4):
        a(f"""
        s_add_u32 s47, s95, {j}
        s_and_b32 s47, s47, 3
        s_mul_i32 s47, s47, 15360
        s_add_u32 s47, s47, {PB + (3-j)*5120}
        v_add_u32 v{9+j}, s47, v3
        """)
    a(f"""
    v_and_b32 v13, 15, v2
    v_lshrrev_b32 v14, 4, v2
    v_lshlrev_b32 v15, 4, v13
    v_lshl_add_u32 v15, v4, 9, v15
    v_and_b32 v16, 1, v14
    v_lshl_add_u32 v15, v16, 3, v15
    s_lshl_b32 s48, s100, 1
    s_lshr_b32 s49, s95, 1
    s_add_u32 s48, s48, s49
    s_mul_i32 s48, s48, 40960
    s_mul_i32 s49, s101, 5120
    s_add_u32 s48, s48, s49
    s_and_b32 s49, s95, 1
    s_lshl_b32 s49, s49, 8
    s_add_u32 s48, s48, s49
    s_add_u32 s49, s48, 4096
    v_lshlrev_b32 v16, 2, v13
    s_lshl_b32 s50, s95, 13
    s_lshl_b32 s51, s100, 8
    s_add_u32 s50, s50, s51
    s_lshl_b32 s51, s95, 6
    s_add_u32 s50, s50, s51
    v_mul_u32_u24 v17, 160, v13
    v_lshl_add_u32 v17, v14, 3, v17
    s_mul_i32 s51, s95, 2560
    s_add_u32 s51, s51, {TB}
    v_add_u32 v17, s51, v17
    v_add_u32 v18, s51, v3
    s_mov_b32 s52, 6554
    """)
    for it in range(3):
        a(f"""
        v_add_u32 v13, {64*it}, v2
        v_mul_u32_u24 v14, s52, v13
        v_lshrrev_b32 v14, 16, v14
        v_mul_u32_u24 v14, {1280-160}, v14
        v_lshl_add_u32 v{19+it}, v13, 4, v14
        """)
    a(f"""
    s_lshl_b32 s52, s100, 2
    s_add_u32 s52, s52, s95
    s_mul_i32 s52, s52, {16*1280}
    s_mul_i32 s53, s101, 160
    s_add_u32 s52, s52, s53
    s_mov_b32 s54, 0xffff0000
    """)
    mspill(a)
    A4 = {1: 24, 2: 44, 3: 64, 0: 84}
    RS_, PS = 24, 44
    todo = []; wr = []
    NL = 14 - KE
    for i, (sl, k) in enumerate(order):
        d = A4[sl]
        if i == SIGI:
            a.wait(vm=tst)
            a("buffer_store_dword v1, v8, s[8:11], s59 offen sc0 sc1")
            mmark(a, "p3_sig")
        if i == 4 * KE - CHK - 3:
            tf4 = a.vm("buffer_load_dword v9, v7, s[8:11], s59 offen sc1")
        if i == 4 * KE - CHK + 1:
            a.wait(vm=tf4)
            check_flags(a, "M_f4", 9, 7, "s59", False)
            mmark(a, "p4_sync")
        L.need(('H', i), gate=999 + i)
        for T in range(5):
            L.need(('W4', 5 * k + T), gate=999 + i)
        if i == 0: mmark(a, "p4_first")
        if i == 4 * KE: mmark(a, "p4_late")
        r = 68 + 4 * (i % 24)
        for T in range(5):
            a(f"v_mfma_f32_16x16x32_bf16 v[{d+4*T}:{d+4*T+3}], {w4reg(5*k+T)}, a[{r}:{r+3}], " + ("0" if k == 0 else f"v[{d+4*T}:{d+4*T+3}]"))
            if wr and T in (1, 3, 4): a(wr.pop(0))
            elif T in (0, 2, 3): L.pump(1, gate=999 + i)
            elif todo:
                a(todo.pop(0));
                if todo: a(todo.pop(0))
        if i >= 4 * KE:
            ph, kk = divmod(i - 4 * KE, NL)
            if kk == 0 and ph > 0:
                dp = A4[ph]
                wr = [f"ds_write_b128 v6, v[{dp+4*T}:{dp+4*T+3}] offset:{(ph-1)*5120 + T*1024}" for T in range(5)]
            if ph == 3 and kk == min(3, NL - 1):
                assert not wr
                a.wait_all_lg()
                a("s_barrier")
                tk = []
                for j, rb in enumerate((24, 44, 64)):
                    for T in range(5):
                        t = a.ds(f"ds_read_b128 v[{rb+4*T}:{rb+4*T+3}], v{10+j} offset:{1024*T}")
                    tk.append(t)
            if ph == 1 and kk == 2:
                L.need('res', gate=999 + i)
                for j in range(0, 10):
                    todo += [f"v_lshlrev_b32 v{116+j}, 16, v{104+j}", f"v_and_b32 v{104+j}, s54, v{104+j}"]
    for ins in todo: a(ins)
    a.wait(lg=tk[1])
    for j in range(0, 20, 2):
        a(f"v_pk_add_f32 {P(24+j)}, {P(24+j)}, {P(44+j)}")
    a.wait(lg=tk[2])
    for j in range(0, 20, 2):
        a(f"v_pk_add_f32 {P(64+j)}, {P(64+j)}, {P(84+j)}")
    mmark(a, "p4_mm")
    for j in range(0, 20, 2):
        a(f"v_pk_add_f32 {P(24+j)}, {P(24+j)}, {P(64+j)}")
    for j in range(10):
        a(f"v_fma_f32 v{PS+2*j}, v{24+2*j}, v114, v{116+j}")
        a(f"v_fma_f32 v{PS+2*j+1}, v{25+2*j}, v114, v{104+j}")
    for j in range(10):
        a(f"v_cvt_pk_bf16_f32 v{RS_+j}, v{PS+2*j}, v{PS+2*j+1}")
    for T in range(5):
        a(f"ds_write_b64 v17, v[{RS_+2*T}:{RS_+2*T+1}] offset:{32*T}")
    a.wait_all_lg()
    tk = [a.ds(f"ds_read_b128 v[{PS+4*it}:{PS+4*it+3}], v18 offset:{1024*it}") for it in range(3)]
    for it in range(3):
        a.wait(lg=tk[it])
        if it == 2: a("s_mov_b32 exec_hi, 0")
        a(f"buffer_store_dwordx4 v[{PS+4*it}:{PS+4*it+3}], v{19+it}, s[12:15], s52 offen")
    a(f"""
    s_or_b32 s40, s2, s95
    s_cmp_lg_u32 s40, 0
    s_cbranch_scc1 M_noclr
    s_load_dwordx2 s[40:41], s[0:1], 72
    s_mov_b64 exec, 1
    v_mov_b32 v8, 0
    s_waitcnt lgkmcnt(0)
    global_store_dword v8, v8, s[40:41] sc0 sc1
M_noclr:
    """)
    mstamp_end(a, 1, 20)
    a("M_exit:\ns_endpgm")
    return a
```

```python
import os
B = int(os.environ.get('WSB', 0)) << 20
S, D, H, DH, DF = 2048, 640, 32, 20, 1728
XN_OFF, XN_SZ = B + 0x0, 2621440
W1_OFF, W1_SZ = B + 0x280000, 16 * 153600
KV_OFF, KV_SZ = B + 0x4E0000, 32 * 3840
ST_OFF, ST_SZ = B + 0x500000, 64 * 8 * 32 * 8
FL_OFF, FL_SZ = B + 0x520000, 8 * 16384
FSH = int(os.environ.get('FSH', 0)); FBIAS = 0x40000 if FSH else 0; PFL = os.environ.get('PFL', 'sc1').replace('_', ' ')
F4M_O, F4N_O = 98304, 114688
CS_OFF, CS_SZ = B + 0x540000, 216 * 512
RS_OFF, RS_SZ = B + 0x560000, 4 * 2048 * 4
WO_OFF, WO_SZ = B + 0x570000, 819200
W4_OFF, W4_SZ = B + 0x640000, 40 * 56 * 1024
W3_OFF, W3_SZ = B + 0x870000, 216 * 20480
HH_OFF, HH_SZ = B + 0xCB0000, 128 * 56 * 1024
O_OFF, O_SZ, O_TT = B + 0x13B0000, 128 * 20480, 20480
H_OFF, H_SZ = B + 0x1630000, 2621440
F4E_O, F6_O = 65536, 81920
FO_O = 0
F2_O, F3_O, F4_O = 0, 16384, 32768
F1A_O, F1B_O, F5_O, F2A_O = 49152, 53248, 57344, 61440
STAMP_OFF = 0x2000000
LOG2E = 1.4426950408889634
```

```python
from common import *
from asmlib import Ins, need
import common, math, p0, p0b

GRID = 256
LDS = 160 * 1024
C0 = -2.0 * math.sqrt(2.0 / math.pi) * LOG2E
C1 = C0 * 0.044715
SC = "sc1"
POLL_MAX = 20000
P1_PACE = 12
import os
OUTF = os.environ.get('OUTF', 'nt').replace('_', ' '); MAP1 = os.environ.get('MAP1', 'x'); MAP2 = os.environ.get('MAP2', 'x'); MAP4 = os.environ.get('MAP4', 'row'); MAP3 = os.environ.get('MAP3', 'x'); NT4 = os.environ.get('NT4', ''); NT3 = os.environ.get('NT3', ''); PACE3 = eval(os.environ.get('PACE3', '(1,3,7)')); NPK = int(os.environ.get('NPK', 3)); ACKD = int(os.environ.get('ACKD', 20)); CHK = int(os.environ.get('CHK', 8)); TOUCH = int(os.environ.get('TOUCH', 0)); FP = int(os.environ.get('FP', 999)); QS = int(os.environ.get('QS', 40)); CK0 = int(os.environ.get('CK0', 14)); CK1 = int(os.environ.get('CK1', 23)); HH1 = int(os.environ.get('HH1', 16)); SIGI = int(os.environ.get('SIGI', 6)); W3EARLY = int(os.environ.get('W3EARLY', 0)); LAG = int(os.environ.get('LAG', 8)); EARLY = int(os.environ.get('EARLY', 4)); WO1 = int(os.environ.get('WO1', 15)); RTSG = int(os.environ.get('RTSG', 36)); RTS0 = int(os.environ.get('RTS0', 99)); RTSN = int(os.environ.get('RTSN', 3))

class Paced:
    def __init__(self, a, L, n, gate=None):
        self.a, self.L, self.n, self.c, self.gate = a, L, n, 0, gate
    def __call__(self, text):
        for line in text.strip().split("\n"):
            if not line.strip(): continue
            self.a(line)
            self.c += 1
            if self.c % self.n == 0: self.L.paced(self.gate)

def poll(a, name, voff, soff, tmp):
    a(f"""
    s_mov_b32 s92, 0
{name}:
    buffer_load_dword v{tmp}, v{voff}, s[8:11], {soff} offen sc1
    s_add_u32 s92, s92, 1
    s_cmp_gt_u32 s92, {POLL_MAX}
    s_cbranch_scc1 {name}_go
    s_waitcnt vmcnt(0)
    v_cmp_ne_u32 vcc, s93, v{tmp}
    s_nop 4
    s_cbranch_vccnz {name}
{name}_go:
    s_waitcnt vmcnt(0)
    """)
    a.vm_done = a.vm_issued

def signal(a, soff, tmp):
    a(f"""
    s_mov_b64 exec, 1
    v_mov_b32 v{tmp}, s93
    v_mov_b32 v{tmp+1}, 0
    buffer_store_dword v{tmp}, v{tmp+1}, s[8:11], {soff} offen sc0 sc1
    s_mov_b64 exec, -1
    """)

def softmax_pair(a, P, E, O, tmp):
    mx, mn = tmp, tmp + 2
    a(f"v_max3_f32 v{mx}, v{P}, v{P+1}, v{P+2}")
    a(f"v_min3_f32 v{mn}, v{P}, v{P+1}, v{P+2}")
    for i in range(3, 19, 2):
        a(f"v_max3_f32 v{mx}, v{mx}, v{P+i}, v{P+i+1}")
        a(f"v_min3_f32 v{mn}, v{mn}, v{P+i}, v{P+i+1}")
    a(f"v_max_f32 v{mx}, v{mx}, v{P+19}")
    a(f"v_min_f32 v{mn}, v{mn}, v{P+19}")
    for i in range(0, 20, 2):
        a(f"v_pk_add_f32 v[{E+i}:{E+i+1}], v[{P+i}:{P+i+1}], v[{mx}:{mx+1}] op_sel_hi:[1,0] neg_lo:[0,1] neg_hi:[0,1]")
        a(f"v_pk_add_f32 v[{E+20+i}:{E+21+i}], v[{P+i}:{P+i+1}], v[{mn}:{mn+1}] op_sel_hi:[1,0] neg_lo:[1,0] neg_hi:[1,0]")
    for i in range(40):
        a(f"v_exp_f32 v{E+i}, v{E+i}")
    sp, sn = tmp, tmp + 2
    a(f"v_pk_add_f32 v[{sp}:{sp+1}], v[{E}:{E+1}], v[{E+2}:{E+3}]")
    a(f"v_pk_add_f32 v[{sn}:{sn+1}], v[{E+20}:{E+21}], v[{E+22}:{E+23}]")
    for i in range(4, 20, 2):
        a(f"v_pk_add_f32 v[{sp}:{sp+1}], v[{sp}:{sp+1}], v[{E+i}:{E+i+1}]")
        a(f"v_pk_add_f32 v[{sn}:{sn+1}], v[{sn}:{sn+1}], v[{E+20+i}:{E+21+i}]")
    a(f"v_add_f32 v{sp}, v{sp}, v{sp+1}")
    a(f"v_add_f32 v{sn}, v{sn}, v{sn+1}")
    a(f"v_rcp_f32 v{sp}, v{sp}")
    a(f"v_rcp_f32 v{sn}, v{sn}")
    for i in range(0, 20, 2):
        a(f"v_pk_mul_f32 v[{E+i}:{E+i+1}], v[{E+i}:{E+i+1}], v[{sp}:{sp+1}] op_sel_hi:[1,0]")
        a(f"v_pk_mul_f32 v[{E+20+i}:{E+21+i}], v[{E+20+i}:{E+21+i}], v[{sn}:{sn+1}] op_sel_hi:[1,0]")
    for i in range(20):
        a(f"v_cvt_pk_bf16_f32 v{O+i}, v{E+2*i}, v{E+2*i+1}")

def map_p1(a, rb, hp, t, kind='x'):
    if kind == 'h4':
        map_p3(a, rb, hp, t, 'x')
        return
    if kind == 'h2':
        map_p3(a, hp, rb, t, 'row')
        return
    a(f"""
    s_bfe_u32 s{rb}, s2, 0x20001
    s_lshl_b32 s{rb}, s{rb}, 2
    s_bfe_u32 s{t}, s2, 0x20003
    s_add_u32 s{rb}, s{rb}, s{t}
    s_and_b32 s{hp}, s2, 1
    s_lshl_b32 s{hp}, s{hp}, 3
    s_lshr_b32 s{t}, s2, 5
    s_add_u32 s{hp}, s{hp}, s{t}
    """)
def map_p2(a, tb, nb, t):
    a(f"""
    s_and_b32 s{tb}, s2, 7
    s_lshl_b32 s{tb}, s{tb}, 3
    s_bfe_u32 s{t}, s2, 0x30003
    s_add_u32 s{tb}, s{tb}, s{t}
    s_lshr_b32 s{nb}, s2, 6
    """)
def map_p3(a, rb, cb, t, kind=None):
    kind = kind or MAP3
    if kind == 'row':
        a(f"""
        s_and_b32 s{rb}, s2, 7
        s_lshl_b32 s{rb}, s{rb}, 1
        s_bfe_u32 s{t}, s2, 0x10003
        s_add_u32 s{rb}, s{rb}, s{t}
        s_lshr_b32 s{cb}, s2, 4
        """)
        return
    if kind == 'mid':
        map_p1(a, rb, cb, t)
        return
    a(f"""
    s_bfe_u32 s{rb}, s2, 0x10002
    s_lshl_b32 s{rb}, s{rb}, 3
    s_bfe_u32 s{t}, s2, 0x30003
    s_add_u32 s{rb}, s{rb}, s{t}
    s_and_b32 s{cb}, s2, 3
    s_lshl_b32 s{cb}, s{cb}, 2
    s_lshr_b32 s{t}, s2, 6
    s_add_u32 s{cb}, s{cb}, s{t}
    """)
def map_p4(a, rb, nb, t, kind=None):
    if (kind or MAP4) == 'row':
        a(f"""
        s_and_b32 s{rb}, s2, 7
        s_lshl_b32 s{rb}, s{rb}, 2
        s_bfe_u32 s{t}, s2, 0x20003
        s_add_u32 s{rb}, s{rb}, s{t}
        s_lshr_b32 s{nb}, s2, 5
        """)
        return
    a(f"""
    s_bfe_u32 s{rb}, s2, 0x20001
    s_lshl_b32 s{rb}, s{rb}, 3
    s_bfe_u32 s{t}, s2, 0x30003
    s_add_u32 s{rb}, s{rb}, s{t}
    s_and_b32 s{nb}, s2, 1
    s_lshl_b32 s{nb}, s{nb}, 2
    s_lshr_b32 s{t}, s2, 6
    s_add_u32 s{nb}, s{nb}, s{t}
    """)

def w3_dma(L, T, gate=None):
    reg = [81920, 122880, 0, 40960, 81920, 122880, 0][T]
    sr = 12 if T < 2 else (16 if T < 6 else 68)
    for c in range(10):
        grp = 0 if c < 4 else (4 if c < 8 else 8)
        L.add(f"buffer_load_dwordx4 v3, s[{sr}:{sr+3}], m0 offen offset:{1024*(c-grp)} {SC} lds", gate=gate,
              pre=f"s_add_u32 m0, s3, {reg + 1024*c}" if c == grp else None, tag=('W3', T) if c == 9 else None)

def check_flags(a, name, regs, voff, soff, wide):
    def test(x):
        if wide:
            x(f"v_xor_b32 v{regs}, s93, v{regs}\nv_xor_b32 v{regs+1}, s93, v{regs+1}\nv_xor_b32 v{regs+2}, s93, v{regs+2}\nv_xor_b32 v{regs+3}, s93, v{regs+3}")
            x(f"v_or3_b32 v{regs}, v{regs}, v{regs+1}, v{regs+2}\nv_or_b32 v{regs}, v{regs}, v{regs+3}\nv_cmp_ne_u32 vcc, 0, v{regs}")
        else:
            x(f"v_cmp_ne_u32 vcc, s93, v{regs}")
    test(a)
    a(f"s_mov_b32 s92, 0\ns_nop 3\ns_cbranch_vccz {name}_ok")
    b = Asm()
    b(f"{name}:")
    b(f"buffer_load_dwordx4 v[{regs}:{regs+3}], v{voff}, s[8:11], {soff} offen sc1" if wide else f"buffer_load_dword v{regs}, v{voff}, s[8:11], {soff} offen sc1")
    b(f"s_add_u32 s92, s92, 1\ns_waitcnt vmcnt(0)\ns_cmp_gt_u32 s92, {POLL_MAX}\ns_cbranch_scc1 {name}_ok")
    test(b)
    b(f"s_nop 4\ns_cbranch_vccnz {name}")
    a.ins += b.ins
    a(f"{name}_ok:")

def gen_mega():
    a = Asm()
    a(f"""
    s_memrealtime s[98:99]
    s_load_dwordx2 s[20:21], s[0:1], 80
    s_load_dwordx2 s[4:5], s[0:1], 0
    s_load_dwordx4 s[12:15], s[0:1], 8
    s_load_dwordx2 s[16:17], s[0:1], 24
    s_load_dwordx2 s[6:7], s[0:1], 64
    s_load_dwordx2 s[18:19], s[0:1], 72
    s_load_dwordx4 s[56:59], s[0:1], 40
    s_load_dwordx2 s[62:63], s[0:1], 56
    v_lshrrev_b32 v1, 6, v0
    v_and_b32 v2, 63, v0
    v_readfirstlane_b32 s95, v1
    s_cmp_ge_u32 s2, {GRID}
    s_cbranch_scc1 M_exit
    """)
    mstamp_begin(a)
    a(f"""
    v_lshlrev_b32 v3, 4, v2
    v_lshrrev_b32 v4, 5, v2
    v_and_b32 v5, 31, v2
    s_mul_i32 s3, s95, 10240
    """)
    map_p1(a, 42, 43, 40, MAP1)
    p0b.p0(a, 2)
    rt_ld, rt_rd, rt_cs, rt_cs2, rt_st, rt_se = p0b.rt_setup(a)
    assert not rt_ld
    a(f"""
    s_lshl_b32 s44, s42, 2
    s_add_u32 s44, s44, s95
    s_mul_i32 s45, s44, 40960
    s_mul_i32 s46, s43, 153600
    s_lshl_b32 s47, s95, 12
    s_lshl_b32 s48, s95, 11
    """)
    srd(a, 24, 20, XN_OFF, XN_SZ)
    srd_dyn(a, 28, 20, W1_OFF, 46, 153600)
    mspill(a)
    poll(a, "M_poll1", 12, "0", 9)
    mmark(a, "p1_sync")
    L = Loads(a, 28 if rt_ld else 24)
    for n in range(10):
        cnt = 4 if n < 9 else 2
        g = 15 if n >= 7 else None
        L.add(f"buffer_load_dwordx4 a[{16*n}:{16*n+3}], v3, s[24:27], s45 offen {SC}", pre=f"s_add_u32 m0, s{47 if n < 9 else 48}, {16384*n}", gate=g)
        for c in range(cnt):
            L.add(f"buffer_load_dwordx4 v3, s[28:31], m0 offen offset:{1024*c} {SC} lds", gate=g)
        for c in range(1, 4):
            L.add(f"buffer_load_dwordx4 a[{16*n+4*c}:{16*n+4*c+3}], v3, s[24:27], s45 offen offset:{1024*c} {SC}",
                  tag=n if c == 3 else None, post="s_add_u32 s45, s45, 4096" if c == 3 and n < 9 else None, gate=g)
        if n == 2:
            for pr, tx_, po in rt_ld: L.add(tx_, pre=pr, post=po or None)
        if RTS0 <= n < 9:
            for _ in range(RTSN):
                if len(rt_st) > 1:
                    tx_, po = rt_st.pop(0); L.add(tx_, post=po, gate=22)
    L.pump(16)
    srd(a, 64, 20, WO_OFF, WO_SZ)
    map_p4(a, 100, 101, 40, MAP2)
    a(f"""
    s_mul_i32 s40, s101, 5
    s_lshr_b32 s40, s40, 2
    s_mul_i32 s40, s40, 20
    s_mul_i32 s41, s95, 5
    s_add_u32 s40, s40, s41
    s_lshl_b32 s40, s40, 4
    s_add_u32 s40, s40, {F5_O}
    v_and_b32 v62, 7, v2
    v_min_u32 v62, 4, v62
    v_lshl_add_u32 v62, v62, 4, s40
    v_bfe_u32 v63, v2, 3, 1
    v_mul_u32_u24 v63, 320, v63
    v_add_u32 v62, v62, v63
    s_mul_i32 s22, s101, 100
    s_add_u32 s22, s22, s41
    s_lshl_b32 s22, s22, 10
    """)
    for n_, (tx_, po) in enumerate(rt_st): L.add(tx_, post=po, gate=RTSG, tag='rts' if n_ == len(rt_st) - 1 else None)
    L.add("buffer_load_dword v63, v62, s[8:11], 0 offen sc1", tag='f6', gate=60)
    def woreg(T, k):
        r = 156 + 4 * ((5 * T + k + 1) % 25)
        return f"a[{r}:{r+3}]"
    for k in range(5):
        for T in range(5):
            L.add(f"buffer_load_dwordx4 {woreg(T, k)}, v3, s[64:67], s23 offen {SC}", pre=f"s_add_u32 s23, s22, {T*20480 + 1024*k}", gate=70, tag=('WO', k))
    a(f"""
    v_lshlrev_b32 v6, 7, v4
    v_sub_u32 v6, v3, v6
    v_add_u32 v7, {16*3840}, v3
    v_add_u32 v8, {16*3840}, v6
    v_add_u32 v9, {32*3840}, v3
    v_add_u32 v10, {32*3840}, v6
    """)
    ACC = 64; WF = 24
    R0 = 11 if rt_ld else 1
    def rd(s, T):
        win = s // 16
        base = [(3, 6), (7, 8), (9, 10)][win][1 if T == 3 else 0]
        off = (s - 16 * win) * 3840 + T * 1024
        r = WF + 4 * ((s % 2) * 4 + T)
        return a.ds(f"ds_read_b128 v[{r}:{r+3}], v{base} offset:{off}")
    tR = {}
    L.need(0)
    a("s_barrier")
    mmark(a, "p1_first")
    for T in range(4): tR[(0, T)] = rd(0, T)
    for s in range(40):
        nxt = s + 1
        if nxt < 40 and nxt % 4 == 0:
            L.need(nxt // 4, gate=s - 1)
            a("s_barrier")
        for T in range(4):
            if nxt < 40: tR[(nxt, T)] = rd(nxt, T)
            if T % 2 == 0: a.wait(lg=tR[(s, T + 1)])
            r = WF + 4 * ((s % 2) * 4 + T)
            d = ACC + 16 * T
            a(f"v_mfma_f32_32x32x16_bf16 v[{d}:{d+15}], v[{r}:{r+3}], a[{4*s}:{4*s+3}], " + ("0" if s == 0 else f"v[{d}:{d+15}]"))
            if R0 <= s < R0 + 3 and rt_rd:
                a(rt_rd.pop(0))
                if T % 2: a(rt_rd.pop(0))
            elif s == R0 + 5 and T == 0:
                for x_ in rt_cs: a(x_)
            elif s == R0 + 8:
                a(rt_cs2.pop(0))
            if T % 2 == 0 or (T == 3 and ((rt_ld and s < 12) or s >= 36)):
                if s >= 28: L.paced(gate=s)
                else: L.pump(1, gate=s)
    EB = 86016
    a(f"""
    s_lshl_b32 s50, s95, 5
    v_add_u32 v11, s50, v5
    v_mul_u32_u24 v11, 272, v11
    v_lshl_add_u32 v11, v4, 7, v11
    v_add_u32 v11, {EB}, v11
    """)
    assert 'rts' in L.t and not rt_rd
    a("s_barrier")
    mmark(a, "p1_loop")
    XL = 61440
    srd(a, 68, 4, 0, 2621440)
    a(f"""
    s_lshl_b32 s40, s100, 2
    s_add_u32 s40, s40, s95
    s_mul_i32 s40, s40, {16*1280}
    s_mul_i32 s41, s101, 160
    s_add_u32 s40, s40, s41
    s_mul_i32 s41, s95, 2560
    s_movk_i32 s45, 6554
    """)
    for n in range(3):
        a(f"""
        v_add_u32 v8, {64*n}, v2
        v_mul_u32_u24 v9, s45, v8
        v_lshrrev_b32 v9, 16, v9
        v_mul_u32_u24 v9, {1280-160}, v9
        v_lshl_add_u32 v8, v8, 4, v9
        s_add_u32 m0, s41, {XL + 1024*n}
        """)
        if n == 2: a("s_mov_b32 exec_hi, 0")
        tRT = a.vm("buffer_load_dwordx4 v8, s[68:71], s40 offen nt lds")
    a("s_mov_b32 exec_hi, -1")
    pa = Paced(a, L, P1_PACE, gate=99)
    E, O, TMP, VP = 128, 168, 12, 188
    for i in range(9):
        a(f"v_cvt_pk_bf16_f32 v{VP+i}, v{84+2*i}, v{85+2*i}")
    a(f"v_mov_b32 v{VP+9}, 0x3f80\nv_cvt_pk_bf16_f32 v{VP+10}, v102, v103\nv_mov_b32 v{VP+11}, 0x3f80")
    for c in range(3):
        a(f"ds_write_b128 v11, v[{VP+4*c}:{VP+4*c+3}] offset:{80+16*c}")
    softmax_pair(a, 64, E, O, TMP)
    srd(a, 32, 20, KV_OFF, KV_SZ)
    for c in range(5):
        a(f"ds_write_b128 v11, v[{O+4*c}:{O+4*c+3}] offset:{16*c}")
    a(f"""
    v_bfe_u32 v56, v2, 2, 2
    v_lshlrev_b32 v56, 2, v56
    v_lshl_add_u32 v56, v4, 1, v56
    v_mul_u32_u24 v56, 272, v56
    v_bfe_u32 v57, v2, 4, 1
    v_lshl_add_u32 v56, v57, 5, v56
    v_and_b32 v57, 3, v2
    v_lshl_add_u32 v56, v57, 3, v56
    s_lshr_b32 s51, s95, 1
    s_and_b32 s52, s95, 1
    s_lshl_b32 s53, s51, 7
    s_add_u32 s53, s53, {EB}
    v_add_u32 v56, s53, v56
    s_mul_i32 s53, s52, 40
    v_add_u32 v57, s53, v56
    """)
    a.wait_all_lg()
    a("s_barrier")
    mmark(a, "p1_ksm")
    tk = []
    FA, FB, KD = 128, 200, 24
    def kvm(k2):
        a.wait(lg=tk[k2])
        a(f"v_mfma_f32_32x32x16_bf16 v[{KD}:{KD+15}], v[{FA+4*k2}:{FA+4*k2+3}], v[{FB+4*k2}:{FB+4*k2+3}], " + ("0" if k2 == 0 else f"v[{KD}:{KD+15}]"))
    for ks in range(8):
        for rho in range(2):
            off = (16 * ks + rho) * 272
            a(f"ds_read_b64_tr_b16 v[{FA+4*ks+2*rho}:{FA+4*ks+2*rho+1}], v57 offset:{off}")
            t = a.ds(f"ds_read_b64_tr_b16 v[{FB+4*ks+2*rho}:{FB+4*ks+2*rho+1}], v56 offset:{off+80}")
        tk.append(t)
        if ks >= 2: kvm(ks - 2)
    kvm(6); kvm(7)
    a(f"""
    s_add_u32 s53, s47, {EB + 40960}
    v_mul_u32_u24 v58, 384, v4
    v_lshl_add_u32 v58, v5, 4, v58
    v_add_u32 v58, s53, v58
    v_lshl_add_u32 v59, v2, 2, s53
    v_lshlrev_b32 v60, 2, v2
    s_lshl_b32 s54, s43, 1
    s_add_u32 s54, s54, s51
    s_mul_i32 s54, s54, 3840
    s_mul_i32 s55, s52, 1920
    s_add_u32 s54, s54, s55
    v_cmp_gt_u32 vcc, 24, v5
    s_and_saveexec_b64 s[56:57], vcc
    """)
    for c in range(3):
        a(f"ds_write_b128 v58, v[{KD+4*c}:{KD+3+4*c}] offset:{768*c}")
    a("s_mov_b64 exec, s[56:57]")
    a.wait_all_lg()
    tk = [a.ds(f"ds_read_b32 v{40+i}, v59 offset:{256*i}") for i in range(8)]
    if a.vm_issued - a.vm_done > 40: a.wait(vm=a.vm_issued - 24)
    for i in range(8):
        a.wait(lg=tk[i])
        if i == 7: a("s_mov_b32 exec_hi, 0")
        a(f"buffer_atomic_add_f32 v{40+i}, v60, s[32:35], s54 offen offset:{256*i}")
    a("s_mov_b64 exec, -1")
    mmark(a, "p1_atom")
    tat = a.vm_issued
    softmax_pair(a, 104, E, O, TMP)
    P = lambda r: f"v[{r}:{r+1}]"
    for c in (0, 2):
        for j in range(4):
            a(f"v_permlane32_swap_b32 v{O+4*c+j}, v{O+4*c+4+j}")
    mmark(a, "p1_qsm")
    a(f"""
    s_lshl_b32 s40, s43, 4
    s_add_u32 s40, s40, s42
    s_lshl_b32 s40, s40, 4
    s_add_u32 s40, s40, {F2A_O}
    """)
    a.wait(vm=tat)
    a("s_barrier")
    a("s_cmp_lg_u32 s95, 0\ns_cbranch_scc1 M_s2")
    signal(a, "s40", 8)
    a("M_s2:")
    mmark(a, "p1_sig")
    a(f"""
    s_lshl_b32 s40, s2, 4
    s_add_u32 s40, s40, {F5_O}
    s_cmp_lg_u32 s95, 3
    s_cselect_b32 s40, 0x1000000, s40
    """)
    signal(a, "s40", 8)
    a.vm_done = a.vm_issued
    srd(a, 24, 20, KV_OFF, KV_SZ)
    srd(a, 28, 20, O_OFF, O_SZ)
    a(f"""
    v_min_u32 v6, 23, v5
    v_lshlrev_b32 v6, 4, v6
    v_mul_u32_u24 v7, 3840, v4
    v_add_u32 v7, v7, v6
    v_mul_u32_u24 v8, 768, v4
    v_add_u32 v6, v8, v6
    s_mul_i32 s45, s43, 7680
    s_add_u32 s46, s45, 3840
    v_and_b32 v8, 15, v2
    v_lshlrev_b32 v8, 4, v8
    s_lshl_b32 s47, s43, 8
    s_add_u32 s47, s47, {F2A_O}
    v_lshrrev_b32 v10, 4, v5
    v_mul_u32_u24 v10, {O_TT}, v10
    v_add_u32 v10, v10, v8
    v_lshl_add_u32 v11, v4, 8, v10
    s_mul_i32 s48, s44, {2*O_TT}
    s_mul_i32 s49, s43, 1280
    s_add_u32 s48, s48, s49
    s_lshl_b32 s49, s44, 4
    s_add_u32 s49, s49, s43
    s_lshl_b32 s49, s49, 4
    s_add_u32 s49, s49, {FO_O}
    """)
    for r in range(12, 20): a(f"v_mov_b32 v{r}, 0")
    mspill(a)
    poll(a, "M_poll2a", 8, "s47", 9)
    mmark(a, "p1b_sync")
    b = 64
    for hh in range(2):
        for u in range(2):
            for e in range(2):
                r = b + 16 * hh + 8 * u + 4 * e
                a(f"buffer_load_dwordx4 v[{r}:{r+3}], v6, s[24:27], s{45+hh} offen offset:{(4*u+e)*384} {SC}")
        if hh == 0:
            for e in range(2):
                r = b + 32 + 4 * e
                t0 = a.vm(f"buffer_load_dwordx4 v[{r}:{r+3}], v7, s[24:27], s45 offen offset:{(8+e)*384} {SC}")
    t1 = a.vm_issued
    OD, OB = [24, 40], 56
    for hh in range(2):
        a.wait(vm=t0 if hh == 0 else t1)
        if hh == 0: mmark(a, "p1b_kv")
        for u in range(2):
            r = b + 16 * hh + 8 * u
            for j in range(4):
                a(f"v_cvt_pk_bf16_f32 v{r+j}, v{r+2*j}, v{r+2*j+1}")
        a("s_mov_b32 exec_hi, 0" if hh == 0 else "s_mov_b32 exec_lo, 0")
        for j in range(4): a(f"v_cvt_pk_bf16_f32 v{12+4*hh+j}, v{b+32+2*j}, v{b+33+2*j}")
        a("s_mov_b64 exec, -1")
        d = OD[hh]
        for u in range(2):
            r = b + 16 * hh + 8 * u
            q = O + 8 * u + 4 * hh
            a(f"v_mfma_f32_32x32x16_bf16 v[{d}:{d+15}], v[{r}:{r+3}], v[{q}:{q+3}], " + ("0" if u == 0 else f"v[{d}:{d+15}]"))
        a(f"v_mfma_f32_32x32x16_bf16 v[{d}:{d+15}], v[{12+4*hh}:{15+4*hh}], v[{O+16}:{O+19}], v[{d}:{d+15}]")
    OB = 104
    for hh in range(2):
        d = OD[hh]
        a(f"v_add_f32 v{d+10}, {f32(1e-6)}, v{d+10}")
        a(f"v_rcp_f32 v{d+10}, v{d+10}")
        for j in range(0, 10, 2):
            a(f"v_pk_mul_f32 {P(d+j)}, {P(d+j)}, {P(d+10)} op_sel_hi:[1,0]")
        for j in range(5):
            a(f"v_cvt_pk_bf16_f32 v{OB+5*hh+j}, v{d+2*j}, v{d+2*j+1}")
        if hh == 0:
            a(f"buffer_store_dwordx4 v[{OB}:{OB+3}], v11, s[28:31], s48 offen {SC}")
    a(f"""
    buffer_store_dwordx4 v[{OB+4}:{OB+7}], v11, s[28:31], s48 offen offset:512 {SC}
    v_permlane32_swap_b32 v{OB+8}, v{OB+10}
    v_permlane32_swap_b32 v{OB+9}, v{OB+11}
    s_mov_b32 exec_hi, 0
    """)
    tst = a.vm(f"buffer_store_dwordx4 v[{OB+8}:{OB+11}], v10, s[28:31], s48 offen offset:1024 {SC}")
    a("s_mov_b32 exec_hi, -1")
    L.lim = 60; L.pump(1, gate=60)
    mmark(a, "p1b_st")
    map_p3(a, 60, 61, 40)
    a(f"""
    s_mul_i32 s62, s61, 27
    s_lshr_b32 s62, s62, 1
    s_mul_i32 s40, s62, 20480
    """)
    srd_dyn(a, 12, 20, W3_OFF - 81920, 40, 163840)
    srd_dyn(a, 16, 20, W3_OFF + 81920, 40, 163840)
    srd_dyn(a, 68, 20, W3_OFF + 245760, 40, 40960)
    a.wait(vm=tst)
    signal(a, "s49", 8)
    mmark(a, "p1b_sig")
    L.need('f6')
    check_flags(a, "M_f6", 63, 62, "0", False)
    L.pump(WO1, gate=99); woq = [(x[0], x[1], x[2], x[3], None) for x in L.q]
    PB2, TB2 = 0, 71680
    srd(a, 24, 20, H_OFF, H_SZ)
    srd(a, 32, 20, ST_OFF, ST_SZ)
    a(f"""
    s_mul_i32 s44, s95, 5
    s_mul_i32 s45, s100, {4*O_TT//1024}
    s_add_u32 s45, s45, s44
    s_lshl_b32 s45, s45, 10
    v_and_b32 v7, 3, v2
    v_lshlrev_b32 v7, 4, v7
    v_bfe_u32 v8, v2, 2, 1
    v_lshl_add_u32 v7, v8, 8, v7
    s_lshl_b32 s46, s100, 9
    s_lshl_b32 s47, s95, 6
    s_add_u32 s46, s46, s47
    s_add_u32 s46, s46, {FO_O}
    s_mul_i32 s47, s95, 15360
    v_add_u32 v6, s47, v3
    """)
    for j in range(1, 4):
        a(f"""
        s_add_u32 s47, s95, {j}
        s_and_b32 s47, s47, 3
        s_mul_i32 s47, s47, 15360
        s_add_u32 s47, s47, {PB2 + (3-j)*5120}
        v_add_u32 v{9+j}, s47, v3
        """)
    map_p4(a, 58, 59, 40)
    a(f"""
    v_and_b32 v13, 15, v2
    v_lshrrev_b32 v14, 4, v2
    v_mul_u32_u24 v17, 160, v13
    v_lshl_add_u32 v17, v14, 3, v17
    s_mul_i32 s51, s95, 2560
    s_add_u32 s52, s51, {XL}
    v_add_u32 v15, s52, v17
    s_add_u32 s51, s51, {TB2}
    v_add_u32 v17, s51, v17
    v_mul_u32_u24 v18, 160, v13
    v_lshl_add_u32 v18, v14, 4, v18
    v_add_u32 v18, s51, v18
    v_lshlrev_b32 v19, 4, v13
    v_lshl_add_u32 v19, v14, 9, v19
    s_lshl_b32 s48, s100, 1
    s_lshr_b32 s49, s95, 1
    s_add_u32 s48, s48, s49
    s_lshl_b32 s53, s48, 3
    s_add_u32 s53, s53, s101
    s_lshl_b32 s53, s53, 8
    s_mul_i32 s48, s48, 40960
    s_mul_i32 s49, s101, 5120
    s_add_u32 s48, s48, s49
    s_and_b32 s49, s95, 1
    s_lshl_b32 s50, s49, 7
    s_add_u32 s53, s53, s50
    s_lshl_b32 s49, s49, 8
    s_add_u32 s48, s48, s49
    s_add_u32 s49, s48, 4096
    s_lshl_b32 s56, s100, 2
    s_add_u32 s56, s56, s95
    s_lshl_b32 s56, s56, 3
    s_add_u32 s56, s56, s101
    s_lshl_b32 s56, s56, 4
    s_add_u32 s56, s56, {F3_O}
    s_mov_b32 s54, 0xffff0000
    s_lshr_b32 s50, s62, 3
    s_lshl_b32 s50, s50, 2
    v_min_u32 v20, 11, v13
    v_add_u32 v20, s50, v20
    v_min_u32 v20, 107, v20
    v_and_b32 v21, 1, v14
    v_mul_u32_u24 v16, 108, v21
    v_add_u32 v20, v20, v16
    s_mul_i32 s50, s59, 5
    s_lshr_b32 s50, s50, 2
    s_mul_i32 s50, s50, 56
    s_mul_i32 s51, s95, 14
    s_add_u32 s50, s50, s51
    v_min_u32 v16, 13, v13
    v_mul_u32_u24 v21, 56, v21
    v_add3_u32 v16, v16, v21, s50
    v_min_u32 v16, 559, v16
    v_lshrrev_b32 v21, 1, v16
    v_subrev_u32 v22, {512-208}, v16
    v_cmp_le_u32 vcc, 512, v16
    v_cndmask_b32 v16, v21, v22, vcc
    v_cmp_le_u32 vcc, 32, v2
    v_cndmask_b32 v20, v20, v16, vcc
    v_lshlrev_b32 v20, 4, v20
    s_mov_b32 s57, {F5_O}
    """)
    tf = a.vm("buffer_load_dword v21, v20, s[8:11], s57 offen sc1")
    tx = [a.ds(f"ds_read_b64 v[{112+2*T}:{113+2*T}], v15 offset:{32*T}") for T in range(5)]
    A4 = [72, 92]; RS_, PS = 24, 44
    a.wait(lg=tx[4])
    for j in range(10):
        a(f"v_lshlrev_b32 v{128+2*j}, 16, v{112+j}")
        a(f"v_and_b32 v{129+2*j}, s54, v{112+j}")
    a.wait(vm=tf)
    check_flags(a, "M_f5", 21, 20, "s57", False)
    L0 = Loads(a, 60); w3_dma(L0, 0); w3_dma(L0, 1); L0.pump(W3EARLY)
    mspill(a)
    poll(a, "M_poll2b", 7, "s46", 9)
    mmark(a, "p2_sync")
    L = Loads(a, 40)
    order = [(sl, k) for sl in (1, 2, 3, 0) for k in range(5)]
    for i, (sl, k) in enumerate(order):
        pre = None
        if k == 0:
            pre = f"s_add_u32 s55, s95, {sl}\ns_and_b32 s55, s55, 3\ns_mul_i32 s55, s55, {O_TT}\ns_add_u32 s55, s55, s45"
        elif k == 4:
            pre = "s_add_u32 s55, s55, 4096"
        L.add(f"buffer_load_dwordx4 a[{4*i}:{4*i+3}], v3, s[28:31], s55 offen offset:{1024*(k%4)} {SC} {NT4}", pre=pre, tag=i)
        while woq and woq[0][1][1] <= i + 1: L.q.append(woq.pop(0))
    L.q += L0.q
    if TOUCH:
        nsh = 4 if MAP4 == 'row' else 8
        per = 560 // nsh
        nin = (per + 63) // 64
        srd(a, 64, 20, W4_OFF, W4_SZ)
        a(f"""
        s_mov_b32 s36, s16
        s_mov_b32 s37, s17
        s_mov_b32 s38, 204800
        s_mov_b32 s39, 0x20000
        s_and_b32 s40, s60, 7
        s_lshl_b32 s40, s40, 2
        s_add_u32 s40, s40, s95
        s_mul_i32 s22, s40, {50*128}
        v_min_u32 v148, 49, v2
        v_lshlrev_b32 v148, 7, v148
        s_and_b32 s40, s58, {nsh-1}
        s_mul_i32 s40, s40, {per}
        s_mul_i32 s41, s95, 14
        s_mul_i32 s23, s59, {5*56}
        s_add_u32 s23, s23, s41
        s_lshl_b32 s23, s23, 10
        s_movk_i32 s41, 586
        """)
        L.add("buffer_load_dword v152, v148, s[36:39], s22 offen sc1")
        for q in range(nin):
            a(f"""
            v_add_u32 v153, {64*q}, v2
            v_min_u32 v153, {per-1}, v153
            v_add_u32 v153, s40, v153
            v_mul_u32_u24 v154, s41, v153
            v_lshrrev_b32 v154, 16, v154
            v_mul_u32_u24 v154, {57344 - 112*128}, v154
            v_lshl_add_u32 v{149+q}, v153, 7, v154
            """)
            L.add(f"buffer_load_dword v152, v{149+q}, s[64:67], s23 offen sc1")
    L.pump(12)
    ACC2 = [72, 92, 72, 128]
    def flush_p(ph):
        dp = ACC2[ph]
        for T in range(5):
            a(f"ds_write_b128 v6, v[{dp+4*T}:{dp+4*T+3}] offset:{ph*5120 + T*1024}")
    wr = []
    for i, (sl, k) in enumerate(order):
        ph = i // 5
        d = ACC2[ph]
        L.need(i)
        if i == 0: mmark(a, "p2_first")
        for T in range(5):
            a(f"v_mfma_f32_16x16x32_bf16 v[{d+4*T}:{d+4*T+3}], {woreg(T, k)}, a[{4*i}:{4*i+3}], " + ("0" if k == 0 and ph < 3 else f"v[{d+4*T}:{d+4*T+3}]"))
            if wr and T in (0, 2, 4): a(wr.pop(0))
            elif T == 1 or (T == 3 and 19 not in L.t): L.pump(1)
        if k == 0 and ph > 0:
            dp = ACC2[ph - 1]
            wr = [f"ds_write_b128 v6, v[{dp+4*T}:{dp+4*T+3}] offset:{(ph-1)*5120 + T*1024}" for T in range(5)]
    assert not wr and not woq
    a.wait_all_lg()
    a("s_barrier")
    mmark(a, "p2_bar")
    tk = []
    for j, rb in enumerate((RS_, PS, A4[0])):
        for T in range(5):
            t = a.ds(f"ds_read_b128 v[{rb+4*T}:{rb+4*T+3}], v{10+j} offset:{1024*T}")
        tk.append(t)
    a("v_mov_b32 v14, 0x3f803f80\nv_mov_b32 v112, 0\nv_mov_b32 v113, 0")
    for j, rb in enumerate((RS_, PS, A4[0])):
        a.wait(lg=tk[j])
        for r in range(0, 20, 2):
            a(f"v_pk_add_f32 {P(128+r)}, {P(128+r)}, {P(rb+r)}")
    for j in range(10):
        a(f"v_cvt_pk_bf16_f32 v{RS_+j}, v{128+2*j}, v{129+2*j}")
    for T in range(5):
        a(f"ds_write_b64 v17, v[{RS_+2*T}:{RS_+2*T+1}] offset:{32*T}")
    for j in range(10):
        a(f"v_dot2c_f32_bf16 v112, v{RS_+j}, v14")
        a(f"v_dot2c_f32_bf16 v113, v{RS_+j}, v{RS_+j}")
    a.wait_all_lg()
    tk = [a.ds(f"ds_read_b128 v[{PS+4*it}:{PS+4*it+3}], v18 offset:{64*it}") for it in range(3)]
    a(f"""
    v_mov_b32 v114, v112
    v_mov_b32 v115, v113
    v_permlane32_swap_b32 v112, v114
    v_permlane32_swap_b32 v113, v115
    v_pk_add_f32 v[112:113], v[112:113], v[114:115]
    """)
    for it in range(3):
        a.wait(lg=tk[it])
        if it == 2: a("s_mov_b32 exec_hi, 0")
        a(f"buffer_store_dwordx4 v[{PS+4*it}:{PS+4*it+3}], v19, s[24:27], s{48 if it < 2 else 49} offen offset:{2048*(it%2)} {SC}")
    a(f"""
    s_mov_b32 exec_hi, -1
    v_mov_b32 v114, v112
    v_mov_b32 v115, v113
    v_lshlrev_b32 v13, 3, v13
    v_permlane16_swap_b32 v112, v114
    v_permlane16_swap_b32 v113, v115
    v_pk_add_f32 v[112:113], v[112:113], v[114:115]
    s_mov_b64 exec, 0xffff
    """)
    tst = a.vm(f"buffer_store_dwordx2 v[112:113], v13, s[32:35], s53 offen {SC}")
    a("s_mov_b64 exec, -1")
    mmark(a, "p2_st")
    L.pump(99)
    srd(a, 28, 20, ST_OFF, ST_SZ)
    a.wait(vm=tst)
    signal(a, "s56", 8)
    mmark(a, "p2_sig")
    L.need(('W3', 1))
    a("s_barrier")
    w3_dma(L, 2); L.pump(99)
    map_p4(a, 100, 101, 40)
    a(f"""
    s_lshl_b32 s44, s60, 2
    s_add_u32 s44, s44, s95
    s_mul_i32 s45, s44, 40960
    v_bfe_u32 v7, v2, 2, 1
    v_bfe_u32 v8, v2, 4, 1
    v_xor_b32 v9, v8, v4
    v_lshlrev_b32 v9, 7, v9
    v_lshl_add_u32 v9, v8, 8, v9
    v_bfe_u32 v8, v2, 3, 1
    v_lshl_add_u32 v9, v8, 6, v9
    v_and_b32 v8, 3, v2
    v_lshl_add_u32 v9, v8, 4, v9
    v_lshl_add_u32 v8, v7, 9, v9
    v_mul_u32_u24 v7, 20480, v7
    v_add_u32 v10, v7, v9
    v_add_u32 v11, 40960, v10
    v_add_u32 v12, 81920, v10
    v_add_u32 v13, 122880, v10
    """)
    srd(a, 12, 20, CS_OFF, CS_SZ)
    a("s_lshl_b32 s46, s62, 9\ns_add_u32 s47, s46, 4096\nv_mov_b32 v0, v8")
    def cs_ld(T):
        return f"buffer_load_dwordx4 a[{160+4*(T%3)}:{163+4*(T%3)}], v0, s[12:15], s{46 if T < 4 else 47} offen offset:{1024*(T%4)} {SC}"
    for T in range(3): a(cs_ld(T))
    srd(a, 36, 20, HH_OFF, HH_SZ)
    srd(a, 32, 20, RS_OFF, RS_SZ)
    a(f"""
    v_lshlrev_b32 v6, 3, v5
    v_lshl_add_u32 v6, v4, 10, v6
    s_lshl_b32 s48, s44, 11
    v_lshrrev_b32 v20, 4, v5
    v_mul_u32_u24 v20, 57344, v20
    v_and_b32 v21, 15, v2
    v_lshlrev_b32 v7, 4, v21
    v_add_u32 v20, v7, v20
    v_lshl_add_u32 v20, v4, 8, v20
    s_mul_i32 s50, s44, 114688
    s_lshr_b32 s51, s61, 2
    s_mul_i32 s51, s51, 14336
    s_add_u32 s50, s50, s51
    s_and_b32 s51, s61, 3
    s_lshl_b32 s51, s51, 9
    s_add_u32 s50, s50, s51
    s_lshl_b32 s51, s44, 4
    s_add_u32 s51, s51, s61
    s_lshl_b32 s51, s51, 4
    v_mov_b32 v8, 0x1000000
    v_writelane_b32 v8, s51, 0
    v_mov_b32 v1, s93
    s_mov_b32 s58, {F4E_O}
    s_mov_b32 s59, {F4_O}
    s_lshl_b32 s51, s44, 8
    s_add_u32 s51, s51, {F3_O}
    s_lshr_b32 s52, s61, 2
    s_lshl_b32 s52, s52, 13
    s_lshl_b32 s53, s44, 7
    s_add_u32 s52, s52, s53
    s_and_b32 s53, s61, 3
    s_cmp_eq_u32 s53, 1
    s_cselect_b32 s52, s52, 0x1000000
    """)
    mspill(a)
    poll(a, "M_poll3", 7, "s51", 9)
    mmark(a, "p3_sync")
    L = Loads(a, 28)
    SR = 64
    for n in range(40):
        L.add(f"buffer_load_dwordx4 a[{4*n}:{4*n+3}], v3, s[24:27], s45 offen offset:{1024*(n%4)} {SC} {NT3}", tag=n,
              post="s_add_u32 s45, s45, 4096" if n % 4 == 3 else None)
        if n == 11:
            for p in range(4):
                L.add(f"buffer_load_dwordx2 v[{SR+2*p}:{SR+2*p+1}], v6, s[28:31], s48 offen offset:{256*p} {SC}", tag='st' if p == 3 else None)
    w3_dma(L, 3)
    L.pump(12)
    ACB = [80, 96, 112]
    NA = 3
    WF, NB, TMP, OUT = 24, 10, 64, [72, 76]
    REG = [12, 13, 10, 11, 12, 13, 10]
    seq = []
    for s in range(40):
        seq += [(0, s), (1, s)]
        if s >= LAG: seq.append((2, s - LAG))
    seq += [(2, s) for s in range(max(40 - LAG, 0), 40)] + [(T, s) for T in range(3, 7) for s in range(40)]
    frs = {}
    nrd = [0]
    def rd3():
        i = nrd[0]
        if i >= len(seq): return
        T, s = seq[i]
        r = WF + 4 * (i % NB)
        frs[i] = (r, a.ds(f"ds_read_b128 v[{r}:{r+3}], v{REG[T]} offset:{512*s}"))
        nrd[0] += 1
    def epi(T, pk):
        d, out, tmp = ACB[T % NA], OUT[T % 2], TMP
        Lx = []
        if pk:
            for j in range(0, 8, 2): Lx.append(f"v_pk_mul_f32 {P(tmp+j)}, {P(d+j)}, {P(d+j)}")
            for j in range(0, 8, 2): Lx.append(f"v_pk_fma_f32 {P(tmp+j)}, {P(tmp+j)}, v[14:15], v[14:15] op_sel:[0,1,0] op_sel_hi:[1,1,0]")
            for j in range(0, 8, 2): Lx.append(f"v_pk_mul_f32 {P(tmp+j)}, {P(tmp+j)}, {P(d+j)}")
            for j in range(8): Lx.append(f"v_exp_f32 v{tmp+j}, v{tmp+j}")
            for j in range(0, 8, 2): Lx.append(f"v_pk_mul_f32 {P(d+j)}, {P(d+j)}, {P(d+8+j)}")
            for j in range(0, 8, 2): Lx.append(f"v_pk_add_f32 {P(tmp+j)}, {P(tmp+j)}, 1.0 op_sel_hi:[1,0]")
            for j in range(8): Lx.append(f"v_rcp_f32 v{tmp+j}, v{tmp+j}")
            for j in range(0, 8, 2): Lx.append(f"v_pk_mul_f32 {P(d+j)}, {P(d+j)}, {P(tmp+j)}")
        else:
            for j in range(8): Lx.append(f"v_mul_f32 v{tmp+j}, v{d+j}, v{d+j}")
            for j in range(8): Lx.append(f"v_fma_f32 v{tmp+j}, v{tmp+j}, v15, v14")
            for j in range(8): Lx.append(f"v_mul_f32 v{tmp+j}, v{tmp+j}, v{d+j}")
            for j in range(8):
                Lx.append(f"v_exp_f32 v{tmp+j}, v{tmp+j}")
                Lx.append(f"v_mul_f32 v{d+j}, v{d+j}, v{d+8+j}")
            for j in range(8): Lx.append(f"v_add_f32 v{tmp+j}, 1.0, v{tmp+j}")
            for j in range(8):
                Lx.append(f"v_rcp_f32 v{tmp+j}, v{tmp+j}")
                if j >= 1: Lx.append(f"v_mul_f32 v{d+j-1}, v{d+j-1}, v{tmp+j-1}")
            Lx.append(f"v_cvt_pk_bf16_f32 v{out}, v{d}, v{d+1}")
            Lx.append(f"v_mul_f32 v{d+7}, v{d+7}, v{tmp+7}")
        for j in range(0 if pk else 1, 4): Lx.append(f"v_cvt_pk_bf16_f32 v{out+j}, v{d+2*j}, v{d+2*j+1}")
        Lx.append(f"buffer_store_dwordx4 v[{out}:{out+3}], v20, s[36:39], s50 offen offset:{2048*(T%2)} {SC}" + ("\ns_add_u32 s50, s50, 4096" if T % 2 else ""))
        return [(T, x) for x in Lx]
    stats = f"""
    v_add_f32 v{SR+0}, v{SR+0}, v{SR+2}
    v_add_f32 v{SR+1}, v{SR+1}, v{SR+3}
    v_add_f32 v{SR+4}, v{SR+4}, v{SR+6}
    v_add_f32 v{SR+5}, v{SR+5}, v{SR+7}
    v_add_f32 v{SR+0}, v{SR+0}, v{SR+4}
    v_add_f32 v{SR+1}, v{SR+1}, v{SR+5}
    v_mov_b32 v{SR+2}, v{SR}
    v_mov_b32 v{SR+3}, v{SR+1}
    v_permlane32_swap_b32 v{SR}, v{SR+2}
    v_permlane32_swap_b32 v{SR+1}, v{SR+3}
    v_add_f32 v{SR}, v{SR}, v{SR+2}
    v_add_f32 v{SR+1}, v{SR+1}, v{SR+3}
    v_mul_f32 v{SR}, {f32(-1.0/640)}, v{SR}
    v_mul_f32 v{SR+1}, {f32(1.0/640)}, v{SR+1}
    v_fma_f32 v{SR+1}, -v{SR}, v{SR}, v{SR+1}
    v_max_f32 v{SR+1}, 0, v{SR+1}
    v_add_f32 v{SR+1}, {f32(1e-5)}, v{SR+1}
    v_rsq_f32 v{SR+1}, v{SR+1}
    v_cvt_pk_bf16_f32 v{SR+2}, v{SR}, v{SR}
    v_lshlrev_b32 v{SR+2}, 16, v{SR+2}
    v_sub_f32 v{SR+3}, v{SR}, v{SR+2}
    v_cvt_pk_bf16_f32 v16, v{SR+2}, v{SR+3}
    v_mul_f32 v22, v{SR+1}, v{SR+1}
    v_mov_b32 v17, v16
    v_mov_b32 v18, v16
    v_mov_b32 v19, v16
    v_mul_f32 v14, {f32(C0)}, v{SR+1}
    v_mul_f32 v15, {f32(C1)}, v{SR+1}
    v_mul_f32 v15, v15, v22
    v_lshlrev_b32 v21, 2, v5
    buffer_store_dword v22, v21, s[32:35], s52 offen {SC}
    """.strip().split("\n")
    pending = []
    def w4reg(i):
        if i < 21: return f"a[{172+4*i}:{175+4*i}]"
        if i < 53: return f"v[{252-4*(i-21)}:{255-4*(i-21)}]"
        return f"a[{4*(i-53)}:{3+4*(i-53)}]"
    def w4_item(i):
        k, T = divmod(i, 5)
        return dict(text=f"buffer_load_dwordx4 {w4reg(i)}, v3, s[64:67], s23 offen {SC}", pre=f"s_add_u32 s23, s22, {T*57344 + 1024*k}", tag=('W4', i))
    srd(a, 64, 20, W4_OFF, W4_SZ)
    a(f"""
    s_mul_i32 s40, s95, 14
    s_mul_i32 s22, s101, {5*56}
    s_add_u32 s22, s22, s40
    s_lshl_b32 s22, s22, 10
    v_and_b32 v7, 3, v2
    v_lshlrev_b32 v7, 4, v7
    v_bfe_u32 v9, v2, 2, 1
    v_lshl_add_u32 v7, v9, 8, v7
    s_lshl_b32 s40, s100, 9
    s_lshl_b32 s41, s95, 6
    s_add_u32 s40, s40, s41
    v_add_u32 v7, s40, v7
    s_mul_i32 s40, s95, 14
    s_mul_i32 s57, s100, {4*56}
    s_add_u32 s57, s57, s40
    s_lshl_b32 s57, s57, 10
    """)
    DIST = 8
    def cost(x):
        x = x.strip()
        return 2 if x.startswith(("v_exp", "v_rcp", "v_rsq", "buffer_")) else 1
    def fill(budget, hold=None):
        while budget > 0 and pending:
            pick = None
            blockW, blockR = set(), set()
            for n, (t, x) in enumerate(pending[:14]):
                ins = Ins(x.split("\n")[0])
                if ins.kind == 'vmem' and n > 0 and any(Ins(y.split("\n")[0]).kind == 'vmem' for _, y in pending[:n]): break
                ok = cost(x) <= budget and t != hold and not (set(ins.r) & blockW) and not (set(ins.w) & (blockW | blockR))
                if ok and any(need(p, ins) > dd for dd, p in enumerate(reversed(a.ins[-2:]))): ok = False
                if ok: pick = n; break
                blockW |= set(ins.w); blockR |= set(ins.r)
            if pick is None: break
            t_, x = pending.pop(pick)
            a(x); budget -= cost(x)
            if x.startswith("buffer_store"): stored[t_] = (a.vm_issued, cur[0])
    stored = {}; cur = [0]; posted = False
    KE = 2 * EARLY
    order = [(sl, k) for sl in (1, 2, 3, 0) for k in range(KE)] + [(sl, k) for sl in (1, 2, 3, 0) for k in range(KE, 14)]
    L4 = Loads(a, 26)
    for i, (sl, k) in enumerate(order):
        pre = None
        if k in (0, KE):
            pre = f"s_add_u32 s55, s95, {sl}\ns_and_b32 s55, s55, 3\ns_mul_i32 s55, s55, 57344\ns_add_u32 s55, s55, s57"
            if k: pre += f"\ns_add_u32 s55, s55, {1024*k}"
            k0 = k
        elif (k - k0) % 4 == 0:
            pre = "s_add_u32 s55, s55, 4096"
        r = 68 + 4 * (i % 24)
        g = 17 + i if i < 24 else 1000 + i - 24
        if i >= 4 * KE: g = max(g, 1000 + 4 * KE - CHK)
        L4.add(f"buffer_load_dwordx4 a[{r}:{r+3}], v3, s[36:39], s55 offen offset:{1024*((k-k0)%4)} {SC} {NT4}", pre=pre, tag=('H', i), gate=g)
        if i == 4 * KE - 1:
            for T in range(5):
                L4.add(f"buffer_load_dwordx2 v[{104+2*T}:{105+2*T}], v15, s[24:27], s{48 if T < 4 else 49} offen offset:{1024*(T%4)} {SC}", gate=1000)
            L4.add(f"buffer_load_dword v114, v16, s[32:35], s50 offen {SC}", tag='res', gate=1000)
    hh0, late4 = L4.q[:24], L4.q[24:]
    for q in range(53): L.add(**w4_item(q))
    for q in range(53, 70): L.add(**w4_item(q), gate=q - 53)
    done01 = False
    for _ in range(DIST): rd3()
    for i, (T, s) in enumerate(seq):
        cur[0] = i
        nx = nrd[0]
        if nx < len(seq) and seq[nx][1] == 0 and seq[nx][0] >= 2:
            Tn = seq[nx][0]
            if Tn > 2: L.need(('W3', Tn))
            a("s_barrier")
            if Tn == 3:
                assert done01
                q0 = L.q; L.q = []; w3_dma(L, 4); w3_dma(L, 5); L.q += q0
            if Tn == 4:
                q0 = [x for x in L.q if 'lds' not in x[0]]; L.q = [x for x in L.q if 'lds' in x[0]]; w3_dma(L, 6); L.q += q0
        if T == 6 and s == CK0:
            tfe = a.vm("buffer_load_dword v9, v7, s[8:11], s58 offen sc1")
        if T == 6 and s == CK1:
            a.wait(vm=tfe)
            check_flags(a, "M_f4e", 9, 7, "s58", False)
            mmark(a, "p3_chk")
            L.q = hh0[:HH1] + L.q + hh0[HH1:]
        rd3()
        budget = 3
        nxt_wait = (i + 1) % 4 == 0
        if T == 0: L.need(s)
        if i == 0: mmark(a, "p3_first")
        if i % 4 == 0: a.wait(lg=frs[min(i + 3, len(seq) - 1)][1])
        r = frs[i][0]
        d = ACB[T % NA]
        if s == 0: assert all(t % NA != T % NA for t, _ in pending if t >= 0), "accumulator still pending"
        a(f"v_mfma_f32_32x32x16_bf16 v[{d}:{d+15}], v[{r}:{r+3}], a[{4*s}:{4*s+3}], " + ("0" if s == 0 else f"v[{d}:{d+15}]"))
        if nxt_wait: budget -= 1
        n0 = a.vm_issued
        if not done01:
            L.pump(1)
            if i + 1 < len(seq) and seq[i + 1][0] == 0: budget -= 1
            if s == 14 and T == 0:
                L.need('st'); pending += [(-1, x) for x in stats]
        elif not posted and EARLY - 1 in stored and i >= stored[EARLY - 1][1] + ACKD:
            a.wait(vm=stored[EARLY - 1][0])
            a("buffer_store_dword v1, v8, s[8:11], s58 offen sc0 sc1")
            posted = True; budget -= 1
            mmark(a, "p3_early")
        elif T == 2 or (i % 2 == 1 and ((T == 3 and s < 24) or T == 6)) or i % 8 in PACE3 or (T == 6 and s >= CK1 and i % 4 == 0):
            if not (T == 6 and s >= QS): L.paced(gate=s - 1 if T == 6 else None)
        budget -= 2 * (a.vm_issued - n0)
        fill(budget, hold=(T - 1 if s < 3 else None) if T > 2 else None)
        if s == 39 and T != 0:
            for t in ((0, 1) if T == 1 else (T,)):
                dd = ACB[t % NA]
                assert not any(p[0] == -1 for p in pending)
                if t >= 3: L.need(('CS', t))
                a(f"v_mfma_f32_32x32x16_bf16 v[{dd}:{dd+15}], a[{160+4*(t%3)}:{163+4*(t%3)}], v[16:19], v[{dd}:{dd+15}]")
                if NPK <= t < 6: pending += epi(t, False)
                if t + 3 < 7: L.q.insert(min(len(L.q), 8) if t == 2 else 0, (cs_ld(t + 3), ('CS', t + 3), None, None, None))
            if T == (1 if NPK < 2 or LAG >= 40 else 2) or (T == 1 and False):
                pass
            if T in (1, 2):
                for t in (range(min(NPK, 2)) if T == 1 else range(2, NPK)):
                    pq_ = Paced(a, L, 5)
                    for _, ins in epi(t, True): (pq_ if T == 2 else a)(ins)
                    stored[t] = (a.vm_issued, i)
            mmark(a, f"p3_t{T}")
            if T == 1: done01 = True
    print('stores at', {k: v[1] for k, v in stored.items()}, 'of', len(seq), 'left loads', len(L.q), 'pending', len(pending))
    assert posted
    rest = [(x[0], x[1], x[2], x[3], None) for x in L.q]
    L.q = rest + late4
    L.lim = 26
    pa = Paced(a, L, FP, gate=999)
    started = {t for t, _ in pending if sum(1 for u, _ in pending if u == t) < len(epi(t, False))}
    rest = sorted({t for t, _ in pending} - started)
    for t, ins in pending:
        if t in started: pa(ins)
    for t in rest + [6]:
        for _, ins in epi(t, True): pa(ins)
    tst = a.vm_issued
    mmark(a, "p3_st")
    for _ in range(8): L.paced(gate=999)
    PB, TB = 40960, 40960 + 61440
    srd(a, 12, 6, 0, 2621440)
    a(f"""
    s_mul_i32 s47, s95, 15360
    s_add_u32 s47, s47, {PB}
    v_add_u32 v6, s47, v3
    """)
    for j in range(1, 4):
        a(f"""
        s_add_u32 s47, s95, {j}
        s_and_b32 s47, s47, 3
        s_mul_i32 s47, s47, 15360
        s_add_u32 s47, s47, {PB + (3-j)*5120}
        v_add_u32 v{9+j}, s47, v3
        """)
    a(f"""
    v_and_b32 v13, 15, v2
    v_lshrrev_b32 v14, 4, v2
    v_lshlrev_b32 v15, 4, v13
    v_lshl_add_u32 v15, v4, 9, v15
    v_and_b32 v16, 1, v14
    v_lshl_add_u32 v15, v16, 3, v15
    s_lshl_b32 s48, s100, 1
    s_lshr_b32 s49, s95, 1
    s_add_u32 s48, s48, s49
    s_mul_i32 s48, s48, 40960
    s_mul_i32 s49, s101, 5120
    s_add_u32 s48, s48, s49
    s_and_b32 s49, s95, 1
    s_lshl_b32 s49, s49, 8
    s_add_u32 s48, s48, s49
    s_add_u32 s49, s48, 4096
    v_lshlrev_b32 v16, 2, v13
    s_lshl_b32 s50, s95, 13
    s_lshl_b32 s51, s100, 8
    s_add_u32 s50, s50, s51
    s_lshl_b32 s51, s95, 6
    s_add_u32 s50, s50, s51
    v_mul_u32_u24 v17, 160, v13
    v_lshl_add_u32 v17, v14, 3, v17
    s_mul_i32 s51, s95, 2560
    s_add_u32 s51, s51, {TB}
    v_add_u32 v17, s51, v17
    v_add_u32 v18, s51, v3
    s_mov_b32 s52, 6554
    """)
    for it in range(3):
        a(f"""
        v_add_u32 v13, {64*it}, v2
        v_mul_u32_u24 v14, s52, v13
        v_lshrrev_b32 v14, 16, v14
        v_mul_u32_u24 v14, {1280-160}, v14
        v_lshl_add_u32 v{19+it}, v13, 4, v14
        """)
    a(f"""
    s_lshl_b32 s52, s100, 2
    s_add_u32 s52, s52, s95
    s_mul_i32 s52, s52, {16*1280}
    s_mul_i32 s53, s101, 160
    s_add_u32 s52, s52, s53
    s_mov_b32 s54, 0xffff0000
    """)
    mspill(a)
    A4 = {1: 24, 2: 44, 3: 64, 0: 84}
    RS_, PS = 24, 44
    todo = []; wr = []
    NL = 14 - KE
    for i, (sl, k) in enumerate(order):
        d = A4[sl]
        if i == SIGI:
            a.wait(vm=tst)
            a("buffer_store_dword v1, v8, s[8:11], s59 offen sc0 sc1")
            mmark(a, "p3_sig")
        if i == 4 * KE - CHK - 3:
            tf4 = a.vm("buffer_load_dword v9, v7, s[8:11], s59 offen sc1")
        if i == 4 * KE - CHK + 1:
            a.wait(vm=tf4)
            check_flags(a, "M_f4", 9, 7, "s59", False)
            mmark(a, "p4_sync")
        L.need(('H', i), gate=999 + i)
        for T in range(5):
            L.need(('W4', 5 * k + T), gate=999 + i)
        if i == 0: mmark(a, "p4_first")
        if i == 4 * KE: mmark(a, "p4_late")
        r = 68 + 4 * (i % 24)
        for T in range(5):
            a(f"v_mfma_f32_16x16x32_bf16 v[{d+4*T}:{d+4*T+3}], {w4reg(5*k+T)}, a[{r}:{r+3}], " + ("0" if k == 0 else f"v[{d+4*T}:{d+4*T+3}]"))
            if wr and T in (1, 3, 4): a(wr.pop(0))
            elif T in (0, 2, 3): L.pump(1, gate=999 + i)
            elif todo:
                a(todo.pop(0));
                if todo: a(todo.pop(0))
        if i >= 4 * KE:
            ph, kk = divmod(i - 4 * KE, NL)
            if kk == 0 and ph > 0:
                dp = A4[ph]
                wr = [f"ds_write_b128 v6, v[{dp+4*T}:{dp+4*T+3}] offset:{(ph-1)*5120 + T*1024}" for T in range(5)]
            if ph == 3 and kk == min(3, NL - 1):
                assert not wr
                a.wait_all_lg()
                a("s_barrier")
                tk = []
                for j, rb in enumerate((24, 44, 64)):
                    for T in range(5):
                        t = a.ds(f"ds_read_b128 v[{rb+4*T}:{rb+4*T+3}], v{10+j} offset:{1024*T}")
                    tk.append(t)
            if ph == 1 and kk == 2:
                L.need('res', gate=999 + i)
                for j in range(0, 10):
                    todo += [f"v_lshlrev_b32 v{116+j}, 16, v{104+j}", f"v_and_b32 v{104+j}, s54, v{104+j}"]
    for ins in todo: a(ins)
    a.wait(lg=tk[1])
    for j in range(0, 20, 2):
        a(f"v_pk_add_f32 {P(24+j)}, {P(24+j)}, {P(44+j)}")
    a.wait(lg=tk[2])
    for j in range(0, 20, 2):
        a(f"v_pk_add_f32 {P(64+j)}, {P(64+j)}, {P(84+j)}")
    mmark(a, "p4_mm")
    for j in range(0, 20, 2):
        a(f"v_pk_add_f32 {P(24+j)}, {P(24+j)}, {P(64+j)}")
    for j in range(10):
        a(f"v_fma_f32 v{PS+2*j}, v{24+2*j}, v114, v{116+j}")
        a(f"v_fma_f32 v{PS+2*j+1}, v{25+2*j}, v114, v{104+j}")
    for j in range(10):
        a(f"v_cvt_pk_bf16_f32 v{RS_+j}, v{PS+2*j}, v{PS+2*j+1}")
    for T in range(5):
        a(f"ds_write_b64 v17, v[{RS_+2*T}:{RS_+2*T+1}] offset:{32*T}")
    a.wait_all_lg()
    tk = [a.ds(f"ds_read_b128 v[{PS+4*it}:{PS+4*it+3}], v18 offset:{1024*it}") for it in range(3)]
    for it in range(3):
        a.wait(lg=tk[it])
        if it == 2: a("s_mov_b32 exec_hi, 0")
        a(f"buffer_store_dwordx4 v[{PS+4*it}:{PS+4*it+3}], v{19+it}, s[12:15], s52 offen {OUTF}")
    a(f"""
    s_or_b32 s40, s2, s95
    s_cmp_lg_u32 s40, 0
    s_cbranch_scc1 M_noclr
    s_load_dwordx2 s[40:41], s[0:1], 72
    s_mov_b64 exec, 1
    v_mov_b32 v8, 0
    s_waitcnt lgkmcnt(0)
    global_store_dword v8, v8, s[40:41] sc0 sc1
M_noclr:
    """)
    mstamp_end(a, 1, 20)
    a("M_exit:\ns_endpgm")
    return a
```

```python
import struct
from asmlib import Asm
from layout import *

def f32(x):
    return "0x%08x" % struct.unpack("<I", struct.pack("<f", x))[0]

def srd(a, d, base, off, size):
    if off:
        a(f"s_add_u32 s{d}, s{base}, {off}\ns_addc_u32 s{d+1}, s{base+1}, 0")
    else:
        a(f"s_mov_b32 s{d}, s{base}\ns_mov_b32 s{d+1}, s{base+1}")
    a(f"s_mov_b32 s{d+2}, {size}\ns_mov_b32 s{d+3}, 0x20000")

def srd_dyn(a, d, base, off, sreg, size):
    a(f"s_add_u32 s{d}, s{base}, {off}\ns_addc_u32 s{d+1}, s{base+1}, 0")
    a(f"s_add_u32 s{d}, s{d}, s{sreg}\ns_addc_u32 s{d+1}, s{d+1}, 0")
    a(f"s_mov_b32 s{d+2}, {size}\ns_mov_b32 s{d+3}, 0x20000")

STAMPS = False
NMARK = 10
def stamp_begin(a):
    a.nmark = 0
    if STAMPS:
        a("s_memrealtime s[96:97]\ns_mov_b32 s74, 0")
def mark(a):
    if STAMPS:
        assert a.nmark < NMARK
        a(f"s_memrealtime s[{72+2*a.nmark}:{73+2*a.nmark}]")
        a.nmark += 1
def stamp_end(a, kidx, ws):
    if not STAMPS: return
    a("s_waitcnt vmcnt(0) lgkmcnt(0)")
    a("s_memrealtime s[98:99]")
    a("s_mov_b64 exec, 1")
    a("s_waitcnt lgkmcnt(0)")
    a(f"""
    s_lshl_b32 s94, s2, 3
    s_add_u32 s94, s94, s95
    s_lshl_b32 s94, s94, 6
    s_add_u32 s94, s94, {STAMP_OFF + kidx * 0x80000}
    v_mov_b32 v1, s94
    v_mov_b32 v4, s96
    v_mov_b32 v5, s98
    """)
    for i in range(NMARK):
        a(f"v_mov_b32 v{6+i}, " + (f"s{72+2*i}" if i < a.nmark else "0"))
    for q in range(3):
        a(f"global_store_dwordx4 v1, v[{4+4*q}:{7+4*q}], s[{ws}:{ws+1}] offset:{16*q}")

def kernel_text(name, a, vgpr=None, agpr=None):
    nv = a.maxreg('v') + 1
    na = a.maxreg('a') + 1
    ns = a.maxreg('s') + 1
    acc = (nv + 3) // 4 * 4
    nfv = acc + na if na > 0 else nv
    body = f".globl {name}\n.p2align 8\n.type {name},@function\n{name}:\n" + a.text()
    desc = f""".amdhsa_kernel {name}
  .amdhsa_next_free_vgpr {nfv}
  .amdhsa_next_free_sgpr {max(ns, 8)}
  .amdhsa_accum_offset {acc}
  .amdhsa_group_segment_fixed_size 0
  .amdhsa_kernarg_size 88
  .amdhsa_user_sgpr_count 2
  .amdhsa_user_sgpr_kernarg_segment_ptr 1
  .amdhsa_system_sgpr_workgroup_id_x 1
  .amdhsa_float_denorm_mode_32 3
.end_amdhsa_kernel
"""
    return body, desc

class Loads:
    def __init__(self, a, lim):
        self.a, self.lim, self.q, self.t = a, lim, [], {}
    def add(self, text, tag=None, pre=None, post=None, gate=None):
        self.q.append((text, tag, pre, post, gate))
    def paced(self, gate=None):
        a = self.a
        if not self.q: return
        if a.vm_issued - a.vm_done >= 56: a.wait(vm=a.vm_issued - 32)
        old = self.lim; self.lim = 63; self.pump(1, gate); self.lim = old
    def pump(self, k=1, gate=None):
        a = self.a
        while k > 0 and self.q and a.vm_issued - a.vm_done < self.lim:
            text, tag, pre, post, g = self.q[0]
            if g is not None and (gate is None or g > gate): break
            self.q.pop(0)
            if pre: a(pre)
            t = a.vm(text)
            if post: a(post)
            if tag is not None: self.t[tag] = t
            k -= 1
    def need(self, tag, gate=None):
        while tag not in self.t:
            old = self.lim; self.lim = 63
            n = len(self.q); self.pump(1, gate); self.lim = old
            assert len(self.q) < n, "load gated but needed: %s" % str(tag)
        self.a.wait(vm=self.t[tag])

SV = 23
def mstamp_begin(a):
    a.nmark = 0; a.nspill = 0; a.mnames = []
    if STAMPS:
        a(f"v_mov_b32 v{SV}, 0")
        mmark(a, "start")
import os
PADAT = os.environ.get('PADAT'); PADUS = float(os.environ.get('PADUS', 50))
def mmark(a, name):
    if name == PADAT:
        a.wait_all_lg()
        a(f"""
PAD_L:
        s_memrealtime s[90:91]
        s_waitcnt lgkmcnt(0)
        s_sub_u32 s90, s90, s93
        s_cmp_lt_i32 s90, {int(PADUS*100)}
        s_cbranch_scc1 PAD_L
        """)
    if STAMPS:
        if a.nmark == NMARK: mspill(a)
        a(f"{os.environ.get('CLK', 's_memrealtime')} s[{72+2*a.nmark}:{73+2*a.nmark}]")
        a.nmark += 1; a.mnames.append(name)
def mspill(a):
    if STAMPS and a.nmark:
        a.wait_all_lg()
        for i in range(a.nmark):
            a(f"v_writelane_b32 v{SV}, s{72+2*i}, {a.nspill}"); a.nspill += 1
        a.nmark = 0
def mstamp_end(a, kidx, ws):
    if PADAT == 'end' and not STAMPS: mmark(a, 'end')
    if not STAMPS: return
    a("s_waitcnt vmcnt(0) lgkmcnt(0)")
    mmark(a, "end")
    mspill(a)
    a(f"""
    s_mov_b64 exec, -1
    s_lshl_b32 s94, s2, 2
    s_add_u32 s94, s94, s95
    s_lshl_b32 s94, s94, 8
    s_add_u32 s94, s94, {STAMP_OFF + kidx * 0x80000}
    v_lshl_add_u32 v1, v2, 2, s94
    global_store_dword v1, v{SV}, s[{ws}:{ws+1}]
    """)
    open("marks.txt", "w").write("\n".join(a.mnames))
```

```python
from common import *
from asmlib import Ins, need
import common, math, p0, p0b

GRID = 256
LDS = 160 * 1024
C0 = -2.0 * math.sqrt(2.0 / math.pi) * LOG2E
C1 = C0 * 0.044715
SC = "sc1"
POLL_MAX = 20000
P1_PACE = 12
import os
F5I = int(os.environ.get('F5I', 8)); PQ2 = int(os.environ.get('PQ2', 12)); P3LIM = int(os.environ.get('P3LIM', 20)); W4S3 = int(os.environ.get('W4S3', 10)); RQ0 = int(os.environ.get('RQ0', 16)); P1LIM = int(os.environ.get('P1LIM', 24)); SIG2 = int(os.environ.get('SIG2', 39)); OUTF = os.environ.get('OUTF', 'nt').replace('_', ' '); MAP1 = os.environ.get('MAP1', 'x'); MAP2 = os.environ.get('MAP2', 'x'); MAP4 = os.environ.get('MAP4', 'x'); MAP3 = os.environ.get('MAP3', 'x'); NT4 = os.environ.get('NT4', ''); NT3 = os.environ.get('NT3', ''); PACE3 = eval(os.environ.get('PACE3', '(1,3,7)')); NPK = int(os.environ.get('NPK', 3)); ACKD = int(os.environ.get('ACKD', 36)); MID = int(os.environ.get('MID', 5)); CHK1 = int(os.environ.get('CHK1', 12)); LWA = int(os.environ.get('LWA', 10)); CHK = int(os.environ.get('CHK', 8)); TOUCH = int(os.environ.get('TOUCH', 0)); FP = int(os.environ.get('FP', 999)); QS = int(os.environ.get('QS', 40)); CK0 = int(os.environ.get('CK0', 16)); CK1 = int(os.environ.get('CK1', 38)); HH1 = int(os.environ.get('HH1', 16)); SIGI = int(os.environ.get('SIGI', 6)); W3EARLY = int(os.environ.get('W3EARLY', 0)); LAG = int(os.environ.get('LAG', 12)); EARLY = int(os.environ.get('EARLY', 3)); WO1 = int(os.environ.get('WO1', 25)); RTSG = int(os.environ.get('RTSG', 36)); RTS0 = int(os.environ.get('RTS0', 99)); RTSN = int(os.environ.get('RTSN', 3))

class Paced:
    def __init__(self, a, L, n, gate=None):
        self.a, self.L, self.n, self.c, self.gate = a, L, n, 0, gate
    def __call__(self, text):
        for line in text.strip().split("\n"):
            if not line.strip(): continue
            self.a(line)
            self.c += 1
            if self.c % self.n == 0: self.L.paced(self.gate)

def poll(a, name, voff, soff, tmp):
    a(f"""
    s_mov_b32 s92, 0
{name}:
    buffer_load_dword v{tmp}, v{voff}, s[8:11], {soff} offen sc1
    s_add_u32 s92, s92, 1
    s_cmp_gt_u32 s92, {POLL_MAX}
    s_cbranch_scc1 {name}_go
    s_waitcnt vmcnt(0)
    v_cmp_ne_u32 vcc, s93, v{tmp}
    s_nop 4
    s_cbranch_vccnz {name}
{name}_go:
    s_waitcnt vmcnt(0)
    """)
    a.vm_done = a.vm_issued

def signal(a, soff, tmp):
    a(f"""
    s_mov_b64 exec, 1
    v_mov_b32 v{tmp}, s93
    v_mov_b32 v{tmp+1}, 0
    buffer_store_dword v{tmp}, v{tmp+1}, s[8:11], {soff} offen sc0 sc1
    s_mov_b64 exec, -1
    """)

def softmax_pair(a, P, E, O, tmp):
    mx, mn = tmp, tmp + 2
    a(f"v_max3_f32 v{mx}, v{P}, v{P+1}, v{P+2}")
    a(f"v_min3_f32 v{mn}, v{P}, v{P+1}, v{P+2}")
    for i in range(3, 19, 2):
        a(f"v_max3_f32 v{mx}, v{mx}, v{P+i}, v{P+i+1}")
        a(f"v_min3_f32 v{mn}, v{mn}, v{P+i}, v{P+i+1}")
    a(f"v_max_f32 v{mx}, v{mx}, v{P+19}")
    a(f"v_min_f32 v{mn}, v{mn}, v{P+19}")
    for i in range(0, 20, 2):
        a(f"v_pk_add_f32 v[{E+i}:{E+i+1}], v[{P+i}:{P+i+1}], v[{mx}:{mx+1}] op_sel_hi:[1,0] neg_lo:[0,1] neg_hi:[0,1]")
        a(f"v_pk_add_f32 v[{E+20+i}:{E+21+i}], v[{P+i}:{P+i+1}], v[{mn}:{mn+1}] op_sel_hi:[1,0] neg_lo:[1,0] neg_hi:[1,0]")
    for i in range(40):
        a(f"v_exp_f32 v{E+i}, v{E+i}")
    sp, sn = tmp, tmp + 2
    a(f"v_pk_add_f32 v[{sp}:{sp+1}], v[{E}:{E+1}], v[{E+2}:{E+3}]")
    a(f"v_pk_add_f32 v[{sn}:{sn+1}], v[{E+20}:{E+21}], v[{E+22}:{E+23}]")
    for i in range(4, 20, 2):
        a(f"v_pk_add_f32 v[{sp}:{sp+1}], v[{sp}:{sp+1}], v[{E+i}:{E+i+1}]")
        a(f"v_pk_add_f32 v[{sn}:{sn+1}], v[{sn}:{sn+1}], v[{E+20+i}:{E+21+i}]")
    a(f"v_add_f32 v{sp}, v{sp}, v{sp+1}")
    a(f"v_add_f32 v{sn}, v{sn}, v{sn+1}")
    a(f"v_rcp_f32 v{sp}, v{sp}")
    a(f"v_rcp_f32 v{sn}, v{sn}")
    for i in range(0, 20, 2):
        a(f"v_pk_mul_f32 v[{E+i}:{E+i+1}], v[{E+i}:{E+i+1}], v[{sp}:{sp+1}] op_sel_hi:[1,0]")
        a(f"v_pk_mul_f32 v[{E+20+i}:{E+21+i}], v[{E+20+i}:{E+21+i}], v[{sn}:{sn+1}] op_sel_hi:[1,0]")
    for i in range(20):
        a(f"v_cvt_pk_bf16_f32 v{O+i}, v{E+2*i}, v{E+2*i+1}")

def map_p1(a, rb, hp, t, kind='x'):
    if kind == 'h4':
        map_p3(a, rb, hp, t, 'x')
        return
    if kind == 'h2':
        map_p3(a, hp, rb, t, 'row')
        return
    a(f"""
    s_bfe_u32 s{rb}, s2, 0x20001
    s_lshl_b32 s{rb}, s{rb}, 2
    s_bfe_u32 s{t}, s2, 0x20003
    s_add_u32 s{rb}, s{rb}, s{t}
    s_and_b32 s{hp}, s2, 1
    s_lshl_b32 s{hp}, s{hp}, 3
    s_lshr_b32 s{t}, s2, 5
    s_add_u32 s{hp}, s{hp}, s{t}
    """)
def map_p2(a, tb, nb, t):
    a(f"""
    s_and_b32 s{tb}, s2, 7
    s_lshl_b32 s{tb}, s{tb}, 3
    s_bfe_u32 s{t}, s2, 0x30003
    s_add_u32 s{tb}, s{tb}, s{t}
    s_lshr_b32 s{nb}, s2, 6
    """)
def map_p3(a, rb, cb, t, kind=None):
    kind = kind or MAP3
    if kind == 'row':
        a(f"""
        s_and_b32 s{rb}, s2, 7
        s_lshl_b32 s{rb}, s{rb}, 1
        s_bfe_u32 s{t}, s2, 0x10003
        s_add_u32 s{rb}, s{rb}, s{t}
        s_lshr_b32 s{cb}, s2, 4
        """)
        return
    if kind == 'mid':
        map_p1(a, rb, cb, t)
        return
    a(f"""
    s_bfe_u32 s{rb}, s2, 0x10002
    s_lshl_b32 s{rb}, s{rb}, 3
    s_bfe_u32 s{t}, s2, 0x30003
    s_add_u32 s{rb}, s{rb}, s{t}
    s_and_b32 s{cb}, s2, 3
    s_lshl_b32 s{cb}, s{cb}, 2
    s_lshr_b32 s{t}, s2, 6
    s_add_u32 s{cb}, s{cb}, s{t}
    """)
def map_p4(a, rb, nb, t, kind=None):
    if (kind or MAP4) == 'row':
        a(f"""
        s_and_b32 s{rb}, s2, 7
        s_lshl_b32 s{rb}, s{rb}, 2
        s_bfe_u32 s{t}, s2, 0x20003
        s_add_u32 s{rb}, s{rb}, s{t}
        s_lshr_b32 s{nb}, s2, 5
        """)
        return
    a(f"""
    s_bfe_u32 s{rb}, s2, 0x20001
    s_lshl_b32 s{rb}, s{rb}, 3
    s_bfe_u32 s{t}, s2, 0x30003
    s_add_u32 s{rb}, s{rb}, s{t}
    s_and_b32 s{nb}, s2, 1
    s_lshl_b32 s{nb}, s{nb}, 2
    s_lshr_b32 s{t}, s2, 6
    s_add_u32 s{nb}, s{nb}, s{t}
    """)

def w3_dma(L, T, gate=None):
    reg = [81920, 122880, 0, 40960, 81920, 122880, 0][T]
    sr = 12 if T < 2 else (16 if T < 6 else 68)
    for c in range(10):
        grp = 0 if c < 4 else (4 if c < 8 else 8)
        L.add(f"buffer_load_dwordx4 v3, s[{sr}:{sr+3}], m0 offen offset:{1024*(c-grp)} {SC} lds", gate=gate,
              pre=f"s_add_u32 m0, s3, {reg + 1024*c}" if c == grp else None, tag=('W3', T) if c == 9 else None)

def check_flags(a, name, regs, voff, soff, wide):
    def test(x):
        if wide:
            x(f"v_xor_b32 v{regs}, s93, v{regs}\nv_xor_b32 v{regs+1}, s93, v{regs+1}\nv_xor_b32 v{regs+2}, s93, v{regs+2}\nv_xor_b32 v{regs+3}, s93, v{regs+3}")
            x(f"v_or3_b32 v{regs}, v{regs}, v{regs+1}, v{regs+2}\nv_or_b32 v{regs}, v{regs}, v{regs+3}\nv_cmp_ne_u32 vcc, 0, v{regs}")
        else:
            x(f"v_cmp_ne_u32 vcc, s93, v{regs}")
    test(a)
    a(f"s_mov_b32 s92, 0\ns_nop 3\ns_cbranch_vccz {name}_ok")
    b = Asm()
    b(f"{name}:")
    b(f"buffer_load_dwordx4 v[{regs}:{regs+3}], v{voff}, s[8:11], {soff} offen sc1" if wide else f"buffer_load_dword v{regs}, v{voff}, s[8:11], {soff} offen sc1")
    b(f"s_add_u32 s92, s92, 1\ns_waitcnt vmcnt(0)\ns_cmp_gt_u32 s92, {POLL_MAX}\ns_cbranch_scc1 {name}_ok")
    test(b)
    b(f"s_nop 4\ns_cbranch_vccnz {name}")
    a.ins += b.ins
    a(f"{name}_ok:")

def gen_mega():
    a = Asm()
    a(f"""
    s_memrealtime s[98:99]
    s_load_dwordx2 s[20:21], s[0:1], 80
    s_load_dwordx2 s[4:5], s[0:1], 0
    s_load_dwordx4 s[12:15], s[0:1], 8
    s_load_dwordx2 s[16:17], s[0:1], 24
    s_load_dwordx2 s[6:7], s[0:1], 64
    s_load_dwordx2 s[18:19], s[0:1], 72
    s_load_dwordx4 s[56:59], s[0:1], 40
    s_load_dwordx2 s[62:63], s[0:1], 56
    v_lshrrev_b32 v1, 6, v0
    v_and_b32 v2, 63, v0
    v_readfirstlane_b32 s95, v1
    s_cmp_ge_u32 s2, {GRID}
    s_cbranch_scc1 M_exit
    """)
    mstamp_begin(a)
    a(f"""
    v_lshlrev_b32 v3, 4, v2
    v_lshrrev_b32 v4, 5, v2
    v_and_b32 v5, 31, v2
    s_mul_i32 s3, s95, 10240
    """)
    map_p1(a, 42, 43, 40, MAP1)
    p0b.p0(a, int(os.environ.get('NPF', 2)))
    rt_ld, rt_rd, rt_cs, rt_cs2, rt_st, rt_se = p0b.rt_setup(a)
    assert not rt_ld
    EB, XL, QB = 0, 61440, 122880
    srd(a, 64, 20, WO_OFF, WO_SZ)
    srd(a, 36, 20, KV_OFF, KV_SZ)
    srd(a, 68, 4, 0, 2621440)
    map_p4(a, 100, 101, 40, MAP2)
    a(f"""
    s_lshl_b32 s44, s42, 2
    s_add_u32 s44, s44, s95
    s_mul_i32 s45, s44, 40960
    s_mul_i32 s46, s43, 153600
    s_mul_i32 s47, s95, 3072
    s_lshl_b32 s48, s95, 13
    s_mul_i32 s40, s101, 5
    s_lshr_b32 s40, s40, 2
    s_mul_i32 s40, s40, 20
    s_mul_i32 s41, s95, 5
    s_add_u32 s40, s40, s41
    s_lshl_b32 s40, s40, 4
    s_add_u32 s40, s40, {F6_O}
    v_and_b32 v62, 7, v2
    v_min_u32 v62, 4, v62
    v_lshl_add_u32 v62, v62, 4, s40
    v_bfe_u32 v63, v2, 3, 1
    v_mul_u32_u24 v63, 320, v63
    v_add_u32 v62, v62, v63
    s_mul_i32 s22, s101, 100
    s_add_u32 s22, s22, s41
    s_lshl_b32 s22, s22, 10
    v_lshlrev_b32 v6, 7, v4
    v_sub_u32 v6, v3, v6
    v_add_u32 v6, {QB}, v6
    v_add_u32 v7, {20*3072}, v3
    s_lshl_b32 s40, s95, 5
    v_add_u32 v11, s40, v5
    v_mul_u32_u24 v11, 272, v11
    v_lshl_add_u32 v11, v4, 7, v11
    v_bfe_u32 v56, v2, 2, 2
    v_lshlrev_b32 v56, 2, v56
    v_lshl_add_u32 v56, v4, 1, v56
    v_mul_u32_u24 v56, 272, v56
    v_bfe_u32 v57, v2, 4, 1
    v_lshl_add_u32 v56, v57, 5, v56
    v_and_b32 v57, 3, v2
    v_lshl_add_u32 v56, v57, 3, v56
    s_lshr_b32 s51, s95, 1
    s_and_b32 s55, s95, 1
    s_lshl_b32 s40, s51, 7
    v_add_u32 v56, s40, v56
    s_mul_i32 s40, s55, 40
    v_add_u32 v57, s40, v56
    s_lshl_b32 s40, s95, 12
    s_add_u32 s40, s40, 40960
    v_mul_u32_u24 v58, 384, v4
    v_lshl_add_u32 v58, v5, 4, v58
    v_add_u32 v58, s40, v58
    v_lshl_add_u32 v59, v2, 2, s40
    v_lshlrev_b32 v60, 2, v2
    s_lshl_b32 s54, s43, 1
    s_add_u32 s54, s54, s51
    s_mul_i32 s54, s54, 3840
    s_mul_i32 s55, s55, 1920
    s_add_u32 s54, s54, s55
    s_lshl_b32 s49, s43, 4
    s_add_u32 s49, s49, s42
    s_lshl_b32 s49, s49, 4
    s_add_u32 s49, s49, {F2A_O}
    s_lshl_b32 s50, s2, 4
    s_add_u32 s50, s50, {F6_O}
    s_cmp_eq_u32 s95, 3
    s_cselect_b32 s50, s50, 0x1000000
    s_cmp_eq_u32 s95, 0
    s_cselect_b32 s49, s49, s50
    v_mov_b32 v61, 0x1000000
    v_writelane_b32 v61, s49, 0
    v_mov_b32 v19, s93
    s_lshl_b32 s56, s100, 2
    s_add_u32 s56, s56, s95
    s_mul_i32 s56, s56, {16*1280}
    s_mul_i32 s41, s101, 160
    s_add_u32 s56, s56, s41
    s_movk_i32 s41, 6554
    """)
    for n in range(3):
        a(f"""
        v_add_u32 v8, {64*n}, v2
        v_min_u32 v8, 159, v8
        v_mul_u32_u24 v9, s41, v8
        v_lshrrev_b32 v9, 16, v9
        v_mul_u32_u24 v9, {1280-160}, v9
        v_lshl_add_u32 v{16+n}, v8, 4, v9
        """)
    srd(a, 24, 20, XN_OFF, XN_SZ)
    srd_dyn(a, 28, 20, W1_OFF, 46, 153600)
    mspill(a)
    poll(a, "M_poll1", 12, "0", 9)
    mmark(a, "p1_sync")
    L = Loads(a, P1LIM)
    for n in range(10):
        g = 11 if n >= 9 else None
        L.add(f"buffer_load_dwordx4 a[{16*n}:{16*n+3}], v3, s[24:27], s45 offen {SC}", pre=f"s_add_u32 m0, s47, {12288*n}", gate=g)
        for c in range(3):
            L.add(f"buffer_load_dwordx4 v3, s[28:31], m0 offen offset:{1024*c} {SC} lds", gate=g)
        for c in range(1, 4):
            L.add(f"buffer_load_dwordx4 a[{16*n+4*c}:{16*n+4*c+3}], v3, s[24:27], s45 offen offset:{1024*c} {SC}",
                  tag=n if c == 3 else None, post="s_add_u32 s45, s45, 4096" if c == 3 and n < 9 else None, gate=g)
    for c in range(8):
        L.add(f"buffer_load_dwordx4 v3, s[28:31], m0 offen offset:{1024*(c%4)} {SC} lds", pre=f"s_add_u32 m0, s48, {QB + 1024*c}" if c % 4 == 0 else None, gate=11, tag='qb' if c == 7 else None)
    for n in range(3):
        L.add(f"buffer_load_dwordx4 v{16+n}, s[68:71], s56 offen nt lds", pre=f"s_add_u32 m0, s47, {XL + 1024*n}", gate=27)
    L.pump(14)
    for tx_, po in rt_se: L.add(tx_, post=po, gate=34)
    for n_, (tx_, po) in enumerate(rt_st): L.add(tx_, post=po, gate=50, tag='rts' if n_ == len(rt_st) - 1 else None)
    L.add("buffer_load_dword v63, v62, s[8:11], 0 offen sc1", tag='f6', gate=60)
    def woreg(T, k):
        r = 156 + 4 * ((5 * T + k + 1) % 25)
        return f"a[{r}:{r+3}]"
    for k in range(5):
        for T in range(5):
            L.add(f"buffer_load_dwordx4 {woreg(T, k)}, v3, s[64:67], s23 offen {SC}", pre=f"s_add_u32 s23, s22, {T*20480 + 1024*k}", gate=70, tag=('WO', k))
    ACC = 64; WF = 24
    def rd(s, T):
        r = WF + 4 * ((s % 2) * 3 + T)
        return a.ds(f"ds_read_b128 v[{r}:{r+3}], v{3 if s < 20 else 7} offset:{(s % 20) * 3072 + T * 1024}")
    tR = {}
    L.need(0)
    a("s_barrier")
    mmark(a, "p1_first")
    for T in range(3): tR[(0, T)] = rd(0, T)
    for s in range(40):
        nxt = s + 1
        if nxt < 40 and nxt % 4 == 0:
            L.need(nxt // 4, gate=s - 1)
            a("s_barrier")
        for T in range(3):
            if nxt < 40: tR[(nxt, T)] = rd(nxt, T)
            a.wait(lg=tR[(s, T)])
            r = WF + 4 * ((s % 2) * 3 + T)
            d = ACC + 16 * T
            a(f"v_mfma_f32_32x32x16_bf16 v[{d}:{d+15}], v[{r}:{r+3}], a[{4*s}:{4*s+3}], " + ("0" if s == 0 else f"v[{d}:{d+15}]"))
            if s >= 1 and rt_rd:
                a(rt_rd.pop(0))
            elif s == 12 and T == 0:
                for x_ in rt_cs: a(x_)
            elif s in (16, 17) and rt_cs2:
                a(rt_cs2.pop(0))
            if T != 1 or s >= 36:
                if 9 in L.t: L.paced(gate=s)
                else: L.pump(1, gate=s)
    assert not rt_rd
    mmark(a, "p1_loop")
    pa = Paced(a, L, 8, gate=45)
    E, O, TMP, VP = 128, 168, 12, 188
    softmax_pair(pa, 64, E, O, TMP)
    for c in range(5):
        a(f"ds_write_b128 v11, v[{O+4*c}:{O+4*c+3}] offset:{16*c}")
        for i in range(2 * c, min(2 * c + 2, 9)):
            a(f"v_cvt_pk_bf16_f32 v{VP+i}, v{84+2*i}, v{85+2*i}")
    a(f"v_mov_b32 v{VP+9}, 0x3f80\nv_cvt_pk_bf16_f32 v{VP+10}, v102, v103\nv_mov_b32 v{VP+11}, 0x3f80")
    for c in range(3):
        a(f"ds_write_b128 v11, v[{VP+4*c}:{VP+4*c+3}] offset:{80+16*c}")
    a.wait_all_lg()
    L.need('qb')
    a("s_barrier")
    mmark(a, "p1_ksm")
    tk = []
    FA, FB, KD = 128, 200, 24
    def kvm(k2):
        a.wait(lg=tk[k2])
        a(f"v_mfma_f32_32x32x16_bf16 v[{KD}:{KD+15}], v[{FA+4*k2}:{FA+4*k2+3}], v[{FB+4*k2}:{FB+4*k2+3}], " + ("0" if k2 == 0 else f"v[{KD}:{KD+15}]"))
    for ks in range(8):
        for rho in range(2):
            off = (16 * ks + rho) * 272
            a(f"ds_read_b64_tr_b16 v[{FA+4*ks+2*rho}:{FA+4*ks+2*rho+1}], v57 offset:{off}")
            t = a.ds(f"ds_read_b64_tr_b16 v[{FB+4*ks+2*rho}:{FB+4*ks+2*rho+1}], v56 offset:{off+80}")
        tk.append(t)
        if ks >= 2: kvm(ks - 2)
    kvm(6); kvm(7)
    a("s_mov_b32 exec_lo, 0xffffff\ns_mov_b32 exec_hi, 0xffffff")
    for c in range(3):
        a(f"ds_write_b128 v58, v[{KD+4*c}:{KD+3+4*c}] offset:{768*c}")
    a("s_mov_b64 exec, -1")
    tk = [a.ds(f"ds_read_b32 v{40+i}, v59 offset:{256*i}") for i in range(8)]
    def rdq(s):
        r = 128 + 4 * (s % 10)
        return a.ds(f"ds_read_b128 v[{r}:{r+3}], v6 offset:{768*s}")
    tq = [rdq(s) for s in range(6)]
    if a.vm_issued - a.vm_done > 40: a.wait(vm=a.vm_issued - 24)
    for i in range(8):
        a.wait(lg=tk[i])
        if i == 7: a("s_mov_b32 exec_hi, 0")
        a(f"buffer_atomic_add_f32 v{40+i}, v60, s[36:39], s54 offen offset:{256*i}")
    a("s_mov_b64 exec, -1")
    mmark(a, "p1_atom")
    tat = a.vm_issued
    P = lambda r: f"v[{r}:{r+1}]"
    def sig2a():
        a.wait(vm=tat)
        a("s_barrier")
        a("buffer_store_dword v19, v61, s[8:11], 0 offen sc0 sc1")
        mmark(a, "p1_sig")
    for s in range(40):
        if s + 6 < 40: tq.append(rdq(s + 6))
        if s % 2 == 0: a.wait(lg=tq[s + 1])
        r = 128 + 4 * (s % 10)
        a(f"v_mfma_f32_32x32x16_bf16 v[112:127], v[{r}:{r+3}], a[{4*s}:{4*s+3}], " + ("0" if s == 0 else "v[112:127]"))
        if s >= RQ0 and s % 2 == 1: L.paced(gate=50)
        if s == SIG2: sig2a()
    assert 'rts' in L.t
    mmark(a, "p1_q")
    softmax_pair(a, 104, E, O, TMP)
    for c in (0, 2):
        for j in range(4):
            a(f"v_permlane32_swap_b32 v{O+4*c+j}, v{O+4*c+4+j}")
    mmark(a, "p1_qsm")
    srd(a, 24, 20, KV_OFF, KV_SZ)
    srd(a, 28, 20, O_OFF, O_SZ)
    a(f"""
    v_min_u32 v6, 23, v5
    v_lshlrev_b32 v6, 4, v6
    v_mul_u32_u24 v7, 3840, v4
    v_add_u32 v7, v7, v6
    v_mul_u32_u24 v8, 768, v4
    v_add_u32 v6, v8, v6
    s_mul_i32 s45, s43, 7680
    s_add_u32 s46, s45, 3840
    v_and_b32 v8, 15, v2
    v_lshlrev_b32 v8, 4, v8
    s_lshl_b32 s47, s43, 8
    s_add_u32 s47, s47, {F2A_O}
    v_lshrrev_b32 v10, 4, v5
    v_mul_u32_u24 v10, {O_TT}, v10
    v_add_u32 v10, v10, v8
    v_lshl_add_u32 v11, v4, 8, v10
    s_mul_i32 s48, s44, {2*O_TT}
    s_mul_i32 s49, s43, 1280
    s_add_u32 s48, s48, s49
    s_lshl_b32 s49, s44, 4
    s_add_u32 s49, s49, s43
    s_lshl_b32 s49, s49, 4
    s_add_u32 s49, s49, {FO_O}
    """)
    for r in range(12, 20): a(f"v_mov_b32 v{r}, 0")
    mspill(a)
    poll(a, "M_poll2a", 8, "s47", 9)
    mmark(a, "p1b_sync")
    b = 64
    for hh in range(2):
        for u in range(2):
            for e in range(2):
                r = b + 16 * hh + 8 * u + 4 * e
                a(f"buffer_load_dwordx4 v[{r}:{r+3}], v6, s[24:27], s{45+hh} offen offset:{(4*u+e)*384} {SC}")
        if hh == 0:
            for e in range(2):
                r = b + 32 + 4 * e
                t0 = a.vm(f"buffer_load_dwordx4 v[{r}:{r+3}], v7, s[24:27], s45 offen offset:{(8+e)*384} {SC}")
    t1 = a.vm_issued
    a("s_barrier")
    OD, OB = [24, 40], 56
    for hh in range(2):
        a.wait(vm=t0 if hh == 0 else t1)
        if hh == 0: mmark(a, "p1b_kv")
        for u in range(2):
            r = b + 16 * hh + 8 * u
            for j in range(4):
                a(f"v_cvt_pk_bf16_f32 v{r+j}, v{r+2*j}, v{r+2*j+1}")
        a("s_mov_b32 exec_hi, 0" if hh == 0 else "s_mov_b32 exec_lo, 0")
        for j in range(4): a(f"v_cvt_pk_bf16_f32 v{12+4*hh+j}, v{b+32+2*j}, v{b+33+2*j}")
        a("s_mov_b64 exec, -1")
        d = OD[hh]
        for u in range(2):
            r = b + 16 * hh + 8 * u
            q = O + 8 * u + 4 * hh
            a(f"v_mfma_f32_32x32x16_bf16 v[{d}:{d+15}], v[{r}:{r+3}], v[{q}:{q+3}], " + ("0" if u == 0 else f"v[{d}:{d+15}]"))
        a(f"v_mfma_f32_32x32x16_bf16 v[{d}:{d+15}], v[{12+4*hh}:{15+4*hh}], v[{O+16}:{O+19}], v[{d}:{d+15}]")
    OB = 104
    for hh in range(2):
        d = OD[hh]
        a(f"v_add_f32 v{d+10}, {f32(1e-6)}, v{d+10}")
        a(f"v_rcp_f32 v{d+10}, v{d+10}")
        for j in range(0, 10, 2):
            a(f"v_pk_mul_f32 {P(d+j)}, {P(d+j)}, {P(d+10)} op_sel_hi:[1,0]")
        for j in range(5):
            a(f"v_cvt_pk_bf16_f32 v{OB+5*hh+j}, v{d+2*j}, v{d+2*j+1}")
        if hh == 0:
            a(f"buffer_store_dwordx4 v[{OB}:{OB+3}], v11, s[28:31], s48 offen {SC}")
    a(f"""
    buffer_store_dwordx4 v[{OB+4}:{OB+7}], v11, s[28:31], s48 offen offset:512 {SC}
    v_permlane32_swap_b32 v{OB+8}, v{OB+10}
    v_permlane32_swap_b32 v{OB+9}, v{OB+11}
    s_mov_b32 exec_hi, 0
    """)
    tst = a.vm(f"buffer_store_dwordx4 v[{OB+8}:{OB+11}], v10, s[28:31], s48 offen offset:1024 {SC}")
    a("s_mov_b32 exec_hi, -1")
    L.lim = 60; L.pump(1, gate=60)
    mmark(a, "p1b_st")
    map_p3(a, 60, 61, 40)
    a(f"""
    s_mul_i32 s62, s61, 27
    s_lshr_b32 s62, s62, 1
    s_mul_i32 s40, s62, 20480
    """)
    srd_dyn(a, 12, 20, W3_OFF - 81920, 40, 163840)
    srd_dyn(a, 16, 20, W3_OFF + 81920, 40, 163840)
    srd_dyn(a, 68, 20, W3_OFF + 245760, 40, 40960)
    a.wait(vm=tst)
    signal(a, "s49", 8)
    a(f"s_sub_u32 s50, s50, {F6_O - F5_O}")
    signal(a, "s50", 8)
    mmark(a, "p1b_sig")
    L.need('f6')
    check_flags(a, "M_f6", 63, 62, "0", False)
    L.pump(WO1, gate=99); woq = [(x[0], x[1], x[2], x[3], None) for x in L.q]
    PB2, TB2 = 0, XL
    srd(a, 24, 20, H_OFF, H_SZ)
    srd(a, 32, 20, ST_OFF, ST_SZ)
    a(f"""
    s_mul_i32 s44, s95, 5
    s_mul_i32 s45, s100, {4*O_TT//1024}
    s_add_u32 s45, s45, s44
    s_lshl_b32 s45, s45, 10
    v_and_b32 v7, 3, v2
    v_lshlrev_b32 v7, 4, v7
    v_bfe_u32 v8, v2, 2, 1
    v_lshl_add_u32 v7, v8, 8, v7
    s_lshl_b32 s46, s100, 9
    s_lshl_b32 s47, s95, 6
    s_add_u32 s46, s46, s47
    s_add_u32 s46, s46, {FO_O}
    s_mul_i32 s47, s95, 15360
    v_add_u32 v6, s47, v3
    """)
    for j in range(1, 4):
        a(f"""
        s_add_u32 s47, s95, {j}
        s_and_b32 s47, s47, 3
        s_mul_i32 s47, s47, 15360
        s_add_u32 s47, s47, {PB2 + (3-j)*5120}
        v_add_u32 v{9+j}, s47, v3
        """)
    map_p4(a, 58, 59, 40)
    a(f"""
    v_and_b32 v13, 15, v2
    v_lshrrev_b32 v14, 4, v2
    v_mul_u32_u24 v17, 160, v13
    v_lshl_add_u32 v17, v14, 3, v17
    s_mul_i32 s51, s95, 3072
    s_add_u32 s52, s51, {XL}
    v_add_u32 v15, s52, v17
    s_add_u32 s51, s51, {TB2}
    v_add_u32 v17, s51, v17
    v_mul_u32_u24 v18, 160, v13
    v_lshl_add_u32 v18, v14, 4, v18
    v_add_u32 v18, s51, v18
    v_lshlrev_b32 v19, 4, v13
    v_lshl_add_u32 v19, v14, 9, v19
    s_lshl_b32 s48, s100, 1
    s_lshr_b32 s49, s95, 1
    s_add_u32 s48, s48, s49
    s_lshl_b32 s53, s48, 3
    s_add_u32 s53, s53, s101
    s_lshl_b32 s53, s53, 8
    s_mul_i32 s48, s48, 40960
    s_mul_i32 s49, s101, 5120
    s_add_u32 s48, s48, s49
    s_and_b32 s49, s95, 1
    s_lshl_b32 s50, s49, 7
    s_add_u32 s53, s53, s50
    s_lshl_b32 s49, s49, 8
    s_add_u32 s48, s48, s49
    s_add_u32 s49, s48, 4096
    s_lshl_b32 s56, s100, 2
    s_add_u32 s56, s56, s95
    s_lshl_b32 s56, s56, 3
    s_add_u32 s56, s56, s101
    s_lshl_b32 s56, s56, 4
    s_add_u32 s56, s56, {F3_O}
    s_mov_b32 s54, 0xffff0000
    s_lshr_b32 s50, s62, 3
    s_lshl_b32 s50, s50, 2
    v_min_u32 v20, 11, v13
    v_add_u32 v20, s50, v20
    v_min_u32 v20, 107, v20
    v_and_b32 v21, 1, v14
    v_mul_u32_u24 v16, 108, v21
    v_add_u32 v20, v20, v16
    s_mul_i32 s50, s59, 5
    s_lshr_b32 s50, s50, 2
    s_mul_i32 s50, s50, 56
    s_mul_i32 s51, s95, 14
    s_add_u32 s50, s50, s51
    v_min_u32 v16, 13, v13
    v_mul_u32_u24 v21, 56, v21
    v_add3_u32 v16, v16, v21, s50
    v_min_u32 v16, 559, v16
    v_lshrrev_b32 v21, 1, v16
    v_subrev_u32 v22, {512-208}, v16
    v_cmp_le_u32 vcc, 512, v16
    v_cndmask_b32 v16, v21, v22, vcc
    v_cmp_le_u32 vcc, 32, v2
    v_cndmask_b32 v20, v20, v16, vcc
    v_lshlrev_b32 v20, 4, v20
    s_mov_b32 s57, {F5_O}
    """)
    tx = [a.ds(f"ds_read_b64 v[{112+2*T}:{113+2*T}], v15 offset:{32*T}") for T in range(5)]
    A4 = [72, 92]; RS_, PS = 24, 44
    a.wait(lg=tx[4])
    for j in range(10):
        a(f"v_lshlrev_b32 v{128+2*j}, 16, v{112+j}")
        a(f"v_and_b32 v{129+2*j}, s54, v{112+j}")
    L0 = Loads(a, 60); w3_dma(L0, 0, 3); w3_dma(L0, 1, 3)
    mspill(a)
    poll(a, "M_poll2b", 7, "s46", 9)
    mmark(a, "p2_sync")
    L = Loads(a, 40)
    order = [(sl, k) for sl in (1, 2, 3, 0) for k in range(5)]
    for i, (sl, k) in enumerate(order):
        pre = None
        if k == 0:
            pre = f"s_add_u32 s55, s95, {sl}\ns_and_b32 s55, s55, 3\ns_mul_i32 s55, s55, {O_TT}\ns_add_u32 s55, s55, s45"
        elif k == 4:
            pre = "s_add_u32 s55, s55, 4096"
        L.add(f"buffer_load_dwordx4 a[{4*i}:{4*i+3}], v3, s[28:31], s55 offen offset:{1024*(k%4)} {SC} {NT4}", pre=pre, tag=i)
        while woq and woq[0][1][1] <= i + 1: L.q.append(woq.pop(0))
        if i == F5I: L.add("buffer_load_dword v21, v20, s[8:11], s57 offen sc1", tag='f5')
    L.q += L0.q
    if TOUCH:
        nsh = 4 if MAP4 == 'row' else 8
        per = 560 // nsh
        nin = (per + 63) // 64
        srd(a, 64, 20, W4_OFF, W4_SZ)
        a(f"""
        s_mov_b32 s36, s16
        s_mov_b32 s37, s17
        s_mov_b32 s38, 204800
        s_mov_b32 s39, 0x20000
        s_and_b32 s40, s60, 7
        s_lshl_b32 s40, s40, 2
        s_add_u32 s40, s40, s95
        s_mul_i32 s22, s40, {50*128}
        v_min_u32 v148, 49, v2
        v_lshlrev_b32 v148, 7, v148
        s_and_b32 s40, s58, {nsh-1}
        s_mul_i32 s40, s40, {per}
        s_mul_i32 s41, s95, 14
        s_mul_i32 s23, s59, {5*56}
        s_add_u32 s23, s23, s41
        s_lshl_b32 s23, s23, 10
        s_movk_i32 s41, 586
        """)
        L.add("buffer_load_dword v152, v148, s[36:39], s22 offen sc1")
        for q in range(nin):
            a(f"""
            v_add_u32 v153, {64*q}, v2
            v_min_u32 v153, {per-1}, v153
            v_add_u32 v153, s40, v153
            v_mul_u32_u24 v154, s41, v153
            v_lshrrev_b32 v154, 16, v154
            v_mul_u32_u24 v154, {57344 - 112*128}, v154
            v_lshl_add_u32 v{149+q}, v153, 7, v154
            """)
            L.add(f"buffer_load_dword v152, v{149+q}, s[64:67], s23 offen sc1")
    L.pump(12)
    ACC2 = [72, 92, 72, 128]
    def flush_p(ph):
        dp = ACC2[ph]
        for T in range(5):
            a(f"ds_write_b128 v6, v[{dp+4*T}:{dp+4*T+3}] offset:{ph*5120 + T*1024}")
    wr = []
    for i, (sl, k) in enumerate(order):
        ph = i // 5
        d = ACC2[ph]
        L.need(i)
        if i == 0: mmark(a, "p2_first")
        if i == F5I + 1: check_flags(a, "M_f5", 21, 20, "s57", False)
        for T in range(5):
            a(f"v_mfma_f32_16x16x32_bf16 v[{d+4*T}:{d+4*T+3}], {woreg(T, k)}, a[{4*i}:{4*i+3}], " + ("0" if k == 0 and ph < 3 else f"v[{d+4*T}:{d+4*T+3}]"))
            if wr and T in (0, 2, 4): a(wr.pop(0))
            elif T == 1 or T == 3: L.pump(1, gate=3 if i > F5I else None)
        if k == 0 and ph > 0:
            dp = ACC2[ph - 1]
            wr = [f"ds_write_b128 v6, v[{dp+4*T}:{dp+4*T+3}] offset:{(ph-1)*5120 + T*1024}" for T in range(5)]
    assert not wr and not woq
    a.wait_all_lg()
    a("s_barrier")
    mmark(a, "p2_bar")
    tk = []
    for j, rb in enumerate((RS_, PS, A4[0])):
        for T in range(5):
            t = a.ds(f"ds_read_b128 v[{rb+4*T}:{rb+4*T+3}], v{10+j} offset:{1024*T}")
        tk.append(t)
    a("v_mov_b32 v14, 0x3f803f80\nv_mov_b32 v112, 0\nv_mov_b32 v113, 0")
    for j, rb in enumerate((RS_, PS, A4[0])):
        a.wait(lg=tk[j])
        for r in range(0, 20, 2):
            a(f"v_pk_add_f32 {P(128+r)}, {P(128+r)}, {P(rb+r)}")
    for j in range(10):
        a(f"v_cvt_pk_bf16_f32 v{RS_+j}, v{128+2*j}, v{129+2*j}")
    for T in range(5):
        a(f"ds_write_b64 v17, v[{RS_+2*T}:{RS_+2*T+1}] offset:{32*T}")
    for j in range(10):
        a(f"v_dot2c_f32_bf16 v112, v{RS_+j}, v14")
        a(f"v_dot2c_f32_bf16 v113, v{RS_+j}, v{RS_+j}")
    a.wait_all_lg()
    tk = [a.ds(f"ds_read_b128 v[{PS+4*it}:{PS+4*it+3}], v18 offset:{64*it}") for it in range(3)]
    a(f"""
    v_mov_b32 v114, v112
    v_mov_b32 v115, v113
    v_permlane32_swap_b32 v112, v114
    v_permlane32_swap_b32 v113, v115
    v_pk_add_f32 v[112:113], v[112:113], v[114:115]
    """)
    for it in range(3):
        a.wait(lg=tk[it])
        if it == 2: a("s_mov_b32 exec_hi, 0")
        a(f"buffer_store_dwordx4 v[{PS+4*it}:{PS+4*it+3}], v19, s[24:27], s{48 if it < 2 else 49} offen offset:{2048*(it%2)} {SC}")
    a(f"""
    s_mov_b32 exec_hi, -1
    v_mov_b32 v114, v112
    v_mov_b32 v115, v113
    v_lshlrev_b32 v13, 3, v13
    v_permlane16_swap_b32 v112, v114
    v_permlane16_swap_b32 v113, v115
    v_pk_add_f32 v[112:113], v[112:113], v[114:115]
    s_mov_b64 exec, 0xffff
    """)
    tst = a.vm(f"buffer_store_dwordx2 v[112:113], v13, s[32:35], s53 offen {SC}")
    a("s_mov_b64 exec, -1")
    mmark(a, "p2_st")
    L.pump(99, gate=3)
    srd(a, 28, 20, ST_OFF, ST_SZ)
    a.wait(vm=tst)
    signal(a, "s56", 8)
    mmark(a, "p2_sig")
    L.need(('W3', 1))
    a("s_barrier")
    w3_dma(L, 2); L.pump(99)
    map_p4(a, 100, 101, 40)
    a(f"""
    s_lshl_b32 s44, s60, 2
    s_add_u32 s44, s44, s95
    s_mul_i32 s45, s44, 40960
    v_bfe_u32 v7, v2, 2, 1
    v_bfe_u32 v8, v2, 4, 1
    v_xor_b32 v9, v8, v4
    v_lshlrev_b32 v9, 7, v9
    v_lshl_add_u32 v9, v8, 8, v9
    v_bfe_u32 v8, v2, 3, 1
    v_lshl_add_u32 v9, v8, 6, v9
    v_and_b32 v8, 3, v2
    v_lshl_add_u32 v9, v8, 4, v9
    v_lshl_add_u32 v8, v7, 9, v9
    v_mul_u32_u24 v7, 20480, v7
    v_add_u32 v10, v7, v9
    v_add_u32 v11, 40960, v10
    v_add_u32 v12, 81920, v10
    v_add_u32 v13, 122880, v10
    """)
    srd(a, 12, 20, CS_OFF, CS_SZ)
    a("s_lshl_b32 s46, s62, 9\ns_add_u32 s47, s46, 4096\nv_mov_b32 v0, v8")
    def cs_ld(T):
        return f"buffer_load_dwordx4 a[{160+4*(T%3)}:{163+4*(T%3)}], v0, s[12:15], s{46 if T < 4 else 47} offen offset:{1024*(T%4)} {SC}"
    for T in range(3): a(cs_ld(T))
    srd(a, 36, 20, HH_OFF, HH_SZ)
    srd(a, 32, 20, RS_OFF, RS_SZ)
    a(f"""
    v_lshlrev_b32 v6, 3, v5
    v_lshl_add_u32 v6, v4, 10, v6
    s_lshl_b32 s48, s44, 11
    v_lshrrev_b32 v20, 4, v5
    v_mul_u32_u24 v20, 57344, v20
    v_and_b32 v21, 15, v2
    v_lshlrev_b32 v7, 4, v21
    v_add_u32 v20, v7, v20
    v_lshl_add_u32 v20, v4, 8, v20
    s_mul_i32 s50, s44, 114688
    s_lshr_b32 s51, s61, 2
    s_mul_i32 s51, s51, 14336
    s_add_u32 s50, s50, s51
    s_and_b32 s51, s61, 3
    s_lshl_b32 s51, s51, 9
    s_add_u32 s50, s50, s51
    s_lshl_b32 s51, s44, 4
    s_add_u32 s51, s51, s61
    s_lshl_b32 s51, s51, 4
    v_mov_b32 v8, 0x1000000
    v_writelane_b32 v8, s51, 0
    v_mov_b32 v1, s93
    s_mov_b32 s58, {F4E_O}
    s_mov_b32 s59, {F4_O}
    s_lshl_b32 s51, s44, 8
    s_add_u32 s51, s51, {F3_O}
    s_lshr_b32 s52, s61, 2
    s_lshl_b32 s52, s52, 13
    s_lshl_b32 s53, s44, 7
    s_add_u32 s52, s52, s53
    s_and_b32 s53, s61, 3
    s_cmp_eq_u32 s53, 1
    s_cselect_b32 s52, s52, 0x1000000
    """)
    def w4reg(i):
        if i < 21: return f"a[{172+4*i}:{175+4*i}]"
        if i < 53: return f"v[{252-4*(i-21)}:{255-4*(i-21)}]"
        return f"a[{96+4*(i-53)}:{99+4*(i-53)}]"
    def w4_item(i):
        k, T = divmod(i, 5)
        return dict(text=f"buffer_load_dwordx4 {w4reg(i)}, v3, s[64:67], s23 offen {SC}", pre=f"s_add_u32 s23, s22, {T*57344 + 1024*k}", tag=('W4', i))
    srd(a, 64, 20, W4_OFF, W4_SZ)
    a(f"""
    s_mul_i32 s40, s95, 14
    s_mul_i32 s22, s101, {5*56}
    s_add_u32 s22, s22, s40
    s_lshl_b32 s22, s22, 10
    """)
    Lw = Loads(a, 60)
    for q in range(W4S3): Lw.add(**w4_item(q))
    Lw.pump(99)
    mspill(a)
    poll(a, "M_poll3", 7, "s51", 9)
    mmark(a, "p3_sync")
    L = Loads(a, P3LIM)
    SR = 64
    for n in range(40):
        L.add(f"buffer_load_dwordx4 a[{4*n}:{4*n+3}], v3, s[24:27], s45 offen offset:{1024*(n%4)} {SC} {NT3}", tag=n,
              post="s_add_u32 s45, s45, 4096" if n % 4 == 3 else None)
        if n == 11:
            for p in range(4):
                L.add(f"buffer_load_dwordx2 v[{SR+2*p}:{SR+2*p+1}], v6, s[28:31], s48 offen offset:{256*p} {SC}", tag='st' if p == 3 else None)
    w3_dma(L, 3)
    L.pump(12)
    ACB = [80, 96, 112]
    NA = 3
    WF, NB, TMP, OUT = 24, 10, 64, [72, 76]
    REG = [12, 13, 10, 11, 12, 13, 10]
    seq = []
    for s in range(40):
        seq += [(0, s), (1, s)]
        if s >= LAG: seq.append((2, s - LAG))
    seq += [(2, s) for s in range(max(40 - LAG, 0), 40)] + [(T, s) for T in range(3, 7) for s in range(40)]
    frs = {}
    nrd = [0]
    def rd3():
        i = nrd[0]
        if i >= len(seq): return
        T, s = seq[i]
        r = WF + 4 * (i % NB)
        frs[i] = (r, a.ds(f"ds_read_b128 v[{r}:{r+3}], v{REG[T]} offset:{512*s}"))
        nrd[0] += 1
    def epi(T, pk):
        d, out, tmp = ACB[T % NA], OUT[T % 2], TMP
        Lx = []
        if pk:
            for j in range(0, 8, 2): Lx.append(f"v_pk_mul_f32 {P(tmp+j)}, {P(d+j)}, {P(d+j)}")
            for j in range(0, 8, 2): Lx.append(f"v_pk_fma_f32 {P(tmp+j)}, {P(tmp+j)}, v[14:15], v[14:15] op_sel:[0,1,0] op_sel_hi:[1,1,0]")
            for j in range(0, 8, 2): Lx.append(f"v_pk_mul_f32 {P(tmp+j)}, {P(tmp+j)}, {P(d+j)}")
            for j in range(8): Lx.append(f"v_exp_f32 v{tmp+j}, v{tmp+j}")
            for j in range(0, 8, 2): Lx.append(f"v_pk_mul_f32 {P(d+j)}, {P(d+j)}, {P(d+8+j)}")
            for j in range(0, 8, 2): Lx.append(f"v_pk_add_f32 {P(tmp+j)}, {P(tmp+j)}, 1.0 op_sel_hi:[1,0]")
            for j in range(8): Lx.append(f"v_rcp_f32 v{tmp+j}, v{tmp+j}")
            for j in range(0, 8, 2): Lx.append(f"v_pk_mul_f32 {P(d+j)}, {P(d+j)}, {P(tmp+j)}")
        else:
            for j in range(8): Lx.append(f"v_mul_f32 v{tmp+j}, v{d+j}, v{d+j}")
            for j in range(8): Lx.append(f"v_fma_f32 v{tmp+j}, v{tmp+j}, v15, v14")
            for j in range(8): Lx.append(f"v_mul_f32 v{tmp+j}, v{tmp+j}, v{d+j}")
            for j in range(8):
                Lx.append(f"v_exp_f32 v{tmp+j}, v{tmp+j}")
                Lx.append(f"v_mul_f32 v{d+j}, v{d+j}, v{d+8+j}")
            for j in range(8): Lx.append(f"v_add_f32 v{tmp+j}, 1.0, v{tmp+j}")
            for j in range(8):
                Lx.append(f"v_rcp_f32 v{tmp+j}, v{tmp+j}")
                if j >= 1: Lx.append(f"v_mul_f32 v{d+j-1}, v{d+j-1}, v{tmp+j-1}")
            Lx.append(f"v_cvt_pk_bf16_f32 v{out}, v{d}, v{d+1}")
            Lx.append(f"v_mul_f32 v{d+7}, v{d+7}, v{tmp+7}")
        for j in range(0 if pk else 1, 4): Lx.append(f"v_cvt_pk_bf16_f32 v{out+j}, v{d+2*j}, v{d+2*j+1}")
        Lx.append(f"buffer_store_dwordx4 v[{out}:{out+3}], v20, s[36:39], s50 offen offset:{2048*(T%2)} {SC}" + ("\ns_add_u32 s50, s50, 4096" if T % 2 else ""))
        return [(T, x) for x in Lx]
    stats = f"""
    v_add_f32 v{SR+0}, v{SR+0}, v{SR+2}
    v_add_f32 v{SR+1}, v{SR+1}, v{SR+3}
    v_add_f32 v{SR+4}, v{SR+4}, v{SR+6}
    v_add_f32 v{SR+5}, v{SR+5}, v{SR+7}
    v_add_f32 v{SR+0}, v{SR+0}, v{SR+4}
    v_add_f32 v{SR+1}, v{SR+1}, v{SR+5}
    v_mov_b32 v{SR+2}, v{SR}
    v_mov_b32 v{SR+3}, v{SR+1}
    v_permlane32_swap_b32 v{SR}, v{SR+2}
    v_permlane32_swap_b32 v{SR+1}, v{SR+3}
    v_add_f32 v{SR}, v{SR}, v{SR+2}
    v_add_f32 v{SR+1}, v{SR+1}, v{SR+3}
    v_mul_f32 v{SR}, {f32(-1.0/640)}, v{SR}
    v_mul_f32 v{SR+1}, {f32(1.0/640)}, v{SR+1}
    v_fma_f32 v{SR+1}, -v{SR}, v{SR}, v{SR+1}
    v_max_f32 v{SR+1}, 0, v{SR+1}
    v_add_f32 v{SR+1}, {f32(1e-5)}, v{SR+1}
    v_rsq_f32 v{SR+1}, v{SR+1}
    v_cvt_pk_bf16_f32 v{SR+2}, v{SR}, v{SR}
    v_lshlrev_b32 v{SR+2}, 16, v{SR+2}
    v_sub_f32 v{SR+3}, v{SR}, v{SR+2}
    v_cvt_pk_bf16_f32 v16, v{SR+2}, v{SR+3}
    v_mul_f32 v22, v{SR+1}, v{SR+1}
    v_mov_b32 v17, v16
    v_mov_b32 v18, v16
    v_mov_b32 v19, v16
    v_mul_f32 v14, {f32(C0)}, v{SR+1}
    v_mul_f32 v15, {f32(C1)}, v{SR+1}
    v_mul_f32 v15, v15, v22
    v_lshlrev_b32 v21, 2, v5
    buffer_store_dword v22, v21, s[32:35], s52 offen {SC}
    """.strip().split("\n")
    pending = []
    a(f"""
    v_and_b32 v7, 3, v2
    v_lshlrev_b32 v7, 4, v7
    v_bfe_u32 v9, v2, 2, 1
    v_lshl_add_u32 v7, v9, 8, v7
    s_lshl_b32 s40, s100, 9
    s_lshl_b32 s41, s95, 6
    s_add_u32 s40, s40, s41
    v_add_u32 v7, s40, v7
    s_mul_i32 s40, s95, 14
    s_mul_i32 s57, s100, {4*56}
    s_add_u32 s57, s57, s40
    s_lshl_b32 s57, s57, 10
    """)
    DIST = 8
    def cost(x):
        x = x.strip()
        return 2 if x.startswith(("v_exp", "v_rcp", "v_rsq", "buffer_")) else 1
    def fill(budget, hold=None):
        while budget > 0 and pending:
            pick = None
            blockW, blockR = set(), set()
            for n, (t, x) in enumerate(pending[:14]):
                ins = Ins(x.split("\n")[0])
                if ins.kind == 'vmem' and n > 0 and any(Ins(y.split("\n")[0]).kind == 'vmem' for _, y in pending[:n]): break
                ok = cost(x) <= budget and t != hold and not (set(ins.r) & blockW) and not (set(ins.w) & (blockW | blockR))
                if ok and any(need(p, ins) > dd for dd, p in enumerate(reversed(a.ins[-2:]))): ok = False
                if ok: pick = n; break
                blockW |= set(ins.w); blockR |= set(ins.r)
            if pick is None: break
            t_, x = pending.pop(pick)
            a(x); budget -= cost(x)
            if x.startswith("buffer_store"): stored[t_] = (a.vm_issued, cur[0])
    stored = {}; cur = [0]; posted = False
    KE, KM = 2 * EARLY, 2 * MID
    order = [(sl, k) for lo, hi in ((0, KE), (KE, KM), (KM, 14)) for sl in (1, 2, 3, 0) for k in range(lo, hi)]
    L4 = Loads(a, 26)
    lateW = list(range(53, 70))
    for i, (sl, k) in enumerate(order):
        pre = None
        if k in (0, KE, KM):
            pre = f"s_add_u32 s55, s95, {sl}\ns_and_b32 s55, s55, 3\ns_mul_i32 s55, s55, 57344\ns_add_u32 s55, s55, s57"
            if k: pre += f"\ns_add_u32 s55, s55, {1024*k}"
            k0 = k
        elif (k - k0) % 4 == 0:
            pre = "s_add_u32 s55, s55, 4096"
        r = 4 * (i % 24)
        g = i if i < 24 else 1000 + i - 24
        if i >= 4 * KE: g = max(g, 1000 + 4 * KE - CHK1)
        if i >= 4 * KM: g = max(g, 1000 + 4 * KM - CHK)
        L4.add(f"buffer_load_dwordx4 a[{r}:{r+3}], v3, s[36:39], s55 offen offset:{1024*((k-k0)%4)} {SC} {NT4}", pre=pre, tag=('H', i), gate=g)
        if i == 23:
            for _ in range(LWA): L4.add(**w4_item(lateW.pop(0)), gate=999)
        if i == 4 * KM - 1:
            while lateW: L4.add(**w4_item(lateW.pop(0)), gate=999)
            for T in range(5):
                L4.add(f"buffer_load_dwordx2 v[{104+2*T}:{105+2*T}], v15, s[24:27], s{48 if T < 4 else 49} offen offset:{1024*(T%4)} {SC}", gate=1000)
            L4.add(f"buffer_load_dword v114, v16, s[32:35], s50 offen {SC}", tag='res', gate=1000)
    hh0, late4 = L4.q[:24], L4.q[24:]
    L.t.update(Lw.t)
    for q in range(W4S3, 53): L.add(**w4_item(q))
    done01 = False
    for _ in range(DIST): rd3()
    for i, (T, s) in enumerate(seq):
        cur[0] = i
        nx = nrd[0]
        if nx < len(seq) and seq[nx][1] == 0 and seq[nx][0] >= 2:
            Tn = seq[nx][0]
            if Tn > 2: L.need(('W3', Tn))
            a("s_barrier")
            if Tn == 3:
                assert done01
                q0 = L.q; L.q = []; w3_dma(L, 4); w3_dma(L, 5); L.q += q0
            if Tn == 4:
                q0 = [x for x in L.q if 'lds' not in x[0]]; L.q = [x for x in L.q if 'lds' in x[0]]; w3_dma(L, 6); L.q += q0
        if T == 6 and s == 0: print('queue at tile 6:', len(L.q))
        if (T, s) == (5, CK0):
            tfe = a.vm("buffer_load_dword v9, v7, s[8:11], s58 offen sc1")
        if (T, s) == (5, CK1):
            a.wait(vm=tfe)
            check_flags(a, "M_f4e", 9, 7, "s58", False)
            mmark(a, "p3_chk")
            L.q = L.q + hh0
        rd3()
        budget = 3
        nxt_wait = (i + 1) % 4 == 0
        if T == 0: L.need(s)
        if i == 0: mmark(a, "p3_first")
        if i % 4 == 0: a.wait(lg=frs[min(i + 3, len(seq) - 1)][1])
        r = frs[i][0]
        d = ACB[T % NA]
        if s == 0: assert all(t % NA != T % NA for t, _ in pending if t >= 0), "accumulator still pending"
        a(f"v_mfma_f32_32x32x16_bf16 v[{d}:{d+15}], v[{r}:{r+3}], a[{4*s}:{4*s+3}], " + ("0" if s == 0 else f"v[{d}:{d+15}]"))
        if nxt_wait: budget -= 1
        n0 = a.vm_issued
        if not done01:
            L.pump(1)
            if i + 1 < len(seq) and seq[i + 1][0] == 0: budget -= 1
            if s == 14 and T == 0:
                L.need('st'); pending += [(-1, x) for x in stats]
        elif not posted and EARLY - 1 in stored and i >= stored[EARLY - 1][1] + ACKD:
            a.wait(vm=stored[EARLY - 1][0])
            a("buffer_store_dword v1, v8, s[8:11], s58 offen sc0 sc1")
            posted = True; budget -= 1
            mmark(a, "p3_early")
        elif (i % 2 == 1 and (T == 2 or (T == 3 and s < 24) or T == 6)) or i % 8 in PACE3:
            if not (T == 6 and s >= QS): L.paced(gate=s - 1 if T == 6 else None)
        budget -= 2 * (a.vm_issued - n0)
        fill(budget, hold=(T - 1 if s < 3 else None) if T > 2 else None)
        if s == 39 and T != 0:
            for t in ((0, 1) if T == 1 else (T,)):
                dd = ACB[t % NA]
                assert not any(p[0] == -1 for p in pending)
                if t >= 3: L.need(('CS', t))
                a(f"v_mfma_f32_32x32x16_bf16 v[{dd}:{dd+15}], a[{160+4*(t%3)}:{163+4*(t%3)}], v[16:19], v[{dd}:{dd+15}]")
                if NPK <= t < 6: pending += epi(t, False)
                if t + 3 < 7: L.q.insert(min(len(L.q), 8) if t == 2 else 0, (cs_ld(t + 3), ('CS', t + 3), None, None, None))
            if T == (1 if NPK < 2 or LAG >= 40 else 2) or (T == 1 and False):
                pass
            if T in (1, 2):
                for t in (range(min(NPK, 2)) if T == 1 else range(2, NPK)):
                    pq_ = Paced(a, L, PQ2)
                    for _, ins in epi(t, True): (pq_ if T == 2 else a)(ins)
                    stored[t] = (a.vm_issued, i)
            mmark(a, f"p3_t{T}")
            if T == 1: done01 = True
    print('stores at', {k: v[1] for k, v in stored.items()}, 'of', len(seq), 'left loads', len(L.q), 'pending', len(pending))
    assert posted and MID - 1 in stored
    a.wait(vm=stored[MID - 1][0])
    a(f"s_mov_b32 s58, {F4M_O}\nbuffer_store_dword v1, v8, s[8:11], s58 offen sc0 sc1")
    rest = [(x[0], x[1], x[2], x[3], None) for x in L.q]
    L.q = rest + late4
    L.lim = 26
    pa = Paced(a, L, FP, gate=999)
    started = {t for t, _ in pending if sum(1 for u, _ in pending if u == t) < len(epi(t, False))}
    rest = sorted({t for t, _ in pending} - started)
    for t, ins in pending:
        if t in started: pa(ins)
    for t in rest + [6]:
        for _, ins in epi(t, True): pa(ins)
    tst = a.vm_issued
    mmark(a, "p3_st")
    for _ in range(8): L.paced(gate=999)
    PB, TB = 40960, 40960 + 61440
    srd(a, 12, 6, 0, 2621440)
    a(f"""
    s_mul_i32 s47, s95, 15360
    s_add_u32 s47, s47, {PB}
    v_add_u32 v6, s47, v3
    """)
    for j in range(1, 4):
        a(f"""
        s_add_u32 s47, s95, {j}
        s_and_b32 s47, s47, 3
        s_mul_i32 s47, s47, 15360
        s_add_u32 s47, s47, {PB + (3-j)*5120}
        v_add_u32 v{9+j}, s47, v3
        """)
    a(f"""
    v_and_b32 v13, 15, v2
    v_lshrrev_b32 v14, 4, v2
    v_lshlrev_b32 v15, 4, v13
    v_lshl_add_u32 v15, v4, 9, v15
    v_and_b32 v16, 1, v14
    v_lshl_add_u32 v15, v16, 3, v15
    s_lshl_b32 s48, s100, 1
    s_lshr_b32 s49, s95, 1
    s_add_u32 s48, s48, s49
    s_mul_i32 s48, s48, 40960
    s_mul_i32 s49, s101, 5120
    s_add_u32 s48, s48, s49
    s_and_b32 s49, s95, 1
    s_lshl_b32 s49, s49, 8
    s_add_u32 s48, s48, s49
    s_add_u32 s49, s48, 4096
    v_lshlrev_b32 v16, 2, v13
    s_lshl_b32 s50, s95, 13
    s_lshl_b32 s51, s100, 8
    s_add_u32 s50, s50, s51
    s_lshl_b32 s51, s95, 6
    s_add_u32 s50, s50, s51
    v_mul_u32_u24 v17, 160, v13
    v_lshl_add_u32 v17, v14, 3, v17
    s_mul_i32 s51, s95, 2560
    s_add_u32 s51, s51, {TB}
    v_add_u32 v17, s51, v17
    v_add_u32 v18, s51, v3
    s_mov_b32 s52, 6554
    """)
    for it in range(3):
        a(f"""
        v_add_u32 v13, {64*it}, v2
        v_mul_u32_u24 v14, s52, v13
        v_lshrrev_b32 v14, 16, v14
        v_mul_u32_u24 v14, {1280-160}, v14
        v_lshl_add_u32 v{19+it}, v13, 4, v14
        """)
    a(f"""
    s_lshl_b32 s52, s100, 2
    s_add_u32 s52, s52, s95
    s_mul_i32 s52, s52, {16*1280}
    s_mul_i32 s53, s101, 160
    s_add_u32 s52, s52, s53
    s_mov_b32 s54, 0xffff0000
    """)
    mspill(a)
    A4 = {1: 24, 2: 44, 3: 64, 0: 84}
    RS_, PS = 24, 44
    todo = []; wr = []
    NL = 14 - KM
    for i, (sl, k) in enumerate(order):
        d = A4[sl]
        if i == SIGI:
            a.wait(vm=tst)
            a("buffer_store_dword v1, v8, s[8:11], s59 offen sc0 sc1")
            mmark(a, "p3_sig")
        if i == 4 * KE - CHK1 - 3:
            tf4 = a.vm("buffer_load_dword v9, v7, s[8:11], s58 offen sc1")
        if i == 4 * KE - CHK1 + 1:
            a.wait(vm=tf4)
            check_flags(a, "M_f4m", 9, 7, "s58", False)
            mmark(a, "p4_mid")
        if i == 4 * KM - CHK - 3:
            tf4 = a.vm("buffer_load_dword v9, v7, s[8:11], s59 offen sc1")
        if i == 4 * KM - CHK + 1:
            a.wait(vm=tf4)
            check_flags(a, "M_f4", 9, 7, "s59", False)
            mmark(a, "p4_sync")
        L.need(('H', i), gate=999 + i)
        for T in range(5):
            L.need(('W4', 5 * k + T), gate=999 + i)
        if i == 0: mmark(a, "p4_first")
        if i == 4 * KM: mmark(a, "p4_late")
        r = 4 * (i % 24)
        for T in range(5):
            a(f"v_mfma_f32_16x16x32_bf16 v[{d+4*T}:{d+4*T+3}], {w4reg(5*k+T)}, a[{r}:{r+3}], " + ("0" if k == 0 else f"v[{d+4*T}:{d+4*T+3}]"))
            if wr and T in (1, 3, 4): a(wr.pop(0))
            elif T in (0, 2, 3): L.pump(1, gate=999 + i)
            elif todo:
                a(todo.pop(0));
                if todo: a(todo.pop(0))
        if i >= 4 * KM:
            ph, kk = divmod(i - 4 * KM, NL)
            if kk == 0 and ph > 0:
                dp = A4[ph]
                wr = [f"ds_write_b128 v6, v[{dp+4*T}:{dp+4*T+3}] offset:{(ph-1)*5120 + T*1024}" for T in range(5)]
            if ph == 3 and kk == min(3, NL - 1):
                assert not wr
                a.wait_all_lg()
                a("s_barrier")
                tk = []
                for j, rb in enumerate((24, 44, 64)):
                    for T in range(5):
                        t = a.ds(f"ds_read_b128 v[{rb+4*T}:{rb+4*T+3}], v{10+j} offset:{1024*T}")
                    tk.append(t)
            if ph == 1 and kk == 2:
                L.need('res', gate=999 + i)
                for j in range(0, 10):
                    todo += [f"v_lshlrev_b32 v{116+j}, 16, v{104+j}", f"v_and_b32 v{104+j}, s54, v{104+j}"]
    for ins in todo: a(ins)
    a.wait(lg=tk[1])
    for j in range(0, 20, 2):
        a(f"v_pk_add_f32 {P(24+j)}, {P(24+j)}, {P(44+j)}")
    a.wait(lg=tk[2])
    for j in range(0, 20, 2):
        a(f"v_pk_add_f32 {P(64+j)}, {P(64+j)}, {P(84+j)}")
    mmark(a, "p4_mm")
    for j in range(0, 20, 2):
        a(f"v_pk_add_f32 {P(24+j)}, {P(24+j)}, {P(64+j)}")
    for j in range(10):
        a(f"v_fma_f32 v{PS+2*j}, v{24+2*j}, v114, v{116+j}")
        a(f"v_fma_f32 v{PS+2*j+1}, v{25+2*j}, v114, v{104+j}")
    for j in range(10):
        a(f"v_cvt_pk_bf16_f32 v{RS_+j}, v{PS+2*j}, v{PS+2*j+1}")
    for T in range(5):
        a(f"ds_write_b64 v17, v[{RS_+2*T}:{RS_+2*T+1}] offset:{32*T}")
    a.wait_all_lg()
    tk = [a.ds(f"ds_read_b128 v[{PS+4*it}:{PS+4*it+3}], v18 offset:{1024*it}") for it in range(3)]
    for it in range(3):
        a.wait(lg=tk[it])
        if it == 2: a("s_mov_b32 exec_hi, 0")
        a(f"buffer_store_dwordx4 v[{PS+4*it}:{PS+4*it+3}], v{19+it}, s[12:15], s52 offen {OUTF}")
    a(f"""
    s_or_b32 s40, s2, s95
    s_cmp_lg_u32 s40, 0
    s_cbranch_scc1 M_noclr
    s_load_dwordx2 s[40:41], s[0:1], 72
    s_mov_b64 exec, 1
    v_mov_b32 v8, 0
    s_waitcnt lgkmcnt(0)
    global_store_dword v8, v8, s[40:41] sc0 sc1
M_noclr:
    """)
    mstamp_end(a, 1, 20)
    a("M_exit:\ns_endpgm")
    return a
```

```python
from common import *
from k0 import reduce32
SC = "sc1"
WL, PL, WOL, LB3, LB4 = 10240, 20480, 24576, 114688, 135168

import os
WNT = os.environ.get('WNT', 'nt'); PNT = os.environ.get('PNT', ''); LDS_NONCE = 163836; KVZ = os.environ.get('KVZ', 'x'); ORDP = os.environ.get('ORDP', 'm'); PFW = int(os.environ.get('PFW', 8)); PFW2 = int(os.environ.get('PFW2', 248)); PF1 = int(os.environ.get('PF1', 6144)); PFAT = os.environ.get('PFAT', 'sig'); RTL = os.environ.get('RTL', 'win')
def rt_src(a, now):
    nR0 = a.vm_issued
    a(f"""
    s_cmp_ge_u32 s2, 108
    s_cselect_b32 s36, s58, s56
    s_cselect_b32 s37, s59, s57
    s_cselect_b32 s56, 1, 0
    s_mov_b32 s38, {640*3456}
    s_mov_b32 s39, 0x20000
    s_mul_i32 s57, s56, 108
    s_sub_u32 s57, s2, s57
    s_and_b32 s58, s57, 3
    s_lshr_b32 s57, s57, 2
    v_lshrrev_b32 v8, 3, v2
    v_and_b32 v9, 7, v2
    v_lshlrev_b32 v9, 4, v9
    v_mul_u32_u24 v232, 3456, v8
    v_add_u32 v232, v232, v9
    s_mul_i32 s60, s58, 160
    s_mul_i32 s40, s95, 40
    s_add_u32 s60, s60, s40
    s_mul_i32 s60, s60, 3456
    s_lshl_b32 s40, s57, 7
    s_add_u32 s60, s60, s40
    s_cmp_ge_u32 s2, 216
    s_cselect_b32 s60, 0x10000000, s60
    s_mul_i32 s55, s95, 5120
    s_lshl_b32 s51, s95, 12
    """)
    ld = []
    for n in range(5):
        ld.append((f"s_add_u32 m0, s55, {LB3 + 1024*n}", f"buffer_load_dwordx4 v232, s[36:39], s60 offen nt lds", f"s_add_u32 s60, s60, {8*3456}"))
    if now:
        for x in ld: a("\n".join(x))
    a(f"""
    s_mov_b32 s71, 0x20000
    s_cmp_eq_u32 s95, 3
    s_cbranch_scc1 P0_wo
    s_mov_b32 s68, s62
    s_mov_b32 s69, s63
    s_mov_b32 s70, {1728*1280}
    v_mul_u32_u24 v10, 1280, v8
    v_add_u32 v10, v10, v9
    s_lshl_b32 s40, s2, 1
    s_add_u32 s40, s40, s95
    s_add_u32 s49, s2, {512 - 208}
    s_cmp_lt_u32 s2, 208
    s_cselect_b32 s49, 999, s49
    s_cmp_eq_u32 s95, 2
    s_cselect_b32 s40, s49, s40
    s_mul_i32 s59, s40, 1171
    s_lshr_b32 s59, s59, 16
    s_mul_i32 s62, s59, 56
    s_sub_u32 s62, s40, s62
    s_mul_i32 s41, s62, 147
    s_lshr_b32 s41, s41, 11
    s_mul_i32 s49, s41, 14
    s_sub_u32 s49, s62, s49
    s_lshl_b32 s41, s41, 1
    s_and_b32 s61, s49, 1
    s_add_u32 s41, s41, s61
    s_mul_i32 s41, s41, 27
    s_andn2_b32 s49, s49, 1
    s_add_u32 s41, s41, s49
    s_mul_i32 s41, s41, {8*1280}
    v_add_u32 v216, s41, v10
    v_add_u32 v218, {13*8*1280}, v216
    v_add_u32 v219, {14*8*1280}, v216
    s_movk_i32 s41, {8*1280}
    s_cmp_eq_u32 s49, 12
    s_cselect_b32 s41, 0x10000000, s41
    v_add_u32 v217, s41, v216
    s_lshl_b32 s61, s59, 7
    s_mul_i32 s59, s59, 224
    s_add_u32 s59, s59, s62
    s_lshl_b32 s59, s59, 10
    s_add_u32 s59, s59, {W4_OFF - WO_OFF}
    s_mov_b32 s96, {56*1024}
    s_cmp_ge_u32 s40, 560
    s_branch P0_wt
P0_wo:
    s_mov_b32 s68, s16
    s_mov_b32 s69, s17
    s_mov_b32 s70, {640*1280}
    s_mul_i32 s59, s2, 205
    s_lshr_b32 s59, s59, 12
    s_mul_i32 s62, s59, 20
    s_sub_u32 s62, s2, s62
    v_cmp_le_u32 vcc, 2, v8
    v_cndmask_b32 v11, 8, 18, vcc
    v_add_u32 v11, v11, v8
    v_lshrrev_b32 v10, 2, v8
    v_mul_u32_u24 v10, 6, v10
    v_add3_u32 v10, v10, v8, 26
    """)
    for n in range(4):
        a(f"""
        s_lshl_b32 s40, s62, 2
        s_add_u32 s40, s40, {n}
        s_mul_i32 s41, s40, 205
        s_lshr_b32 s41, s41, 10
        s_mul_i32 s49, s41, 5
        s_sub_u32 s40, s40, s49
        s_mul_i32 s41, s41, 40
        s_and_b32 s49, s40, 1
        s_mul_i32 s49, s49, 10
        s_add_u32 s41, s41, s49
        s_cmp_ge_u32 s40, 2
        s_cselect_b64 vcc, -1, 0
        v_cndmask_b32 v{216+n}, v8, v11, vcc
        s_cmp_eq_u32 s40, 4
        s_cselect_b64 vcc, -1, 0
        v_cndmask_b32 v{216+n}, v{216+n}, v10, vcc
        v_add_u32 v{216+n}, s41, v{216+n}
        v_mul_u32_u24 v{216+n}, 1280, v{216+n}
        v_add_u32 v{216+n}, v{216+n}, v9
        """)
    a(f"""
    s_lshl_b32 s61, s59, 7
    s_mul_i32 s59, s59, 80
    s_add_u32 s59, s59, s62
    s_lshl_b32 s59, s59, 10
    s_mov_b32 s96, {20*1024}
    s_cmp_ge_u32 s2, 200
P0_wt:
    s_cselect_b32 s61, 0x10000000, s61
    s_cselect_b32 s59, 0x10000000, s59
    """)
    for n in range(4):
        ld.append((f"s_add_u32 m0, s51, {LB4 + 1024*n}", f"buffer_load_dwordx4 v{216+n}, s[68:71], s61 offen nt lds", ""))
    if now:
        for x in ld[5:]: a("\n".join(x))
    return a.vm_issued - nR0 if now else ld

def p0(a, npf):
    P = lambda r: f"v[{r}:{r+1}]"
    a(f"""
    s_getpc_b64 s[96:97]
P0_pc:
    s_cmp_ge_u32 s2, {PFW}
    s_cbranch_scc1 P0_nopf
    v_lshlrev_b32 v8, 7, v0
    v_mov_b32 v11, s97
    v_cmp_gt_u32 vcc, {PF1}, v8
    s_and_saveexec_b64 s[40:41], vcc
    s_cbranch_execz P0_pf0
    v_add_co_u32 v10, vcc, s96, v8
    v_addc_co_u32 v11, vcc, 0, v11, vcc
    global_load_dword v255, v[10:11], off
P0_pf0:
    s_mov_b64 exec, s[40:41]
    """)
    a(f"""
P0_nopf:
    v_lshrrev_b32 v6, 5, v0
    v_mul_u32_u24 v7, 1280, v6
    v_lshl_add_u32 v7, v5, 3, v7
    s_lshl_b32 s44, s42, 4
    s_add_u32 s44, s44, s43
    s_mul_i32 s40, s44, 10240
    s_mov_b32 s26, 2621440
    s_mov_b32 s27, 0x20000
    s_mov_b32 s30, {640*3840}
    s_mov_b32 s31, 0x20000
    s_mov_b32 s35, 0x20000
    s_movk_i32 s45, 13108
    s_mul_i32 s46, s42, {40*3840}
    s_mul_i32 s47, s43, 80
    s_add_u32 s46, s46, s47
    s_mul_i32 s47, s43, 1600
    s_lshl_b32 s48, s95, 10
    """)
    for n in range(3):
        a(f"""
        v_add_u32 v{8+n}, {256*n}, v0
        v_min_u32 v{8+n}, 599, v{8+n}
        v_mul_u32_u24 v11, s45, v{8+n}
        v_lshrrev_b32 v11, 16, v11
        v_mul_u32_u24 v11, 1200, v11
        v_lshl_add_u32 v{8+n}, v{8+n}, 4, v11
        """)
    a(f"""
    v_subrev_u32 v11, 128, v0
    v_min_u32 v11, 99, v11
    v_lshlrev_b32 v11, 4, v11
    s_cmp_ge_u32 s95, 2
    s_cselect_b64 vcc, -1, 0
    s_cselect_b32 s34, {32*800}, s30
    s_cselect_b32 s47, s47, s46
    v_cndmask_b32 v10, v10, v11, vcc
    s_waitcnt lgkmcnt(0)
    s_cselect_b32 s32, s14, s12
    s_cselect_b32 s33, s15, s13
    s_mov_b32 s24, s4
    s_mov_b32 s25, s5
    s_mov_b32 s28, s12
    s_mov_b32 s29, s13
    """)
    mmark(a, "p0_karg")
    a.reset_counters()
    X = 24
    def ldx():
        for i in range(5):
            t = a.vm(f"buffer_load_dwordx2 v[{X+2*i}:{X+1+2*i}], v7, s[24:27], s40 offen offset:{256*i} nt")
        return t
    def ldw(ns):
        for n in ns:
            a(f"s_add_u32 m0, s48, {WL + 4096*n}")
            a(f"buffer_load_dwordx4 v{8+n}, s[{28 if n < 2 else 32}:{31 if n < 2 else 35}], s{46 if n < 2 else 47} offen {WNT if n < 2 else PNT} lds")
    if ORDP == 'xw': tX = ldx(); ldw((2, 0, 1))
    elif ORDP == 'wx': ldw((2, 0, 1)); tX = ldx()
    else: ldw((2, 0)); tX = ldx(); ldw((1,))
    nW = a.vm_issued
    mmark(a, "p0_iss")
    srd(a, 64, 18, 0, 256)
    srd(a, 8, 20, FL_OFF, FL_SZ)
    a(f"""
    v_mov_b32 v16, 0
    s_or_b32 s40, s2, s95
    s_cmp_lg_u32 s40, 0
    s_cbranch_scc1 P0_non
    s_or_b32 s40, s98, 1
    s_mov_b64 exec, 1
    v_mov_b32 v8, s40
    buffer_store_dword v8, v16, s[64:67], 0 offen sc0 sc1
    s_mov_b64 exec, -1
P0_non:
    """)
    nR = rt_src(a, True) if RTL == 'p0' else 0
    srd(a, 28, 20, XN_OFF, XN_SZ)
    srd(a, 32, 20, W1_OFF, W1_SZ)
    a(f"""
    v_lshrrev_b32 v8, 1, v5
    v_xor_b32 v7, v6, v8
    v_and_b32 v7, 7, v7
    v_lshlrev_b32 v7, 4, v7
    v_lshl_add_u32 v7, v8, 7, v7
    v_and_b32 v8, 1, v5
    v_lshl_add_u32 v7, v8, 3, v7
    v_lshrrev_b32 v10, 3, v0
    v_xor_b32 v18, v0, v10
    v_and_b32 v18, 7, v18
    v_lshlrev_b32 v18, 4, v18
    v_lshl_add_u32 v18, v10, 7, v18
    v_and_b32 v19, 7, v0
    v_lshlrev_b32 v19, 4, v19
    v_lshl_add_u32 v19, v10, 9, v19
    s_lshr_b32 s52, s44, 2
    s_mul_i32 s52, s52, 40960
    s_and_b32 s53, s44, 3
    s_lshl_b32 s53, s53, 7
    s_add_u32 s52, s52, s53
    s_add_u32 s53, s52, 16384
    s_add_u32 s54, s52, 32768
    s_mov_b32 s41, 0xffff0000
    s_and_b32 s45, s95, 1
    s_lshr_b32 s46, s95, 1
    """)
    A0 = [64, 72, 80]; A1 = [68, 76, 84]
    a(f"""
    v_and_b32 v8, 0x13, v5
    v_lshrrev_b32 v9, 1, v5
    v_and_b32 v9, 4, v9
    v_lshlrev_b32 v10, 1, v5
    v_and_b32 v10, 8, v10
    v_or3_b32 v8, v8, v9, v10
    s_lshl_b32 s47, s46, 5
    v_add_u32 v8, s47, v8
    v_min_u32 v8, 39, v8
    v_mul_u32_u24 v8, 240, v8
    s_mul_i32 s47, s45, 40
    s_add_u32 s47, s47, {WL}
    v_add_u32 v21, s47, v8
    v_lshl_add_u32 v20, v4, 4, v21
    v_bfe_u32 v8, v2, 2, 2
    v_lshl_add_u32 v8, v4, 3, v8
    v_mul_u32_u24 v8, 40, v8
    v_bfe_u32 v9, v2, 4, 1
    v_lshl_add_u32 v8, v9, 5, v8
    v_and_b32 v9, 3, v2
    v_lshl_add_u32 v8, v9, 3, v8
    s_mul_i32 s47, s45, 800
    s_add_u32 s47, s47, {PL}
    v_add_u32 v22, s47, v8
    """)
    for sg in range(3):
        a(f"v_mov_b32 v{A1[sg]+2}, 0\nv_mov_b32 v{A1[sg]+3}, 0")
    a(f"""
    v_add_u32 v8, 2, v5
    v_cmp_gt_u32 vcc, 18, v5
    v_cndmask_b32 v8, v8, v5, vcc
    v_bfe_u32 v9, v8, 2, 1
    v_mul_u32_u24 v9, 10, v9
    v_lshrrev_b32 v10, 3, v8
    v_lshl_add_u32 v9, v10, 2, v9
    v_and_b32 v10, 3, v8
    v_add_u32 v9, v9, v10
    v_lshlrev_b32 v10, 3, v4
    v_sub_u32 v9, v9, v10
    v_and_b32 v10, 1, v9
    v_lshlrev_b32 v10, 4, v10
    v_mov_b32 v8, 0x3f80
    v_lshlrev_b32 v10, v10, v8
    v_lshrrev_b32 v9, 1, v9
    """)
    for jj, cmpv in enumerate([0, 1, 2, 3, 8, 9]):
        a(f"v_cmp_eq_u32 vcc, {cmpv}, v9\nv_cndmask_b32 v{112+jj}, 0, v10, vcc")
    a("v_mov_b32 v118, 0\nv_mov_b32 v119, 0\nv_mov_b32 v94, 0\nv_mov_b32 v95, 0")
    a(f"""
    s_mul_i32 s40, s42, 5
    s_lshl_b32 s47, s46, 2
    s_add_u32 s40, s40, s47
    v_add_u32 v12, s40, v4
    v_lshrrev_b32 v11, 1, v12
    v_mul_u32_u24 v14, 768, v11
    v_mul_u32_u24 v11, 3072, v11
    v_and_b32 v12, 1, v12
    v_lshl_add_u32 v11, v12, 9, v11
    v_mul_u32_u24 v12, 384, v12
    v_add_u32 v14, v14, v12
    v_add_u32 v14, {122880 - 3072}, v14
    """)
    for sg, sb in enumerate([40, 0, 20]):
        d = 120 + sg
        a(f"v_add_u32 v8, {sb}, v5\nv_lshrrev_b32 v9, 4, v8")
        if sg == 0:
            a("v_cmp_eq_u32 vcc, 3, v9\nv_cndmask_b32 v15, v11, v14, vcc\nv_mov_b32 v123, 3072\nv_mov_b32 v10, 768\nv_cndmask_b32 v123, v123, v10, vcc")
        a(f"""
        v_lshl_add_u32 v{d}, v9, 10, v{15 if sg == 0 else 11}
        v_bfe_u32 v10, v8, 2, 2
        v_lshl_add_u32 v{d}, v10, 7, v{d}
        v_and_b32 v10, 3, v8
        v_lshl_add_u32 v{d}, v10, 4, v{d}
        """)
    a("v_add_u32 v123, v123, v120")
    a(f"""
    s_mul_i32 s48, s43, 153600
    s_lshl_b32 s49, s45, 6
    s_add_u32 s48, s48, s49
    s_mov_b32 s50, {f32(LOG2E)}
    """)
    srd(a, 36, 20, KV_OFF, KV_SZ)
    a(f"""
    v_mov_b32 v60, 0
    v_mov_b32 v61, 0
    v_mov_b32 v62, 0
    v_mov_b32 v63, 0
    s_mul_i32 s22, s43, 7680
    s_mul_i32 s23, s42, 480
    s_add_u32 s22, s22, s23
    v_cmp_gt_u32 vcc, 30, v0
    v_mov_b32 v13, 0x10000000
    v_cndmask_b32 v13, v13, v3, vcc
    """)
    mmark(a, "p0_pre")
    a(f"s_waitcnt vmcnt({nW - tX + nR})")
    mmark(a, "p0_x")
    if KVZ == 'x': a(f"buffer_store_dwordx4 v[60:63], v13, s[36:39], s22 offen {SC}")
    F = 36
    for i in range(10):
        a(f"v_lshlrev_b32 v{F+2*i}, 16, v{X+i}")
        a(f"v_and_b32 v{F+2*i+1}, s41, v{X+i}")
    a(f"v_pk_add_f32 v[56:57], {P(F)}, {P(F+2)}")
    a(f"v_pk_add_f32 v[58:59], {P(F+4)}, {P(F+6)}")
    for i in range(4, 10):
        a(f"v_pk_add_f32 {P(56+2*(i%2))}, {P(56+2*(i%2))}, {P(F+2*i)}")
    a("v_pk_add_f32 v[56:57], v[56:57], v[58:59]")
    a("v_add_f32 v56, v56, v57")
    reduce32(a, 56, 57)
    a(f"v_mul_f32 v56, {f32(1.0/640)}, v56")
    for i in range(10):
        a(f"v_pk_add_f32 {P(F+2*i)}, {P(F+2*i)}, v[56:57] op_sel_hi:[1,0] neg_lo:[0,1] neg_hi:[0,1]")
    a(f"v_pk_mul_f32 v[58:59], {P(F)}, {P(F)}")
    for i in range(1, 10):
        a(f"v_pk_fma_f32 v[58:59], {P(F+2*i)}, {P(F+2*i)}, v[58:59]")
    a("v_add_f32 v58, v58, v59")
    reduce32(a, 58, 59)
    a(f"v_mov_b32 v59, {f32(1e-5)}")
    a(f"v_fmac_f32 v59, {f32(1.0/640)}, v58")
    a("v_rsq_f32 v58, v59")
    for i in range(10):
        a(f"v_pk_mul_f32 {P(F+2*i)}, {P(F+2*i)}, v[58:59] op_sel_hi:[1,0]")
    for i in range(10):
        a(f"v_cvt_pk_bf16_f32 v{X+i}, v{F+2*i}, v{F+2*i+1}")
    for i in range(5):
        a(f"ds_write_b64 v7, v[{X+2*i}:{X+1+2*i}] offset:{2048*i}")
    mmark(a, "p0_ln")
    a(f"s_waitcnt vmcnt({(KVZ == 'x') + nR}) lgkmcnt(0)\ns_barrier")
    mmark(a, "p0_w")
    a.reset_counters()
    a("s_lshl_b32 s23, s95, 12\nbuffer_load_dword v17, v16, s[64:67], s23 offen sc1")
    if KVZ != 'x': a(f"buffer_store_dwordx4 v[60:63], v13, s[36:39], s22 offen {SC}")
    b = Asm()
    b(f"""
    s_sub_u32 s40, s2, {PFW2}
    s_cmp_ge_u32 s40, 8
    s_cbranch_scc1 P0_nopf2
    v_lshlrev_b32 v8, 7, v0
    v_add_u32 v8, {PF1}, v8
    v_mov_b32 v11, s97
    v_cmp_gt_u32 vcc, CODE_END-P0_pc, v8
    s_and_saveexec_b64 s[46:47], vcc
    s_cbranch_execz P0_pf1
    v_add_co_u32 v10, vcc, s96, v8
    v_addc_co_u32 v11, vcc, 0, v11, vcc
    global_load_dword v255, v[10:11], off
P0_pf1:
    s_mov_b64 exec, s[46:47]
P0_nopf2:
    """)
    if PFAT == 'w': a.ins += b.ins
    a("ds_read_b64_tr_b16 v[88:89], v22\nds_read_b64_tr_b16 v[90:91], v22 offset:160")
    tb = a.ds("ds_read_b64_tr_b16 v[92:93], v22 offset:640")
    tA = []
    for sg in range(3):
        a(f"ds_read2_b64 v[{A0[sg]}:{A0[sg]+3}], v20 offset0:{10*sg} offset1:{10*sg+1}")
        tA.append(a.ds(f"ds_read_b64 v[{A1[sg]}:{A1[sg]+1}], v21 offset:{80*sg+32}"))
    tx = [a.ds(f"ds_read_b128 v[{36+4*n}:{39+4*n}], v18 offset:{4096*n}") for n in range(3)]
    a(f"""
    s_cmp_ge_u32 s95, 2
    s_cselect_b32 s54, 0x10000000, s54
    s_cselect_b32 s49, 0x10000000, s48
    s_cselect_b32 s40, 0, 0xfffff
    """)
    a.wait(lg=tb)
    a("s_mov_b32 exec_lo, 0\nv_mov_b32 v92, 0\nv_mov_b32 v93, 0\ns_mov_b32 exec_lo, -1")
    Dr = [128, 144, 160]
    for sg in range(3):
        a.wait(lg=tA[sg])
        b0, b1 = (88, 92) if sg < 2 else (112, 116)
        a(f"v_mfma_f32_32x32x16_bf16 v[{Dr[sg]}:{Dr[sg]+15}], v[{A0[sg]}:{A0[sg]+3}], v[{b0}:{b0+3}], 0")
        a(f"v_mfma_f32_32x32x16_bf16 v[{Dr[sg]}:{Dr[sg]+15}], v[{A1[sg]}:{A1[sg]+3}], v[{b1}:{b1+3}], v[{Dr[sg]}:{Dr[sg]+15}]")
    for n in range(3):
        a.wait(lg=tx[n])
        a(f"buffer_store_dwordx4 v[{36+4*n}:{39+4*n}], v19, s[28:31], s{52+n} offen {SC}")
    a("s_mov_b32 exec_lo, 0xfffff\ns_mov_b32 exec_hi, s40")
    for sg in range(3):
        d = Dr[sg]
        if sg < 2:
            for r in range(0, 16, 2):
                a(f"v_pk_mul_f32 {P(d+r)}, {P(d+r)}, s[50:51] op_sel_hi:[1,0]")
        o = 64 + 8 * sg
        for r in range(8):
            a(f"v_cvt_pk_bf16_f32 v{o+r}, v{d+2*r}, v{d+2*r+1}")
        a(f"buffer_store_dwordx4 v[{o}:{o+3}], v{120+sg}, s[32:35], s48 offen {SC}")
        a(f"buffer_store_dwordx4 v[{o+4}:{o+7}], v{120+sg}, s[32:35], s49 offen offset:3072 {SC}" if sg else f"buffer_store_dwordx4 v[{o+4}:{o+7}], v123, s[32:35], s49 offen {SC}")
    a(f"""
    s_mov_b64 exec, -1
    """)
    mmark(a, "p0_st")
    a(f"""
    s_lshl_b32 s40, s44, 4
    s_add_u32 s40, s40, {F1A_O}
    s_lshl_b32 s41, s43, 8
    s_add_u32 s41, s41, {F1B_O}
    s_lshl_b32 s50, s42, 4
    s_add_u32 s50, s50, s41
    v_mov_b32 v10, s50
    v_writelane_b32 v10, s40, 0
    s_lshl_b32 s40, s42, 8
    s_lshl_b32 s50, s95, 6
    s_add_u32 s40, s40, s50
    s_add_u32 s40, s40, {F1A_O}
    v_and_b32 v12, 3, v2
    v_lshl_add_u32 v12, v12, 4, s40
    v_add_u32 v13, s41, v3
    v_cmp_gt_u32 vcc, 16, v2
    v_cndmask_b32 v12, v12, v13, vcc
    s_waitcnt vmcnt(0)
    s_cmp_lg_u32 s95, 0
    s_cbranch_scc1 P0_oth
    s_mov_b32 s92, 0
P0_nspin:
    v_readfirstlane_b32 s93, v17
    s_add_u32 s92, s92, 1
    s_nop 2
    s_cmp_lg_u32 s93, 0
    s_cbranch_scc1 P0_ngo
    s_cmp_gt_u32 s92, 20000
    s_cbranch_scc1 P0_ngo
    buffer_load_dword v17, v16, s[64:67], 0 offen sc1
    s_waitcnt vmcnt(0)
    s_branch P0_nspin
P0_ngo:
    v_mov_b32 v16, {LDS_NONCE}
    ds_write_b32 v16, v17
    s_waitcnt lgkmcnt(0)
    s_barrier
    s_mov_b64 exec, 3
    buffer_store_dword v17, v10, s[8:11], 0 offen sc0 sc1
    s_mov_b64 exec, -1
    s_branch P0_sig
P0_oth:
    v_mov_b32 v16, {LDS_NONCE}
    s_barrier
    ds_read_b32 v17, v16
    s_waitcnt lgkmcnt(0)
    v_readfirstlane_b32 s93, v17
P0_sig:
    """)
    mmark(a, "p0_sig")
    if PFAT == 'sig': a.ins += b.ins
    a.reset_counters()


def rt_setup(a):
    ld0 = []
    if RTL == 'loop': ld0 = rt_src(a, False)
    if RTL == 'win': rt_src(a, True)
    srd(a, 12, 20, W3_OFF, W3_SZ)
    srd(a, 32, 20, CS_OFF, CS_SZ)
    srd(a, 16, 20, WO_OFF, W4_OFF + W4_SZ - WO_OFF)
    a(f"""
    v_lshrrev_b32 v6, 4, v2
    v_bfe_u32 v7, v2, 2, 2
    v_lshl_add_u32 v7, v6, 3, v7
    v_lshlrev_b32 v7, 7, v7
    v_and_b32 v8, 3, v2
    v_lshl_add_u32 v7, v8, 3, v7
    s_lshl_b32 s45, s95, 5
    s_add_u32 s45, s45, {LB3}
    v_add_u32 v248, s45, v7
    s_add_u32 s45, s51, {LB4}
    v_add_u32 v249, s45, v7
    v_bfe_u32 v9, v2, 3, 1
    v_and_b32 v10, 7, v2
    v_mul_u32_u24 v238, 20480, v9
    v_lshlrev_b32 v239, 9, v9
    v_lshl_add_u32 v239, v10, 4, v239
    v_lshl_add_u32 v239, v6, 26, v239
    v_lshl_add_u32 v238, v10, 4, v238
    v_lshl_add_u32 v238, v4, 9, v238
    v_xor_b32 v9, s56, v6
    v_and_b32 v9, 1, v9
    v_lshl_add_u32 v238, v9, 7, v238
    s_lshl_b32 s45, s57, 3
    s_lshl_b32 s46, s95, 1
    s_add_u32 s45, s45, s46
    s_mul_i32 s52, s45, 20480
    s_mul_i32 s47, s58, 5120
    s_add_u32 s52, s52, s47
    s_lshl_b32 s47, s56, 8
    s_add_u32 s52, s52, s47
    s_lshl_b32 s45, s45, 9
    s_add_u32 s45, s45, s47
    s_lshr_b32 s47, s58, 1
    s_xor_b32 s47, s47, s56
    s_lshl_b32 s47, s47, 7
    s_add_u32 s45, s45, s47
    s_and_b32 s47, s58, 1
    s_lshl_b32 s47, s47, 3
    s_add_u32 s58, s45, s47
    s_cmp_ge_u32 s2, 216
    s_cselect_b32 s52, 0x10000000, s52
    s_cselect_b32 s58, 0x10000000, s58
    s_add_u32 s53, s52, 4096
    v_mov_b32 v240, 0x3f803f80
    v_mov_b32 v241, 0x3f803f80
    v_mov_b32 v242, 0x3f803f80
    v_mov_b32 v243, 0x3f803f80
    """)
    ld = ld0
    rd = []
    for ss in range(5):
        rd.append(f"ds_read_b64_tr_b16 a[{160+4*ss}:{161+4*ss}], v248 offset:{4096*ss}")
        rd.append(f"ds_read_b64_tr_b16 a[{162+4*ss}:{163+4*ss}], v248 offset:{4096*ss+512}")
    for f in range(4):
        rd.append(f"ds_read_b64_tr_b16 a[{180+4*f}:{181+4*f}], v249 offset:{32*f}")
        rd.append(f"ds_read_b64_tr_b16 a[{182+4*f}:{183+4*f}], v249 offset:{32*f+512}")
    cs = [f"v_mfma_f32_16x16x32_bf16 v[244:247], v[240:243], a[{160+4*ss}:{163+4*ss}], " + ("0" if ss == 0 else "v[244:247]") for ss in range(5)]
    cs2 = ["v_cvt_pk_bf16_f32 v236, v244, v244", "v_lshlrev_b32 v245, 16, v236", "v_sub_f32 v245, v244, v245", "v_cvt_pk_bf16_f32 v237, v245, v245"]
    st = []
    for ss in range(5):
        so, off = ("s52", 1024 * ss) if ss < 4 else ("s53", 0)
        st.append((f"buffer_store_dwordx4 a[{160+4*ss}:{163+4*ss}], v238, s[12:15], {so} offen offset:{off} {SC}", None))
    st.append((f"buffer_store_dwordx2 v[236:237], v239, s[32:35], s58 offen {SC}", None))
    for f in range(4):
        st.append((f"buffer_store_dwordx4 a[{180+4*f}:{183+4*f}], v3, s[16:19], s59 offen {SC}", "s_add_u32 s59, s59, s96"))
    a("""
    s_cmp_eq_u32 s95, 3
    s_cselect_b32 s97, s59, 0x10000000
    s_cselect_b32 s59, 0x10000000, s59
    """)
    se = [(f"buffer_store_dwordx4 a[{180+4*f}:{183+4*f}], v3, s[16:19], s97 offen {SC}", "s_add_u32 s97, s97, s96") for f in range(4)]
    return ld, rd, cs, cs2, st, se
```

```python
import re

_REG = re.compile(r'\b([vas])(\d+)\b|\b([vas])\[(\d+):(\d+)\]|\b(vcc|exec|m0|scc)\b')

def regs_of(tok):
    out = []
    for m in _REG.finditer(tok):
        if m.group(1):
            out.append((m.group(1), int(m.group(2))))
        elif m.group(3):
            out += [(m.group(3), i) for i in range(int(m.group(4)), int(m.group(5)) + 1)]
        else:
            out.append((m.group(6), 0))
    return out

TRANS = ('v_exp_f32', 'v_rcp_f32', 'v_rsq_f32', 'v_log_f32', 'v_sqrt_f32', 'v_sin_f32', 'v_cos_f32')

class Ins:
    __slots__ = ('text', 'op', 'kind', 'w', 'r', 'passes', 'ab', 'c', 'states', 'widest', 'dpp', 'skip')
    def __init__(self, text):
        self.text = text
        t = text.split(';')[0].strip()
        self.w, self.r, self.passes, self.ab, self.c = [], [], 0, [], []
        self.states = 1
        self.widest = False
        self.dpp = False
        self.skip = False
        if not t or t.endswith(':') or t.startswith('.'):
            self.kind = 'label' if t.endswith(':') else 'none'
            self.op = ''
            self.states = 0
            return
        parts = t.split(None, 1)
        op = parts[0]
        self.op = op
        ops = [o.strip() for o in parts[1].split(',')] if len(parts) > 1 else []
        R = [regs_of(o) for o in ops]
        flat = lambda l: [x for y in l for x in y]
        if op == 's_nop':
            self.kind = 'salu'; self.states = int(ops[0], 0) + 1
        elif op.startswith('v_mfma'):
            self.kind = 'mfma'
            self.passes = 8 if '32x32' in op else 4
            self.w = R[0]; self.ab = R[1] + R[2]; self.c = R[3]; self.r = self.ab + self.c
        elif op.startswith('v_cmp'):
            self.kind = 'valu'; self.w = R[0]; self.r = flat(R[1:])
        elif op.startswith('v_permlane') and 'swap' in op:
            self.kind = 'valu'; self.w = R[0] + R[1]; self.r = R[0] + R[1]
        elif op.startswith('v_'):
            self.kind = 'valu'; self.w = R[0]; self.r = flat(R[1:])
            if op.startswith(('v_fmac', 'v_dot2c', 'v_pk_fmac')):
                self.r = self.r + R[0]
            if op.startswith(('v_add_co', 'v_sub_co', 'v_addc_co')):
                self.w = R[0] + R[1]; self.r = flat(R[2:])
            if op.startswith('v_cndmask') and len(ops) == 3:
                self.r = self.r + [('vcc', 0)]
            if '_dpp' in op or 'quad_perm' in t or 'row_' in t:
                self.dpp = True
                self.r = self.r + R[0]
        elif op.startswith(('buffer_load', 'global_load')):
            self.kind = 'vmem'
            if re.search(r'\blds\b', t):
                self.r = flat(R) + [('m0', 0)]; self.kind = 'dma'
            else:
                self.w = R[0]; self.r = flat(R[1:])
        elif op.startswith(('buffer_store', 'global_store', 'buffer_atomic', 'global_atomic')):
            self.kind = 'vmem'; self.r = flat(R)
            if 'x4' in op or 'x3' in op:
                self.widest = R[0] if op.startswith('buffer') else R[1]
        elif op.startswith('ds_read') or op.startswith('ds_bpermute') or op.startswith('ds_swizzle'):
            self.kind = 'ds'; self.w = R[0]; self.r = flat(R[1:])
        elif op.startswith('ds_'):
            self.kind = 'ds'; self.r = flat(R)
        elif op.startswith('s_'):
            self.kind = 'salu'
            if op.startswith(('s_cmp', 's_cbranch', 's_branch', 's_waitcnt', 's_barrier', 's_endpgm', 's_setprio', 's_sleep')):
                self.r = flat(R)
            else:
                self.w = R[0] if R else []; self.r = flat(R[1:])
                if 'saveexec' in op:
                    self.w = self.w + [('exec', 0)]
        else:
            raise ValueError("unknown instruction: " + text)

def need(p, c):
    n = 0
    pw = set(p.w)
    if p.kind == 'valu':
        vg = {x for x in pw if x[0] in 'va'}
        sg = {x for x in pw if x[0] == 's' or x[0] == 'vcc'}
        if c.kind == 'mfma' and vg & set(c.r): n = max(n, 2)
        if c.kind == 'valu':
            if p.op.startswith(TRANS) and vg & (set(c.r) | set(c.w)): n = max(n, 1)
            if (c.dpp or c.op.startswith('v_permlane')) and vg & set(c.r): n = max(n, 2)
            if c.op.startswith(('v_readlane', 'v_readfirstlane')) and vg & set(c.r): n = max(n, 1)
            if sg & set(c.r): n = max(n, 4 if c.op.startswith(('v_readlane', 'v_writelane')) else 2)
            if 'sdwa' in p.op and vg & (set(c.r) | set(c.w)): n = max(n, 1)
        if c.kind in ('vmem', 'dma') and sg & set(c.r): n = max(n, 5)
        if c.kind == 'salu' and sg & set(c.r): n = max(n, 2)
    elif p.kind == 'mfma':
        big = 12 if p.passes == 8 else 8
        if c.kind == 'mfma':
            if pw & set(c.ab): n = max(n, big)
            if pw & set(c.c):
                if not (c.c == p.w and c.passes == p.passes): n = max(n, big - 2)
            elif pw & set(c.w): n = max(n, big - 2)
        elif c.kind in ('valu', 'vmem', 'dma', 'ds'):
            if pw & (set(c.r) | set(c.w)): n = max(n, big)
            if c.kind == 'valu' and set(p.c) & set(c.w): n = max(n, 7 if p.passes == 8 else 3)
    elif p.kind == 'salu':
        if ('m0', 0) in pw and c.kind == 'dma': n = max(n, 1)
    elif p.kind == 'vmem' and p.widest:
        if set(p.widest) & set(c.w): n = max(n, 2)
    if c.kind == 'valu' and c.dpp and p.kind in ('ds', 'vmem') and pw & set(c.r):
        pass
    return n

class Asm:
    def __init__(self):
        self.ins = []
        self.vm_issued = 0; self.vm_done = 0
        self.lg_issued = 0; self.lg_done = 0
    def __call__(self, text):
        for line in text.strip().split('\n'):
            line = line.strip()
            if not line: continue
            i = Ins(line)
            if i.kind == 'label':
                name = line.split(':')[0]
                for n in range(len(self.ins)):
                    p = self.ins[n]
                    if p.op.startswith(('s_cbranch', 's_branch')) and p.text.split()[-1] == name:
                        for q in self.ins[n + 1:]: q.skip = True
                        break
            if i.kind not in ('none', 'label'):
                dist = 0; pad = 0
                for p in reversed(self.ins[-400:]):
                    if p.kind in ('none', 'label'): continue
                    nd = need(p, i)
                    if nd > dist: pad = max(pad, nd - dist)
                    if not p.skip: dist += p.states
                    if dist >= 12: break
                while pad > 0:
                    k = min(pad, 16)
                    self.ins.append(Ins("s_nop %d" % (k - 1))); pad -= k
            self.ins.append(i)
            if i.kind in ('vmem', 'dma'):
                self.vm_issued += 1
                assert self.vm_issued - self.vm_done <= 63, "vmcnt overflow"
            elif i.kind == 'ds':
                self.lg_issued += 1
        return self
    def vm(self, text):
        self(text); return self.vm_issued
    def ds(self, text):
        self(text); return self.lg_issued
    def wait(self, vm=None, lg=None):
        parts = []
        if vm is not None and vm > self.vm_done:
            parts.append("vmcnt(%d)" % (self.vm_issued - vm)); self.vm_done = vm
        if lg is not None and lg > self.lg_done:
            n = self.lg_issued - lg
            if n > 15:
                n = 15
            parts.append("lgkmcnt(%d)" % n); self.lg_done = self.lg_issued - n
        if parts:
            self("s_waitcnt " + " ".join(parts))
    def wait_all_lg(self):
        self("s_waitcnt lgkmcnt(0)"); self.lg_done = self.lg_issued
    def wait_all_vm(self):
        self("s_waitcnt vmcnt(0)"); self.vm_done = self.vm_issued
    def reset_counters(self):
        self.vm_issued = self.vm_done = self.lg_issued = self.lg_done = 0
    def splice(self, other):
        c = (self.vm_issued, self.vm_done, self.lg_issued, self.lg_done)
        for i in other.ins:
            self.vm_done = self.vm_issued
            self(i.text)
        self.vm_issued, self.vm_done, self.lg_issued, self.lg_done = c
    def fence(self):
        self.ins.append(Ins("s_nop 11"))
    def text(self):
        return "\n".join(("" if i.kind == 'label' else "  ") + i.text for i in self.ins) + "\n"
    def maxreg(self, cls):
        m = -1
        for i in self.ins:
            for r in list(i.w) + list(i.r):
                if r[0] == cls: m = max(m, r[1])
        return m
```

```python
from common import *
from asmlib import Ins, need
import common, math, p0, p0b

GRID = 256
LDS = 160 * 1024
C0 = -2.0 * math.sqrt(2.0 / math.pi) * LOG2E
C1 = C0 * 0.044715
SC = "sc1"
POLL_MAX = 400000
P1_PACE = 12
import os
F5I = int(os.environ.get('F5I', 8)); PQ2 = int(os.environ.get('PQ2', 12)); P3LIM = int(os.environ.get('P3LIM', 20)); W4S3 = int(os.environ.get('W4S3', 12)); RQ0 = int(os.environ.get('RQ0', 16)); P1LIM = int(os.environ.get('P1LIM', 24)); SIG2 = int(os.environ.get('SIG2', 39)); OUTF = os.environ.get('OUTF', 'nt').replace('_', ' '); MAP1 = os.environ.get('MAP1', 'x'); MAP2 = os.environ.get('MAP2', 'x'); MAP4 = os.environ.get('MAP4', 'x'); MAP3 = os.environ.get('MAP3', 'x'); NT4 = os.environ.get('NT4', ''); NT3 = os.environ.get('NT3', ''); PACE3 = eval(os.environ.get('PACE3', '(1,3,5,7)')); NPK = int(os.environ.get('NPK', 3)); ACKD = int(os.environ.get('ACKD', 36)); AFT = int(os.environ.get('AFT', 0)); HF = int(os.environ.get('HF', 0)); P2A = int(os.environ.get('P2A', 0)); PRET = int(os.environ.get('PRET', 0)); ACKM = int(os.environ.get('ACKM', 24)); BURST = int(os.environ.get('BURST', 6)); FL4 = int(os.environ.get('FL4', 6)); WOP = int(os.environ.get('WOP', 8)); LOC = os.environ.get('LOC'); LOCT = int(os.environ.get('LOCT', 4)); TOUCH3 = int(os.environ.get('TOUCH3', 0)); MID2 = int(os.environ.get('MID2', 4)); CHK2 = int(os.environ.get('CHK2', 16)); LWB = int(os.environ.get('LWB', 8)); SFL = int(os.environ.get('SFL', 1)); BURST0 = int(os.environ.get('BURST0', 0)); LIM4 = int(os.environ.get('LIM4', 40)); PT4 = eval(os.environ.get('PT4', '(0,2)')); MID = int(os.environ.get('MID', 4)); CHK1 = int(os.environ.get('CHK1', 24)); LWA = int(os.environ.get('LWA', 0)); CHK = int(os.environ.get('CHK', 10)); TOUCH = int(os.environ.get('TOUCH', 0)); FP = int(os.environ.get('FP', 999)); QS = int(os.environ.get('QS', 40)); CK0 = int(os.environ.get('CK0', 16)); CK1 = int(os.environ.get('CK1', 38)); HH1 = int(os.environ.get('HH1', 16)); SIGI = int(os.environ.get('SIGI', 5)); W3EARLY = int(os.environ.get('W3EARLY', 10)); LAG = int(os.environ.get('LAG', 12)); EARLY = int(os.environ.get('EARLY', 3)); WO1 = int(os.environ.get('WO1', 25)); RTSG = int(os.environ.get('RTSG', 36)); RTS0 = int(os.environ.get('RTS0', 99)); RTSN = int(os.environ.get('RTSN', 3))

class Paced:
    def __init__(self, a, L, n, gate=None):
        self.a, self.L, self.n, self.c, self.gate = a, L, n, 0, gate
    def __call__(self, text):
        for line in text.strip().split("\n"):
            if not line.strip(): continue
            self.a(line)
            self.c += 1
            if self.c % self.n == 0: self.L.paced(self.gate)

def poll(a, name, voff, soff, tmp):
    a(f"""
    s_mov_b32 s92, 0
{name}:
    buffer_load_dword v{tmp}, v{voff}, s[8:11], {soff} offen sc1
    s_add_u32 s92, s92, 1
    s_cmp_gt_u32 s92, {POLL_MAX}
    s_cbranch_scc1 {name}_go
    s_waitcnt vmcnt(0)
    v_cmp_ne_u32 vcc, s93, v{tmp}
    s_nop 4
    s_cbranch_vccnz {name}
{name}_go:
    s_waitcnt vmcnt(0)
    """)
    a.vm_done = a.vm_issued

def signal(a, soff, tmp, fl='sc0 sc1'):
    a(f"""
    s_mov_b64 exec, 1
    v_mov_b32 v{tmp}, s93
    v_mov_b32 v{tmp+1}, 0
    buffer_store_dword v{tmp}, v{tmp+1}, s[8:11], {soff} offen {fl}
    s_mov_b64 exec, -1
    """)

def softmax_pair(a, P, E, O, tmp):
    mx, mn = tmp, tmp + 2
    a(f"v_max3_f32 v{mx}, v{P}, v{P+1}, v{P+2}")
    a(f"v_min3_f32 v{mn}, v{P}, v{P+1}, v{P+2}")
    for i in range(3, 19, 2):
        a(f"v_max3_f32 v{mx}, v{mx}, v{P+i}, v{P+i+1}")
        a(f"v_min3_f32 v{mn}, v{mn}, v{P+i}, v{P+i+1}")
    a(f"v_max_f32 v{mx}, v{mx}, v{P+19}")
    a(f"v_min_f32 v{mn}, v{mn}, v{P+19}")
    for i in range(0, 20, 2):
        a(f"v_pk_add_f32 v[{E+i}:{E+i+1}], v[{P+i}:{P+i+1}], v[{mx}:{mx+1}] op_sel_hi:[1,0] neg_lo:[0,1] neg_hi:[0,1]")
        a(f"v_pk_add_f32 v[{E+20+i}:{E+21+i}], v[{P+i}:{P+i+1}], v[{mn}:{mn+1}] op_sel_hi:[1,0] neg_lo:[1,0] neg_hi:[1,0]")
    for i in range(40):
        a(f"v_exp_f32 v{E+i}, v{E+i}")
    sp, sn = tmp, tmp + 2
    a(f"v_pk_add_f32 v[{sp}:{sp+1}], v[{E}:{E+1}], v[{E+2}:{E+3}]")
    a(f"v_pk_add_f32 v[{sn}:{sn+1}], v[{E+20}:{E+21}], v[{E+22}:{E+23}]")
    for i in range(4, 20, 2):
        a(f"v_pk_add_f32 v[{sp}:{sp+1}], v[{sp}:{sp+1}], v[{E+i}:{E+i+1}]")
        a(f"v_pk_add_f32 v[{sn}:{sn+1}], v[{sn}:{sn+1}], v[{E+20+i}:{E+21+i}]")
    a(f"v_add_f32 v{sp}, v{sp}, v{sp+1}")
    a(f"v_add_f32 v{sn}, v{sn}, v{sn+1}")
    a(f"v_rcp_f32 v{sp}, v{sp}")
    a(f"v_rcp_f32 v{sn}, v{sn}")
    for i in range(0, 20, 2):
        a(f"v_pk_mul_f32 v[{E+i}:{E+i+1}], v[{E+i}:{E+i+1}], v[{sp}:{sp+1}] op_sel_hi:[1,0]")
        a(f"v_pk_mul_f32 v[{E+20+i}:{E+21+i}], v[{E+20+i}:{E+21+i}], v[{sn}:{sn+1}] op_sel_hi:[1,0]")
    for i in range(20):
        a(f"v_cvt_pk_bf16_f32 v{O+i}, v{E+2*i}, v{E+2*i+1}")

def map_p1(a, rb, hp, t, kind='x'):
    if kind == 'h4':
        map_p3(a, rb, hp, t, 'x')
        return
    if kind == 'h2':
        map_p3(a, hp, rb, t, 'row')
        return
    a(f"""
    s_bfe_u32 s{rb}, s2, 0x20001
    s_lshl_b32 s{rb}, s{rb}, 2
    s_bfe_u32 s{t}, s2, 0x20003
    s_add_u32 s{rb}, s{rb}, s{t}
    s_and_b32 s{hp}, s2, 1
    s_lshl_b32 s{hp}, s{hp}, 3
    s_lshr_b32 s{t}, s2, 5
    s_add_u32 s{hp}, s{hp}, s{t}
    """)
def map_p2(a, tb, nb, t):
    a(f"""
    s_and_b32 s{tb}, s2, 7
    s_lshl_b32 s{tb}, s{tb}, 3
    s_bfe_u32 s{t}, s2, 0x30003
    s_add_u32 s{tb}, s{tb}, s{t}
    s_lshr_b32 s{nb}, s2, 6
    """)
def map_p3(a, rb, cb, t, kind=None):
    kind = kind or MAP3
    if kind == 'row':
        a(f"""
        s_and_b32 s{rb}, s2, 7
        s_lshl_b32 s{rb}, s{rb}, 1
        s_bfe_u32 s{t}, s2, 0x10003
        s_add_u32 s{rb}, s{rb}, s{t}
        s_lshr_b32 s{cb}, s2, 4
        """)
        return
    if kind == 'mid':
        map_p1(a, rb, cb, t)
        return
    a(f"""
    s_bfe_u32 s{rb}, s2, 0x10002
    s_lshl_b32 s{rb}, s{rb}, 3
    s_bfe_u32 s{t}, s2, 0x30003
    s_add_u32 s{rb}, s{rb}, s{t}
    s_and_b32 s{cb}, s2, 3
    s_lshl_b32 s{cb}, s{cb}, 2
    s_lshr_b32 s{t}, s2, 6
    s_add_u32 s{cb}, s{cb}, s{t}
    """)
def map_p4(a, rb, nb, t, kind=None):
    if (kind or MAP4) == 'row':
        a(f"""
        s_and_b32 s{rb}, s2, 7
        s_lshl_b32 s{rb}, s{rb}, 2
        s_bfe_u32 s{t}, s2, 0x20003
        s_add_u32 s{rb}, s{rb}, s{t}
        s_lshr_b32 s{nb}, s2, 5
        """)
        return
    a(f"""
    s_bfe_u32 s{rb}, s2, 0x20001
    s_lshl_b32 s{rb}, s{rb}, 3
    s_bfe_u32 s{t}, s2, 0x30003
    s_add_u32 s{rb}, s{rb}, s{t}
    s_and_b32 s{nb}, s2, 1
    s_lshl_b32 s{nb}, s{nb}, 2
    s_lshr_b32 s{t}, s2, 6
    s_add_u32 s{nb}, s{nb}, s{t}
    """)

def w3_dma(L, T, gate=None):
    reg = [81920, 122880, 0, 40960, 81920, 122880, 0][T]
    sr = 12 if T < 2 else (16 if T < 6 else 68)
    for c in range(10):
        grp = 0 if c < 4 else (4 if c < 8 else 8)
        L.add(f"buffer_load_dwordx4 v3, s[{sr}:{sr+3}], m0 offen offset:{1024*(c-grp)} {SC} lds", gate=gate,
              pre=f"s_add_u32 m0, s3, {reg + 1024*c}" if c == grp else None, tag=('W3', T) if c == 9 else None)

def check_flags(a, name, regs, voff, soff, wide):
    def test(x):
        if wide:
            x(f"v_xor_b32 v{regs}, s93, v{regs}\nv_xor_b32 v{regs+1}, s93, v{regs+1}\nv_xor_b32 v{regs+2}, s93, v{regs+2}\nv_xor_b32 v{regs+3}, s93, v{regs+3}")
            x(f"v_or3_b32 v{regs}, v{regs}, v{regs+1}, v{regs+2}\nv_or_b32 v{regs}, v{regs}, v{regs+3}\nv_cmp_ne_u32 vcc, 0, v{regs}")
        else:
            x(f"v_cmp_ne_u32 vcc, s93, v{regs}")
    test(a)
    a(f"s_mov_b32 s92, 0\ns_nop 3\ns_cbranch_vccz {name}_ok")
    b = Asm()
    b(f"{name}:")
    b(f"buffer_load_dwordx4 v[{regs}:{regs+3}], v{voff}, s[8:11], {soff} offen sc1" if wide else f"buffer_load_dword v{regs}, v{voff}, s[8:11], {soff} offen sc1")
    b(f"s_add_u32 s92, s92, 1\ns_waitcnt vmcnt(0)\ns_cmp_gt_u32 s92, {POLL_MAX}\ns_cbranch_scc1 {name}_ok")
    test(b)
    b(f"s_nop 4\ns_cbranch_vccnz {name}")
    a.splice(b)
    a(f"{name}_ok:")

def sflag_load(a, off):
    a(f"s_add_u32 s62, s63, {off}\ns_buffer_load_dwordx8 s[40:47], s[8:11], s62 glc")
def sflag_check(a, name, regs, voff, soff):
    a.wait_all_lg()
    a(f"""
    s_and_b64 s[60:61], s[40:41], s[42:43]
    s_or_b64 s[40:41], s[40:41], s[42:43]
    s_and_b64 s[42:43], s[44:45], s[46:47]
    s_or_b64 s[44:45], s[44:45], s[46:47]
    s_and_b64 s[60:61], s[60:61], s[42:43]
    s_or_b64 s[40:41], s[40:41], s[44:45]
    s_and_b32 s60, s60, s61
    s_or_b32 s61, s40, s41
    s_mov_b32 s92, s93
    s_cmp_eq_u64 s[60:61], s[92:93]
    s_cbranch_scc1 {name}_ok
    """)
    b = Asm()
    b(f"s_mov_b32 s92, 0\n{name}:")
    b(f"buffer_load_dword v{regs}, v{voff}, s[8:11], {soff} offen sc1")
    b(f"s_add_u32 s92, s92, 1\ns_waitcnt vmcnt(0)\ns_cmp_gt_u32 s92, {POLL_MAX}\ns_cbranch_scc1 {name}_ok")
    b(f"v_cmp_ne_u32 vcc, s93, v{regs}\ns_nop 4\ns_cbranch_vccnz {name}")
    a.splice(b)
    a(f"{name}_ok:")

def gen_mega():
    LS = SC if LOC is None else LOC.strip('_'); LF = 'sc0 sc1' if LOC is None else ''
    a = Asm()
    a(f"""
    s_memrealtime s[98:99]
    s_load_dwordx2 s[20:21], s[0:1], 80
    s_load_dwordx2 s[4:5], s[0:1], 0
    s_load_dwordx4 s[12:15], s[0:1], 8
    s_load_dwordx2 s[16:17], s[0:1], 24
    s_load_dwordx2 s[6:7], s[0:1], 64
    s_load_dwordx2 s[18:19], s[0:1], 72
    s_load_dwordx4 s[56:59], s[0:1], 40
    s_load_dwordx2 s[62:63], s[0:1], 56
    v_lshrrev_b32 v1, 6, v0
    v_and_b32 v2, 63, v0
    v_readfirstlane_b32 s95, v1
    s_cmp_ge_u32 s2, {GRID}
    s_cbranch_scc1 M_exit
    """)
    mstamp_begin(a)
    a(f"""
    v_lshlrev_b32 v3, 4, v2
    v_lshrrev_b32 v4, 5, v2
    v_and_b32 v5, 31, v2
    s_mul_i32 s3, s95, 10240
    """)
    map_p1(a, 42, 43, 40, MAP1)
    p0b.p0(a, int(os.environ.get('NPF', 2)))
    rt_ld, rt_rd, rt_cs, rt_cs2, rt_st, rt_se = p0b.rt_setup(a)
    assert not rt_ld
    RTW = p0b.RTL in ('p0', 'ln')
    if RTW:
        tt_ = [a.ds(x_) for x_ in rt_rd]; rt_rd = []
        for n_ in range(5):
            a.wait(lg=tt_[2 * n_ + 1]); a(rt_cs[n_]); a(rt_st[n_][0])
        for n_ in range(4):
            a.wait(lg=tt_[11 + 2 * n_]); a(rt_st[6 + n_][0]); a(rt_st[6 + n_][1]); a(rt_se[n_][0]); a(rt_se[n_][1])
        for x_ in rt_cs2: a(x_)
        a(rt_st[5][0])
        rt_cs = []; rt_cs2 = []; rt_st = []; rt_se = []
        mmark(a, "p0_rt")
    EB, XL, QB = 0, 61440, 122880
    srd(a, 64, 20, WO_OFF, WO_SZ)
    srd(a, 36, 20, KV_OFF, KV_SZ)
    srd(a, 68, 4, 0, 2621440)
    map_p4(a, 100, 101, 40, MAP2)
    a(f"""
    s_lshl_b32 s44, s42, 2
    s_add_u32 s44, s44, s95
    s_mul_i32 s45, s44, 40960
    s_mul_i32 s46, s43, 153600
    s_mul_i32 s47, s95, 3072
    s_lshl_b32 s48, s95, 13
    s_mul_i32 s40, s101, 5
    s_lshr_b32 s40, s40, 2
    s_mul_i32 s40, s40, 20
    s_mul_i32 s41, s95, 5
    s_add_u32 s40, s40, s41
    s_lshl_b32 s40, s40, 4
    s_add_u32 s40, s40, {F6_O}
    v_and_b32 v62, 7, v2
    v_min_u32 v62, 4, v62
    v_lshl_add_u32 v62, v62, 4, s40
    v_bfe_u32 v63, v2, 3, 1
    v_mul_u32_u24 v63, 320, v63
    v_add_u32 v62, v62, v63
    s_mul_i32 s22, s101, 100
    s_add_u32 s22, s22, s41
    s_lshl_b32 s22, s22, 10
    v_lshlrev_b32 v6, 7, v4
    v_sub_u32 v6, v3, v6
    v_add_u32 v6, {QB}, v6
    v_add_u32 v7, {20*3072}, v3
    s_lshl_b32 s40, s95, 5
    v_add_u32 v11, s40, v5
    v_mul_u32_u24 v11, 272, v11
    v_lshl_add_u32 v11, v4, 7, v11
    v_bfe_u32 v56, v2, 2, 2
    v_lshlrev_b32 v56, 2, v56
    v_lshl_add_u32 v56, v4, 1, v56
    v_mul_u32_u24 v56, 272, v56
    v_bfe_u32 v57, v2, 4, 1
    v_lshl_add_u32 v56, v57, 5, v56
    v_and_b32 v57, 3, v2
    v_lshl_add_u32 v56, v57, 3, v56
    s_lshr_b32 s51, s95, 1
    s_and_b32 s55, s95, 1
    s_lshl_b32 s40, s51, 7
    v_add_u32 v56, s40, v56
    s_mul_i32 s40, s55, 40
    v_add_u32 v57, s40, v56
    s_lshl_b32 s40, s95, 12
    s_add_u32 s40, s40, 40960
    v_mul_u32_u24 v58, 384, v4
    v_lshl_add_u32 v58, v5, 4, v58
    v_add_u32 v58, s40, v58
    v_lshl_add_u32 v59, v2, 2, s40
    v_lshlrev_b32 v60, 2, v2
    s_lshl_b32 s54, s43, 1
    s_add_u32 s54, s54, s51
    s_mul_i32 s54, s54, 3840
    s_mul_i32 s55, s55, 1920
    s_add_u32 s54, s54, s55
    s_lshl_b32 s49, s43, 4
    s_add_u32 s49, s49, s42
    s_lshl_b32 s49, s49, 4
    s_add_u32 s49, s49, {F2A_O}
    s_lshl_b32 s50, s2, 4
    s_add_u32 s50, s50, {F6_O}
    s_cmp_eq_u32 s95, 3
    s_cselect_b32 s50, s50, 0x1000000
    s_cmp_eq_u32 s95, 0
    s_cselect_b32 s49, s49, s50
    v_mov_b32 v61, 0x1000000
    v_writelane_b32 v61, s49, 0
    v_mov_b32 v19, s93
    s_lshl_b32 s40, s2, 4
    s_add_u32 s40, s40, {F5_O}
    s_cmp_eq_u32 s95, 2
    s_cselect_b32 s40, s40, s50
    v_mov_b32 v10, 0x1000000
    v_writelane_b32 v10, s40, 0
    s_lshl_b32 s56, s100, 2
    s_add_u32 s56, s56, s95
    s_mul_i32 s56, s56, {16*1280}
    s_mul_i32 s41, s101, 160
    s_add_u32 s56, s56, s41
    s_movk_i32 s41, 6554
    """)
    for n in range(3):
        a(f"""
        v_add_u32 v8, {64*n}, v2
        v_min_u32 v8, 159, v8
        v_mul_u32_u24 v9, s41, v8
        v_lshrrev_b32 v9, 16, v9
        v_mul_u32_u24 v9, {1280-160}, v9
        v_lshl_add_u32 v{16+n}, v8, 4, v9
        """)
    if PRET:
        map_p3(a, 60, 61, 40)
        a(f"""
        s_lshl_b32 s40, s60, 2
        s_add_u32 s40, s40, s95
        s_mul_i32 s40, s40, 114688
        s_lshr_b32 s41, s61, 2
        s_mul_i32 s41, s41, 14336
        s_add_u32 s40, s40, s41
        s_and_b32 s41, s61, 3
        s_lshl_b32 s41, s41, 9
        s_add_u32 s40, s40, s41
        s_add_u32 s40, s40, {HH_OFF}
        v_and_b32 v20, 3, v2
        v_lshlrev_b32 v20, 7, v20
        v_bfe_u32 v21, v2, 2, 3
        v_min_u32 v21, 6, v21
        v_lshl_add_u32 v20, v21, 11, v20
        v_mul_u32_u24 v21, 57344, v4
        v_add3_u32 v20, v20, v21, s40
        s_lshl_b32 s40, s100, 1
        s_lshr_b32 s41, s95, 1
        s_add_u32 s40, s40, s41
        s_mul_i32 s40, s40, 40960
        s_mul_i32 s41, s101, 5120
        s_add_u32 s40, s40, s41
        s_and_b32 s41, s95, 1
        s_lshl_b32 s41, s41, 8
        s_add_u32 s40, s40, s41
        s_add_u32 s40, s40, {H_OFF}
        v_lshrrev_b32 v21, 1, v2
        v_min_u32 v21, 9, v21
        v_lshlrev_b32 v21, 9, v21
        v_and_b32 v22, 1, v2
        v_lshl_add_u32 v21, v22, 7, v21
        v_add_u32 v21, s40, v21
        """)
    srd(a, 24, 20, XN_OFF, XN_SZ)
    srd_dyn(a, 28, 20, W1_OFF, 46, 153600)
    mspill(a)
    poll(a, "M_poll1", 12, "0", 9)
    mmark(a, "p1_sync")
    L = Loads(a, P1LIM)
    for n in range(10):
        g = 11 if n >= 9 else None
        L.add(f"buffer_load_dwordx4 a[{16*n}:{16*n+3}], v3, s[24:27], s45 offen {SC}", pre=f"s_add_u32 m0, s47, {12288*n}", gate=g)
        for c in range(3):
            L.add(f"buffer_load_dwordx4 v3, s[28:31], m0 offen offset:{1024*c} {SC} lds", gate=g)
        for c in range(1, 4):
            L.add(f"buffer_load_dwordx4 a[{16*n+4*c}:{16*n+4*c+3}], v3, s[24:27], s45 offen offset:{1024*c} {SC}",
                  tag=n if c == 3 else None, post="s_add_u32 s45, s45, 4096" if c == 3 and n < 9 else None, gate=g)
    for c in range(8):
        L.add(f"buffer_load_dwordx4 v3, s[28:31], m0 offen offset:{1024*(c%4)} {SC} lds", pre=f"s_add_u32 m0, s48, {QB + 1024*c}" if c % 4 == 0 else None, gate=11, tag='qb' if c == 7 else None)
    for n in range(3):
        L.add(f"buffer_load_dwordx4 v{16+n}, s[68:71], s56 offen nt lds", pre=f"s_add_u32 m0, s47, {XL + 1024*n}", gate=27)
    L.pump(14)
    for tx_, po in rt_se: L.add(tx_, post=po, gate=34)
    for n_, (tx_, po) in enumerate(rt_st): L.add(tx_, post=po, gate=50, tag='rts' if n_ == len(rt_st) - 1 else None)
    if RTW: L.add("buffer_store_dword v19, v10, s[8:11], 0 offen sc0 sc1", gate=4)
    L.add("buffer_load_dword v63, v62, s[8:11], 0 offen sc1", tag='f6', gate=60)
    def woreg(T, k):
        r = 156 + 4 * ((5 * T + k + 1) % 25)
        return f"a[{r}:{r+3}]"
    for k in range(5):
        for T in range(5):
            L.add(f"buffer_load_dwordx4 {woreg(T, k)}, v3, s[64:67], s23 offen {SC}", pre=f"s_add_u32 s23, s22, {T*20480 + 1024*k}", gate=70, tag=('WO', k))
    ACC = 64; WF = 24
    def rd(s, T):
        r = WF + 4 * ((s % 2) * 3 + T)
        return a.ds(f"ds_read_b128 v[{r}:{r+3}], v{3 if s < 20 else 7} offset:{(s % 20) * 3072 + T * 1024}")
    tR = {}
    L.need(0)
    a("s_barrier")
    mmark(a, "p1_first")
    for T in range(3): tR[(0, T)] = rd(0, T)
    for s in range(40):
        nxt = s + 1
        if nxt < 40 and nxt % 4 == 0:
            L.need(nxt // 4, gate=s - 1)
            a("s_barrier")
        for T in range(3):
            if nxt < 40: tR[(nxt, T)] = rd(nxt, T)
            a.wait(lg=tR[(s, T)])
            r = WF + 4 * ((s % 2) * 3 + T)
            d = ACC + 16 * T
            a(f"v_mfma_f32_32x32x16_bf16 v[{d}:{d+15}], v[{r}:{r+3}], a[{4*s}:{4*s+3}], " + ("0" if s == 0 else f"v[{d}:{d+15}]"))
            if s >= 1 and rt_rd:
                a(rt_rd.pop(0))
            elif s == 12 and T == 0:
                for x_ in rt_cs: a(x_)
            elif s in (16, 17) and rt_cs2:
                a(rt_cs2.pop(0))
            if T != 1 or s >= 36:
                if 9 in L.t: L.paced(gate=s)
                else: L.pump(1, gate=s)
    assert not rt_rd
    mmark(a, "p1_loop")
    if PRET == 2: a("global_load_dword v22, v21, s[20:21] sc1\nglobal_load_dword v22, v20, s[20:21] sc1")
    pa = Paced(a, L, 8, gate=45)
    E, O, TMP, VP = 128, 168, 12, 188
    softmax_pair(pa, 64, E, O, TMP)
    for c in range(5):
        a(f"ds_write_b128 v11, v[{O+4*c}:{O+4*c+3}] offset:{16*c}")
        for i in range(2 * c, min(2 * c + 2, 9)):
            a(f"v_cvt_pk_bf16_f32 v{VP+i}, v{84+2*i}, v{85+2*i}")
    a(f"v_mov_b32 v{VP+9}, 0x3f80\nv_cvt_pk_bf16_f32 v{VP+10}, v102, v103\nv_mov_b32 v{VP+11}, 0x3f80")
    for c in range(3):
        a(f"ds_write_b128 v11, v[{VP+4*c}:{VP+4*c+3}] offset:{80+16*c}")
    if RTW: L.lim = 60; L.pump(1, gate=60)
    a.wait_all_lg()
    L.need('qb')
    a("s_barrier")
    mmark(a, "p1_ksm")
    tk = []
    FA, FB, KD = 128, 200, 24
    def kvm(k2):
        a.wait(lg=tk[k2])
        a(f"v_mfma_f32_32x32x16_bf16 v[{KD}:{KD+15}], v[{FA+4*k2}:{FA+4*k2+3}], v[{FB+4*k2}:{FB+4*k2+3}], " + ("0" if k2 == 0 else f"v[{KD}:{KD+15}]"))
    for ks in range(8):
        for rho in range(2):
            off = (16 * ks + rho) * 272
            a(f"ds_read_b64_tr_b16 v[{FA+4*ks+2*rho}:{FA+4*ks+2*rho+1}], v57 offset:{off}")
            t = a.ds(f"ds_read_b64_tr_b16 v[{FB+4*ks+2*rho}:{FB+4*ks+2*rho+1}], v56 offset:{off+80}")
        tk.append(t)
        if ks >= 2: kvm(ks - 2)
    kvm(6); kvm(7)
    a("s_mov_b32 exec_lo, 0xffffff\ns_mov_b32 exec_hi, 0xffffff")
    for c in range(3):
        a(f"ds_write_b128 v58, v[{KD+4*c}:{KD+3+4*c}] offset:{768*c}")
    a("s_mov_b64 exec, -1")
    tk = [a.ds(f"ds_read_b32 v{40+i}, v59 offset:{256*i}") for i in range(8)]
    def rdq(s):
        r = 128 + 4 * (s % 10)
        return a.ds(f"ds_read_b128 v[{r}:{r+3}], v6 offset:{768*s}")
    tq = [rdq(s) for s in range(6)]
    if a.vm_issued - a.vm_done > 40: a.wait(vm=a.vm_issued - 24)
    for i in range(8):
        a.wait(lg=tk[i])
        if i == 7: a("s_mov_b32 exec_hi, 0")
        a(f"buffer_atomic_add_f32 v{40+i}, v60, s[36:39], s54 offen offset:{256*i}")
    a("s_mov_b64 exec, -1")
    mmark(a, "p1_atom")
    tat = a.vm_issued
    def pretouch():
        a("global_load_dword v22, v21, s[20:21] sc1\nglobal_load_dword v22, v20, s[20:21] sc1")
    if PRET == 1: pretouch()
    P = lambda r: f"v[{r}:{r+1}]"
    L.lim = 60
    def sig2a():
        a.wait(vm=tat)
        a("s_barrier")
        a("buffer_store_dword v19, v61, s[8:11], 0 offen sc0 sc1")
        mmark(a, "p1_sig")
    for s in range(40):
        if s + 6 < 40: tq.append(rdq(s + 6))
        if s % 2 == 0: a.wait(lg=tq[s + 1])
        r = 128 + 4 * (s % 10)
        a(f"v_mfma_f32_32x32x16_bf16 v[112:127], v[{r}:{r+3}], a[{4*s}:{4*s+3}], " + ("0" if s == 0 else "v[112:127]"))
        if s >= RQ0 and s % 2 == 1: L.paced(gate=50)
        if s == SIG2: sig2a()
    assert RTW or 'rts' in L.t
    mmark(a, "p1_q")
    if RTW: check_flags(a, "M_f6", 63, 62, "0", False)
    softmax_pair(Paced(a, L, WOP, gate=99) if RTW else a, 104, E, O, TMP)
    for c in (0, 2):
        for j in range(4):
            a(f"v_permlane32_swap_b32 v{O+4*c+j}, v{O+4*c+4+j}")
    mmark(a, "p1_qsm")
    srd(a, 24, 20, KV_OFF, KV_SZ)
    srd(a, 28, 20, O_OFF, O_SZ)
    a(f"""
    v_min_u32 v6, 23, v5
    v_lshlrev_b32 v6, 4, v6
    v_mul_u32_u24 v7, 3840, v4
    v_add_u32 v7, v7, v6
    v_mul_u32_u24 v8, 768, v4
    v_add_u32 v6, v8, v6
    s_mul_i32 s45, s43, 7680
    s_add_u32 s46, s45, 3840
    v_and_b32 v8, 15, v2
    v_lshlrev_b32 v8, 4, v8
    s_lshl_b32 s47, s43, 8
    s_add_u32 s47, s47, {F2A_O}
    v_lshrrev_b32 v10, 4, v5
    v_mul_u32_u24 v10, {O_TT}, v10
    v_add_u32 v10, v10, v8
    v_lshl_add_u32 v11, v4, 8, v10
    s_mul_i32 s48, s44, {2*O_TT}
    s_mul_i32 s49, s43, 1280
    s_add_u32 s48, s48, s49
    s_lshl_b32 s49, s44, 4
    s_add_u32 s49, s49, s43
    s_lshl_b32 s49, s49, 4
    s_add_u32 s49, s49, {FO_O}
    """)
    for r in range(12, 20): a(f"v_mov_b32 v{r}, 0")
    mspill(a)
    poll(a, "M_poll2a", 8, "s47", 9)
    mmark(a, "p1b_sync")
    b = 64
    for hh in range(2):
        for u in range(2):
            for e in range(2):
                r = b + 16 * hh + 8 * u + 4 * e
                a(f"buffer_load_dwordx4 v[{r}:{r+3}], v6, s[24:27], s{45+hh} offen offset:{(4*u+e)*384} {SC}")
        if hh == 0:
            for e in range(2):
                r = b + 32 + 4 * e
                t0 = a.vm(f"buffer_load_dwordx4 v[{r}:{r+3}], v7, s[24:27], s45 offen offset:{(8+e)*384} {SC}")
    t1 = a.vm_issued
    if not RTW: a("s_barrier")
    OD, OB = [24, 40], 56
    for hh in range(2):
        a.wait(vm=t0 if hh == 0 else t1)
        if hh == 0: mmark(a, "p1b_kv")
        for u in range(2):
            r = b + 16 * hh + 8 * u
            for j in range(4):
                a(f"v_cvt_pk_bf16_f32 v{r+j}, v{r+2*j}, v{r+2*j+1}")
        a("s_mov_b32 exec_hi, 0" if hh == 0 else "s_mov_b32 exec_lo, 0")
        for j in range(4): a(f"v_cvt_pk_bf16_f32 v{12+4*hh+j}, v{b+32+2*j}, v{b+33+2*j}")
        a("s_mov_b64 exec, -1")
        d = OD[hh]
        for u in range(2):
            r = b + 16 * hh + 8 * u
            q = O + 8 * u + 4 * hh
            a(f"v_mfma_f32_32x32x16_bf16 v[{d}:{d+15}], v[{r}:{r+3}], v[{q}:{q+3}], " + ("0" if u == 0 else f"v[{d}:{d+15}]"))
        a(f"v_mfma_f32_32x32x16_bf16 v[{d}:{d+15}], v[{12+4*hh}:{15+4*hh}], v[{O+16}:{O+19}], v[{d}:{d+15}]")
    OB = 104
    for hh in range(2):
        d = OD[hh]
        a(f"v_add_f32 v{d+10}, {f32(1e-6)}, v{d+10}")
        a(f"v_rcp_f32 v{d+10}, v{d+10}")
        for j in range(0, 10, 2):
            a(f"v_pk_mul_f32 {P(d+j)}, {P(d+j)}, {P(d+10)} op_sel_hi:[1,0]")
        for j in range(5):
            a(f"v_cvt_pk_bf16_f32 v{OB+5*hh+j}, v{d+2*j}, v{d+2*j+1}")
        if hh == 0:
            a(f"buffer_store_dwordx4 v[{OB}:{OB+3}], v11, s[28:31], s48 offen {SC}")
    a(f"""
    buffer_store_dwordx4 v[{OB+4}:{OB+7}], v11, s[28:31], s48 offen offset:512 {SC}
    v_permlane32_swap_b32 v{OB+8}, v{OB+10}
    v_permlane32_swap_b32 v{OB+9}, v{OB+11}
    s_mov_b32 exec_hi, 0
    """)
    tst = a.vm(f"buffer_store_dwordx4 v[{OB+8}:{OB+11}], v10, s[28:31], s48 offen offset:1024 {SC}")
    a("s_mov_b32 exec_hi, -1")
    if not RTW: L.pump(1, gate=60)
    mmark(a, "p1b_st")
    map_p3(a, 60, 61, 40)
    a(f"""
    s_mul_i32 s62, s61, 27
    s_lshr_b32 s62, s62, 1
    s_mul_i32 s40, s62, 20480
    """)
    srd_dyn(a, 12, 20, W3_OFF - 81920, 40, 163840)
    srd_dyn(a, 16, 20, W3_OFF + 81920, 40, 163840)
    srd_dyn(a, 68, 20, W3_OFF + 245760, 40, 40960)
    a.wait(vm=tst)
    signal(a, "s49", 8)
    if not RTW:
        a(f"s_sub_u32 s50, s50, {F6_O - F5_O}")
        signal(a, "s50", 8)
    mmark(a, "p1b_sig")
    if not RTW:
        L.need('f6')
        check_flags(a, "M_f6", 63, 62, "0", False)
    L.pump(WO1, gate=99); woq = [(x[0], x[1], x[2], x[3], None) for x in L.q]
    PB2, TB2 = 0, XL
    srd(a, 24, 20, H_OFF, H_SZ)
    srd(a, 32, 20, ST_OFF, ST_SZ)
    a(f"""
    s_mul_i32 s44, s95, 5
    s_mul_i32 s45, s100, {4*O_TT//1024}
    s_add_u32 s45, s45, s44
    s_lshl_b32 s45, s45, 10
    v_and_b32 v7, 3, v2
    v_lshlrev_b32 v7, 4, v7
    v_bfe_u32 v8, v2, 2, 1
    v_lshl_add_u32 v7, v8, 8, v7
    s_lshl_b32 s46, s100, 9
    s_lshl_b32 s47, s95, 6
    s_add_u32 s46, s46, s47
    s_add_u32 s46, s46, {FO_O}
    s_mul_i32 s47, s95, 15360
    v_add_u32 v6, s47, v3
    """)
    for j in range(1, 4):
        a(f"""
        s_add_u32 s47, s95, {j}
        s_and_b32 s47, s47, 3
        s_mul_i32 s47, s47, 15360
        s_add_u32 s47, s47, {PB2 + (3-j)*5120}
        v_add_u32 v{9+j}, s47, v3
        """)
    map_p4(a, 58, 59, 40)
    a(f"""
    v_and_b32 v13, 15, v2
    v_lshrrev_b32 v14, 4, v2
    v_mul_u32_u24 v17, 160, v13
    v_lshl_add_u32 v17, v14, 3, v17
    s_mul_i32 s51, s95, 3072
    s_add_u32 s52, s51, {XL}
    v_add_u32 v15, s52, v17
    s_add_u32 s51, s51, {TB2}
    v_add_u32 v17, s51, v17
    v_mul_u32_u24 v18, 160, v13
    v_lshl_add_u32 v18, v14, 4, v18
    v_add_u32 v18, s51, v18
    v_lshlrev_b32 v19, 4, v13
    v_lshl_add_u32 v19, v14, 9, v19
    s_lshl_b32 s48, s100, 1
    s_lshr_b32 s49, s95, 1
    s_add_u32 s48, s48, s49
    s_lshl_b32 s53, s48, 3
    s_add_u32 s53, s53, s101
    s_lshl_b32 s53, s53, 8
    s_mul_i32 s48, s48, 40960
    s_mul_i32 s49, s101, 5120
    s_add_u32 s48, s48, s49
    s_and_b32 s49, s95, 1
    s_lshl_b32 s50, s49, 7
    s_add_u32 s53, s53, s50
    s_lshl_b32 s49, s49, 8
    s_add_u32 s48, s48, s49
    s_add_u32 s49, s48, 4096
    s_lshl_b32 s56, s100, 2
    s_add_u32 s56, s56, s95
    s_lshl_b32 s56, s56, 3
    s_add_u32 s56, s56, s101
    s_lshl_b32 s56, s56, 4
    s_add_u32 s56, s56, {F3_O}
    s_mov_b32 s54, 0xffff0000
    s_lshr_b32 s50, s62, 3
    s_lshl_b32 s50, s50, 2
    v_min_u32 v20, 11, v13
    v_add_u32 v20, s50, v20
    v_min_u32 v20, 107, v20
    v_and_b32 v21, 1, v14
    v_mul_u32_u24 v16, 108, v21
    v_add_u32 v20, v20, v16
    s_mul_i32 s50, s59, 5
    s_lshr_b32 s50, s50, 2
    s_mul_i32 s50, s50, 56
    s_mul_i32 s51, s95, 14
    s_add_u32 s50, s50, s51
    v_min_u32 v16, 13, v13
    v_mul_u32_u24 v21, 56, v21
    v_add3_u32 v16, v16, v21, s50
    v_min_u32 v16, 559, v16
    v_lshrrev_b32 v21, 1, v16
    v_subrev_u32 v22, {512-208}, v16
    v_cmp_le_u32 vcc, 512, v16
    v_cndmask_b32 v16, v21, v22, vcc
    v_cmp_le_u32 vcc, 32, v2
    v_cndmask_b32 v20, v20, v16, vcc
    v_lshlrev_b32 v20, 4, v20
    s_mov_b32 s57, {F5_O}
    """)
    if RTW: tf = a.vm("buffer_load_dword v21, v20, s[8:11], s57 offen sc1")
    tx = [a.ds(f"ds_read_b64 v[{112+2*T}:{113+2*T}], v15 offset:{32*T}") for T in range(5)]
    A4 = [72, 92]; RS_, PS = 24, 44
    a.wait(lg=tx[4])
    for j in range(10):
        a(f"v_lshlrev_b32 v{128+2*j}, 16, v{112+j}")
        a(f"v_and_b32 v{129+2*j}, s54, v{112+j}")
    L0 = Loads(a, 60); w3_dma(L0, 0, 3); w3_dma(L0, 1, 3)
    if RTW:
        a.wait(vm=tf)
        check_flags(a, "M_f5", 21, 20, "s57", False)
        L0.pump(W3EARLY, gate=3)
    mspill(a)
    poll(a, "M_poll2b", 7, "s46", 9)
    mmark(a, "p2_sync")
    L = Loads(a, 40)
    order = [(sl, k) for sl in (1, 2, 3, 0) for k in range(5)]
    for i, (sl, k) in enumerate(order):
        pre = None
        if k == 0:
            pre = f"s_add_u32 s55, s95, {sl}\ns_and_b32 s55, s55, 3\ns_mul_i32 s55, s55, {O_TT}\ns_add_u32 s55, s55, s45"
        elif k == 4:
            pre = "s_add_u32 s55, s55, 4096"
        L.add(f"buffer_load_dwordx4 a[{4*i}:{4*i+3}], v3, s[28:31], s55 offen offset:{1024*(k%4)} {SC} {NT4}", pre=pre, tag=i)
        while woq and woq[0][1][1] <= i + 1: L.q.append(woq.pop(0))
        if i == F5I and not RTW: L.add("buffer_load_dword v21, v20, s[8:11], s57 offen sc1", tag='f5')
    L.q += L0.q; L.t.update(L0.t)
    if TOUCH:
        nsh = 4 if MAP4 == 'row' else 8
        per = 560 // nsh
        nin = (per + 63) // 64
        srd(a, 64, 20, W4_OFF, W4_SZ)
        a(f"""
        s_mov_b32 s36, s16
        s_mov_b32 s37, s17
        s_mov_b32 s38, 204800
        s_mov_b32 s39, 0x20000
        s_and_b32 s40, s60, 7
        s_lshl_b32 s40, s40, 2
        s_add_u32 s40, s40, s95
        s_mul_i32 s22, s40, {50*128}
        v_min_u32 v148, 49, v2
        v_lshlrev_b32 v148, 7, v148
        s_and_b32 s40, s58, {nsh-1}
        s_mul_i32 s40, s40, {per}
        s_mul_i32 s41, s95, 14
        s_mul_i32 s23, s59, {5*56}
        s_add_u32 s23, s23, s41
        s_lshl_b32 s23, s23, 10
        s_movk_i32 s41, 586
        """)
        L.add("buffer_load_dword v152, v148, s[36:39], s22 offen sc1", gate=3)
        for q in range(nin):
            a(f"""
            v_add_u32 v153, {64*q}, v2
            v_min_u32 v153, {per-1}, v153
            v_add_u32 v153, s40, v153
            v_mul_u32_u24 v154, s41, v153
            v_lshrrev_b32 v154, 16, v154
            v_mul_u32_u24 v154, {57344 - 112*128}, v154
            v_lshl_add_u32 v{149+q}, v153, 7, v154
            """)
            L.add(f"buffer_load_dword v152, v{149+q}, s[64:67], s23 offen sc1", gate=3)
    L.pump(12)
    ACC2 = [72, 92, 72, 128]
    def flush_p(ph):
        dp = ACC2[ph]
        for T in range(5):
            a(f"ds_write_b128 v6, v[{dp+4*T}:{dp+4*T+3}] offset:{ph*5120 + T*1024}")
    wr = []
    for i, (sl, k) in enumerate(order):
        ph = i // 5
        d = ACC2[ph]
        L.need(i)
        if i == 0: mmark(a, "p2_first")
        if i == F5I + 1 and not RTW: check_flags(a, "M_f5", 21, 20, "s57", False)
        for T in range(5):
            a(f"v_mfma_f32_16x16x32_bf16 v[{d+4*T}:{d+4*T+3}], {woreg(T, k)}, a[{4*i}:{4*i+3}], " + ("0" if k == 0 and ph < 3 else f"v[{d+4*T}:{d+4*T+3}]"))
            if wr and T in (0, 2, 4): a(wr.pop(0))
            elif T == 1 or T == 3: L.pump(1, gate=3 if i > F5I else None)
        if k == 0 and ph > 0:
            dp = ACC2[ph - 1]
            wr = [f"ds_write_b128 v6, v[{dp+4*T}:{dp+4*T+3}] offset:{(ph-1)*5120 + T*1024}" for T in range(5)]
    assert not wr and not woq
    a.wait_all_lg()
    a("s_barrier")
    mmark(a, "p2_bar")
    tk = []
    for j, rb in enumerate((RS_, PS, A4[0])):
        for T in range(5):
            t = a.ds(f"ds_read_b128 v[{rb+4*T}:{rb+4*T+3}], v{10+j} offset:{1024*T}")
        tk.append(t)
    a("v_mov_b32 v14, 0x3f803f80\nv_mov_b32 v112, 0\nv_mov_b32 v113, 0")
    for j, rb in enumerate((RS_, PS, A4[0])):
        a.wait(lg=tk[j])
        for r in range(0, 20, 2):
            a(f"v_pk_add_f32 {P(128+r)}, {P(128+r)}, {P(rb+r)}")
    for j in range(10):
        a(f"v_cvt_pk_bf16_f32 v{RS_+j}, v{128+2*j}, v{129+2*j}")
    for T in range(5):
        a(f"ds_write_b64 v17, v[{RS_+2*T}:{RS_+2*T+1}] offset:{32*T}")
    for j in range(10):
        a(f"v_dot2c_f32_bf16 v112, v{RS_+j}, v14")
        a(f"v_dot2c_f32_bf16 v113, v{RS_+j}, v{RS_+j}")
    a.wait_all_lg()
    tk = [a.ds(f"ds_read_b128 v[{PS+4*it}:{PS+4*it+3}], v18 offset:{64*it}") for it in range(3)]
    a(f"""
    v_mov_b32 v114, v112
    v_mov_b32 v115, v113
    v_permlane32_swap_b32 v112, v114
    v_permlane32_swap_b32 v113, v115
    v_pk_add_f32 v[112:113], v[112:113], v[114:115]
    """)
    for it in range(3):
        a.wait(lg=tk[it])
        if it == 2: a("s_mov_b32 exec_hi, 0")
        a(f"buffer_store_dwordx4 v[{PS+4*it}:{PS+4*it+3}], v19, s[24:27], s{48 if it < 2 else 49} offen offset:{2048*(it%2)} {LS}")
    a(f"""
    s_mov_b32 exec_hi, -1
    v_mov_b32 v114, v112
    v_mov_b32 v115, v113
    v_lshlrev_b32 v13, 3, v13
    v_permlane16_swap_b32 v112, v114
    v_permlane16_swap_b32 v113, v115
    v_pk_add_f32 v[112:113], v[112:113], v[114:115]
    s_mov_b64 exec, 0xffff
    """)
    tst = a.vm(f"buffer_store_dwordx2 v[112:113], v13, s[32:35], s53 offen {LS}")
    a("s_mov_b64 exec, -1")
    mmark(a, "p2_st")
    if P2A: L.pump(99, gate=3)
    srd(a, 28, 20, ST_OFF, ST_SZ)
    a.wait(vm=tst)
    signal(a, "s56", 8, LF)
    mmark(a, "p2_sig")
    L.need(('W3', 1), gate=3)
    a("s_barrier")
    L.pump(99, gate=3); w3_dma(L, 2); L.pump(99)
    map_p4(a, 100, 101, 40)
    a(f"""
    s_lshl_b32 s44, s60, 2
    s_add_u32 s44, s44, s95
    s_mul_i32 s45, s44, 40960
    v_bfe_u32 v7, v2, 2, 1
    v_bfe_u32 v8, v2, 4, 1
    v_xor_b32 v9, v8, v4
    v_lshlrev_b32 v9, 7, v9
    v_lshl_add_u32 v9, v8, 8, v9
    v_bfe_u32 v8, v2, 3, 1
    v_lshl_add_u32 v9, v8, 6, v9
    v_and_b32 v8, 3, v2
    v_lshl_add_u32 v9, v8, 4, v9
    v_lshl_add_u32 v8, v7, 9, v9
    v_mul_u32_u24 v7, 20480, v7
    v_add_u32 v10, v7, v9
    v_add_u32 v11, 40960, v10
    v_add_u32 v12, 81920, v10
    v_add_u32 v13, 122880, v10
    """)
    srd(a, 12, 20, CS_OFF, CS_SZ)
    a("s_lshl_b32 s46, s62, 9\ns_add_u32 s47, s46, 4096\nv_mov_b32 v0, v8")
    def cs_ld(T):
        return f"buffer_load_dwordx4 a[{160+4*(T%3)}:{163+4*(T%3)}], v0, s[12:15], s{46 if T < 4 else 47} offen offset:{1024*(T%4)} {SC}"
    for T in range(3): a(cs_ld(T))
    srd(a, 36, 20, HH_OFF, HH_SZ)
    srd(a, 32, 20, RS_OFF, RS_SZ)
    a(f"""
    v_lshlrev_b32 v6, 3, v5
    v_lshl_add_u32 v6, v4, 10, v6
    s_lshl_b32 s48, s44, 11
    v_lshrrev_b32 v20, 4, v5
    v_mul_u32_u24 v20, 57344, v20
    v_and_b32 v21, 15, v2
    v_lshlrev_b32 v7, 4, v21
    v_add_u32 v20, v7, v20
    v_lshl_add_u32 v20, v4, 8, v20
    s_mul_i32 s50, s44, 114688
    s_lshr_b32 s51, s61, 2
    s_mul_i32 s51, s51, 14336
    s_add_u32 s50, s50, s51
    s_and_b32 s51, s61, 3
    s_lshl_b32 s51, s51, 9
    s_add_u32 s50, s50, s51
    s_lshr_b32 s51, s44, 1
    s_lshl_b32 s51, s51, 2
    s_lshr_b32 s52, s61, 2
    s_add_u32 s51, s51, s52
    s_lshl_b32 s51, s51, 7
    s_and_b32 s52, s44, 1
    s_lshl_b32 s52, s52, 4
    s_add_u32 s51, s51, s52
    s_and_b32 s52, s61, 3
    s_lshl_b32 s52, s52, 2
    s_add_u32 s51, s51, s52
    v_mov_b32 v8, 0x1000000
    v_writelane_b32 v8, s51, 0
    v_mov_b32 v1, s93
    s_mov_b32 s58, {F4E_O}
    s_mov_b32 s59, {F4_O}
    s_lshl_b32 s51, s44, 8
    s_add_u32 s51, s51, {F3_O}
    s_lshr_b32 s52, s61, 2
    s_lshl_b32 s52, s52, 13
    s_lshl_b32 s53, s44, 7
    s_add_u32 s52, s52, s53
    s_and_b32 s53, s61, 3
    s_cmp_eq_u32 s53, 1
    s_cselect_b32 s52, s52, 0x1000000
    """)
    def w4reg(i):
        if i < 21: return f"a[{172+4*i}:{175+4*i}]"
        if i < 53: return f"v[{252-4*(i-21)}:{255-4*(i-21)}]"
        return f"a[{96+4*(i-53)}:{99+4*(i-53)}]"
    def w4_item(i):
        k, T = divmod(i, 5)
        return dict(text=f"buffer_load_dwordx4 {w4reg(i)}, v3, s[64:67], s23 offen {SC}", pre=f"s_add_u32 s23, s22, {T*57344 + 1024*k}", tag=('W4', i))
    srd(a, 64, 20, W4_OFF, W4_SZ)
    a(f"""
    s_mul_i32 s40, s95, 14
    s_mul_i32 s22, s101, {5*56}
    s_add_u32 s22, s22, s40
    s_lshl_b32 s22, s22, 10
    """)
    if TOUCH3:
        a(f"""
        s_and_b32 s40, s60, 7
        s_lshl_b32 s40, s40, 2
        s_add_u32 s40, s40, s95
        s_mul_i32 s40, s40, {30*128}
        s_mul_i32 s41, s62, 20480
        s_add_u32 s40, s40, s41
        s_add_u32 s40, s40, {W3_OFF + 163840}
        v_min_u32 v72, 29, v2
        v_lshl_add_u32 v72, v72, 7, s40
        s_and_b32 s40, s100, 7
        s_mul_i32 s40, s40, 50
        v_min_u32 v73, 49, v2
        v_add_u32 v73, s40, v73
        s_movk_i32 s41, 820
        v_mul_u32_u24 v74, s41, v73
        v_lshrrev_b32 v74, 16, v74
        v_mul_u32_u24 v74, {57344 - 80*128}, v74
        v_lshl_add_u32 v73, v73, 7, v74
        s_add_u32 s40, s22, {W4_OFF + 4096}
        v_add_u32 v73, s40, v73
        """)
    Lw = Loads(a, 60)
    for q in range(W4S3): Lw.add(**w4_item(q))
    Lw.pump(99)
    mspill(a)
    poll(a, "M_poll3", 7, "s51", 9)
    mmark(a, "p3_sync")
    L = Loads(a, P3LIM)
    SR = 64
    for n in range(40):
        L.add(f"buffer_load_dwordx4 a[{4*n}:{4*n+3}], v3, s[24:27], s45 offen offset:{1024*(n%4)} {SC} {NT3}", tag=n,
              post="s_add_u32 s45, s45, 4096" if n % 4 == 3 else None)
        if n == 11:
            for p in range(4):
                L.add(f"buffer_load_dwordx2 v[{SR+2*p}:{SR+2*p+1}], v6, s[28:31], s48 offen offset:{256*p} {SC}", tag='st' if p == 3 else None)
    if TOUCH3 == 2: L.add("global_load_dword v9, v72, s[20:21] sc1")
    w3_dma(L, 3)
    if TOUCH3 == 1: L.add("global_load_dword v9, v72, s[20:21] sc1")
    if TOUCH3: L.add("global_load_dword v9, v73, s[20:21] sc1")
    L.pump(12)
    ACB = [80, 96, 112]
    NA = 3
    WF, NB, TMP, OUT = 24, 10, 64, [72, 76]
    REG = [12, 13, 10, 11, 12, 13, 10]
    seq = []
    for s in range(40):
        seq += [(0, s), (1, s)]
        if s >= LAG: seq.append((2, s - LAG))
    seq += [(2, s) for s in range(max(40 - LAG, 0), 40)] + [(T, s) for T in range(3, 7) for s in range(40)]
    frs = {}
    nrd = [0]
    def rd3():
        i = nrd[0]
        if i >= len(seq): return
        T, s = seq[i]
        r = WF + 4 * (i % NB)
        frs[i] = (r, a.ds(f"ds_read_b128 v[{r}:{r+3}], v{REG[T]} offset:{512*s}"))
        nrd[0] += 1
    def epi(T, pk):
        d, out, tmp = ACB[T % NA], OUT[T % 2], TMP
        Lx = []
        if pk:
            for j in range(0, 8, 2): Lx.append(f"v_pk_mul_f32 {P(tmp+j)}, {P(d+j)}, {P(d+j)}")
            for j in range(0, 8, 2): Lx.append(f"v_pk_fma_f32 {P(tmp+j)}, {P(tmp+j)}, v[14:15], v[14:15] op_sel:[0,1,0] op_sel_hi:[1,1,0]")
            for j in range(0, 8, 2): Lx.append(f"v_pk_mul_f32 {P(tmp+j)}, {P(tmp+j)}, {P(d+j)}")
            for j in range(8): Lx.append(f"v_exp_f32 v{tmp+j}, v{tmp+j}")
            for j in range(0, 8, 2): Lx.append(f"v_pk_mul_f32 {P(d+j)}, {P(d+j)}, {P(d+8+j)}")
            for j in range(0, 8, 2): Lx.append(f"v_pk_add_f32 {P(tmp+j)}, {P(tmp+j)}, 1.0 op_sel_hi:[1,0]")
            for j in range(8): Lx.append(f"v_rcp_f32 v{tmp+j}, v{tmp+j}")
            for j in range(0, 8, 2): Lx.append(f"v_pk_mul_f32 {P(d+j)}, {P(d+j)}, {P(tmp+j)}")
        else:
            for j in range(8): Lx.append(f"v_mul_f32 v{tmp+j}, v{d+j}, v{d+j}")
            for j in range(8): Lx.append(f"v_fma_f32 v{tmp+j}, v{tmp+j}, v15, v14")
            for j in range(8): Lx.append(f"v_mul_f32 v{tmp+j}, v{tmp+j}, v{d+j}")
            for j in range(8):
                Lx.append(f"v_exp_f32 v{tmp+j}, v{tmp+j}")
                Lx.append(f"v_mul_f32 v{d+j}, v{d+j}, v{d+8+j}")
            for j in range(8): Lx.append(f"v_add_f32 v{tmp+j}, 1.0, v{tmp+j}")
            for j in range(8):
                Lx.append(f"v_rcp_f32 v{tmp+j}, v{tmp+j}")
                if j >= 1: Lx.append(f"v_mul_f32 v{d+j-1}, v{d+j-1}, v{tmp+j-1}")
            Lx.append(f"v_cvt_pk_bf16_f32 v{out}, v{d}, v{d+1}")
            Lx.append(f"v_mul_f32 v{d+7}, v{d+7}, v{tmp+7}")
        for j in range(0 if pk else 1, 4): Lx.append(f"v_cvt_pk_bf16_f32 v{out+j}, v{d+2*j}, v{d+2*j+1}")
        Lx.append(f"buffer_store_dwordx4 v[{out}:{out+3}], v20, s[36:39], s50 offen offset:{2048*(T%2)} {SC if T < LOCT else LS}" + ("\ns_add_u32 s50, s50, 4096" if T % 2 else ""))
        return [(T, x) for x in Lx]
    stats = f"""
    v_add_f32 v{SR+0}, v{SR+0}, v{SR+2}
    v_add_f32 v{SR+1}, v{SR+1}, v{SR+3}
    v_add_f32 v{SR+4}, v{SR+4}, v{SR+6}
    v_add_f32 v{SR+5}, v{SR+5}, v{SR+7}
    v_add_f32 v{SR+0}, v{SR+0}, v{SR+4}
    v_add_f32 v{SR+1}, v{SR+1}, v{SR+5}
    v_mov_b32 v{SR+2}, v{SR}
    v_mov_b32 v{SR+3}, v{SR+1}
    v_permlane32_swap_b32 v{SR}, v{SR+2}
    v_permlane32_swap_b32 v{SR+1}, v{SR+3}
    v_add_f32 v{SR}, v{SR}, v{SR+2}
    v_add_f32 v{SR+1}, v{SR+1}, v{SR+3}
    v_mul_f32 v{SR}, {f32(-1.0/640)}, v{SR}
    v_mul_f32 v{SR+1}, {f32(1.0/640)}, v{SR+1}
    v_fma_f32 v{SR+1}, -v{SR}, v{SR}, v{SR+1}
    v_max_f32 v{SR+1}, 0, v{SR+1}
    v_add_f32 v{SR+1}, {f32(1e-5)}, v{SR+1}
    v_rsq_f32 v{SR+1}, v{SR+1}
    v_cvt_pk_bf16_f32 v{SR+2}, v{SR}, v{SR}
    v_lshlrev_b32 v{SR+2}, 16, v{SR+2}
    v_sub_f32 v{SR+3}, v{SR}, v{SR+2}
    v_cvt_pk_bf16_f32 v16, v{SR+2}, v{SR+3}
    v_mul_f32 v22, v{SR+1}, v{SR+1}
    v_mov_b32 v17, v16
    v_mov_b32 v18, v16
    v_mov_b32 v19, v16
    v_mul_f32 v14, {f32(C0)}, v{SR+1}
    v_mul_f32 v15, {f32(C1)}, v{SR+1}
    v_mul_f32 v15, v15, v22
    v_lshlrev_b32 v21, 2, v5
    buffer_store_dword v22, v21, s[32:35], s52 offen {SC}
    """.strip().split("\n")
    pending = []
    a(f"""
    v_and_b32 v7, 7, v2
    s_lshl_b32 s40, s100, 9
    s_lshl_b32 s41, s95, 7
    s_add_u32 s63, s40, s41
    v_lshl_add_u32 v7, v7, 2, s63
    s_mul_i32 s40, s95, 14
    s_mul_i32 s57, s100, {4*56}
    s_add_u32 s57, s57, s40
    s_lshl_b32 s57, s57, 10
    """)
    DIST = 8
    def cost(x):
        x = x.strip()
        return 2 if x.startswith(("v_exp", "v_rcp", "v_rsq", "buffer_")) else 1
    def fill(budget, hold=None):
        while budget > 0 and pending:
            pick = None
            blockW, blockR = set(), set()
            for n, (t, x) in enumerate(pending[:14]):
                ins = Ins(x.split("\n")[0])
                if ins.kind == 'vmem' and n > 0 and any(Ins(y.split("\n")[0]).kind == 'vmem' for _, y in pending[:n]): break
                ok = cost(x) <= budget and t != hold and not (set(ins.r) & blockW) and not (set(ins.w) & (blockW | blockR))
                if ok and any(need(p, ins) > dd for dd, p in enumerate(reversed(a.ins[-2:]))): ok = False
                if ok: pick = n; break
                blockW |= set(ins.w); blockR |= set(ins.r)
            if pick is None: break
            t_, x = pending.pop(pick)
            a(x); budget -= cost(x)
            if x.startswith("buffer_store"): stored[t_] = (a.vm_issued, cur[0])
    stored = {}; cur = [0]; posted = False; posted2 = False
    a(f"s_mov_b32 s56, {F4M_O}")
    KE, KN = 2 * EARLY, 2 * MID
    KM = 2 * MID2
    order = [(sl, k) for lo, hi in ((0, KE), (KE, KN), (KN, KM), (KM, 14)) for sl in (1, 2, 3, 0) for k in range(lo, hi)]
    L4 = Loads(a, 26)
    lateW = list(range(53, 70))
    for i, (sl, k) in enumerate(order):
        pre = None
        if k in (0, KE, KN, KM):
            pre = f"s_add_u32 s55, s95, {sl}\ns_and_b32 s55, s55, 3\ns_mul_i32 s55, s55, 57344\ns_add_u32 s55, s55, s57"
            if k: pre += f"\ns_add_u32 s55, s55, {1024*k}"
            k0 = k
        elif (k - k0) % 4 == 0:
            pre = "s_add_u32 s55, s55, 4096"
        r = 4 * (i % 24)
        g = i if i < 24 else 1000 + i - 24
        if i >= 4 * KE: g = max(g, 1000 + 4 * KE - CHK1)
        if i >= 4 * KN and KM > KN: g = max(g, 1000 + 4 * KN - CHK2)
        if i >= 4 * KM: g = max(g, 1000 + 4 * KM - CHK)
        L4.add(f"buffer_load_dwordx4 a[{r}:{r+3}], v3, s[36:39], s55 offen offset:{1024*((k-k0)%4)} {SC} {NT4}", pre=pre, tag=('H', i), gate=g)
        if i == 23:
            for _ in range(LWA): L4.add(**w4_item(lateW.pop(0)), gate=999)
        if i == 4 * KN - 1:
            for _ in range(min(LWB, len(lateW))): L4.add(**w4_item(lateW.pop(0)), gate=999)
        if i == 4 * KM - 1:
            while lateW: L4.add(**w4_item(lateW.pop(0)), gate=999)
            for T in range(5):
                L4.add(f"buffer_load_dwordx2 v[{104+2*T}:{105+2*T}], v15, s[24:27], s{48 if T < 4 else 49} offen offset:{1024*(T%4)} {SC}", gate=1000)
            L4.add(f"buffer_load_dword v114, v16, s[32:35], s50 offen {SC}", tag='res', gate=1000)
    hh0, late4 = L4.q[:24], L4.q[24:]
    L.t.update(Lw.t)
    for q in range(W4S3, 53): L.add(**w4_item(q))
    done01 = False
    for _ in range(DIST): rd3()
    for i, (T, s) in enumerate(seq):
        cur[0] = i
        nx = nrd[0]
        if nx < len(seq) and seq[nx][1] == 0 and seq[nx][0] >= 2:
            Tn = seq[nx][0]
            if Tn > 2: L.need(('W3', Tn))
            a("s_barrier")
            if Tn == 3:
                assert done01
                q0 = L.q; L.q = []; w3_dma(L, 4); w3_dma(L, 5); L.q += q0
            if Tn == 4:
                q0 = [x for x in L.q if 'lds' not in x[0]]; L.q = [x for x in L.q if 'lds' in x[0]]; w3_dma(L, 6); L.q += q0
        if T == 6 and s == 0: print('queue at tile 6:', len(L.q))
        if (T, s) == (5, CK0):
            tfe = a.vm("buffer_load_dword v9, v7, s[8:11], s58 offen sc1")
        if (T, s) == (5, CK1):
            a.wait(vm=tfe)
            check_flags(a, "M_f4e", 9, 7, "s58", False)
            mmark(a, "p3_chk")
            L.q = L.q + hh0
        if (T, s) == (6, 2) and HF:
            hq = [x for x in L.q if x[1] and x[1][0] == 'H']; oq = [x for x in L.q if not (x[1] and x[1][0] == 'H')]
            L.q = hq[:HF] + oq + hq[HF:]
        rd3()
        budget = 3
        nxt_wait = (i + 1) % 4 == 0
        if T == 0: L.need(s)
        if i == 0: mmark(a, "p3_first")
        if i % 4 == 0: a.wait(lg=frs[min(i + 3, len(seq) - 1)][1])
        r = frs[i][0]
        d = ACB[T % NA]
        if s == 0: assert all(t % NA != T % NA for t, _ in pending if t >= 0), "accumulator still pending"
        a(f"v_mfma_f32_32x32x16_bf16 v[{d}:{d+15}], v[{r}:{r+3}], a[{4*s}:{4*s+3}], " + ("0" if s == 0 else f"v[{d}:{d+15}]"))
        if nxt_wait: budget -= 1
        n0 = a.vm_issued
        if not done01:
            L.pump(1)
            if i + 1 < len(seq) and seq[i + 1][0] == 0: budget -= 1
            if s == 14 and T == 0:
                L.need('st'); pending += [(-1, x) for x in stats]
        elif not posted and EARLY - 1 in stored and i >= stored[EARLY - 1][1] + ACKD:
            a.wait(vm=stored[EARLY - 1][0])
            a("buffer_store_dword v1, v8, s[8:11], s58 offen sc0 sc1")
            posted = True; budget -= 1
            mmark(a, "p3_early")
        elif posted and not posted2 and MID - 1 in stored and i >= stored[MID - 1][1] + ACKM:
            a.wait(vm=stored[MID - 1][0])
            a("buffer_store_dword v1, v8, s[8:11], s56 offen sc0 sc1")
            posted2 = True; budget -= 1
        elif (i % 2 == 1 and (T == 2 or (T == 3 and s < 24) or T == 6)) or i % 8 in PACE3:
            if not (T == 6 and s >= QS): L.paced(gate=s - 1 if T == 6 else None)
        budget -= 2 * (a.vm_issued - n0)
        fill(budget, hold=(T - 1 if s < 3 else None) if T > 2 else None)
        if s == 39 and T != 0:
            for t in ((0, 1) if T == 1 else (T,)):
                dd = ACB[t % NA]
                assert not any(p[0] == -1 for p in pending)
                if t >= 3: L.need(('CS', t))
                a(f"v_mfma_f32_32x32x16_bf16 v[{dd}:{dd+15}], a[{160+4*(t%3)}:{163+4*(t%3)}], v[16:19], v[{dd}:{dd+15}]")
                if NPK <= t < 6: pending += epi(t, False)
                if t + 3 < 7: L.q.insert(min(len(L.q), 8) if t == 2 else 0, (cs_ld(t + 3), ('CS', t + 3), None, None, None))
            if T == (1 if NPK < 2 or LAG >= 40 else 2) or (T == 1 and False):
                pass
            assert not any('global_load' in x[0] for x in L.q)
            if T in (1, 2):
                for t in (range(min(NPK, 2)) if T == 1 else range(2, NPK)):
                    pq_ = Paced(a, L, PQ2)
                    for _, ins in epi(t, True): (pq_ if T == 2 else a)(ins)
                    stored[t] = (a.vm_issued, i)
            mmark(a, f"p3_t{T}")
            if T == 1: done01 = True
    print('stores at', {k: v[1] for k, v in stored.items()}, 'of', len(seq), 'left loads', len(L.q), 'pending', len(pending))
    assert posted and MID - 1 in stored
    if not posted2:
        a.wait(vm=stored[MID - 1][0])
        a("buffer_store_dword v1, v8, s[8:11], s56 offen sc0 sc1")
    if 4 * KE - CHK1 - 3 < 0: tf4 = a.vm("buffer_load_dword v9, v7, s[8:11], s56 offen sc1")
    if KM > KN:
        a.wait(vm=stored[MID2 - 1][0])
        a(f"s_mov_b32 s58, {F4N_O}\nbuffer_store_dword v1, v8, s[8:11], s58 offen sc0 sc1")
    rest = [(x[0], x[1], x[2], x[3], None) for x in L.q]
    L.q = rest + late4
    L.lim = LIM4
    pa = Paced(a, L, FP, gate=999)
    started = {t for t, _ in pending if sum(1 for u, _ in pending if u == t) < len(epi(t, False))}
    rest = sorted({t for t, _ in pending} - started)
    for t, ins in pending:
        if t in started: pa(ins)
    for t in rest + [6]:
        for _, ins in epi(t, True): pa(ins)
    tst = a.vm_issued
    mmark(a, "p3_st")
    for _ in range(AFT): L.paced(gate=999)
    PB, TB = 40960, 40960 + 61440
    srd(a, 12, 6, 0, 2621440)
    a(f"""
    s_mul_i32 s47, s95, 15360
    s_add_u32 s47, s47, {PB}
    v_add_u32 v6, s47, v3
    """)
    for j in range(1, 4):
        a(f"""
        s_add_u32 s47, s95, {j}
        s_and_b32 s47, s47, 3
        s_mul_i32 s47, s47, 15360
        s_add_u32 s47, s47, {PB + (3-j)*5120}
        v_add_u32 v{9+j}, s47, v3
        """)
    a(f"""
    v_and_b32 v13, 15, v2
    v_lshrrev_b32 v14, 4, v2
    v_lshlrev_b32 v15, 4, v13
    v_lshl_add_u32 v15, v4, 9, v15
    v_and_b32 v16, 1, v14
    v_lshl_add_u32 v15, v16, 3, v15
    s_lshl_b32 s48, s100, 1
    s_lshr_b32 s49, s95, 1
    s_add_u32 s48, s48, s49
    s_mul_i32 s48, s48, 40960
    s_mul_i32 s49, s101, 5120
    s_add_u32 s48, s48, s49
    s_and_b32 s49, s95, 1
    s_lshl_b32 s49, s49, 8
    s_add_u32 s48, s48, s49
    s_add_u32 s49, s48, 4096
    v_lshlrev_b32 v16, 2, v13
    s_lshl_b32 s50, s95, 13
    s_lshl_b32 s51, s100, 8
    s_add_u32 s50, s50, s51
    s_lshl_b32 s51, s95, 6
    s_add_u32 s50, s50, s51
    v_mul_u32_u24 v17, 160, v13
    v_lshl_add_u32 v17, v14, 3, v17
    s_mul_i32 s51, s95, 2560
    s_add_u32 s51, s51, {TB}
    v_add_u32 v17, s51, v17
    v_add_u32 v18, s51, v3
    s_mov_b32 s52, 6554
    """)
    for it in range(3):
        a(f"""
        v_add_u32 v13, {64*it}, v2
        v_mul_u32_u24 v14, s52, v13
        v_lshrrev_b32 v14, 16, v14
        v_mul_u32_u24 v14, {1280-160}, v14
        v_lshl_add_u32 v{19+it}, v13, 4, v14
        """)
    a(f"""
    s_lshl_b32 s52, s100, 2
    s_add_u32 s52, s52, s95
    s_mul_i32 s52, s52, {16*1280}
    s_mul_i32 s53, s101, 160
    s_add_u32 s52, s52, s53
    s_mov_b32 s54, 0xffff0000
    """)
    mspill(a)
    A4 = {1: 24, 2: 44, 3: 64, 0: 84}
    RS_, PS = 24, 44
    todo = []; wr = []
    NL = 14 - KM
    for i, (sl, k) in enumerate(order):
        d = A4[sl]
        if i == SIGI:
            a.wait(vm=tst)
            a(f"buffer_store_dword v1, v8, s[8:11], s59 offen {LF}")
            mmark(a, "p3_sig")
            L.pump(BURST0, gate=999 + i)
        if i == 4 * KE - CHK1 - 3:
            tf4 = a.vm("buffer_load_dword v9, v7, s[8:11], s56 offen sc1")
        if i == 4 * KE - CHK1 + 1:
            a.wait(vm=tf4)
            check_flags(a, "M_f4m", 9, 7, "s56", False)
            mmark(a, "p4_mid")
        if KM > KN and i == 4 * KN - CHK2 - FL4:
            sflag_load(a, F4N_O)
        if KM > KN and i == 4 * KN - CHK2 + 1:
            sflag_check(a, "M_f4n", 9, 7, "s58")
            mmark(a, "p4_mid2")
        if i == 4 * KM - CHK - FL4:
            if SFL: sflag_load(a, F4_O)
            else: tf4 = a.vm("buffer_load_dword v9, v7, s[8:11], s59 offen sc1")
        if i == 4 * KM - CHK + 1:
            if SFL: sflag_check(a, "M_f4", 9, 7, "s59")
            else:
                a.wait(vm=tf4)
                check_flags(a, "M_f4", 9, 7, "s59", False)
            mmark(a, "p4_sync")
            L.pump(BURST, gate=999 + i)
        L.need(('H', i), gate=999 + i)
        for T in range(5):
            L.need(('W4', 5 * k + T), gate=999 + i)
        if i == 0: mmark(a, "p4_first")
        if i == 4 * KM: mmark(a, "p4_late")
        r = 4 * (i % 24)
        for T in range(5):
            a(f"v_mfma_f32_16x16x32_bf16 v[{d+4*T}:{d+4*T+3}], {w4reg(5*k+T)}, a[{r}:{r+3}], " + ("0" if k == 0 else f"v[{d+4*T}:{d+4*T+3}]"))
            if wr and T in (1, 3, 4): a(wr.pop(0))
            elif T in PT4 and (i >= SIGI or AFT): L.pump(1, gate=999 + i)
            elif todo:
                a(todo.pop(0));
                if todo: a(todo.pop(0))
        if i >= 4 * KM:
            ph, kk = divmod(i - 4 * KM, NL)
            if kk == 0 and ph > 0:
                dp = A4[ph]
                wr = [f"ds_write_b128 v6, v[{dp+4*T}:{dp+4*T+3}] offset:{(ph-1)*5120 + T*1024}" for T in range(5)]
            if ph == 3 and kk == min(3, NL - 1):
                assert not wr
                a.wait_all_lg()
                a("s_barrier")
                tk = []
                for j, rb in enumerate((24, 44, 64)):
                    for T in range(5):
                        t = a.ds(f"ds_read_b128 v[{rb+4*T}:{rb+4*T+3}], v{10+j} offset:{1024*T}")
                    tk.append(t)
            if ph == 1 and kk == 2:
                L.need('res', gate=999 + i)
                for j in range(0, 10):
                    todo += [f"v_lshlrev_b32 v{116+j}, 16, v{104+j}", f"v_and_b32 v{104+j}, s54, v{104+j}"]
    for ins in todo: a(ins)
    a.wait(lg=tk[1])
    for j in range(0, 20, 2):
        a(f"v_pk_add_f32 {P(24+j)}, {P(24+j)}, {P(44+j)}")
    a.wait(lg=tk[2])
    for j in range(0, 20, 2):
        a(f"v_pk_add_f32 {P(64+j)}, {P(64+j)}, {P(84+j)}")
    mmark(a, "p4_mm")
    for j in range(0, 20, 2):
        a(f"v_pk_add_f32 {P(24+j)}, {P(24+j)}, {P(64+j)}")
    for j in range(10):
        a(f"v_fma_f32 v{PS+2*j}, v{24+2*j}, v114, v{116+j}")
        a(f"v_fma_f32 v{PS+2*j+1}, v{25+2*j}, v114, v{104+j}")
    for j in range(10):
        a(f"v_cvt_pk_bf16_f32 v{RS_+j}, v{PS+2*j}, v{PS+2*j+1}")
    for T in range(5):
        a(f"ds_write_b64 v17, v[{RS_+2*T}:{RS_+2*T+1}] offset:{32*T}")
    a.wait_all_lg()
    tk = [a.ds(f"ds_read_b128 v[{PS+4*it}:{PS+4*it+3}], v18 offset:{1024*it}") for it in range(3)]
    for it in range(3):
        a.wait(lg=tk[it])
        if it == 2: a("s_mov_b32 exec_hi, 0")
        a(f"buffer_store_dwordx4 v[{PS+4*it}:{PS+4*it+3}], v{19+it}, s[12:15], s52 offen {OUTF}")
    a(f"""
    s_or_b32 s40, s2, s95
    s_cmp_lg_u32 s40, 0
    s_cbranch_scc1 M_noclr
    s_load_dwordx2 s[40:41], s[0:1], 72
    s_mov_b64 exec, 1
    v_mov_b32 v8, 0
    s_waitcnt lgkmcnt(0)
    global_store_dword v8, v8, s[40:41] sc0 sc1
M_noclr:
    """)
    mstamp_end(a, 1, 20)
    a("M_exit:\ns_endpgm")
    return a
```

```python
from common import *
from k0 import reduce32
SC = "sc1"
WL, PL, WOL, LB3, LB4 = 10240, 20480, 24576, 114688, 135168

import os
WNT = os.environ.get('WNT', 'nt'); PNT = os.environ.get('PNT', ''); LDS_NONCE = 163836; KVZ = os.environ.get('KVZ', 'x'); ORDP = os.environ.get('ORDP', 'm'); PFW = int(os.environ.get('PFW', 8)); PFW2 = int(os.environ.get('PFW2', 248)); PF1 = int(os.environ.get('PF1', 6144)); PFAT = os.environ.get('PFAT', 'sig'); RTL = os.environ.get('RTL', 'win')
def rt_src(a, now):
    nR0 = a.vm_issued
    a(f"""
    s_cmp_ge_u32 s2, 108
    s_cselect_b32 s36, s58, s56
    s_cselect_b32 s37, s59, s57
    s_cselect_b32 s56, 1, 0
    s_mov_b32 s38, {640*3456}
    s_mov_b32 s39, 0x20000
    s_mul_i32 s57, s56, 108
    s_sub_u32 s57, s2, s57
    s_and_b32 s58, s57, 3
    s_lshr_b32 s57, s57, 2
    v_lshrrev_b32 v8, 3, v2
    v_and_b32 v9, 7, v2
    v_lshlrev_b32 v9, 4, v9
    v_mul_u32_u24 v232, 3456, v8
    v_add_u32 v232, v232, v9
    s_mul_i32 s60, s58, 160
    s_mul_i32 s40, s95, 40
    s_add_u32 s60, s60, s40
    s_mul_i32 s60, s60, 3456
    s_lshl_b32 s40, s57, 7
    s_add_u32 s60, s60, s40
    s_cmp_ge_u32 s2, 216
    s_cselect_b32 s60, 0x10000000, s60
    s_mul_i32 s55, s95, 5120
    s_lshl_b32 s51, s95, 12
    """)
    ld = []
    for n in range(5):
        ld.append((f"s_add_u32 m0, s55, {LB3 + 1024*n}", f"buffer_load_dwordx4 v232, s[36:39], s60 offen nt lds", f"s_add_u32 s60, s60, {8*3456}"))
    if now:
        for x in ld: a("\n".join(x))
    a(f"""
    s_mov_b32 s71, 0x20000
    s_cmp_eq_u32 s95, 3
    s_cbranch_scc1 P0_wo
    s_mov_b32 s68, s62
    s_mov_b32 s69, s63
    s_mov_b32 s70, {1728*1280}
    v_mul_u32_u24 v10, 1280, v8
    v_add_u32 v10, v10, v9
    s_lshl_b32 s40, s2, 1
    s_add_u32 s40, s40, s95
    s_add_u32 s49, s2, {512 - 208}
    s_cmp_lt_u32 s2, 208
    s_cselect_b32 s49, 999, s49
    s_cmp_eq_u32 s95, 2
    s_cselect_b32 s40, s49, s40
    s_mul_i32 s59, s40, 1171
    s_lshr_b32 s59, s59, 16
    s_mul_i32 s62, s59, 56
    s_sub_u32 s62, s40, s62
    s_mul_i32 s41, s62, 147
    s_lshr_b32 s41, s41, 11
    s_mul_i32 s49, s41, 14
    s_sub_u32 s49, s62, s49
    s_lshl_b32 s41, s41, 1
    s_and_b32 s61, s49, 1
    s_add_u32 s41, s41, s61
    s_mul_i32 s41, s41, 27
    s_andn2_b32 s49, s49, 1
    s_add_u32 s41, s41, s49
    s_mul_i32 s41, s41, {8*1280}
    v_add_u32 v216, s41, v10
    v_add_u32 v218, {13*8*1280}, v216
    v_add_u32 v219, {14*8*1280}, v216
    s_movk_i32 s41, {8*1280}
    s_cmp_eq_u32 s49, 12
    s_cselect_b32 s41, 0x10000000, s41
    v_add_u32 v217, s41, v216
    s_lshl_b32 s61, s59, 7
    s_mul_i32 s59, s59, 224
    s_add_u32 s59, s59, s62
    s_lshl_b32 s59, s59, 10
    s_add_u32 s59, s59, {W4_OFF - WO_OFF}
    s_mov_b32 s96, {56*1024}
    s_cmp_ge_u32 s40, 560
    s_branch P0_wt
P0_wo:
    s_mov_b32 s68, s16
    s_mov_b32 s69, s17
    s_mov_b32 s70, {640*1280}
    s_mul_i32 s59, s2, 205
    s_lshr_b32 s59, s59, 12
    s_mul_i32 s62, s59, 20
    s_sub_u32 s62, s2, s62
    v_cmp_le_u32 vcc, 2, v8
    v_cndmask_b32 v11, 8, 18, vcc
    v_add_u32 v11, v11, v8
    v_lshrrev_b32 v10, 2, v8
    v_mul_u32_u24 v10, 6, v10
    v_add3_u32 v10, v10, v8, 26
    """)
    for n in range(4):
        a(f"""
        s_lshl_b32 s40, s62, 2
        s_add_u32 s40, s40, {n}
        s_mul_i32 s41, s40, 205
        s_lshr_b32 s41, s41, 10
        s_mul_i32 s49, s41, 5
        s_sub_u32 s40, s40, s49
        s_mul_i32 s41, s41, 40
        s_and_b32 s49, s40, 1
        s_mul_i32 s49, s49, 10
        s_add_u32 s41, s41, s49
        s_cmp_ge_u32 s40, 2
        s_cselect_b64 vcc, -1, 0
        v_cndmask_b32 v{216+n}, v8, v11, vcc
        s_cmp_eq_u32 s40, 4
        s_cselect_b64 vcc, -1, 0
        v_cndmask_b32 v{216+n}, v{216+n}, v10, vcc
        v_add_u32 v{216+n}, s41, v{216+n}
        v_mul_u32_u24 v{216+n}, 1280, v{216+n}
        v_add_u32 v{216+n}, v{216+n}, v9
        """)
    a(f"""
    s_lshl_b32 s61, s59, 7
    s_mul_i32 s59, s59, 80
    s_add_u32 s59, s59, s62
    s_lshl_b32 s59, s59, 10
    s_mov_b32 s96, {20*1024}
    s_cmp_ge_u32 s2, 200
P0_wt:
    s_cselect_b32 s61, 0x10000000, s61
    s_cselect_b32 s59, 0x10000000, s59
    """)
    for n in range(4):
        ld.append((f"s_add_u32 m0, s51, {LB4 + 1024*n}", f"buffer_load_dwordx4 v{216+n}, s[68:71], s61 offen nt lds", ""))
    if now:
        for x in ld[5:]: a("\n".join(x))
    return a.vm_issued - nR0 if now else ld

def p0(a, npf):
    P = lambda r: f"v[{r}:{r+1}]"
    a(f"""
    s_getpc_b64 s[100:101]
P0_pc:
    s_cmp_ge_u32 s2, {PFW}
    s_cbranch_scc1 P0_nopf
    v_lshlrev_b32 v8, 7, v0
    v_mov_b32 v11, s101
    v_cmp_gt_u32 vcc, {PF1}, v8
    s_and_saveexec_b64 s[40:41], vcc
    s_cbranch_execz P0_pf0
    v_add_co_u32 v10, vcc, s100, v8
    v_addc_co_u32 v11, vcc, 0, v11, vcc
    global_load_dword v255, v[10:11], off
P0_pf0:
    s_mov_b64 exec, s[40:41]
    """)
    a(f"""
P0_nopf:
    v_lshrrev_b32 v6, 5, v0
    v_mul_u32_u24 v7, 1280, v6
    v_lshl_add_u32 v7, v5, 3, v7
    s_lshl_b32 s44, s42, 4
    s_add_u32 s44, s44, s43
    s_mul_i32 s40, s44, 10240
    s_mov_b32 s26, 2621440
    s_mov_b32 s27, 0x20000
    s_mov_b32 s30, {640*3840}
    s_mov_b32 s31, 0x20000
    s_mov_b32 s35, 0x20000
    s_movk_i32 s45, 13108
    s_mul_i32 s46, s42, {40*3840}
    s_mul_i32 s47, s43, 80
    s_add_u32 s46, s46, s47
    s_mul_i32 s47, s43, 1600
    s_lshl_b32 s48, s95, 10
    """)
    for n in range(3):
        a(f"""
        v_add_u32 v{8+n}, {256*n}, v0
        v_min_u32 v{8+n}, 599, v{8+n}
        v_mul_u32_u24 v11, s45, v{8+n}
        v_lshrrev_b32 v11, 16, v11
        v_mul_u32_u24 v11, 1200, v11
        v_lshl_add_u32 v{8+n}, v{8+n}, 4, v11
        """)
    a(f"""
    v_subrev_u32 v11, 128, v0
    v_min_u32 v11, 99, v11
    v_lshlrev_b32 v11, 4, v11
    s_cmp_ge_u32 s95, 2
    s_cselect_b64 vcc, -1, 0
    s_cselect_b32 s34, {32*800}, s30
    s_cselect_b32 s47, s47, s46
    v_cndmask_b32 v10, v10, v11, vcc
    s_waitcnt lgkmcnt(0)
    s_cselect_b32 s32, s14, s12
    s_cselect_b32 s33, s15, s13
    s_mov_b32 s24, s4
    s_mov_b32 s25, s5
    s_mov_b32 s28, s12
    s_mov_b32 s29, s13
    """)
    mmark(a, "p0_karg")
    a.reset_counters()
    X = 24
    def ldx():
        for i in range(5):
            t = a.vm(f"buffer_load_dwordx2 v[{X+2*i}:{X+1+2*i}], v7, s[24:27], s40 offen offset:{256*i} nt")
        return t
    def ldw(ns):
        for n in ns:
            a(f"s_add_u32 m0, s48, {WL + 4096*n}")
            a(f"buffer_load_dwordx4 v{8+n}, s[{28 if n < 2 else 32}:{31 if n < 2 else 35}], s{46 if n < 2 else 47} offen {WNT if n < 2 else PNT} lds")
    if ORDP == 'xw': tX = ldx(); ldw((2, 0, 1))
    elif ORDP == 'wx': ldw((2, 0, 1)); tX = ldx()
    else: ldw((2, 0)); tX = ldx(); ldw((1,))
    nW = a.vm_issued
    mmark(a, "p0_iss")
    srd(a, 64, 18, 0, 256)
    srd(a, 8, 20, FL_OFF, FL_SZ)
    a(f"""
    v_mov_b32 v16, 0
    s_or_b32 s40, s2, s95
    s_cmp_lg_u32 s40, 0
    s_cbranch_scc1 P0_non
    s_or_b32 s40, s98, 1
    s_mov_b64 exec, 1
    v_mov_b32 v8, s40
    buffer_store_dword v8, v16, s[64:67], 0 offen sc0 sc1
    s_mov_b64 exec, -1
P0_non:
    """)
    nR = rt_src(a, True) if RTL == 'p0' else 0
    ldst = rt_src(a, False) if RTL == 'st' else []
    ldln = rt_src(a, False) if RTL == 'ln' else []
    srd(a, 28, 20, XN_OFF, XN_SZ)
    srd(a, 32, 20, W1_OFF, W1_SZ)
    a(f"""
    v_lshrrev_b32 v8, 1, v5
    v_xor_b32 v7, v6, v8
    v_and_b32 v7, 7, v7
    v_lshlrev_b32 v7, 4, v7
    v_lshl_add_u32 v7, v8, 7, v7
    v_and_b32 v8, 1, v5
    v_lshl_add_u32 v7, v8, 3, v7
    v_lshrrev_b32 v10, 3, v0
    v_xor_b32 v18, v0, v10
    v_and_b32 v18, 7, v18
    v_lshlrev_b32 v18, 4, v18
    v_lshl_add_u32 v18, v10, 7, v18
    v_and_b32 v19, 7, v0
    v_lshlrev_b32 v19, 4, v19
    v_lshl_add_u32 v19, v10, 9, v19
    s_lshr_b32 s52, s44, 2
    s_mul_i32 s52, s52, 40960
    s_and_b32 s53, s44, 3
    s_lshl_b32 s53, s53, 7
    s_add_u32 s52, s52, s53
    s_add_u32 s53, s52, 16384
    s_add_u32 s54, s52, 32768
    s_mov_b32 s41, 0xffff0000
    s_and_b32 s45, s95, 1
    s_lshr_b32 s46, s95, 1
    """)
    A0 = [64, 72, 80]; A1 = [68, 76, 84]
    a(f"""
    v_and_b32 v8, 0x13, v5
    v_lshrrev_b32 v9, 1, v5
    v_and_b32 v9, 4, v9
    v_lshlrev_b32 v10, 1, v5
    v_and_b32 v10, 8, v10
    v_or3_b32 v8, v8, v9, v10
    s_lshl_b32 s47, s46, 5
    v_add_u32 v8, s47, v8
    v_min_u32 v8, 39, v8
    v_mul_u32_u24 v8, 240, v8
    s_mul_i32 s47, s45, 40
    s_add_u32 s47, s47, {WL}
    v_add_u32 v21, s47, v8
    v_lshl_add_u32 v20, v4, 4, v21
    v_bfe_u32 v8, v2, 2, 2
    v_lshl_add_u32 v8, v4, 3, v8
    v_mul_u32_u24 v8, 40, v8
    v_bfe_u32 v9, v2, 4, 1
    v_lshl_add_u32 v8, v9, 5, v8
    v_and_b32 v9, 3, v2
    v_lshl_add_u32 v8, v9, 3, v8
    s_mul_i32 s47, s45, 800
    s_add_u32 s47, s47, {PL}
    v_add_u32 v22, s47, v8
    """)
    for sg in range(3):
        a(f"v_mov_b32 v{A1[sg]+2}, 0\nv_mov_b32 v{A1[sg]+3}, 0")
    a(f"""
    v_add_u32 v8, 2, v5
    v_cmp_gt_u32 vcc, 18, v5
    v_cndmask_b32 v8, v8, v5, vcc
    v_bfe_u32 v9, v8, 2, 1
    v_mul_u32_u24 v9, 10, v9
    v_lshrrev_b32 v10, 3, v8
    v_lshl_add_u32 v9, v10, 2, v9
    v_and_b32 v10, 3, v8
    v_add_u32 v9, v9, v10
    v_lshlrev_b32 v10, 3, v4
    v_sub_u32 v9, v9, v10
    v_and_b32 v10, 1, v9
    v_lshlrev_b32 v10, 4, v10
    v_mov_b32 v8, 0x3f80
    v_lshlrev_b32 v10, v10, v8
    v_lshrrev_b32 v9, 1, v9
    """)
    for jj, cmpv in enumerate([0, 1, 2, 3, 8, 9]):
        a(f"v_cmp_eq_u32 vcc, {cmpv}, v9\nv_cndmask_b32 v{112+jj}, 0, v10, vcc")
    a("v_mov_b32 v118, 0\nv_mov_b32 v119, 0\nv_mov_b32 v94, 0\nv_mov_b32 v95, 0")
    a(f"""
    s_mul_i32 s40, s42, 5
    s_lshl_b32 s47, s46, 2
    s_add_u32 s40, s40, s47
    v_add_u32 v12, s40, v4
    v_lshrrev_b32 v11, 1, v12
    v_mul_u32_u24 v14, 768, v11
    v_mul_u32_u24 v11, 3072, v11
    v_and_b32 v12, 1, v12
    v_lshl_add_u32 v11, v12, 9, v11
    v_mul_u32_u24 v12, 384, v12
    v_add_u32 v14, v14, v12
    v_add_u32 v14, {122880 - 3072}, v14
    """)
    for sg, sb in enumerate([40, 0, 20]):
        d = 120 + sg
        a(f"v_add_u32 v8, {sb}, v5\nv_lshrrev_b32 v9, 4, v8")
        if sg == 0:
            a("v_cmp_eq_u32 vcc, 3, v9\nv_cndmask_b32 v15, v11, v14, vcc\nv_mov_b32 v123, 3072\nv_mov_b32 v10, 768\nv_cndmask_b32 v123, v123, v10, vcc")
        a(f"""
        v_lshl_add_u32 v{d}, v9, 10, v{15 if sg == 0 else 11}
        v_bfe_u32 v10, v8, 2, 2
        v_lshl_add_u32 v{d}, v10, 7, v{d}
        v_and_b32 v10, 3, v8
        v_lshl_add_u32 v{d}, v10, 4, v{d}
        """)
    a("v_add_u32 v123, v123, v120")
    a(f"""
    s_mul_i32 s48, s43, 153600
    s_lshl_b32 s49, s45, 6
    s_add_u32 s48, s48, s49
    s_mov_b32 s50, {f32(LOG2E)}
    """)
    srd(a, 24, 20, KV_OFF, KV_SZ)
    a(f"""
    v_mov_b32 v60, 0
    v_mov_b32 v61, 0
    v_mov_b32 v62, 0
    v_mov_b32 v63, 0
    s_mul_i32 s22, s43, 7680
    s_mul_i32 s23, s42, 480
    s_add_u32 s22, s22, s23
    v_cmp_gt_u32 vcc, 30, v0
    v_mov_b32 v13, 0x10000000
    v_cndmask_b32 v13, v13, v3, vcc
    """)
    mmark(a, "p0_pre")
    a(f"s_waitcnt vmcnt({nW - tX + nR})")
    mmark(a, "p0_x")
    if KVZ == 'x': a(f"buffer_store_dwordx4 v[60:63], v13, s[24:27], s22 offen {SC}")
    F = 36
    for i in range(10):
        a(f"v_lshlrev_b32 v{F+2*i}, 16, v{X+i}")
        a(f"v_and_b32 v{F+2*i+1}, s41, v{X+i}")
    a(f"v_pk_add_f32 v[56:57], {P(F)}, {P(F+2)}")
    a(f"v_pk_add_f32 v[58:59], {P(F+4)}, {P(F+6)}")
    for i in range(4, 10):
        a(f"v_pk_add_f32 {P(56+2*(i%2))}, {P(56+2*(i%2))}, {P(F+2*i)}")
    a("v_pk_add_f32 v[56:57], v[56:57], v[58:59]")
    a("v_add_f32 v56, v56, v57")
    reduce32(a, 56, 57)
    a(f"v_mul_f32 v56, {f32(1.0/640)}, v56")
    for i in range(10):
        a(f"v_pk_add_f32 {P(F+2*i)}, {P(F+2*i)}, v[56:57] op_sel_hi:[1,0] neg_lo:[0,1] neg_hi:[0,1]")
    a(f"v_pk_mul_f32 v[58:59], {P(F)}, {P(F)}")
    for i in range(1, 10):
        a(f"v_pk_fma_f32 v[58:59], {P(F+2*i)}, {P(F+2*i)}, v[58:59]")
    a("v_add_f32 v58, v58, v59")
    reduce32(a, 58, 59)
    a(f"v_mov_b32 v59, {f32(1e-5)}")
    a(f"v_fmac_f32 v59, {f32(1.0/640)}, v58")
    a("v_rsq_f32 v58, v59")
    for i in range(10):
        a(f"v_pk_mul_f32 {P(F+2*i)}, {P(F+2*i)}, v[58:59] op_sel_hi:[1,0]")
    for i in range(10):
        a(f"v_cvt_pk_bf16_f32 v{X+i}, v{F+2*i}, v{F+2*i+1}")
    for i in range(5):
        a(f"ds_write_b64 v7, v[{X+2*i}:{X+1+2*i}] offset:{2048*i}")
    if RTL == 'ln':
        for x in ldln: a("\n".join(x))
        nR = len(ldln)
    mmark(a, "p0_ln")
    a(f"s_waitcnt vmcnt({(KVZ == 'x') + nR}) lgkmcnt(0)\ns_barrier")
    mmark(a, "p0_w")
    a.reset_counters()
    a("s_lshl_b32 s23, s95, 12\nbuffer_load_dword v17, v16, s[64:67], s23 offen sc1")
    if KVZ != 'x': a(f"buffer_store_dwordx4 v[60:63], v13, s[24:27], s22 offen {SC}")
    b = Asm()
    b(f"""
    s_sub_u32 s40, s2, {PFW2}
    s_cmp_ge_u32 s40, 8
    s_cbranch_scc1 P0_nopf2
    v_lshlrev_b32 v8, 7, v0
    v_add_u32 v8, {PF1}, v8
    v_mov_b32 v11, s101
    v_cmp_gt_u32 vcc, CODE_END-P0_pc, v8
    s_and_saveexec_b64 s[46:47], vcc
    s_cbranch_execz P0_pf1
    v_add_co_u32 v10, vcc, s100, v8
    v_addc_co_u32 v11, vcc, 0, v11, vcc
    global_load_dword v255, v[10:11], off
P0_pf1:
    s_mov_b64 exec, s[46:47]
P0_nopf2:
    """)
    if PFAT == 'w': a.splice(b)
    a("ds_read_b64_tr_b16 v[88:89], v22\nds_read_b64_tr_b16 v[90:91], v22 offset:160")
    tb = a.ds("ds_read_b64_tr_b16 v[92:93], v22 offset:640")
    tA = []
    for sg in range(3):
        a(f"ds_read2_b64 v[{A0[sg]}:{A0[sg]+3}], v20 offset0:{10*sg} offset1:{10*sg+1}")
        tA.append(a.ds(f"ds_read_b64 v[{A1[sg]}:{A1[sg]+1}], v21 offset:{80*sg+32}"))
    tx = [a.ds(f"ds_read_b128 v[{36+4*n}:{39+4*n}], v18 offset:{4096*n}") for n in range(3)]
    a(f"""
    s_cmp_ge_u32 s95, 2
    s_cselect_b32 s54, 0x10000000, s54
    s_cselect_b32 s49, 0x10000000, s48
    s_cselect_b32 s40, 0, 0xfffff
    """)
    a.wait(lg=tb)
    a("s_mov_b32 exec_lo, 0\nv_mov_b32 v92, 0\nv_mov_b32 v93, 0\ns_mov_b32 exec_lo, -1")
    Dr = [128, 144, 160]
    for sg in range(3):
        a.wait(lg=tA[sg])
        b0, b1 = (88, 92) if sg < 2 else (112, 116)
        a(f"v_mfma_f32_32x32x16_bf16 v[{Dr[sg]}:{Dr[sg]+15}], v[{A0[sg]}:{A0[sg]+3}], v[{b0}:{b0+3}], 0")
        a(f"v_mfma_f32_32x32x16_bf16 v[{Dr[sg]}:{Dr[sg]+15}], v[{A1[sg]}:{A1[sg]+3}], v[{b1}:{b1+3}], v[{Dr[sg]}:{Dr[sg]+15}]")
    for n in range(3):
        a.wait(lg=tx[n])
        a(f"buffer_store_dwordx4 v[{36+4*n}:{39+4*n}], v19, s[28:31], s{52+n} offen {SC}")
    a("s_mov_b32 exec_lo, 0xfffff\ns_mov_b32 exec_hi, s40")
    for sg in range(3):
        d = Dr[sg]
        if sg < 2:
            for r in range(0, 16, 2):
                a(f"v_pk_mul_f32 {P(d+r)}, {P(d+r)}, s[50:51] op_sel_hi:[1,0]")
        o = 64 + 8 * sg
        for r in range(8):
            a(f"v_cvt_pk_bf16_f32 v{o+r}, v{d+2*r}, v{d+2*r+1}")
        a(f"buffer_store_dwordx4 v[{o}:{o+3}], v{120+sg}, s[32:35], s48 offen {SC}")
        a(f"buffer_store_dwordx4 v[{o+4}:{o+7}], v{120+sg}, s[32:35], s49 offen offset:3072 {SC}" if sg else f"buffer_store_dwordx4 v[{o+4}:{o+7}], v123, s[32:35], s49 offen {SC}")
    a(f"""
    s_mov_b64 exec, -1
    """)
    mmark(a, "p0_st")
    for x in ldst: a("\n".join(x))
    a(f"""
    s_lshl_b32 s40, s44, 4
    s_add_u32 s40, s40, {F1A_O}
    s_lshl_b32 s41, s43, 8
    s_add_u32 s41, s41, {F1B_O}
    s_lshl_b32 s50, s42, 4
    s_add_u32 s50, s50, s41
    v_mov_b32 v10, s50
    v_writelane_b32 v10, s40, 0
    s_lshl_b32 s40, s42, 8
    s_lshl_b32 s50, s95, 6
    s_add_u32 s40, s40, s50
    s_add_u32 s40, s40, {F1A_O}
    v_and_b32 v12, 3, v2
    v_lshl_add_u32 v12, v12, 4, s40
    v_add_u32 v13, s41, v3
    v_cmp_gt_u32 vcc, 16, v2
    v_cndmask_b32 v12, v12, v13, vcc
    s_waitcnt vmcnt({len(ldst)})
    s_cmp_lg_u32 s95, 0
    s_cbranch_scc1 P0_oth
    s_mov_b32 s92, 0
P0_nspin:
    v_readfirstlane_b32 s93, v17
    s_add_u32 s92, s92, 1
    s_nop 2
    s_cmp_lg_u32 s93, 0
    s_cbranch_scc1 P0_ngo
    s_cmp_gt_u32 s92, 400000
    s_cbranch_scc1 P0_ngo
    buffer_load_dword v17, v16, s[64:67], 0 offen sc1
    s_waitcnt vmcnt(0)
    s_branch P0_nspin
P0_ngo:
    v_mov_b32 v16, {LDS_NONCE}
    ds_write_b32 v16, v17
    s_waitcnt lgkmcnt(0)
    s_barrier
    s_mov_b64 exec, 3
    buffer_store_dword v17, v10, s[8:11], 0 offen sc0 sc1
    s_mov_b64 exec, -1
    s_branch P0_sig
P0_oth:
    v_mov_b32 v16, {LDS_NONCE}
    s_barrier
    ds_read_b32 v17, v16
    s_waitcnt lgkmcnt(0)
    v_readfirstlane_b32 s93, v17
P0_sig:
    """)
    mmark(a, "p0_sig")
    if PFAT == 'sig': a.splice(b)
    a.reset_counters()


def rt_setup(a):
    ld0 = []
    if RTL == 'loop': ld0 = rt_src(a, False)
    if RTL == 'win': rt_src(a, True)
    srd(a, 12, 20, W3_OFF, W3_SZ)
    srd(a, 32, 20, CS_OFF, CS_SZ)
    srd(a, 16, 20, WO_OFF, W4_OFF + W4_SZ - WO_OFF)
    a(f"""
    v_lshrrev_b32 v6, 4, v2
    v_bfe_u32 v7, v2, 2, 2
    v_lshl_add_u32 v7, v6, 3, v7
    v_lshlrev_b32 v7, 7, v7
    v_and_b32 v8, 3, v2
    v_lshl_add_u32 v7, v8, 3, v7
    s_lshl_b32 s45, s95, 5
    s_add_u32 s45, s45, {LB3}
    v_add_u32 v248, s45, v7
    s_add_u32 s45, s51, {LB4}
    v_add_u32 v249, s45, v7
    v_bfe_u32 v9, v2, 3, 1
    v_and_b32 v10, 7, v2
    v_mul_u32_u24 v238, 20480, v9
    v_lshlrev_b32 v239, 9, v9
    v_lshl_add_u32 v239, v10, 4, v239
    v_lshl_add_u32 v239, v6, 26, v239
    v_lshl_add_u32 v238, v10, 4, v238
    v_lshl_add_u32 v238, v4, 9, v238
    v_xor_b32 v9, s56, v6
    v_and_b32 v9, 1, v9
    v_lshl_add_u32 v238, v9, 7, v238
    s_lshl_b32 s45, s57, 3
    s_lshl_b32 s46, s95, 1
    s_add_u32 s45, s45, s46
    s_mul_i32 s52, s45, 20480
    s_mul_i32 s47, s58, 5120
    s_add_u32 s52, s52, s47
    s_lshl_b32 s47, s56, 8
    s_add_u32 s52, s52, s47
    s_lshl_b32 s45, s45, 9
    s_add_u32 s45, s45, s47
    s_lshr_b32 s47, s58, 1
    s_xor_b32 s47, s47, s56
    s_lshl_b32 s47, s47, 7
    s_add_u32 s45, s45, s47
    s_and_b32 s47, s58, 1
    s_lshl_b32 s47, s47, 3
    s_add_u32 s58, s45, s47
    s_cmp_ge_u32 s2, 216
    s_cselect_b32 s52, 0x10000000, s52
    s_cselect_b32 s58, 0x10000000, s58
    s_add_u32 s53, s52, 4096
    v_mov_b32 v240, 0x3f803f80
    v_mov_b32 v241, 0x3f803f80
    v_mov_b32 v242, 0x3f803f80
    v_mov_b32 v243, 0x3f803f80
    """)
    ld = ld0
    rd = []
    for ss in range(5):
        rd.append(f"ds_read_b64_tr_b16 a[{160+4*ss}:{161+4*ss}], v248 offset:{4096*ss}")
        rd.append(f"ds_read_b64_tr_b16 a[{162+4*ss}:{163+4*ss}], v248 offset:{4096*ss+512}")
    for f in range(4):
        rd.append(f"ds_read_b64_tr_b16 a[{180+4*f}:{181+4*f}], v249 offset:{32*f}")
        rd.append(f"ds_read_b64_tr_b16 a[{182+4*f}:{183+4*f}], v249 offset:{32*f+512}")
    cs = [f"v_mfma_f32_16x16x32_bf16 v[244:247], v[240:243], a[{160+4*ss}:{163+4*ss}], " + ("0" if ss == 0 else "v[244:247]") for ss in range(5)]
    cs2 = ["v_cvt_pk_bf16_f32 v236, v244, v244", "v_lshlrev_b32 v245, 16, v236", "v_sub_f32 v245, v244, v245", "v_cvt_pk_bf16_f32 v237, v245, v245"]
    st = []
    for ss in range(5):
        so, off = ("s52", 1024 * ss) if ss < 4 else ("s53", 0)
        st.append((f"buffer_store_dwordx4 a[{160+4*ss}:{163+4*ss}], v238, s[12:15], {so} offen offset:{off} {SC}", None))
    st.append((f"buffer_store_dwordx2 v[236:237], v239, s[32:35], s58 offen {SC}", None))
    for f in range(4):
        st.append((f"buffer_store_dwordx4 a[{180+4*f}:{183+4*f}], v3, s[16:19], s59 offen {SC}", "s_add_u32 s59, s59, s96"))
    a("""
    s_cmp_eq_u32 s95, 3
    s_cselect_b32 s97, s59, 0x10000000
    s_cselect_b32 s59, 0x10000000, s59
    """)
    se = [(f"buffer_store_dwordx4 a[{180+4*f}:{183+4*f}], v3, s[16:19], s97 offen {SC}", "s_add_u32 s97, s97, s96") for f in range(4)]
    return ld, rd, cs, cs2, st, se
```

```python
from common import *
from asmlib import Ins, need
import common, math, p0, p0b

GRID = 256
LDS = 160 * 1024
C0 = -2.0 * math.sqrt(2.0 / math.pi) * LOG2E
C1 = C0 * 0.044715
SC = "sc1"
POLL_MAX = 400000
P1_PACE = 12
import os
F5I = int(os.environ.get('F5I', 8)); PQ2 = int(os.environ.get('PQ2', 12)); P3LIM = int(os.environ.get('P3LIM', 20)); W4S3 = int(os.environ.get('W4S3', 12)); RQ0 = int(os.environ.get('RQ0', 16)); P1LIM = int(os.environ.get('P1LIM', 24)); SIG2 = int(os.environ.get('SIG2', 39)); OUTF = os.environ.get('OUTF', 'nt').replace('_', ' '); MAP1 = os.environ.get('MAP1', 'x'); MAP2 = os.environ.get('MAP2', 'x'); MAP4 = os.environ.get('MAP4', 'x'); MAP3 = os.environ.get('MAP3', 'x'); NT4 = os.environ.get('NT4', ''); NT3 = os.environ.get('NT3', ''); PACE3 = eval(os.environ.get('PACE3', '(1,3,5,7)')); NPK = int(os.environ.get('NPK', 3)); ACKD = int(os.environ.get('ACKD', 36)); AFT = int(os.environ.get('AFT', 0)); HF = int(os.environ.get('HF', 0)); P2A = int(os.environ.get('P2A', 0)); PRET = int(os.environ.get('PRET', 0)); ACKM = int(os.environ.get('ACKM', 24)); BURST = int(os.environ.get('BURST', 6)); FL4 = int(os.environ.get('FL4', 6)); WOP = int(os.environ.get('WOP', 8)); LOC = os.environ.get('LOC'); LOCT = int(os.environ.get('LOCT', 4)); TOUCH3 = int(os.environ.get('TOUCH3', 0)); MID2 = int(os.environ.get('MID2', 4)); CHK2 = int(os.environ.get('CHK2', 16)); LWB = int(os.environ.get('LWB', 8)); SFL = int(os.environ.get('SFL', 1)); BURST0 = int(os.environ.get('BURST0', 0)); LIM4 = int(os.environ.get('LIM4', 40)); PT4 = eval(os.environ.get('PT4', '(0,2)')); SFM = int(os.environ.get('SFM', 1)); ROT4 = int(os.environ.get('ROT4', 0)); ONE2A = int(os.environ.get('ONE2A', 0)); PSL = int(os.environ.get('PSL', 0)); MID = int(os.environ.get('MID', 4)); CHK1 = int(os.environ.get('CHK1', 18)); LWA = int(os.environ.get('LWA', 0)); CHK = int(os.environ.get('CHK', 10)); TOUCH = int(os.environ.get('TOUCH', 0)); FP = int(os.environ.get('FP', 999)); QS = int(os.environ.get('QS', 40)); CK0 = int(os.environ.get('CK0', 16)); CK1 = int(os.environ.get('CK1', 38)); HH1 = int(os.environ.get('HH1', 16)); SIGI = int(os.environ.get('SIGI', 5)); W3EARLY = int(os.environ.get('W3EARLY', 10)); LAG = int(os.environ.get('LAG', 12)); EARLY = int(os.environ.get('EARLY', 3)); WO1 = int(os.environ.get('WO1', 25)); RTSG = int(os.environ.get('RTSG', 36)); RTS0 = int(os.environ.get('RTS0', 99)); RTSN = int(os.environ.get('RTSN', 3))

class Paced:
    def __init__(self, a, L, n, gate=None):
        self.a, self.L, self.n, self.c, self.gate = a, L, n, 0, gate
    def __call__(self, text):
        for line in text.strip().split("\n"):
            if not line.strip(): continue
            self.a(line)
            self.c += 1
            if self.c % self.n == 0: self.L.paced(self.gate)

def poll(a, name, voff, soff, tmp):
    a(f"""
    s_mov_b32 s92, 0
{name}:
    buffer_load_dword v{tmp}, v{voff}, s[8:11], {soff} offen sc1
    s_add_u32 s92, s92, 1
    s_cmp_gt_u32 s92, {POLL_MAX}
    s_cbranch_scc1 {name}_go
    s_waitcnt vmcnt(0)
    v_cmp_ne_u32 vcc, s93, v{tmp}
    s_nop 4
    {"s_cbranch_vccz %s_go" % name if PSL else ""}
    {"s_sleep %d" % PSL if PSL else ""}
    {"s_branch" if PSL else "s_cbranch_vccnz"} {name}
{name}_go:
    s_waitcnt vmcnt(0)
    """)
    a.vm_done = a.vm_issued

def signal(a, soff, tmp, fl='sc0 sc1'):
    a(f"""
    s_mov_b64 exec, 1
    v_mov_b32 v{tmp}, s93
    v_mov_b32 v{tmp+1}, 0
    buffer_store_dword v{tmp}, v{tmp+1}, s[8:11], {soff} offen {fl}
    s_mov_b64 exec, -1
    """)

def softmax_pair(a, P, E, O, tmp):
    mx, mn = tmp, tmp + 2
    a(f"v_max3_f32 v{mx}, v{P}, v{P+1}, v{P+2}")
    a(f"v_min3_f32 v{mn}, v{P}, v{P+1}, v{P+2}")
    for i in range(3, 19, 2):
        a(f"v_max3_f32 v{mx}, v{mx}, v{P+i}, v{P+i+1}")
        a(f"v_min3_f32 v{mn}, v{mn}, v{P+i}, v{P+i+1}")
    a(f"v_max_f32 v{mx}, v{mx}, v{P+19}")
    a(f"v_min_f32 v{mn}, v{mn}, v{P+19}")
    for i in range(0, 20, 2):
        a(f"v_pk_add_f32 v[{E+i}:{E+i+1}], v[{P+i}:{P+i+1}], v[{mx}:{mx+1}] op_sel_hi:[1,0] neg_lo:[0,1] neg_hi:[0,1]")
        a(f"v_pk_add_f32 v[{E+20+i}:{E+21+i}], v[{P+i}:{P+i+1}], v[{mn}:{mn+1}] op_sel_hi:[1,0] neg_lo:[1,0] neg_hi:[1,0]")
    for i in range(40):
        a(f"v_exp_f32 v{E+i}, v{E+i}")
    sp, sn = tmp, tmp + 2
    a(f"v_pk_add_f32 v[{sp}:{sp+1}], v[{E}:{E+1}], v[{E+2}:{E+3}]")
    a(f"v_pk_add_f32 v[{sn}:{sn+1}], v[{E+20}:{E+21}], v[{E+22}:{E+23}]")
    for i in range(4, 20, 2):
        a(f"v_pk_add_f32 v[{sp}:{sp+1}], v[{sp}:{sp+1}], v[{E+i}:{E+i+1}]")
        a(f"v_pk_add_f32 v[{sn}:{sn+1}], v[{sn}:{sn+1}], v[{E+20+i}:{E+21+i}]")
    a(f"v_add_f32 v{sp}, v{sp}, v{sp+1}")
    a(f"v_add_f32 v{sn}, v{sn}, v{sn+1}")
    a(f"v_rcp_f32 v{sp}, v{sp}")
    a(f"v_rcp_f32 v{sn}, v{sn}")
    for i in range(0, 20, 2):
        a(f"v_pk_mul_f32 v[{E+i}:{E+i+1}], v[{E+i}:{E+i+1}], v[{sp}:{sp+1}] op_sel_hi:[1,0]")
        a(f"v_pk_mul_f32 v[{E+20+i}:{E+21+i}], v[{E+20+i}:{E+21+i}], v[{sn}:{sn+1}] op_sel_hi:[1,0]")
    for i in range(20):
        a(f"v_cvt_pk_bf16_f32 v{O+i}, v{E+2*i}, v{E+2*i+1}")

def map_p1(a, rb, hp, t, kind='x'):
    if kind == 'h4':
        map_p3(a, rb, hp, t, 'x')
        return
    if kind == 'h2':
        map_p3(a, hp, rb, t, 'row')
        return
    a(f"""
    s_bfe_u32 s{rb}, s2, 0x20001
    s_lshl_b32 s{rb}, s{rb}, 2
    s_bfe_u32 s{t}, s2, 0x20003
    s_add_u32 s{rb}, s{rb}, s{t}
    s_and_b32 s{hp}, s2, 1
    s_lshl_b32 s{hp}, s{hp}, 3
    s_lshr_b32 s{t}, s2, 5
    s_add_u32 s{hp}, s{hp}, s{t}
    """)
def map_p2(a, tb, nb, t):
    a(f"""
    s_and_b32 s{tb}, s2, 7
    s_lshl_b32 s{tb}, s{tb}, 3
    s_bfe_u32 s{t}, s2, 0x30003
    s_add_u32 s{tb}, s{tb}, s{t}
    s_lshr_b32 s{nb}, s2, 6
    """)
def map_p3(a, rb, cb, t, kind=None):
    kind = kind or MAP3
    if kind == 'row':
        a(f"""
        s_and_b32 s{rb}, s2, 7
        s_lshl_b32 s{rb}, s{rb}, 1
        s_bfe_u32 s{t}, s2, 0x10003
        s_add_u32 s{rb}, s{rb}, s{t}
        s_lshr_b32 s{cb}, s2, 4
        """)
        return
    if kind == 'mid':
        map_p1(a, rb, cb, t)
        return
    a(f"""
    s_bfe_u32 s{rb}, s2, 0x10002
    s_lshl_b32 s{rb}, s{rb}, 3
    s_bfe_u32 s{t}, s2, 0x30003
    s_add_u32 s{rb}, s{rb}, s{t}
    s_and_b32 s{cb}, s2, 3
    s_lshl_b32 s{cb}, s{cb}, 2
    s_lshr_b32 s{t}, s2, 6
    s_add_u32 s{cb}, s{cb}, s{t}
    """)
def map_p4(a, rb, nb, t, kind=None):
    if (kind or MAP4) == 'row':
        a(f"""
        s_and_b32 s{rb}, s2, 7
        s_lshl_b32 s{rb}, s{rb}, 2
        s_bfe_u32 s{t}, s2, 0x20003
        s_add_u32 s{rb}, s{rb}, s{t}
        s_lshr_b32 s{nb}, s2, 5
        """)
        return
    a(f"""
    s_bfe_u32 s{rb}, s2, 0x20001
    s_lshl_b32 s{rb}, s{rb}, 3
    s_bfe_u32 s{t}, s2, 0x30003
    s_add_u32 s{rb}, s{rb}, s{t}
    s_and_b32 s{nb}, s2, 1
    s_lshl_b32 s{nb}, s{nb}, 2
    s_lshr_b32 s{t}, s2, 6
    s_add_u32 s{nb}, s{nb}, s{t}
    """)

def w3_dma(L, T, gate=None):
    reg = [81920, 122880, 0, 40960, 81920, 122880, 0][T]
    sr = 12 if T < 2 else (16 if T < 6 else 68)
    for c in range(10):
        grp = 0 if c < 4 else (4 if c < 8 else 8)
        L.add(f"buffer_load_dwordx4 v3, s[{sr}:{sr+3}], m0 offen offset:{1024*(c-grp)} {SC} lds", gate=gate,
              pre=f"s_add_u32 m0, s3, {reg + 1024*c}" if c == grp else None, tag=('W3', T) if c == 9 else None)

def check_flags(a, name, regs, voff, soff, wide):
    def test(x):
        if wide:
            x(f"v_xor_b32 v{regs}, s93, v{regs}\nv_xor_b32 v{regs+1}, s93, v{regs+1}\nv_xor_b32 v{regs+2}, s93, v{regs+2}\nv_xor_b32 v{regs+3}, s93, v{regs+3}")
            x(f"v_or3_b32 v{regs}, v{regs}, v{regs+1}, v{regs+2}\nv_or_b32 v{regs}, v{regs}, v{regs+3}\nv_cmp_ne_u32 vcc, 0, v{regs}")
        else:
            x(f"v_cmp_ne_u32 vcc, s93, v{regs}")
    test(a)
    a(f"s_mov_b32 s92, 0\ns_nop 3\ns_cbranch_vccz {name}_ok")
    b = Asm()
    b(f"{name}:")
    b(f"buffer_load_dwordx4 v[{regs}:{regs+3}], v{voff}, s[8:11], {soff} offen sc1" if wide else f"buffer_load_dword v{regs}, v{voff}, s[8:11], {soff} offen sc1")
    b(f"s_add_u32 s92, s92, 1\ns_waitcnt vmcnt(0)\ns_cmp_gt_u32 s92, {POLL_MAX}\ns_cbranch_scc1 {name}_ok")
    test(b)
    b(f"s_nop 4\ns_cbranch_vccnz {name}")
    a.splice(b)
    a(f"{name}_ok:")

def sflag_load(a, off):
    a(f"s_add_u32 s62, s63, {off}\ns_buffer_load_dwordx8 s[40:47], s[8:11], s62 glc")
def sflag_check(a, name, regs, voff, soff):
    a.wait_all_lg()
    a(f"""
    s_and_b64 s[60:61], s[40:41], s[42:43]
    s_or_b64 s[40:41], s[40:41], s[42:43]
    s_and_b64 s[42:43], s[44:45], s[46:47]
    s_or_b64 s[44:45], s[44:45], s[46:47]
    s_and_b64 s[60:61], s[60:61], s[42:43]
    s_or_b64 s[40:41], s[40:41], s[44:45]
    s_and_b32 s60, s60, s61
    s_or_b32 s61, s40, s41
    s_mov_b32 s92, s93
    s_cmp_eq_u64 s[60:61], s[92:93]
    s_cbranch_scc1 {name}_ok
    """)
    b = Asm()
    b(f"s_mov_b32 s92, 0\n{name}:")
    b(f"buffer_load_dword v{regs}, v{voff}, s[8:11], {soff} offen sc1")
    b(f"s_add_u32 s92, s92, 1\ns_waitcnt vmcnt(0)\ns_cmp_gt_u32 s92, {POLL_MAX}\ns_cbranch_scc1 {name}_ok")
    b(f"v_cmp_ne_u32 vcc, s93, v{regs}\ns_nop 4\ns_cbranch_vccnz {name}")
    a.splice(b)
    a(f"{name}_ok:")

def gen_mega():
    LS = SC if LOC is None else LOC.strip('_'); LF = 'sc0 sc1' if LOC is None else ''
    a = Asm()
    a(f"""
    s_memrealtime s[98:99]
    s_load_dwordx2 s[20:21], s[0:1], 80
    s_load_dwordx2 s[4:5], s[0:1], 0
    s_load_dwordx4 s[12:15], s[0:1], 8
    s_load_dwordx2 s[16:17], s[0:1], 24
    s_load_dwordx2 s[6:7], s[0:1], 64
    s_load_dwordx2 s[18:19], s[0:1], 72
    s_load_dwordx4 s[56:59], s[0:1], 40
    s_load_dwordx2 s[62:63], s[0:1], 56
    v_lshrrev_b32 v1, 6, v0
    v_and_b32 v2, 63, v0
    v_readfirstlane_b32 s95, v1
    s_cmp_ge_u32 s2, {GRID}
    s_cbranch_scc1 M_exit
    """)
    mstamp_begin(a)
    a(f"""
    v_lshlrev_b32 v3, 4, v2
    v_lshrrev_b32 v4, 5, v2
    v_and_b32 v5, 31, v2
    s_mul_i32 s3, s95, 10240
    """)
    map_p1(a, 42, 43, 40, MAP1)
    a("; ==== P0: first LayerNorm (8 rows per workgroup), w_phi folded into wq/wk, weights re-laid out as MFMA fragments in d_ws")
    p0b.p0(a, int(os.environ.get('NPF', 2)))
    rt_ld, rt_rd, rt_cs, rt_cs2, rt_st, rt_se = p0b.rt_setup(a)
    assert not rt_ld
    RTW = p0b.RTL in ('p0', 'ln')
    if RTW:
        tt_ = [a.ds(x_) for x_ in rt_rd]; rt_rd = []
        for n_ in range(5):
            a.wait(lg=tt_[2 * n_ + 1]); a(rt_cs[n_]); a(rt_st[n_][0])
        for n_ in range(4):
            a.wait(lg=tt_[11 + 2 * n_]); a(rt_st[6 + n_][0]); a(rt_st[6 + n_][1]); a(rt_se[n_][0]); a(rt_se[n_][1])
        for x_ in rt_cs2: a(x_)
        a(rt_st[5][0])
        rt_cs = []; rt_cs2 = []; rt_st = []; rt_se = []
        mmark(a, "p0_rt")
    a("""; ==== P1: k/v/q projection (LayerNorm rows x folded weights), dual softmax (true max / min subtracted),
;      per-workgroup phi_k^T [v|1] partial added into the kv accumulator, q tile deferred behind the adds""")
    EB, XL, QB = 0, 61440, 122880
    srd(a, 64, 20, WO_OFF, WO_SZ)
    srd(a, 36, 20, KV_OFF, KV_SZ)
    srd(a, 68, 4, 0, 2621440)
    map_p4(a, 100, 101, 40, MAP2)
    a(f"""
    s_lshl_b32 s44, s42, 2
    s_add_u32 s44, s44, s95
    s_mul_i32 s45, s44, 40960
    s_mul_i32 s46, s43, 153600
    s_mul_i32 s47, s95, 3072
    s_lshl_b32 s48, s95, 13
    s_mul_i32 s40, s101, 5
    s_lshr_b32 s40, s40, 2
    s_mul_i32 s40, s40, 20
    s_mul_i32 s41, s95, 5
    s_add_u32 s40, s40, s41
    s_lshl_b32 s40, s40, 4
    s_add_u32 s40, s40, {F6_O}
    v_and_b32 v62, 7, v2
    v_min_u32 v62, 4, v62
    v_lshl_add_u32 v62, v62, 4, s40
    v_bfe_u32 v63, v2, 3, 1
    v_mul_u32_u24 v63, 320, v63
    v_add_u32 v62, v62, v63
    s_mul_i32 s22, s101, 100
    s_add_u32 s22, s22, s41
    s_lshl_b32 s22, s22, 10
    v_lshlrev_b32 v6, 7, v4
    v_sub_u32 v6, v3, v6
    v_add_u32 v6, {QB}, v6
    v_add_u32 v7, {20*3072}, v3
    s_lshl_b32 s40, s95, 5
    v_add_u32 v11, s40, v5
    v_mul_u32_u24 v11, 272, v11
    v_lshl_add_u32 v11, v4, 7, v11
    v_bfe_u32 v56, v2, 2, 2
    v_lshlrev_b32 v56, 2, v56
    v_lshl_add_u32 v56, v4, 1, v56
    v_mul_u32_u24 v56, 272, v56
    v_bfe_u32 v57, v2, 4, 1
    v_lshl_add_u32 v56, v57, 5, v56
    v_and_b32 v57, 3, v2
    v_lshl_add_u32 v56, v57, 3, v56
    s_lshr_b32 s51, s95, 1
    s_and_b32 s55, s95, 1
    s_lshl_b32 s40, s51, 7
    v_add_u32 v56, s40, v56
    s_mul_i32 s40, s55, 40
    v_add_u32 v57, s40, v56
    s_lshl_b32 s40, s95, 12
    s_add_u32 s40, s40, 40960
    v_mul_u32_u24 v58, 384, v4
    v_lshl_add_u32 v58, v5, 4, v58
    v_add_u32 v58, s40, v58
    v_lshl_add_u32 v59, v2, 2, s40
    v_lshlrev_b32 v60, 2, v2
    s_lshl_b32 s54, s43, 1
    s_add_u32 s54, s54, s51
    s_mul_i32 s54, s54, 3840
    s_mul_i32 s55, s55, 1920
    s_add_u32 s54, s54, s55
    s_lshl_b32 s49, s43, 4
    s_add_u32 s49, s49, s42
    s_lshl_b32 s49, s49, 4
    s_add_u32 s49, s49, {F2A_O}
    s_lshl_b32 s50, s2, 4
    s_add_u32 s50, s50, {F6_O}
    s_cmp_eq_u32 s95, 3
    s_cselect_b32 s50, s50, 0x1000000
    s_cmp_eq_u32 s95, 0
    s_cselect_b32 s49, s49, s50
    v_mov_b32 v61, 0x1000000
    v_writelane_b32 v61, s49, 0
    v_mov_b32 v19, s93
    s_lshl_b32 s40, s2, 4
    s_add_u32 s40, s40, {F5_O}
    s_cmp_eq_u32 s95, 2
    s_cselect_b32 s40, s40, s50
    v_mov_b32 v10, 0x1000000
    v_writelane_b32 v10, s40, 0
    s_lshl_b32 s56, s100, 2
    s_add_u32 s56, s56, s95
    s_mul_i32 s56, s56, {16*1280}
    s_mul_i32 s41, s101, 160
    s_add_u32 s56, s56, s41
    s_movk_i32 s41, 6554
    """)
    for n in range(3):
        a(f"""
        v_add_u32 v8, {64*n}, v2
        v_min_u32 v8, 159, v8
        v_mul_u32_u24 v9, s41, v8
        v_lshrrev_b32 v9, 16, v9
        v_mul_u32_u24 v9, {1280-160}, v9
        v_lshl_add_u32 v{16+n}, v8, 4, v9
        """)
    if PRET:
        map_p3(a, 60, 61, 40)
        a(f"""
        s_lshl_b32 s40, s60, 2
        s_add_u32 s40, s40, s95
        s_mul_i32 s40, s40, 114688
        s_lshr_b32 s41, s61, 2
        s_mul_i32 s41, s41, 14336
        s_add_u32 s40, s40, s41
        s_and_b32 s41, s61, 3
        s_lshl_b32 s41, s41, 9
        s_add_u32 s40, s40, s41
        s_add_u32 s40, s40, {HH_OFF}
        v_and_b32 v20, 3, v2
        v_lshlrev_b32 v20, 7, v20
        v_bfe_u32 v21, v2, 2, 3
        v_min_u32 v21, 6, v21
        v_lshl_add_u32 v20, v21, 11, v20
        v_mul_u32_u24 v21, 57344, v4
        v_add3_u32 v20, v20, v21, s40
        s_lshl_b32 s40, s100, 1
        s_lshr_b32 s41, s95, 1
        s_add_u32 s40, s40, s41
        s_mul_i32 s40, s40, 40960
        s_mul_i32 s41, s101, 5120
        s_add_u32 s40, s40, s41
        s_and_b32 s41, s95, 1
        s_lshl_b32 s41, s41, 8
        s_add_u32 s40, s40, s41
        s_add_u32 s40, s40, {H_OFF}
        v_lshrrev_b32 v21, 1, v2
        v_min_u32 v21, 9, v21
        v_lshlrev_b32 v21, 9, v21
        v_and_b32 v22, 1, v2
        v_lshl_add_u32 v21, v22, 7, v21
        v_add_u32 v21, s40, v21
        """)
    srd(a, 24, 20, XN_OFF, XN_SZ)
    srd_dyn(a, 28, 20, W1_OFF, 46, 153600)
    mspill(a)
    poll(a, "M_poll1", 12, "0", 9)
    mmark(a, "p1_sync")
    L = Loads(a, P1LIM)
    for n in range(10):
        g = 11 if n >= 9 else None
        L.add(f"buffer_load_dwordx4 a[{16*n}:{16*n+3}], v3, s[24:27], s45 offen {SC}", pre=f"s_add_u32 m0, s47, {12288*n}", gate=g)
        for c in range(3):
            L.add(f"buffer_load_dwordx4 v3, s[28:31], m0 offen offset:{1024*c} {SC} lds", gate=g)
        for c in range(1, 4):
            L.add(f"buffer_load_dwordx4 a[{16*n+4*c}:{16*n+4*c+3}], v3, s[24:27], s45 offen offset:{1024*c} {SC}",
                  tag=n if c == 3 else None, post="s_add_u32 s45, s45, 4096" if c == 3 and n < 9 else None, gate=g)
    for c in range(8):
        L.add(f"buffer_load_dwordx4 v3, s[28:31], m0 offen offset:{1024*(c%4)} {SC} lds", pre=f"s_add_u32 m0, s48, {QB + 1024*c}" if c % 4 == 0 else None, gate=11, tag='qb' if c == 7 else None)
    for n in range(3):
        L.add(f"buffer_load_dwordx4 v{16+n}, s[68:71], s56 offen nt lds", pre=f"s_add_u32 m0, s47, {XL + 1024*n}", gate=27)
    L.pump(14)
    for tx_, po in rt_se: L.add(tx_, post=po, gate=34)
    for n_, (tx_, po) in enumerate(rt_st): L.add(tx_, post=po, gate=50, tag='rts' if n_ == len(rt_st) - 1 else None)
    if RTW: L.add("buffer_store_dword v19, v10, s[8:11], 0 offen sc0 sc1", gate=4)
    L.add("buffer_load_dword v63, v62, s[8:11], 0 offen sc1", tag='f6', gate=60)
    def woreg(T, k):
        r = 156 + 4 * ((5 * T + k + 1) % 25)
        return f"a[{r}:{r+3}]"
    for k in range(5):
        for T in range(5):
            L.add(f"buffer_load_dwordx4 {woreg(T, k)}, v3, s[64:67], s23 offen {SC}", pre=f"s_add_u32 s23, s22, {T*20480 + 1024*k}", gate=70, tag=('WO', k))
    ACC = 64; WF = 24
    def rd(s, T):
        r = WF + 4 * ((s % 2) * 3 + T)
        return a.ds(f"ds_read_b128 v[{r}:{r+3}], v{3 if s < 20 else 7} offset:{(s % 20) * 3072 + T * 1024}")
    tR = {}
    L.need(0)
    a("s_barrier")
    mmark(a, "p1_first")
    for T in range(3): tR[(0, T)] = rd(0, T)
    for s in range(40):
        nxt = s + 1
        if nxt < 40 and nxt % 4 == 0:
            L.need(nxt // 4, gate=s - 1)
            a("s_barrier")
        for T in range(3):
            if nxt < 40: tR[(nxt, T)] = rd(nxt, T)
            a.wait(lg=tR[(s, T)])
            r = WF + 4 * ((s % 2) * 3 + T)
            d = ACC + 16 * T
            a(f"v_mfma_f32_32x32x16_bf16 v[{d}:{d+15}], v[{r}:{r+3}], a[{4*s}:{4*s+3}], " + ("0" if s == 0 else f"v[{d}:{d+15}]"))
            if s >= 1 and rt_rd:
                a(rt_rd.pop(0))
            elif s == 12 and T == 0:
                for x_ in rt_cs: a(x_)
            elif s in (16, 17) and rt_cs2:
                a(rt_cs2.pop(0))
            if T != 1 or s >= 36:
                if 9 in L.t: L.paced(gate=s)
                else: L.pump(1, gate=s)
    assert not rt_rd
    mmark(a, "p1_loop")
    if PRET == 2: a("global_load_dword v22, v21, s[20:21] sc1\nglobal_load_dword v22, v20, s[20:21] sc1")
    pa = Paced(a, L, 8, gate=45)
    E, O, TMP, VP = 128, 168, 12, 188
    softmax_pair(pa, 64, E, O, TMP)
    for c in range(5):
        a(f"ds_write_b128 v11, v[{O+4*c}:{O+4*c+3}] offset:{16*c}")
        for i in range(2 * c, min(2 * c + 2, 9)):
            a(f"v_cvt_pk_bf16_f32 v{VP+i}, v{84+2*i}, v{85+2*i}")
    a(f"v_mov_b32 v{VP+9}, 0x3f80\nv_cvt_pk_bf16_f32 v{VP+10}, v102, v103\nv_mov_b32 v{VP+11}, 0x3f80")
    for c in range(3):
        a(f"ds_write_b128 v11, v[{VP+4*c}:{VP+4*c+3}] offset:{80+16*c}")
    if RTW: L.lim = 60; L.pump(1, gate=60)
    a.wait_all_lg()
    L.need('qb')
    a("s_barrier")
    mmark(a, "p1_ksm")
    tk = []
    FA, FB, KD = 128, 200, 24
    def kvm(k2):
        a.wait(lg=tk[k2])
        a(f"v_mfma_f32_32x32x16_bf16 v[{KD}:{KD+15}], v[{FA+4*k2}:{FA+4*k2+3}], v[{FB+4*k2}:{FB+4*k2+3}], " + ("0" if k2 == 0 else f"v[{KD}:{KD+15}]"))
    for ks in range(8):
        for rho in range(2):
            off = (16 * ks + rho) * 272
            a(f"ds_read_b64_tr_b16 v[{FA+4*ks+2*rho}:{FA+4*ks+2*rho+1}], v57 offset:{off}")
            t = a.ds(f"ds_read_b64_tr_b16 v[{FB+4*ks+2*rho}:{FB+4*ks+2*rho+1}], v56 offset:{off+80}")
        tk.append(t)
        if ks >= 2: kvm(ks - 2)
    kvm(6); kvm(7)
    a("s_mov_b32 exec_lo, 0xffffff\ns_mov_b32 exec_hi, 0xffffff")
    for c in range(3):
        a(f"ds_write_b128 v58, v[{KD+4*c}:{KD+3+4*c}] offset:{768*c}")
    a("s_mov_b64 exec, -1")
    tk = [a.ds(f"ds_read_b32 v{40+i}, v59 offset:{256*i}") for i in range(8)]
    def rdq(s):
        r = 128 + 4 * (s % 10)
        return a.ds(f"ds_read_b128 v[{r}:{r+3}], v6 offset:{768*s}")
    tq = [rdq(s) for s in range(6)]
    if a.vm_issued - a.vm_done > 40: a.wait(vm=a.vm_issued - 24)
    for i in range(8):
        a.wait(lg=tk[i])
        if i == 7: a("s_mov_b32 exec_hi, 0")
        a(f"buffer_atomic_add_f32 v{40+i}, v60, s[36:39], s54 offen offset:{256*i}")
    a("s_mov_b64 exec, -1")
    mmark(a, "p1_atom")
    tat = a.vm_issued
    def pretouch():
        a("global_load_dword v22, v21, s[20:21] sc1\nglobal_load_dword v22, v20, s[20:21] sc1")
    if PRET == 1: pretouch()
    P = lambda r: f"v[{r}:{r+1}]"
    L.lim = 60
    def sig2a():
        a.wait(vm=tat)
        a("s_barrier")
        a("buffer_store_dword v19, v61, s[8:11], 0 offen sc0 sc1")
        mmark(a, "p1_sig")
    for s in range(40):
        if s + 6 < 40: tq.append(rdq(s + 6))
        if s % 2 == 0: a.wait(lg=tq[s + 1])
        r = 128 + 4 * (s % 10)
        a(f"v_mfma_f32_32x32x16_bf16 v[112:127], v[{r}:{r+3}], a[{4*s}:{4*s+3}], " + ("0" if s == 0 else "v[112:127]"))
        if s >= RQ0 and s % 2 == 1: L.paced(gate=50)
        if s == SIG2: sig2a()
    assert RTW or 'rts' in L.t
    mmark(a, "p1_q")
    if RTW: check_flags(a, "M_f6", 63, 62, "0", False)
    softmax_pair(Paced(a, L, WOP, gate=99) if RTW else a, 104, E, O, TMP)
    for c in (0, 2):
        for j in range(4):
            a(f"v_permlane32_swap_b32 v{O+4*c+j}, v{O+4*c+4+j}")
    mmark(a, "p1_qsm")
    a("""; ==== P1b: o = phi_q kv / (phi_q z + 1e-6) for this workgroup's 128 rows x 2 heads""")
    srd(a, 24, 20, KV_OFF, KV_SZ)
    srd(a, 28, 20, O_OFF, O_SZ)
    a(f"""
    v_min_u32 v6, 23, v5
    v_lshlrev_b32 v6, 4, v6
    v_mul_u32_u24 v7, 3840, v4
    v_add_u32 v7, v7, v6
    v_mul_u32_u24 v8, 768, v4
    v_add_u32 v6, v8, v6
    s_mul_i32 s45, s43, 7680
    s_add_u32 s46, s45, 3840
    v_and_b32 v8, 15, v2
    v_lshlrev_b32 v8, 4, v8
    s_lshl_b32 s47, s43, 8
    s_add_u32 s47, s47, {F2A_O}
    v_lshrrev_b32 v10, 4, v5
    v_mul_u32_u24 v10, {O_TT}, v10
    v_add_u32 v10, v10, v8
    v_lshl_add_u32 v11, v4, 8, v10
    s_mul_i32 s48, s44, {2*O_TT}
    s_mul_i32 s49, s43, 1280
    s_add_u32 s48, s48, s49
    s_lshl_b32 s49, s44, 4
    s_add_u32 s49, s49, s43
    s_lshl_b32 s49, s49, 4
    s_add_u32 s49, s49, {FO_O}
    """)
    for r in range(12, 20): a(f"v_mov_b32 v{r}, 0")
    mspill(a)
    if ONE2A:
        a("s_cmp_lg_u32 s95, 0\ns_cbranch_scc1 M_poll2a_go")
        poll(a, "M_poll2a", 8, "s47", 9)
        a("s_barrier")
    else:
        poll(a, "M_poll2a", 8, "s47", 9)
    mmark(a, "p1b_sync")
    b = 64
    for hh in range(2):
        for u in range(2):
            for e in range(2):
                r = b + 16 * hh + 8 * u + 4 * e
                a(f"buffer_load_dwordx4 v[{r}:{r+3}], v6, s[24:27], s{45+hh} offen offset:{(4*u+e)*384} {SC}")
        if hh == 0:
            for e in range(2):
                r = b + 32 + 4 * e
                t0 = a.vm(f"buffer_load_dwordx4 v[{r}:{r+3}], v7, s[24:27], s45 offen offset:{(8+e)*384} {SC}")
    t1 = a.vm_issued
    if not RTW and not ONE2A: a("s_barrier")
    OD, OB = [24, 40], 56
    for hh in range(2):
        a.wait(vm=t0 if hh == 0 else t1)
        if hh == 0: mmark(a, "p1b_kv")
        for u in range(2):
            r = b + 16 * hh + 8 * u
            for j in range(4):
                a(f"v_cvt_pk_bf16_f32 v{r+j}, v{r+2*j}, v{r+2*j+1}")
        a("s_mov_b32 exec_hi, 0" if hh == 0 else "s_mov_b32 exec_lo, 0")
        for j in range(4): a(f"v_cvt_pk_bf16_f32 v{12+4*hh+j}, v{b+32+2*j}, v{b+33+2*j}")
        a("s_mov_b64 exec, -1")
        d = OD[hh]
        for u in range(2):
            r = b + 16 * hh + 8 * u
            q = O + 8 * u + 4 * hh
            a(f"v_mfma_f32_32x32x16_bf16 v[{d}:{d+15}], v[{r}:{r+3}], v[{q}:{q+3}], " + ("0" if u == 0 else f"v[{d}:{d+15}]"))
        a(f"v_mfma_f32_32x32x16_bf16 v[{d}:{d+15}], v[{12+4*hh}:{15+4*hh}], v[{O+16}:{O+19}], v[{d}:{d+15}]")
    OB = 104
    for hh in range(2):
        d = OD[hh]
        a(f"v_add_f32 v{d+10}, {f32(1e-6)}, v{d+10}")
        a(f"v_rcp_f32 v{d+10}, v{d+10}")
        for j in range(0, 10, 2):
            a(f"v_pk_mul_f32 {P(d+j)}, {P(d+j)}, {P(d+10)} op_sel_hi:[1,0]")
        for j in range(5):
            a(f"v_cvt_pk_bf16_f32 v{OB+5*hh+j}, v{d+2*j}, v{d+2*j+1}")
        if hh == 0:
            a(f"buffer_store_dwordx4 v[{OB}:{OB+3}], v11, s[28:31], s48 offen {SC}")
    a(f"""
    buffer_store_dwordx4 v[{OB+4}:{OB+7}], v11, s[28:31], s48 offen offset:512 {SC}
    v_permlane32_swap_b32 v{OB+8}, v{OB+10}
    v_permlane32_swap_b32 v{OB+9}, v{OB+11}
    s_mov_b32 exec_hi, 0
    """)
    tst = a.vm(f"buffer_store_dwordx4 v[{OB+8}:{OB+11}], v10, s[28:31], s48 offen offset:1024 {SC}")
    a("s_mov_b32 exec_hi, -1")
    if not RTW: L.pump(1, gate=60)
    mmark(a, "p1b_st")
    map_p3(a, 60, 61, 40)
    a(f"""
    s_mul_i32 s62, s61, 27
    s_lshr_b32 s62, s62, 1
    s_mul_i32 s40, s62, 20480
    """)
    srd_dyn(a, 12, 20, W3_OFF - 81920, 40, 163840)
    srd_dyn(a, 16, 20, W3_OFF + 81920, 40, 163840)
    srd_dyn(a, 68, 20, W3_OFF + 245760, 40, 40960)
    a.wait(vm=tst)
    signal(a, "s49", 8)
    if not RTW:
        a(f"s_sub_u32 s50, s50, {F6_O - F5_O}")
        signal(a, "s50", 8)
    mmark(a, "p1b_sig")
    if not RTW:
        L.need('f6')
        check_flags(a, "M_f6", 63, 62, "0", False)
    L.pump(WO1, gate=99); woq = [(x[0], x[1], x[2], x[3], None) for x in L.q]
    a("""; ==== P2: h = x + o wo (64 rows x 80 columns, K split over the 4 waves), row sums for the second LayerNorm""")
    PB2, TB2 = 0, XL
    srd(a, 24, 20, H_OFF, H_SZ)
    srd(a, 32, 20, ST_OFF, ST_SZ)
    a(f"""
    s_mul_i32 s44, s95, 5
    s_mul_i32 s45, s100, {4*O_TT//1024}
    s_add_u32 s45, s45, s44
    s_lshl_b32 s45, s45, 10
    v_and_b32 v7, 3, v2
    v_lshlrev_b32 v7, 4, v7
    v_bfe_u32 v8, v2, 2, 1
    v_lshl_add_u32 v7, v8, 8, v7
    s_lshl_b32 s46, s100, 9
    s_lshl_b32 s47, s95, 6
    s_add_u32 s46, s46, s47
    s_add_u32 s46, s46, {FO_O}
    s_mul_i32 s47, s95, 15360
    v_add_u32 v6, s47, v3
    """)
    for j in range(1, 4):
        a(f"""
        s_add_u32 s47, s95, {j}
        s_and_b32 s47, s47, 3
        s_mul_i32 s47, s47, 15360
        s_add_u32 s47, s47, {PB2 + (3-j)*5120}
        v_add_u32 v{9+j}, s47, v3
        """)
    map_p4(a, 58, 59, 40)
    a(f"""
    v_and_b32 v13, 15, v2
    v_lshrrev_b32 v14, 4, v2
    v_mul_u32_u24 v17, 160, v13
    v_lshl_add_u32 v17, v14, 3, v17
    s_mul_i32 s51, s95, 3072
    s_add_u32 s52, s51, {XL}
    v_add_u32 v15, s52, v17
    s_add_u32 s51, s51, {TB2}
    v_add_u32 v17, s51, v17
    v_mul_u32_u24 v18, 160, v13
    v_lshl_add_u32 v18, v14, 4, v18
    v_add_u32 v18, s51, v18
    v_lshlrev_b32 v19, 4, v13
    v_lshl_add_u32 v19, v14, 9, v19
    s_lshl_b32 s48, s100, 1
    s_lshr_b32 s49, s95, 1
    s_add_u32 s48, s48, s49
    s_lshl_b32 s53, s48, 3
    s_add_u32 s53, s53, s101
    s_lshl_b32 s53, s53, 8
    s_mul_i32 s48, s48, 40960
    s_mul_i32 s49, s101, 5120
    s_add_u32 s48, s48, s49
    s_and_b32 s49, s95, 1
    s_lshl_b32 s50, s49, 7
    s_add_u32 s53, s53, s50
    s_lshl_b32 s49, s49, 8
    s_add_u32 s48, s48, s49
    s_add_u32 s49, s48, 4096
    s_lshl_b32 s56, s100, 2
    s_add_u32 s56, s56, s95
    s_lshl_b32 s56, s56, 3
    s_add_u32 s56, s56, s101
    s_lshl_b32 s56, s56, 4
    s_add_u32 s56, s56, {F3_O}
    s_mov_b32 s54, 0xffff0000
    s_lshr_b32 s50, s62, 3
    s_lshl_b32 s50, s50, 2
    v_min_u32 v20, 11, v13
    v_add_u32 v20, s50, v20
    v_min_u32 v20, 107, v20
    v_and_b32 v21, 1, v14
    v_mul_u32_u24 v16, 108, v21
    v_add_u32 v20, v20, v16
    s_mul_i32 s50, s59, 5
    s_lshr_b32 s50, s50, 2
    s_mul_i32 s50, s50, 56
    s_mul_i32 s51, s95, 14
    s_add_u32 s50, s50, s51
    v_min_u32 v16, 13, v13
    v_mul_u32_u24 v21, 56, v21
    v_add3_u32 v16, v16, v21, s50
    v_min_u32 v16, 559, v16
    v_lshrrev_b32 v21, 1, v16
    v_subrev_u32 v22, {512-208}, v16
    v_cmp_le_u32 vcc, 512, v16
    v_cndmask_b32 v16, v21, v22, vcc
    v_cmp_le_u32 vcc, 32, v2
    v_cndmask_b32 v20, v20, v16, vcc
    v_lshlrev_b32 v20, 4, v20
    s_mov_b32 s57, {F5_O}
    """)
    if RTW: tf = a.vm("buffer_load_dword v21, v20, s[8:11], s57 offen sc1")
    tx = [a.ds(f"ds_read_b64 v[{112+2*T}:{113+2*T}], v15 offset:{32*T}") for T in range(5)]
    A4 = [72, 92]; RS_, PS = 24, 44
    a.wait(lg=tx[4])
    for j in range(10):
        a(f"v_lshlrev_b32 v{128+2*j}, 16, v{112+j}")
        a(f"v_and_b32 v{129+2*j}, s54, v{112+j}")
    L0 = Loads(a, 60); w3_dma(L0, 0, 3); w3_dma(L0, 1, 3)
    if RTW:
        a.wait(vm=tf)
        check_flags(a, "M_f5", 21, 20, "s57", False)
        L0.pump(W3EARLY, gate=3)
    mspill(a)
    poll(a, "M_poll2b", 7, "s46", 9)
    mmark(a, "p2_sync")
    L = Loads(a, 40)
    order = [(sl, k) for sl in (1, 2, 3, 0) for k in range(5)]
    for i, (sl, k) in enumerate(order):
        pre = None
        if k == 0:
            pre = f"s_add_u32 s55, s95, {sl}\ns_and_b32 s55, s55, 3\ns_mul_i32 s55, s55, {O_TT}\ns_add_u32 s55, s55, s45"
        elif k == 4:
            pre = "s_add_u32 s55, s55, 4096"
        L.add(f"buffer_load_dwordx4 a[{4*i}:{4*i+3}], v3, s[28:31], s55 offen offset:{1024*(k%4)} {SC} {NT4}", pre=pre, tag=i)
        while woq and woq[0][1][1] <= i + 1: L.q.append(woq.pop(0))
        if i == F5I and not RTW: L.add("buffer_load_dword v21, v20, s[8:11], s57 offen sc1", tag='f5')
    L.q += L0.q; L.t.update(L0.t)
    if TOUCH:
        nsh = 4 if MAP4 == 'row' else 8
        per = 560 // nsh
        nin = (per + 63) // 64
        srd(a, 64, 20, W4_OFF, W4_SZ)
        a(f"""
        s_mov_b32 s36, s16
        s_mov_b32 s37, s17
        s_mov_b32 s38, 204800
        s_mov_b32 s39, 0x20000
        s_and_b32 s40, s60, 7
        s_lshl_b32 s40, s40, 2
        s_add_u32 s40, s40, s95
        s_mul_i32 s22, s40, {50*128}
        v_min_u32 v148, 49, v2
        v_lshlrev_b32 v148, 7, v148
        s_and_b32 s40, s58, {nsh-1}
        s_mul_i32 s40, s40, {per}
        s_mul_i32 s41, s95, 14
        s_mul_i32 s23, s59, {5*56}
        s_add_u32 s23, s23, s41
        s_lshl_b32 s23, s23, 10
        s_movk_i32 s41, 586
        """)
        L.add("buffer_load_dword v152, v148, s[36:39], s22 offen sc1", gate=3)
        for q in range(nin):
            a(f"""
            v_add_u32 v153, {64*q}, v2
            v_min_u32 v153, {per-1}, v153
            v_add_u32 v153, s40, v153
            v_mul_u32_u24 v154, s41, v153
            v_lshrrev_b32 v154, 16, v154
            v_mul_u32_u24 v154, {57344 - 112*128}, v154
            v_lshl_add_u32 v{149+q}, v153, 7, v154
            """)
            L.add(f"buffer_load_dword v152, v{149+q}, s[64:67], s23 offen sc1", gate=3)
    L.pump(12)
    ACC2 = [72, 92, 72, 128]
    def flush_p(ph):
        dp = ACC2[ph]
        for T in range(5):
            a(f"ds_write_b128 v6, v[{dp+4*T}:{dp+4*T+3}] offset:{ph*5120 + T*1024}")
    wr = []
    for i, (sl, k) in enumerate(order):
        ph = i // 5
        d = ACC2[ph]
        L.need(i)
        if i == 0: mmark(a, "p2_first")
        if i == F5I + 1 and not RTW: check_flags(a, "M_f5", 21, 20, "s57", False)
        for T in range(5):
            a(f"v_mfma_f32_16x16x32_bf16 v[{d+4*T}:{d+4*T+3}], {woreg(T, k)}, a[{4*i}:{4*i+3}], " + ("0" if k == 0 and ph < 3 else f"v[{d+4*T}:{d+4*T+3}]"))
            if wr and T in (0, 2, 4): a(wr.pop(0))
            elif T == 1 or T == 3: L.pump(1, gate=3 if i > F5I else None)
        if k == 0 and ph > 0:
            dp = ACC2[ph - 1]
            wr = [f"ds_write_b128 v6, v[{dp+4*T}:{dp+4*T+3}] offset:{(ph-1)*5120 + T*1024}" for T in range(5)]
    assert not wr and not woq
    a.wait_all_lg()
    a("s_barrier")
    mmark(a, "p2_bar")
    tk = []
    for j, rb in enumerate((RS_, PS, A4[0])):
        for T in range(5):
            t = a.ds(f"ds_read_b128 v[{rb+4*T}:{rb+4*T+3}], v{10+j} offset:{1024*T}")
        tk.append(t)
    a("v_mov_b32 v14, 0x3f803f80\nv_mov_b32 v112, 0\nv_mov_b32 v113, 0")
    for j, rb in enumerate((RS_, PS, A4[0])):
        a.wait(lg=tk[j])
        for r in range(0, 20, 2):
            a(f"v_pk_add_f32 {P(128+r)}, {P(128+r)}, {P(rb+r)}")
    for j in range(10):
        a(f"v_cvt_pk_bf16_f32 v{RS_+j}, v{128+2*j}, v{129+2*j}")
    for T in range(5):
        a(f"ds_write_b64 v17, v[{RS_+2*T}:{RS_+2*T+1}] offset:{32*T}")
    for j in range(10):
        a(f"v_dot2c_f32_bf16 v112, v{RS_+j}, v14")
        a(f"v_dot2c_f32_bf16 v113, v{RS_+j}, v{RS_+j}")
    a.wait_all_lg()
    tk = [a.ds(f"ds_read_b128 v[{PS+4*it}:{PS+4*it+3}], v18 offset:{64*it}") for it in range(3)]
    a(f"""
    v_mov_b32 v114, v112
    v_mov_b32 v115, v113
    v_permlane32_swap_b32 v112, v114
    v_permlane32_swap_b32 v113, v115
    v_pk_add_f32 v[112:113], v[112:113], v[114:115]
    """)
    for it in range(3):
        a.wait(lg=tk[it])
        if it == 2: a("s_mov_b32 exec_hi, 0")
        a(f"buffer_store_dwordx4 v[{PS+4*it}:{PS+4*it+3}], v19, s[24:27], s{48 if it < 2 else 49} offen offset:{2048*(it%2)} {LS}")
    a(f"""
    s_mov_b32 exec_hi, -1
    v_mov_b32 v114, v112
    v_mov_b32 v115, v113
    v_lshlrev_b32 v13, 3, v13
    v_permlane16_swap_b32 v112, v114
    v_permlane16_swap_b32 v113, v115
    v_pk_add_f32 v[112:113], v[112:113], v[114:115]
    s_mov_b64 exec, 0xffff
    """)
    tst = a.vm(f"buffer_store_dwordx2 v[112:113], v13, s[32:35], s53 offen {LS}")
    a("s_mov_b64 exec, -1")
    mmark(a, "p2_st")
    if P2A: L.pump(99, gate=3)
    srd(a, 28, 20, ST_OFF, ST_SZ)
    a.wait(vm=tst)
    signal(a, "s56", 8, LF)
    mmark(a, "p2_sig")
    L.need(('W3', 1), gate=3)
    a("s_barrier")
    L.pump(99, gate=3); w3_dma(L, 2); L.pump(99)
    a("""; ==== P3: gate/up GEMM on h; mean removed by an extra K-step with the weight column sums, rstd applied in the GELU epilogue""")
    map_p4(a, 100, 101, 40)
    a(f"s_mul_i32 s96, s101, {ROT4}\ns_add_u32 s96, s96, s95\ns_and_b32 s96, s96, 3")
    a(f"""
    s_lshl_b32 s44, s60, 2
    s_add_u32 s44, s44, s95
    s_mul_i32 s45, s44, 40960
    v_bfe_u32 v7, v2, 2, 1
    v_bfe_u32 v8, v2, 4, 1
    v_xor_b32 v9, v8, v4
    v_lshlrev_b32 v9, 7, v9
    v_lshl_add_u32 v9, v8, 8, v9
    v_bfe_u32 v8, v2, 3, 1
    v_lshl_add_u32 v9, v8, 6, v9
    v_and_b32 v8, 3, v2
    v_lshl_add_u32 v9, v8, 4, v9
    v_lshl_add_u32 v8, v7, 9, v9
    v_mul_u32_u24 v7, 20480, v7
    v_add_u32 v10, v7, v9
    v_add_u32 v11, 40960, v10
    v_add_u32 v12, 81920, v10
    v_add_u32 v13, 122880, v10
    """)
    srd(a, 12, 20, CS_OFF, CS_SZ)
    a("s_lshl_b32 s46, s62, 9\ns_add_u32 s47, s46, 4096\nv_mov_b32 v0, v8")
    def cs_ld(T):
        return f"buffer_load_dwordx4 a[{160+4*(T%3)}:{163+4*(T%3)}], v0, s[12:15], s{46 if T < 4 else 47} offen offset:{1024*(T%4)} {SC}"
    for T in range(3): a(cs_ld(T))
    srd(a, 36, 20, HH_OFF, HH_SZ)
    srd(a, 32, 20, RS_OFF, RS_SZ)
    a(f"""
    v_lshlrev_b32 v6, 3, v5
    v_lshl_add_u32 v6, v4, 10, v6
    s_lshl_b32 s48, s44, 11
    v_lshrrev_b32 v20, 4, v5
    v_mul_u32_u24 v20, 57344, v20
    v_and_b32 v21, 15, v2
    v_lshlrev_b32 v7, 4, v21
    v_add_u32 v20, v7, v20
    v_lshl_add_u32 v20, v4, 8, v20
    s_mul_i32 s50, s44, 114688
    s_lshr_b32 s51, s61, 2
    s_mul_i32 s51, s51, 14336
    s_add_u32 s50, s50, s51
    s_and_b32 s51, s61, 3
    s_lshl_b32 s51, s51, 9
    s_add_u32 s50, s50, s51
    s_lshr_b32 s51, s44, 1
    s_lshl_b32 s51, s51, 2
    s_lshr_b32 s52, s61, 2
    s_add_u32 s51, s51, s52
    s_lshl_b32 s51, s51, 7
    s_and_b32 s52, s44, 1
    s_lshl_b32 s52, s52, 4
    s_add_u32 s51, s51, s52
    s_and_b32 s52, s61, 3
    s_lshl_b32 s52, s52, 2
    s_add_u32 s51, s51, s52
    v_mov_b32 v8, 0x1000000
    v_writelane_b32 v8, s51, 0
    v_mov_b32 v1, s93
    s_mov_b32 s58, {F4E_O}
    s_mov_b32 s59, {F4_O}
    s_lshl_b32 s51, s44, 8
    s_add_u32 s51, s51, {F3_O}
    s_lshr_b32 s52, s61, 2
    s_lshl_b32 s52, s52, 13
    s_lshl_b32 s53, s44, 7
    s_add_u32 s52, s52, s53
    s_and_b32 s53, s61, 3
    s_cmp_eq_u32 s53, 1
    s_cselect_b32 s52, s52, 0x1000000
    """)
    def w4reg(i):
        if i < 21: return f"a[{172+4*i}:{175+4*i}]"
        if i < 53: return f"v[{252-4*(i-21)}:{255-4*(i-21)}]"
        return f"a[{96+4*(i-53)}:{99+4*(i-53)}]"
    def w4_item(i):
        k, T = divmod(i, 5)
        return dict(text=f"buffer_load_dwordx4 {w4reg(i)}, v3, s[64:67], s23 offen {SC}", pre=f"s_add_u32 s23, s22, {T*57344 + 1024*k}", tag=('W4', i))
    srd(a, 64, 20, W4_OFF, W4_SZ)
    a(f"""
    s_mul_i32 s40, s95, 14
    s_mul_i32 s22, s101, {5*56}
    s_add_u32 s22, s22, s40
    s_lshl_b32 s22, s22, 10
    """)
    if TOUCH3:
        a(f"""
        s_and_b32 s40, s60, 7
        s_lshl_b32 s40, s40, 2
        s_add_u32 s40, s40, s95
        s_mul_i32 s40, s40, {30*128}
        s_mul_i32 s41, s62, 20480
        s_add_u32 s40, s40, s41
        s_add_u32 s40, s40, {W3_OFF + 163840}
        v_min_u32 v72, 29, v2
        v_lshl_add_u32 v72, v72, 7, s40
        s_and_b32 s40, s100, 7
        s_mul_i32 s40, s40, 50
        v_min_u32 v73, 49, v2
        v_add_u32 v73, s40, v73
        s_movk_i32 s41, 820
        v_mul_u32_u24 v74, s41, v73
        v_lshrrev_b32 v74, 16, v74
        v_mul_u32_u24 v74, {57344 - 80*128}, v74
        v_lshl_add_u32 v73, v73, 7, v74
        s_add_u32 s40, s22, {W4_OFF + 4096}
        v_add_u32 v73, s40, v73
        """)
    Lw = Loads(a, 60)
    for q in range(W4S3): Lw.add(**w4_item(q))
    Lw.pump(99)
    mspill(a)
    poll(a, "M_poll3", 7, "s51", 9)
    mmark(a, "p3_sync")
    L = Loads(a, P3LIM)
    SR = 64
    for n in range(40):
        L.add(f"buffer_load_dwordx4 a[{4*n}:{4*n+3}], v3, s[24:27], s45 offen offset:{1024*(n%4)} {SC} {NT3}", tag=n,
              post="s_add_u32 s45, s45, 4096" if n % 4 == 3 else None)
        if n == 11:
            for p in range(4):
                L.add(f"buffer_load_dwordx2 v[{SR+2*p}:{SR+2*p+1}], v6, s[28:31], s48 offen offset:{256*p} {SC}", tag='st' if p == 3 else None)
    if TOUCH3 == 2: L.add("global_load_dword v9, v72, s[20:21] sc1")
    w3_dma(L, 3)
    if TOUCH3 == 1: L.add("global_load_dword v9, v72, s[20:21] sc1")
    if TOUCH3: L.add("global_load_dword v9, v73, s[20:21] sc1")
    L.pump(12)
    ACB = [80, 96, 112]
    NA = 3
    WF, NB, TMP, OUT = 24, 10, 64, [72, 76]
    REG = [12, 13, 10, 11, 12, 13, 10]
    seq = []
    for s in range(40):
        seq += [(0, s), (1, s)]
        if s >= LAG: seq.append((2, s - LAG))
    seq += [(2, s) for s in range(max(40 - LAG, 0), 40)] + [(T, s) for T in range(3, 7) for s in range(40)]
    frs = {}
    nrd = [0]
    def rd3():
        i = nrd[0]
        if i >= len(seq): return
        T, s = seq[i]
        r = WF + 4 * (i % NB)
        frs[i] = (r, a.ds(f"ds_read_b128 v[{r}:{r+3}], v{REG[T]} offset:{512*s}"))
        nrd[0] += 1
    def epi(T, pk):
        d, out, tmp = ACB[T % NA], OUT[T % 2], TMP
        Lx = []
        if pk:
            for j in range(0, 8, 2): Lx.append(f"v_pk_mul_f32 {P(tmp+j)}, {P(d+j)}, {P(d+j)}")
            for j in range(0, 8, 2): Lx.append(f"v_pk_fma_f32 {P(tmp+j)}, {P(tmp+j)}, v[14:15], v[14:15] op_sel:[0,1,0] op_sel_hi:[1,1,0]")
            for j in range(0, 8, 2): Lx.append(f"v_pk_mul_f32 {P(tmp+j)}, {P(tmp+j)}, {P(d+j)}")
            for j in range(8): Lx.append(f"v_exp_f32 v{tmp+j}, v{tmp+j}")
            for j in range(0, 8, 2): Lx.append(f"v_pk_mul_f32 {P(d+j)}, {P(d+j)}, {P(d+8+j)}")
            for j in range(0, 8, 2): Lx.append(f"v_pk_add_f32 {P(tmp+j)}, {P(tmp+j)}, 1.0 op_sel_hi:[1,0]")
            for j in range(8): Lx.append(f"v_rcp_f32 v{tmp+j}, v{tmp+j}")
            for j in range(0, 8, 2): Lx.append(f"v_pk_mul_f32 {P(d+j)}, {P(d+j)}, {P(tmp+j)}")
        else:
            for j in range(8): Lx.append(f"v_mul_f32 v{tmp+j}, v{d+j}, v{d+j}")
            for j in range(8): Lx.append(f"v_fma_f32 v{tmp+j}, v{tmp+j}, v15, v14")
            for j in range(8): Lx.append(f"v_mul_f32 v{tmp+j}, v{tmp+j}, v{d+j}")
            for j in range(8):
                Lx.append(f"v_exp_f32 v{tmp+j}, v{tmp+j}")
                Lx.append(f"v_mul_f32 v{d+j}, v{d+j}, v{d+8+j}")
            for j in range(8): Lx.append(f"v_add_f32 v{tmp+j}, 1.0, v{tmp+j}")
            for j in range(8):
                Lx.append(f"v_rcp_f32 v{tmp+j}, v{tmp+j}")
                if j >= 1: Lx.append(f"v_mul_f32 v{d+j-1}, v{d+j-1}, v{tmp+j-1}")
            Lx.append(f"v_cvt_pk_bf16_f32 v{out}, v{d}, v{d+1}")
            Lx.append(f"v_mul_f32 v{d+7}, v{d+7}, v{tmp+7}")
        for j in range(0 if pk else 1, 4): Lx.append(f"v_cvt_pk_bf16_f32 v{out+j}, v{d+2*j}, v{d+2*j+1}")
        Lx.append(f"buffer_store_dwordx4 v[{out}:{out+3}], v20, s[36:39], s50 offen offset:{2048*(T%2)} {SC if T < LOCT else LS}" + ("\ns_add_u32 s50, s50, 4096" if T % 2 else ""))
        return [(T, x) for x in Lx]
    stats = f"""
    v_add_f32 v{SR+0}, v{SR+0}, v{SR+2}
    v_add_f32 v{SR+1}, v{SR+1}, v{SR+3}
    v_add_f32 v{SR+4}, v{SR+4}, v{SR+6}
    v_add_f32 v{SR+5}, v{SR+5}, v{SR+7}
    v_add_f32 v{SR+0}, v{SR+0}, v{SR+4}
    v_add_f32 v{SR+1}, v{SR+1}, v{SR+5}
    v_mov_b32 v{SR+2}, v{SR}
    v_mov_b32 v{SR+3}, v{SR+1}
    v_permlane32_swap_b32 v{SR}, v{SR+2}
    v_permlane32_swap_b32 v{SR+1}, v{SR+3}
    v_add_f32 v{SR}, v{SR}, v{SR+2}
    v_add_f32 v{SR+1}, v{SR+1}, v{SR+3}
    v_mul_f32 v{SR}, {f32(-1.0/640)}, v{SR}
    v_mul_f32 v{SR+1}, {f32(1.0/640)}, v{SR+1}
    v_fma_f32 v{SR+1}, -v{SR}, v{SR}, v{SR+1}
    v_max_f32 v{SR+1}, 0, v{SR+1}
    v_add_f32 v{SR+1}, {f32(1e-5)}, v{SR+1}
    v_rsq_f32 v{SR+1}, v{SR+1}
    v_cvt_pk_bf16_f32 v{SR+2}, v{SR}, v{SR}
    v_lshlrev_b32 v{SR+2}, 16, v{SR+2}
    v_sub_f32 v{SR+3}, v{SR}, v{SR+2}
    v_cvt_pk_bf16_f32 v16, v{SR+2}, v{SR+3}
    v_mul_f32 v22, v{SR+1}, v{SR+1}
    v_mov_b32 v17, v16
    v_mov_b32 v18, v16
    v_mov_b32 v19, v16
    v_mul_f32 v14, {f32(C0)}, v{SR+1}
    v_mul_f32 v15, {f32(C1)}, v{SR+1}
    v_mul_f32 v15, v15, v22
    v_lshlrev_b32 v21, 2, v5
    buffer_store_dword v22, v21, s[32:35], s52 offen {SC}
    """.strip().split("\n")
    pending = []
    a(f"""
    v_and_b32 v7, 7, v2
    s_lshl_b32 s40, s100, 9
    s_lshl_b32 s41, s95, 7
    s_add_u32 s63, s40, s41
    v_lshl_add_u32 v7, v7, 2, s63
    s_mul_i32 s40, s95, 14
    s_mul_i32 s57, s100, {4*56}
    s_add_u32 s57, s57, s40
    s_lshl_b32 s57, s57, 10
    """)
    DIST = 8
    def cost(x):
        x = x.strip()
        return 2 if x.startswith(("v_exp", "v_rcp", "v_rsq", "buffer_")) else 1
    def fill(budget, hold=None):
        while budget > 0 and pending:
            pick = None
            blockW, blockR = set(), set()
            for n, (t, x) in enumerate(pending[:14]):
                ins = Ins(x.split("\n")[0])
                if ins.kind == 'vmem' and n > 0 and any(Ins(y.split("\n")[0]).kind == 'vmem' for _, y in pending[:n]): break
                ok = cost(x) <= budget and t != hold and not (set(ins.r) & blockW) and not (set(ins.w) & (blockW | blockR))
                if ok and any(need(p, ins) > dd for dd, p in enumerate(reversed(a.ins[-2:]))): ok = False
                if ok: pick = n; break
                blockW |= set(ins.w); blockR |= set(ins.r)
            if pick is None: break
            t_, x = pending.pop(pick)
            a(x); budget -= cost(x)
            if x.startswith("buffer_store"): stored[t_] = (a.vm_issued, cur[0])
    stored = {}; cur = [0]; posted = False; posted2 = False
    a(f"s_mov_b32 s56, {F4M_O}")
    KE, KN = 2 * EARLY, 2 * MID
    KM = 2 * MID2
    order = [(sl, k) for lo, hi in ((0, KE), (KE, KN), (KN, KM), (KM, 14)) for sl in (1, 2, 3, 0) for k in range(lo, hi)]
    L4 = Loads(a, 26)
    lateW = list(range(53, 70))
    for i, (sl, k) in enumerate(order):
        pre = None
        if k in (0, KE, KN, KM):
            pre = f"s_add_u32 s55, s96, {sl}\ns_and_b32 s55, s55, 3\ns_mul_i32 s55, s55, 57344\ns_add_u32 s55, s55, s57"
            if k: pre += f"\ns_add_u32 s55, s55, {1024*k}"
            k0 = k
        elif (k - k0) % 4 == 0:
            pre = "s_add_u32 s55, s55, 4096"
        r = 4 * (i % 24)
        g = i if i < 24 else 1000 + i - 24
        if i >= 4 * KE: g = max(g, 1000 + 4 * KE - CHK1)
        if i >= 4 * KN and KM > KN: g = max(g, 1000 + 4 * KN - CHK2)
        if i >= 4 * KM: g = max(g, 1000 + 4 * KM - CHK)
        L4.add(f"buffer_load_dwordx4 a[{r}:{r+3}], v3, s[36:39], s55 offen offset:{1024*((k-k0)%4)} {SC} {NT4}", pre=pre, tag=('H', i), gate=g)
        if i == 23:
            for _ in range(LWA): L4.add(**w4_item(lateW.pop(0)), gate=999)
        if i == 4 * KN - 1:
            for _ in range(min(LWB, len(lateW))): L4.add(**w4_item(lateW.pop(0)), gate=999)
        if i == 4 * KM - 1:
            while lateW: L4.add(**w4_item(lateW.pop(0)), gate=999)
            for T in range(5):
                L4.add(f"buffer_load_dwordx2 v[{104+2*T}:{105+2*T}], v15, s[24:27], s{48 if T < 4 else 49} offen offset:{1024*(T%4)} {SC}", gate=1000)
            L4.add(f"buffer_load_dword v114, v16, s[32:35], s50 offen {SC}", tag='res', gate=1000)
    hh0, late4 = L4.q[:24], L4.q[24:]
    L.t.update(Lw.t)
    for q in range(W4S3, 53): L.add(**w4_item(q))
    done01 = False
    for _ in range(DIST): rd3()
    for i, (T, s) in enumerate(seq):
        cur[0] = i
        nx = nrd[0]
        if nx < len(seq) and seq[nx][1] == 0 and seq[nx][0] >= 2:
            Tn = seq[nx][0]
            if Tn > 2: L.need(('W3', Tn))
            a("s_barrier")
            if Tn == 3:
                assert done01
                q0 = L.q; L.q = []; w3_dma(L, 4); w3_dma(L, 5); L.q += q0
            if Tn == 4:
                q0 = [x for x in L.q if 'lds' not in x[0]]; L.q = [x for x in L.q if 'lds' in x[0]]; w3_dma(L, 6); L.q += q0
        if T == 6 and s == 0: print('queue at tile 6:', len(L.q))
        if (T, s) == (5, CK0):
            tfe = a.vm("buffer_load_dword v9, v7, s[8:11], s58 offen sc1")
        if (T, s) == (5, CK1):
            a.wait(vm=tfe)
            check_flags(a, "M_f4e", 9, 7, "s58", False)
            mmark(a, "p3_chk")
            L.q = L.q + hh0
        if (T, s) == (6, 2) and HF:
            hq = [x for x in L.q if x[1] and x[1][0] == 'H']; oq = [x for x in L.q if not (x[1] and x[1][0] == 'H')]
            L.q = hq[:HF] + oq + hq[HF:]
        rd3()
        budget = 3
        nxt_wait = (i + 1) % 4 == 0
        if T == 0: L.need(s)
        if i == 0: mmark(a, "p3_first")
        if i % 4 == 0: a.wait(lg=frs[min(i + 3, len(seq) - 1)][1])
        r = frs[i][0]
        d = ACB[T % NA]
        if s == 0: assert all(t % NA != T % NA for t, _ in pending if t >= 0), "accumulator still pending"
        a(f"v_mfma_f32_32x32x16_bf16 v[{d}:{d+15}], v[{r}:{r+3}], a[{4*s}:{4*s+3}], " + ("0" if s == 0 else f"v[{d}:{d+15}]"))
        if nxt_wait: budget -= 1
        n0 = a.vm_issued
        if not done01:
            L.pump(1)
            if i + 1 < len(seq) and seq[i + 1][0] == 0: budget -= 1
            if s == 14 and T == 0:
                L.need('st'); pending += [(-1, x) for x in stats]
        elif not posted and EARLY - 1 in stored and i >= stored[EARLY - 1][1] + ACKD:
            a.wait(vm=stored[EARLY - 1][0])
            a("buffer_store_dword v1, v8, s[8:11], s58 offen sc0 sc1")
            posted = True; budget -= 1
            mmark(a, "p3_early")
        elif posted and not posted2 and MID - 1 in stored and i >= stored[MID - 1][1] + ACKM:
            a.wait(vm=stored[MID - 1][0])
            a("buffer_store_dword v1, v8, s[8:11], s56 offen sc0 sc1")
            posted2 = True; budget -= 1
        elif (i % 2 == 1 and (T == 2 or (T == 3 and s < 24) or T == 6)) or i % 8 in PACE3:
            if not (T == 6 and s >= QS): L.paced(gate=s - 1 if T == 6 else None)
        budget -= 2 * (a.vm_issued - n0)
        fill(budget, hold=(T - 1 if s < 3 else None) if T > 2 else None)
        if s == 39 and T != 0:
            for t in ((0, 1) if T == 1 else (T,)):
                dd = ACB[t % NA]
                assert not any(p[0] == -1 for p in pending)
                if t >= 3: L.need(('CS', t))
                a(f"v_mfma_f32_32x32x16_bf16 v[{dd}:{dd+15}], a[{160+4*(t%3)}:{163+4*(t%3)}], v[16:19], v[{dd}:{dd+15}]")
                if NPK <= t < 6: pending += epi(t, False)
                if t + 3 < 7: L.q.insert(min(len(L.q), 8) if t == 2 else 0, (cs_ld(t + 3), ('CS', t + 3), None, None, None))
            if T == (1 if NPK < 2 or LAG >= 40 else 2) or (T == 1 and False):
                pass
            assert not any('global_load' in x[0] for x in L.q)
            if T in (1, 2):
                for t in (range(min(NPK, 2)) if T == 1 else range(2, NPK)):
                    pq_ = Paced(a, L, PQ2)
                    for _, ins in epi(t, True): (pq_ if T == 2 else a)(ins)
                    stored[t] = (a.vm_issued, i)
            mmark(a, f"p3_t{T}")
            if T == 1: done01 = True
    print('stores at', {k: v[1] for k, v in stored.items()}, 'of', len(seq), 'left loads', len(L.q), 'pending', len(pending))
    assert posted and MID - 1 in stored
    if not posted2:
        a.wait(vm=stored[MID - 1][0])
        a("buffer_store_dword v1, v8, s[8:11], s56 offen sc0 sc1")
    if 4 * KE - CHK1 - 3 < 0 and not SFM: tf4 = a.vm("buffer_load_dword v9, v7, s[8:11], s56 offen sc1")
    if KM > KN:
        a.wait(vm=stored[MID2 - 1][0])
        a(f"s_mov_b32 s58, {F4N_O}\nbuffer_store_dword v1, v8, s[8:11], s58 offen sc0 sc1")
    rest = [(x[0], x[1], x[2], x[3], None) for x in L.q]
    L.q = rest + late4
    L.lim = LIM4
    pa = Paced(a, L, FP, gate=999)
    started = {t for t, _ in pending if sum(1 for u, _ in pending if u == t) < len(epi(t, False))}
    rest = sorted({t for t, _ in pending} - started)
    for t, ins in pending:
        if t in started: pa(ins)
    for t in rest + [6]:
        for _, ins in epi(t, True): pa(ins)
    tst = a.vm_issued
    mmark(a, "p3_st")
    for _ in range(AFT): L.paced(gate=999)
    a("""; ==== P4: out = h + rstd^2 * (hh' w_down) (64 rows x 80 columns, K split over the 4 waves)""")
    PB, TB = 40960, 40960 + 61440
    srd(a, 12, 6, 0, 2621440)
    a(f"""
    s_mul_i32 s47, s95, 15360
    s_add_u32 s47, s47, {PB}
    v_add_u32 v6, s47, v3
    """)
    for j in range(1, 4):
        a(f"""
        s_add_u32 s47, s95, {j}
        s_and_b32 s47, s47, 3
        s_mul_i32 s47, s47, 15360
        s_add_u32 s47, s47, {PB + (3-j)*5120}
        v_add_u32 v{9+j}, s47, v3
        """)
    a(f"""
    v_and_b32 v13, 15, v2
    v_lshrrev_b32 v14, 4, v2
    v_lshlrev_b32 v15, 4, v13
    v_lshl_add_u32 v15, v4, 9, v15
    v_and_b32 v16, 1, v14
    v_lshl_add_u32 v15, v16, 3, v15
    s_lshl_b32 s48, s100, 1
    s_lshr_b32 s49, s96, 1
    s_add_u32 s48, s48, s49
    s_mul_i32 s48, s48, 40960
    s_mul_i32 s49, s101, 5120
    s_add_u32 s48, s48, s49
    s_and_b32 s49, s96, 1
    s_lshl_b32 s49, s49, 8
    s_add_u32 s48, s48, s49
    s_add_u32 s49, s48, 4096
    v_lshlrev_b32 v16, 2, v13
    s_lshl_b32 s50, s95, 13
    s_lshl_b32 s51, s100, 8
    s_add_u32 s50, s50, s51
    s_lshl_b32 s51, s96, 6
    s_add_u32 s50, s50, s51
    v_mul_u32_u24 v17, 160, v13
    v_lshl_add_u32 v17, v14, 3, v17
    s_mul_i32 s51, s95, 2560
    s_add_u32 s51, s51, {TB}
    v_add_u32 v17, s51, v17
    v_add_u32 v18, s51, v3
    s_mov_b32 s52, 6554
    """)
    for it in range(3):
        a(f"""
        v_add_u32 v13, {64*it}, v2
        v_mul_u32_u24 v14, s52, v13
        v_lshrrev_b32 v14, 16, v14
        v_mul_u32_u24 v14, {1280-160}, v14
        v_lshl_add_u32 v{19+it}, v13, 4, v14
        """)
    a(f"""
    s_lshl_b32 s52, s100, 2
    s_add_u32 s52, s52, s96
    s_mul_i32 s52, s52, {16*1280}
    s_mul_i32 s53, s101, 160
    s_add_u32 s52, s52, s53
    s_mov_b32 s54, 0xffff0000
    """)
    mspill(a)
    A4 = {1: 24, 2: 44, 3: 64, 0: 84}
    RS_, PS = 24, 44
    todo = []; wr = []
    NL = 14 - KM
    for i, (sl, k) in enumerate(order):
        d = A4[sl]
        if i == SIGI:
            a.wait(vm=tst)
            a(f"buffer_store_dword v1, v8, s[8:11], s59 offen {LF}")
            mmark(a, "p3_sig")
            L.pump(BURST0, gate=999 + i)
        if SFM and i == 0: sflag_load(a, F4M_O)
        if i == 4 * KE - CHK1 - 3 and not SFM:
            tf4 = a.vm("buffer_load_dword v9, v7, s[8:11], s56 offen sc1")
        if i == 4 * KE - CHK1 + 1:
            if SFM: sflag_check(a, "M_f4m", 9, 7, "s56")
            else:
                a.wait(vm=tf4)
                check_flags(a, "M_f4m", 9, 7, "s56", False)
            mmark(a, "p4_mid")
        if KM > KN and i == 4 * KN - CHK2 - FL4:
            sflag_load(a, F4N_O)
        if KM > KN and i == 4 * KN - CHK2 + 1:
            sflag_check(a, "M_f4n", 9, 7, "s58")
            mmark(a, "p4_mid2")
        if i == 4 * KM - CHK - FL4:
            if SFL: sflag_load(a, F4_O)
            else: tf4 = a.vm("buffer_load_dword v9, v7, s[8:11], s59 offen sc1")
        if i == 4 * KM - CHK + 1:
            if SFL: sflag_check(a, "M_f4", 9, 7, "s59")
            else:
                a.wait(vm=tf4)
                check_flags(a, "M_f4", 9, 7, "s59", False)
            mmark(a, "p4_sync")
            L.pump(BURST, gate=999 + i)
        L.need(('H', i), gate=999 + i)
        for T in range(5):
            L.need(('W4', 5 * k + T), gate=999 + i)
        if i == 0: mmark(a, "p4_first")
        if i == 4 * KM: mmark(a, "p4_late")
        r = 4 * (i % 24)
        for T in range(5):
            a(f"v_mfma_f32_16x16x32_bf16 v[{d+4*T}:{d+4*T+3}], {w4reg(5*k+T)}, a[{r}:{r+3}], " + ("0" if k == 0 else f"v[{d+4*T}:{d+4*T+3}]"))
            if wr and T in (1, 3, 4): a(wr.pop(0))
            elif T in PT4 and (i >= SIGI or AFT): L.pump(1, gate=999 + i)
            elif todo:
                a(todo.pop(0));
                if todo: a(todo.pop(0))
        if i >= 4 * KM:
            ph, kk = divmod(i - 4 * KM, NL)
            if kk == 0 and ph > 0:
                dp = A4[ph]
                wr = [f"ds_write_b128 v6, v[{dp+4*T}:{dp+4*T+3}] offset:{(ph-1)*5120 + T*1024}" for T in range(5)]
            if ph == 3 and kk == min(3, NL - 1):
                assert not wr
                a.wait_all_lg()
                a("s_barrier")
                tk = []
                for j, rb in enumerate((24, 44, 64)):
                    for T in range(5):
                        t = a.ds(f"ds_read_b128 v[{rb+4*T}:{rb+4*T+3}], v{10+j} offset:{1024*T}")
                    tk.append(t)
            if ph == 1 and kk == 2:
                L.need('res', gate=999 + i)
                for j in range(0, 10):
                    todo += [f"v_lshlrev_b32 v{116+j}, 16, v{104+j}", f"v_and_b32 v{104+j}, s54, v{104+j}"]
    for ins in todo: a(ins)
    a.wait(lg=tk[1])
    for j in range(0, 20, 2):
        a(f"v_pk_add_f32 {P(24+j)}, {P(24+j)}, {P(44+j)}")
    a.wait(lg=tk[2])
    for j in range(0, 20, 2):
        a(f"v_pk_add_f32 {P(64+j)}, {P(64+j)}, {P(84+j)}")
    mmark(a, "p4_mm")
    for j in range(0, 20, 2):
        a(f"v_pk_add_f32 {P(24+j)}, {P(24+j)}, {P(64+j)}")
    for j in range(10):
        a(f"v_fma_f32 v{PS+2*j}, v{24+2*j}, v114, v{116+j}")
        a(f"v_fma_f32 v{PS+2*j+1}, v{25+2*j}, v114, v{104+j}")
    for j in range(10):
        a(f"v_cvt_pk_bf16_f32 v{RS_+j}, v{PS+2*j}, v{PS+2*j+1}")
    for T in range(5):
        a(f"ds_write_b64 v17, v[{RS_+2*T}:{RS_+2*T+1}] offset:{32*T}")
    a.wait_all_lg()
    tk = [a.ds(f"ds_read_b128 v[{PS+4*it}:{PS+4*it+3}], v18 offset:{1024*it}") for it in range(3)]
    for it in range(3):
        a.wait(lg=tk[it])
        if it == 2: a("s_mov_b32 exec_hi, 0")
        a(f"buffer_store_dwordx4 v[{PS+4*it}:{PS+4*it+3}], v{19+it}, s[12:15], s52 offen {OUTF}")
    a(f"""
    s_or_b32 s40, s2, s95
    s_cmp_lg_u32 s40, 0
    s_cbranch_scc1 M_noclr
    s_load_dwordx2 s[40:41], s[0:1], 72
    s_mov_b64 exec, 1
    v_mov_b32 v8, 0
    s_waitcnt lgkmcnt(0)
    global_store_dword v8, v8, s[40:41] sc0 sc1
M_noclr:
    """)
    mstamp_end(a, 1, 20)
    a("M_exit:\ns_endpgm")
    return a
```

```python
from common import *
from asmlib import Ins, need
import common, math, p0, p0b, re

GRID = 256
LDS = 160 * 1024
C0 = -2.0 * math.sqrt(2.0 / math.pi) * LOG2E
C1 = C0 * 0.044715
SC = "sc1"
POLL_MAX = 400000
P1_PACE = 12
import os
F5I = int(os.environ.get('F5I', 8)); PQ2 = int(os.environ.get('PQ2', 12)); P3LIM = int(os.environ.get('P3LIM', 20)); W4S3 = int(os.environ.get('W4S3', 12)); RQ0 = int(os.environ.get('RQ0', 16)); P1LIM = int(os.environ.get('P1LIM', 24)); SIG2 = int(os.environ.get('SIG2', 39)); OUTF = os.environ.get('OUTF', 'nt').replace('_', ' '); MAP1 = os.environ.get('MAP1', 'x'); MAP2 = os.environ.get('MAP2', 'x'); MAP4 = os.environ.get('MAP4', 'x'); MAP3 = os.environ.get('MAP3', 'x'); NT4 = os.environ.get('NT4', ''); NT3 = os.environ.get('NT3', ''); PACE3 = eval(os.environ.get('PACE3', '(1,3,5,7)')); NPK = int(os.environ.get('NPK', 3)); ACKD = int(os.environ.get('ACKD', 36)); AFT = int(os.environ.get('AFT', 0)); HF = int(os.environ.get('HF', 0)); P2A = int(os.environ.get('P2A', 0)); PRET = int(os.environ.get('PRET', 0)); ACKM = int(os.environ.get('ACKM', 24)); BURST = int(os.environ.get('BURST', 6)); FL4 = int(os.environ.get('FL4', 6)); WOP = int(os.environ.get('WOP', 8)); LOC = os.environ.get('LOC'); LOCT = int(os.environ.get('LOCT', 4)); TOUCH3 = int(os.environ.get('TOUCH3', 0)); MID2 = int(os.environ.get('MID2', 4)); CHK2 = int(os.environ.get('CHK2', 16)); LWB = int(os.environ.get('LWB', 8)); SFL = int(os.environ.get('SFL', 1)); BURST0 = int(os.environ.get('BURST0', 0)); LIM4 = int(os.environ.get('LIM4', 40)); PT4 = eval(os.environ.get('PT4', '(0,2)')); SFM = int(os.environ.get('SFM', 1)); ROT4 = int(os.environ.get('ROT4', 0)); ONE2A = int(os.environ.get('ONE2A', 0)); PSL = int(os.environ.get('PSL', 0)); RTK = int(os.environ.get('RTK', 0)); SEG = int(os.environ.get('SEG', 34)); F6S = int(os.environ.get('F6S', 28)); WO2 = int(os.environ.get('WO2', 0)); F6E = int(os.environ.get('F6E', 0)); MID = int(os.environ.get('MID', 4)); CHK1 = int(os.environ.get('CHK1', 18)); LWA = int(os.environ.get('LWA', 0)); CHK = int(os.environ.get('CHK', 10)); TOUCH = int(os.environ.get('TOUCH', 0)); FP = int(os.environ.get('FP', 999)); QS = int(os.environ.get('QS', 40)); CK0 = int(os.environ.get('CK0', 16)); CK1 = int(os.environ.get('CK1', 38)); HH1 = int(os.environ.get('HH1', 16)); SIGI = int(os.environ.get('SIGI', 5)); W3EARLY = int(os.environ.get('W3EARLY', 10)); LAG = int(os.environ.get('LAG', 12)); EARLY = int(os.environ.get('EARLY', 3)); WO1 = int(os.environ.get('WO1', 25)); RTSG = int(os.environ.get('RTSG', 36)); RTS0 = int(os.environ.get('RTS0', 99)); RTSN = int(os.environ.get('RTSN', 3))

class Paced:
    def __init__(self, a, L, n, gate=None):
        self.a, self.L, self.n, self.c, self.gate = a, L, n, 0, gate
    def __call__(self, text):
        for line in text.strip().split("\n"):
            if not line.strip(): continue
            self.a(line)
            self.c += 1
            if self.c % self.n == 0: self.L.paced(self.gate)

def poll(a, name, voff, soff, tmp):
    if FSH:
        a(f"v_add_u32 v{tmp}, {soff}, v{voff}\nv_lshlrev_b32 v{tmp}, {FSH}, v{tmp}\nv_add_u32 v1, {FBIAS}, v{tmp}")
        voff, soff = 1, "0"
    a(f"""
    s_mov_b32 s92, 0
{name}:
    buffer_load_dword v{tmp}, v{voff}, s[8:11], {soff} offen {PFL}
    s_add_u32 s92, s92, 1
    s_cmp_gt_u32 s92, {POLL_MAX}
    s_cbranch_scc1 {name}_go
    s_waitcnt vmcnt(0)
    v_cmp_ne_u32 vcc, s93, v{tmp}
    s_nop 4
    {"s_cbranch_vccz %s_go" % name if PSL else ""}
    {"s_sleep %d" % PSL if PSL else ""}
    {"s_branch" if PSL else "s_cbranch_vccnz"} {name}
{name}_go:
    s_waitcnt vmcnt(0)
    """)
    a.vm_done = a.vm_issued

def signal(a, soff, tmp, fl='sc0 sc1', scale=True):
    if FSH and scale: a(f"s_lshl_b32 {soff}, {soff}, {FSH}\ns_add_u32 {soff}, {soff}, {FBIAS}")
    a(f"""
    s_mov_b64 exec, 1
    v_mov_b32 v{tmp}, s93
    v_mov_b32 v{tmp+1}, 0
    buffer_store_dword v{tmp}, v{tmp+1}, s[8:11], {soff} offen {fl}
    s_mov_b64 exec, -1
    """)

def softmax_pair(a, P, E, O, tmp, inter=False):
    mx, mn = tmp, tmp + 2
    a(f"v_max3_f32 v{mx}, v{P}, v{P+1}, v{P+2}")
    a(f"v_min3_f32 v{mn}, v{P}, v{P+1}, v{P+2}")
    for i in range(3, 19, 2):
        a(f"v_max3_f32 v{mx}, v{mx}, v{P+i}, v{P+i+1}")
        a(f"v_min3_f32 v{mn}, v{mn}, v{P+i}, v{P+i+1}")
    a(f"v_max_f32 v{mx}, v{mx}, v{P+19}")
    a(f"v_min_f32 v{mn}, v{mn}, v{P+19}")
    for i in range(0, 20, 2):
        a(f"v_pk_add_f32 v[{E+i}:{E+i+1}], v[{P+i}:{P+i+1}], v[{mx}:{mx+1}] op_sel_hi:[1,0] neg_lo:[0,1] neg_hi:[0,1]")
        a(f"v_pk_add_f32 v[{E+20+i}:{E+21+i}], v[{P+i}:{P+i+1}], v[{mn}:{mn+1}] op_sel_hi:[1,0] neg_lo:[1,0] neg_hi:[1,0]")
    for i in range(40):
        a(f"v_exp_f32 v{E+i}, v{E+i}")
    sp, sn = tmp, tmp + 2
    a(f"v_pk_add_f32 v[{sp}:{sp+1}], v[{E}:{E+1}], v[{E+2}:{E+3}]")
    a(f"v_pk_add_f32 v[{sn}:{sn+1}], v[{E+20}:{E+21}], v[{E+22}:{E+23}]")
    for i in range(4, 20, 2):
        a(f"v_pk_add_f32 v[{sp}:{sp+1}], v[{sp}:{sp+1}], v[{E+i}:{E+i+1}]")
        a(f"v_pk_add_f32 v[{sn}:{sn+1}], v[{sn}:{sn+1}], v[{E+20+i}:{E+21+i}]")
    a(f"v_add_f32 v{sp}, v{sp}, v{sp+1}")
    a(f"v_add_f32 v{sn}, v{sn}, v{sn+1}")
    a(f"v_rcp_f32 v{sp}, v{sp}")
    a(f"v_rcp_f32 v{sn}, v{sn}")
    if inter:
        for q in range(5):
            for i in range(8 * q, 8 * q + 8, 2):
                sc = sp if i < 20 else sn
                a(f"v_pk_mul_f32 v[{E+i}:{E+i+1}], v[{E+i}:{E+i+1}], v[{sc}:{sc+1}] op_sel_hi:[1,0]")
            for i in range(4 * q, 4 * q + 4):
                a(f"v_cvt_pk_bf16_f32 v{O+i}, v{E+2*i}, v{E+2*i+1}")
        return
    for i in range(0, 20, 2):
        a(f"v_pk_mul_f32 v[{E+i}:{E+i+1}], v[{E+i}:{E+i+1}], v[{sp}:{sp+1}] op_sel_hi:[1,0]")
        a(f"v_pk_mul_f32 v[{E+20+i}:{E+21+i}], v[{E+20+i}:{E+21+i}], v[{sn}:{sn+1}] op_sel_hi:[1,0]")
    for i in range(20):
        a(f"v_cvt_pk_bf16_f32 v{O+i}, v{E+2*i}, v{E+2*i+1}")

def map_p1(a, rb, hp, t, kind='x'):
    if kind == 'h4':
        map_p3(a, rb, hp, t, 'x')
        return
    if kind == 'h2':
        map_p3(a, hp, rb, t, 'row')
        return
    a(f"""
    s_bfe_u32 s{rb}, s2, 0x20001
    s_lshl_b32 s{rb}, s{rb}, 2
    s_bfe_u32 s{t}, s2, 0x20003
    s_add_u32 s{rb}, s{rb}, s{t}
    s_and_b32 s{hp}, s2, 1
    s_lshl_b32 s{hp}, s{hp}, 3
    s_lshr_b32 s{t}, s2, 5
    s_add_u32 s{hp}, s{hp}, s{t}
    """)
def map_p2(a, tb, nb, t):
    a(f"""
    s_and_b32 s{tb}, s2, 7
    s_lshl_b32 s{tb}, s{tb}, 3
    s_bfe_u32 s{t}, s2, 0x30003
    s_add_u32 s{tb}, s{tb}, s{t}
    s_lshr_b32 s{nb}, s2, 6
    """)
def map_p3(a, rb, cb, t, kind=None):
    kind = kind or MAP3
    if kind == 'row':
        a(f"""
        s_and_b32 s{rb}, s2, 7
        s_lshl_b32 s{rb}, s{rb}, 1
        s_bfe_u32 s{t}, s2, 0x10003
        s_add_u32 s{rb}, s{rb}, s{t}
        s_lshr_b32 s{cb}, s2, 4
        """)
        return
    if kind == 'mid':
        map_p1(a, rb, cb, t)
        return
    a(f"""
    s_bfe_u32 s{rb}, s2, 0x10002
    s_lshl_b32 s{rb}, s{rb}, 3
    s_bfe_u32 s{t}, s2, 0x30003
    s_add_u32 s{rb}, s{rb}, s{t}
    s_and_b32 s{cb}, s2, 3
    s_lshl_b32 s{cb}, s{cb}, 2
    s_lshr_b32 s{t}, s2, 6
    s_add_u32 s{cb}, s{cb}, s{t}
    """)
def map_p4(a, rb, nb, t, kind=None):
    if (kind or MAP4) == 'row':
        a(f"""
        s_and_b32 s{rb}, s2, 7
        s_lshl_b32 s{rb}, s{rb}, 2
        s_bfe_u32 s{t}, s2, 0x20003
        s_add_u32 s{rb}, s{rb}, s{t}
        s_lshr_b32 s{nb}, s2, 5
        """)
        return
    a(f"""
    s_bfe_u32 s{rb}, s2, 0x20001
    s_lshl_b32 s{rb}, s{rb}, 3
    s_bfe_u32 s{t}, s2, 0x30003
    s_add_u32 s{rb}, s{rb}, s{t}
    s_and_b32 s{nb}, s2, 1
    s_lshl_b32 s{nb}, s{nb}, 2
    s_lshr_b32 s{t}, s2, 6
    s_add_u32 s{nb}, s{nb}, s{t}
    """)

def w3_dma(L, T, gate=None):
    reg = [81920, 122880, 0, 40960, 81920, 122880, 0][T]
    sr = 12 if T < 2 else (16 if T < 6 else 68)
    for c in range(10):
        grp = 0 if c < 4 else (4 if c < 8 else 8)
        L.add(f"buffer_load_dwordx4 v3, s[{sr}:{sr+3}], m0 offen offset:{1024*(c-grp)} {SC} lds", gate=gate,
              pre=f"s_add_u32 m0, s3, {reg + 1024*c}" if c == grp else None, tag=('W3', T) if c == 9 else None)

def check_flags(a, name, regs, voff, soff, wide):
    def test(x):
        if wide:
            x(f"v_xor_b32 v{regs}, s93, v{regs}\nv_xor_b32 v{regs+1}, s93, v{regs+1}\nv_xor_b32 v{regs+2}, s93, v{regs+2}\nv_xor_b32 v{regs+3}, s93, v{regs+3}")
            x(f"v_or3_b32 v{regs}, v{regs}, v{regs+1}, v{regs+2}\nv_or_b32 v{regs}, v{regs}, v{regs+3}\nv_cmp_ne_u32 vcc, 0, v{regs}")
        else:
            x(f"v_cmp_ne_u32 vcc, s93, v{regs}")
    test(a)
    a(f"s_mov_b32 s92, 0\ns_nop 3\ns_cbranch_vccz {name}_ok")
    b = Asm()
    b(f"{name}:")
    b(f"buffer_load_dwordx4 v[{regs}:{regs+3}], v{voff}, s[8:11], {soff} offen sc1" if wide else f"buffer_load_dword v{regs}, v{voff}, s[8:11], {soff} offen sc1")
    b(f"s_add_u32 s92, s92, 1\ns_waitcnt vmcnt(0)\ns_cmp_gt_u32 s92, {POLL_MAX}\ns_cbranch_scc1 {name}_ok")
    test(b)
    b(f"s_nop 4\ns_cbranch_vccnz {name}")
    a.splice(b)
    a(f"{name}_ok:")

def sflag_load(a, off):
    a(f"s_add_u32 s62, s63, {off}\ns_buffer_load_dwordx8 s[40:47], s[8:11], s62 glc")
def sflag_check(a, name, regs, voff, soff):
    a.wait_all_lg()
    a(f"""
    s_and_b64 s[60:61], s[40:41], s[42:43]
    s_or_b64 s[40:41], s[40:41], s[42:43]
    s_and_b64 s[42:43], s[44:45], s[46:47]
    s_or_b64 s[44:45], s[44:45], s[46:47]
    s_and_b64 s[60:61], s[60:61], s[42:43]
    s_or_b64 s[40:41], s[40:41], s[44:45]
    s_and_b32 s60, s60, s61
    s_or_b32 s61, s40, s41
    s_mov_b32 s92, s93
    s_cmp_eq_u64 s[60:61], s[92:93]
    s_cbranch_scc1 {name}_ok
    """)
    b = Asm()
    b(f"s_mov_b32 s92, 0\n{name}:")
    b(f"buffer_load_dword v{regs}, v{voff}, s[8:11], {soff} offen sc1")
    b(f"s_add_u32 s92, s92, 1\ns_waitcnt vmcnt(0)\ns_cmp_gt_u32 s92, {POLL_MAX}\ns_cbranch_scc1 {name}_ok")
    b(f"v_cmp_ne_u32 vcc, s93, v{regs}\ns_nop 4\ns_cbranch_vccnz {name}")
    a.splice(b)
    a(f"{name}_ok:")

def gen_mega():
    LS = SC if LOC is None else LOC.strip('_'); LF = 'sc0 sc1' if LOC is None else ''
    a = Asm()
    a(f"""
    s_memrealtime s[98:99]
    s_load_dwordx2 s[20:21], s[0:1], 80
    s_load_dwordx2 s[4:5], s[0:1], 0
    s_load_dwordx4 s[12:15], s[0:1], 8
    s_load_dwordx2 s[16:17], s[0:1], 24
    s_load_dwordx2 s[6:7], s[0:1], 64
    s_load_dwordx2 s[18:19], s[0:1], 72
    s_load_dwordx4 s[56:59], s[0:1], 40
    s_load_dwordx2 s[62:63], s[0:1], 56
    v_lshrrev_b32 v1, 6, v0
    v_and_b32 v2, 63, v0
    v_readfirstlane_b32 s95, v1
    s_cmp_ge_u32 s2, {GRID}
    s_cbranch_scc1 M_exit
    """)
    mstamp_begin(a)
    a(f"""
    v_lshlrev_b32 v3, 4, v2
    v_lshrrev_b32 v4, 5, v2
    v_and_b32 v5, 31, v2
    s_mul_i32 s3, s95, 10240
    """)
    map_p1(a, 42, 43, 40, MAP1)
    a("; ==== P0: first LayerNorm (8 rows per workgroup), w_phi folded into wq/wk, weights re-laid out as MFMA fragments in d_ws")
    p0b.p0(a, int(os.environ.get('NPF', 2)))
    rt_ld, rt_rd, rt_cs, rt_cs2, rt_st, rt_se = p0b.rt_setup(a)
    assert not rt_ld
    RTW = p0b.RTL in ('p0', 'ln') or RTK
    if RTW and not RTK:
        tt_ = [a.ds(x_) for x_ in rt_rd]; rt_rd = []
        for n_ in range(5):
            a.wait(lg=tt_[2 * n_ + 1]); a(rt_cs[n_]); a(rt_st[n_][0])
        for n_ in range(4):
            a.wait(lg=tt_[11 + 2 * n_]); a(rt_st[6 + n_][0]); a(rt_st[6 + n_][1]); a(rt_se[n_][0]); a(rt_se[n_][1])
        for x_ in rt_cs2: a(x_)
        a(rt_st[5][0])
        rt_cs = []; rt_cs2 = []; rt_st = []; rt_se = []
        mmark(a, "p0_rt")
    a("""; ==== P1: k/v/q projection (LayerNorm rows x folded weights), dual softmax (true max / min subtracted),
;      per-workgroup phi_k^T [v|1] partial added into the kv accumulator, q tile deferred behind the adds""")
    EB, XL, QB = 0, 61440, 122880
    srd(a, 64, 20, WO_OFF, WO_SZ)
    srd(a, 36, 20, KV_OFF, KV_SZ)
    srd(a, 68, 4, 0, 2621440)
    map_p4(a, 100, 101, 40, MAP2)
    a(f"""
    s_lshl_b32 s44, s42, 2
    s_add_u32 s44, s44, s95
    s_mul_i32 s45, s44, 40960
    s_mul_i32 s46, s43, 153600
    s_mul_i32 s47, s95, 3072
    s_lshl_b32 s48, s95, 13
    s_mul_i32 s40, s101, 5
    s_lshr_b32 s40, s40, 2
    s_mul_i32 s40, s40, 20
    s_mul_i32 s41, s95, 5
    s_add_u32 s40, s40, s41
    s_lshl_b32 s40, s40, 4
    s_add_u32 s40, s40, {F6_O}
    v_and_b32 v62, 7, v2
    v_min_u32 v62, 4, v62
    v_lshl_add_u32 v62, v62, 4, s40
    v_bfe_u32 v63, v2, 3, 1
    v_mul_u32_u24 v63, 320, v63
    v_add_u32 v62, v62, v63
    s_mul_i32 s22, s101, 100
    s_add_u32 s22, s22, s41
    s_lshl_b32 s22, s22, 10
    v_lshlrev_b32 v6, 7, v4
    v_sub_u32 v6, v3, v6
    v_add_u32 v6, {QB}, v6
    v_add_u32 v7, {20*3072}, v3
    s_lshl_b32 s40, s95, 5
    v_add_u32 v11, s40, v5
    v_mul_u32_u24 v11, 272, v11
    v_lshl_add_u32 v11, v4, 7, v11
    v_bfe_u32 v56, v2, 2, 2
    v_lshlrev_b32 v56, 2, v56
    v_lshl_add_u32 v56, v4, 1, v56
    v_mul_u32_u24 v56, 272, v56
    v_bfe_u32 v57, v2, 4, 1
    v_lshl_add_u32 v56, v57, 5, v56
    v_and_b32 v57, 3, v2
    v_lshl_add_u32 v56, v57, 3, v56
    s_lshr_b32 s51, s95, 1
    s_and_b32 s55, s95, 1
    s_lshl_b32 s40, s51, 7
    v_add_u32 v56, s40, v56
    s_mul_i32 s40, s55, 40
    v_add_u32 v57, s40, v56
    s_lshl_b32 s40, s95, 12
    s_add_u32 s40, s40, 40960
    v_mul_u32_u24 v58, 384, v4
    v_lshl_add_u32 v58, v5, 4, v58
    v_add_u32 v58, s40, v58
    v_lshl_add_u32 v59, v2, 2, s40
    v_lshlrev_b32 v60, 2, v2
    s_lshl_b32 s54, s43, 1
    s_add_u32 s54, s54, s51
    s_mul_i32 s54, s54, 3840
    s_mul_i32 s55, s55, 1920
    s_add_u32 s54, s54, s55
    s_lshl_b32 s49, s43, 4
    s_add_u32 s49, s49, s42
    s_lshl_b32 s49, s49, 4
    s_add_u32 s49, s49, {F2A_O}
    s_lshl_b32 s49, s49, {FSH}
    s_add_u32 s49, s49, {FBIAS}
    s_lshl_b32 s50, s2, 4
    s_add_u32 s50, s50, {F6_O}
    s_cmp_eq_u32 s95, 3
    s_cselect_b32 s50, s50, 0x1000000
    s_cmp_eq_u32 s95, 0
    s_cselect_b32 s49, s49, {'0x1000000' if (F6E or RTK) else 's50'}
    v_mov_b32 v61, 0x1000000
    v_writelane_b32 v61, s49, 0
    v_mov_b32 v19, s93
    s_lshl_b32 s40, s2, 4
    s_add_u32 s40, s40, {F5_O}
    s_cmp_eq_u32 s95, 2
    s_cselect_b32 s40, s40, {'0x1000000' if RTK else 's50'}
    v_mov_b32 v10, 0x1000000
    v_writelane_b32 v10, s40, 0
    s_mov_b32 s57, s50
    s_lshl_b32 s56, s100, 2
    s_add_u32 s56, s56, s95
    s_mul_i32 s56, s56, {16*1280}
    s_mul_i32 s41, s101, 160
    s_add_u32 s56, s56, s41
    s_movk_i32 s41, 6554
    """)
    for n in range(3):
        a(f"""
        v_add_u32 v8, {64*n}, v2
        v_min_u32 v8, 159, v8
        v_mul_u32_u24 v9, s41, v8
        v_lshrrev_b32 v9, 16, v9
        v_mul_u32_u24 v9, {1280-160}, v9
        v_lshl_add_u32 v{16+n}, v8, 4, v9
        """)
    if PRET:
        map_p3(a, 60, 61, 40)
        a(f"""
        s_lshl_b32 s40, s60, 2
        s_add_u32 s40, s40, s95
        s_mul_i32 s40, s40, 114688
        s_lshr_b32 s41, s61, 2
        s_mul_i32 s41, s41, 14336
        s_add_u32 s40, s40, s41
        s_and_b32 s41, s61, 3
        s_lshl_b32 s41, s41, 9
        s_add_u32 s40, s40, s41
        s_add_u32 s40, s40, {HH_OFF}
        v_and_b32 v20, 3, v2
        v_lshlrev_b32 v20, 7, v20
        v_bfe_u32 v21, v2, 2, 3
        v_min_u32 v21, 6, v21
        v_lshl_add_u32 v20, v21, 11, v20
        v_mul_u32_u24 v21, 57344, v4
        v_add3_u32 v20, v20, v21, s40
        s_lshl_b32 s40, s100, 1
        s_lshr_b32 s41, s95, 1
        s_add_u32 s40, s40, s41
        s_mul_i32 s40, s40, 40960
        s_mul_i32 s41, s101, 5120
        s_add_u32 s40, s40, s41
        s_and_b32 s41, s95, 1
        s_lshl_b32 s41, s41, 8
        s_add_u32 s40, s40, s41
        s_add_u32 s40, s40, {H_OFF}
        v_lshrrev_b32 v21, 1, v2
        v_min_u32 v21, 9, v21
        v_lshlrev_b32 v21, 9, v21
        v_and_b32 v22, 1, v2
        v_lshl_add_u32 v21, v22, 7, v21
        v_add_u32 v21, s40, v21
        """)
    srd(a, 24, 20, XN_OFF, XN_SZ)
    srd_dyn(a, 28, 20, W1_OFF, 46, 153600)
    mspill(a)
    poll(a, "M_poll1", 12, "0", 9)
    mmark(a, "p1_sync")
    L = Loads(a, P1LIM)
    for n in range(10):
        g = 11 if n >= 9 else None
        L.add(f"buffer_load_dwordx4 a[{16*n}:{16*n+3}], v3, s[24:27], s45 offen {SC}", pre=f"s_add_u32 m0, s47, {12288*n}", gate=g)
        for c in range(3):
            L.add(f"buffer_load_dwordx4 v3, s[28:31], m0 offen offset:{1024*c} {SC} lds", gate=g)
        for c in range(1, 4):
            L.add(f"buffer_load_dwordx4 a[{16*n+4*c}:{16*n+4*c+3}], v3, s[24:27], s45 offen offset:{1024*c} {SC}",
                  tag=n if c == 3 else None, post="s_add_u32 s45, s45, 4096" if c == 3 and n < 9 else None, gate=g)
    for c in range(8):
        L.add(f"buffer_load_dwordx4 v3, s[28:31], m0 offen offset:{1024*(c%4)} {SC} lds", pre=f"s_add_u32 m0, s48, {QB + 1024*c}" if c % 4 == 0 else None, gate=11, tag='qb' if c == 7 else None)
    for n in range(3):
        L.add(f"buffer_load_dwordx4 v{16+n}, s[68:71], s56 offen nt lds", pre=f"s_add_u32 m0, s47, {XL + 1024*n}", gate=27)
    L.pump(14)
    for tx_, po in rt_se: L.add(tx_, post=po, gate=SEG, tag='se')
    for n_, (tx_, po) in enumerate(rt_st): L.add(tx_, post=po, gate=(41 if RTK else 50), tag='rts' if n_ == len(rt_st) - 1 else None)
    if RTW and not RTK: L.add("buffer_store_dword v19, v10, s[8:11], 0 offen sc0 sc1", gate=4)
    L.add("buffer_load_dword v63, v62, s[8:11], 0 offen sc1", tag='f6', gate=60)
    def woreg(T, k):
        r = 156 + 4 * ((5 * T + k + 1) % 25)
        return f"a[{r}:{r+3}]"
    for k in range(5):
        for T in range(5):
            L.add(f"buffer_load_dwordx4 {woreg(T, k)}, v3, s[64:67], s23 offen {SC}", pre=f"s_add_u32 s23, s22, {T*20480 + 1024*k}", gate=70, tag=('WO', k))
    ACC = 64; WF = 24
    def rd(s, T):
        r = WF + 4 * ((s % 2) * 3 + T)
        return a.ds(f"ds_read_b128 v[{r}:{r+3}], v{3 if s < 20 else 7} offset:{(s % 20) * 3072 + T * 1024}")
    tR = {}
    L.need(0)
    a("s_barrier")
    mmark(a, "p1_first")
    for T in range(3): tR[(0, T)] = rd(0, T)
    for s in range(40):
        nxt = s + 1
        if nxt < 40 and nxt % 4 == 0:
            L.need(nxt // 4, gate=s - 1)
            a("s_barrier")
        for T in range(3):
            if nxt < 40: tR[(nxt, T)] = rd(nxt, T)
            a.wait(lg=tR[(s, T)])
            r = WF + 4 * ((s % 2) * 3 + T)
            d = ACC + 16 * T
            a(f"v_mfma_f32_32x32x16_bf16 v[{d}:{d+15}], v[{r}:{r+3}], a[{4*s}:{4*s+3}], " + ("0" if s == 0 else f"v[{d}:{d+15}]"))
            if s >= 1 and rt_rd:
                a(rt_rd.pop(0))
            elif s == 12 and T == 0:
                for x_ in rt_cs: a(x_)
            elif s in (16, 17) and rt_cs2:
                a(rt_cs2.pop(0))
            if T != 1 or s >= 36:
                if 9 in L.t: L.paced(gate=s)
                else: L.pump(1, gate=s)
    assert not rt_rd
    mmark(a, "p1_loop")
    if RTK or F6E: a("v_mov_b32 v9, 0x1000000\nv_writelane_b32 v9, s57, 0")
    if PRET == 2: a("global_load_dword v22, v21, s[20:21] sc1\nglobal_load_dword v22, v20, s[20:21] sc1")
    pa = Paced(a, L, 8, gate=45)
    E, O, TMP, VP = 128, 168, 12, 188
    for i in range(9):
        a(f"v_cvt_pk_bf16_f32 v{VP+i}, v{84+2*i}, v{85+2*i}")
    a(f"v_mov_b32 v{VP+9}, 0x3f80\nv_cvt_pk_bf16_f32 v{VP+10}, v102, v103\nv_mov_b32 v{VP+11}, 0x3f80")
    class KW:
        c = 0
        def __call__(self, text):
            pa(text); self.c += 1
            if self.c in (10, 30, 50):
                q = (self.c - 10) // 20
                a(f"ds_write_b128 v11, v[{VP+4*q}:{VP+4*q+3}] offset:{80+16*q}")
            m = re.match(r"v_cvt_pk_bf16_f32 v(\d+),", text)
            if m and (int(m.group(1)) - O) % 4 == 3:
                q = (int(m.group(1)) - O) // 4
                a(f"ds_write_b128 v11, v[{O+4*q}:{O+4*q+3}] offset:{16*q}")
    softmax_pair(KW(), 64, E, O, TMP, True)
    if RTW and not RTK: L.lim = 60; L.pump(1, gate=60)
    a.wait_all_lg()
    L.need('qb')
    if RTK or F6E:
        L.need('se')
        a("buffer_store_dword v19, v9, s[8:11], 0 offen sc0 sc1")
    a("s_barrier")
    mmark(a, "p1_ksm")
    tk = []
    FA, FB, KD = 128, 200, 24
    def kvm(k2):
        a.wait(lg=tk[k2])
        a(f"v_mfma_f32_32x32x16_bf16 v[{KD}:{KD+15}], v[{FA+4*k2}:{FA+4*k2+3}], v[{FB+4*k2}:{FB+4*k2+3}], " + ("0" if k2 == 0 else f"v[{KD}:{KD+15}]"))
    for ks in range(8):
        for rho in range(2):
            off = (16 * ks + rho) * 272
            a(f"ds_read_b64_tr_b16 v[{FA+4*ks+2*rho}:{FA+4*ks+2*rho+1}], v57 offset:{off}")
            t = a.ds(f"ds_read_b64_tr_b16 v[{FB+4*ks+2*rho}:{FB+4*ks+2*rho+1}], v56 offset:{off+80}")
        tk.append(t)
        if ks >= 2: kvm(ks - 2)
    kvm(6); kvm(7)
    a("s_mov_b32 exec_lo, 0xffffff\ns_mov_b32 exec_hi, 0xffffff")
    for c in range(3):
        a(f"ds_write_b128 v58, v[{KD+4*c}:{KD+3+4*c}] offset:{768*c}")
    a("s_mov_b64 exec, -1")
    tk = [a.ds(f"ds_read_b32 v{40+i}, v59 offset:{256*i}") for i in range(8)]
    def rdq(s):
        r = 128 + 4 * (s % 10)
        return a.ds(f"ds_read_b128 v[{r}:{r+3}], v6 offset:{768*s}")
    tq = [rdq(s) for s in range(6)]
    if a.vm_issued - a.vm_done > 40: a.wait(vm=a.vm_issued - 24)
    for i in range(8):
        a.wait(lg=tk[i])
        if i == 7: a("s_mov_b32 exec_hi, 0")
        a(f"buffer_atomic_add_f32 v{40+i}, v60, s[36:39], s54 offen offset:{256*i}")
    a("s_mov_b64 exec, -1")
    mmark(a, "p1_atom")
    tat = a.vm_issued
    def pretouch():
        a("global_load_dword v22, v21, s[20:21] sc1\nglobal_load_dword v22, v20, s[20:21] sc1")
    if PRET == 1: pretouch()
    P = lambda r: f"v[{r}:{r+1}]"
    L.lim = 60
    def sig2a():
        a.wait(vm=tat)
        a("s_barrier")
        a("buffer_store_dword v19, v61, s[8:11], 0 offen sc0 sc1")
        if RTK: a("buffer_store_dword v19, v10, s[8:11], 0 offen sc0 sc1")
        mmark(a, "p1_sig")
    for s in range(40):
        if s + 6 < 40: tq.append(rdq(s + 6))
        if s % 2 == 0: a.wait(lg=tq[s + 1])
        r = 128 + 4 * (s % 10)
        a(f"v_mfma_f32_32x32x16_bf16 v[112:127], v[{r}:{r+3}], a[{4*s}:{4*s+3}], " + ("0" if s == 0 else "v[112:127]"))
        if s >= RQ0 and s % 2 == 1: L.paced(gate=50)
        if RTK and s == F6S: L.pump(1, gate=60)
        if s == SIG2: sig2a()
    assert RTW or 'rts' in L.t
    mmark(a, "p1_q")
    if F6E: L.pump(1, gate=60)
    if RTK: L.need('f6')
    if RTW: check_flags(a, "M_f6", 63, 62, "0", False)
    softmax_pair(Paced(a, L, WOP, gate=99) if RTW else a, 104, E, O, TMP)
    for c in (0, 2):
        for j in range(4):
            a(f"v_permlane32_swap_b32 v{O+4*c+j}, v{O+4*c+4+j}")
    mmark(a, "p1_qsm")
    a("""; ==== P1b: o = phi_q kv / (phi_q z + 1e-6) for this workgroup's 128 rows x 2 heads""")
    srd(a, 24, 20, KV_OFF, KV_SZ)
    srd(a, 28, 20, O_OFF, O_SZ)
    a(f"""
    v_min_u32 v6, 23, v5
    v_lshlrev_b32 v6, 4, v6
    v_mul_u32_u24 v7, 3840, v4
    v_add_u32 v7, v7, v6
    v_mul_u32_u24 v8, 768, v4
    v_add_u32 v6, v8, v6
    s_mul_i32 s45, s43, 7680
    s_add_u32 s46, s45, 3840
    v_and_b32 v8, 15, v2
    v_lshlrev_b32 v8, 4, v8
    s_lshl_b32 s47, s43, 8
    s_add_u32 s47, s47, {F2A_O}
    v_lshrrev_b32 v10, 4, v5
    v_mul_u32_u24 v10, {O_TT}, v10
    v_add_u32 v10, v10, v8
    v_lshl_add_u32 v11, v4, 8, v10
    s_mul_i32 s48, s44, {2*O_TT}
    s_mul_i32 s49, s43, 1280
    s_add_u32 s48, s48, s49
    s_lshl_b32 s49, s44, 4
    s_add_u32 s49, s49, s43
    s_lshl_b32 s49, s49, 4
    s_add_u32 s49, s49, {FO_O}
    """)
    for r in range(12, 20): a(f"v_mov_b32 v{r}, 0")
    if F6E:
        L.need('f6')
        check_flags(a, "M_f6", 63, 62, "0", False)
    if RTK or F6E: L.pump(WO2, gate=99)
    mspill(a)
    if ONE2A:
        a("s_cmp_lg_u32 s95, 0\ns_cbranch_scc1 M_poll2a_go")
        poll(a, "M_poll2a", 8, "s47", 9)
        a("s_barrier")
    else:
        poll(a, "M_poll2a", 8, "s47", 9)
    mmark(a, "p1b_sync")
    b = 64
    for hh in range(2):
        for u in range(2):
            for e in range(2):
                r = b + 16 * hh + 8 * u + 4 * e
                a(f"buffer_load_dwordx4 v[{r}:{r+3}], v6, s[24:27], s{45+hh} offen offset:{(4*u+e)*384} {SC}")
        if hh == 0:
            for e in range(2):
                r = b + 32 + 4 * e
                t0 = a.vm(f"buffer_load_dwordx4 v[{r}:{r+3}], v7, s[24:27], s45 offen offset:{(8+e)*384} {SC}")
    t1 = a.vm_issued
    if not RTW and not ONE2A: a("s_barrier")
    OD, OB = [24, 40], 56
    for hh in range(2):
        a.wait(vm=t0 if hh == 0 else t1)
        if hh == 0: mmark(a, "p1b_kv")
        for u in range(2):
            r = b + 16 * hh + 8 * u
            for j in range(4):
                a(f"v_cvt_pk_bf16_f32 v{r+j}, v{r+2*j}, v{r+2*j+1}")
        a("s_mov_b32 exec_hi, 0" if hh == 0 else "s_mov_b32 exec_lo, 0")
        for j in range(4): a(f"v_cvt_pk_bf16_f32 v{12+4*hh+j}, v{b+32+2*j}, v{b+33+2*j}")
        a("s_mov_b64 exec, -1")
        d = OD[hh]
        for u in range(2):
            r = b + 16 * hh + 8 * u
            q = O + 8 * u + 4 * hh
            a(f"v_mfma_f32_32x32x16_bf16 v[{d}:{d+15}], v[{r}:{r+3}], v[{q}:{q+3}], " + ("0" if u == 0 else f"v[{d}:{d+15}]"))
        a(f"v_mfma_f32_32x32x16_bf16 v[{d}:{d+15}], v[{12+4*hh}:{15+4*hh}], v[{O+16}:{O+19}], v[{d}:{d+15}]")
    OB = 104
    for hh in range(2):
        d = OD[hh]
        a(f"v_add_f32 v{d+10}, {f32(1e-6)}, v{d+10}")
        a(f"v_rcp_f32 v{d+10}, v{d+10}")
        for j in range(0, 10, 2):
            a(f"v_pk_mul_f32 {P(d+j)}, {P(d+j)}, {P(d+10)} op_sel_hi:[1,0]")
        for j in range(5):
            a(f"v_cvt_pk_bf16_f32 v{OB+5*hh+j}, v{d+2*j}, v{d+2*j+1}")
        if hh == 0:
            a(f"buffer_store_dwordx4 v[{OB}:{OB+3}], v11, s[28:31], s48 offen {SC}")
    a(f"""
    buffer_store_dwordx4 v[{OB+4}:{OB+7}], v11, s[28:31], s48 offen offset:512 {SC}
    v_permlane32_swap_b32 v{OB+8}, v{OB+10}
    v_permlane32_swap_b32 v{OB+9}, v{OB+11}
    s_mov_b32 exec_hi, 0
    """)
    tst = a.vm(f"buffer_store_dwordx4 v[{OB+8}:{OB+11}], v10, s[28:31], s48 offen offset:1024 {SC}")
    a("s_mov_b32 exec_hi, -1")
    if not RTW and not F6E: L.pump(1, gate=60)
    mmark(a, "p1b_st")
    map_p3(a, 60, 61, 40)
    a(f"""
    s_mul_i32 s62, s61, 27
    s_lshr_b32 s62, s62, 1
    s_mul_i32 s40, s62, 20480
    """)
    srd_dyn(a, 12, 20, W3_OFF - 81920, 40, 163840)
    srd_dyn(a, 16, 20, W3_OFF + 81920, 40, 163840)
    srd_dyn(a, 68, 20, W3_OFF + 245760, 40, 40960)
    a.wait(vm=tst)
    signal(a, "s49", 8)
    if not RTW:
        a(f"s_sub_u32 s50, s50, {F6_O - F5_O}")
        signal(a, "s50", 8, scale=False)
    mmark(a, "p1b_sig")
    if not RTW and not F6E:
        L.need('f6')
        check_flags(a, "M_f6", 63, 62, "0", False)
    L.pump(WO1, gate=99); woq = [(x[0], x[1], x[2], x[3], None) for x in L.q]
    a("""; ==== P2: h = x + o wo (64 rows x 80 columns, K split over the 4 waves), row sums for the second LayerNorm""")
    PB2, TB2 = 0, XL
    srd(a, 24, 20, H_OFF, H_SZ)
    srd(a, 32, 20, ST_OFF, ST_SZ)
    a(f"""
    s_mul_i32 s44, s95, 5
    s_mul_i32 s45, s100, {4*O_TT//1024}
    s_add_u32 s45, s45, s44
    s_lshl_b32 s45, s45, 10
    v_and_b32 v7, 3, v2
    v_lshlrev_b32 v7, 4, v7
    v_bfe_u32 v8, v2, 2, 1
    v_lshl_add_u32 v7, v8, 8, v7
    s_lshl_b32 s46, s100, 9
    s_lshl_b32 s47, s95, 6
    s_add_u32 s46, s46, s47
    s_add_u32 s46, s46, {FO_O}
    s_mul_i32 s47, s95, 15360
    v_add_u32 v6, s47, v3
    """)
    for j in range(1, 4):
        a(f"""
        s_add_u32 s47, s95, {j}
        s_and_b32 s47, s47, 3
        s_mul_i32 s47, s47, 15360
        s_add_u32 s47, s47, {PB2 + (3-j)*5120}
        v_add_u32 v{9+j}, s47, v3
        """)
    map_p4(a, 58, 59, 40)
    a(f"""
    v_and_b32 v13, 15, v2
    v_lshrrev_b32 v14, 4, v2
    v_mul_u32_u24 v17, 160, v13
    v_lshl_add_u32 v17, v14, 3, v17
    s_mul_i32 s51, s95, 3072
    s_add_u32 s52, s51, {XL}
    v_add_u32 v15, s52, v17
    s_add_u32 s51, s51, {TB2}
    v_add_u32 v17, s51, v17
    v_mul_u32_u24 v18, 160, v13
    v_lshl_add_u32 v18, v14, 4, v18
    v_add_u32 v18, s51, v18
    v_lshlrev_b32 v19, 4, v13
    v_lshl_add_u32 v19, v4, 9, v19
    v_and_b32 v18, 1, v14
    v_lshl_add_u32 v19, v18, 10, v19
    s_lshl_b32 s48, s100, 1
    s_lshr_b32 s49, s95, 1
    s_add_u32 s48, s48, s49
    s_lshl_b32 s53, s48, 3
    s_add_u32 s53, s53, s101
    s_lshl_b32 s53, s53, 8
    s_mul_i32 s48, s48, 40960
    s_mul_i32 s49, s101, 5120
    s_add_u32 s48, s48, s49
    s_and_b32 s49, s95, 1
    s_lshl_b32 s50, s49, 7
    s_add_u32 s53, s53, s50
    s_lshl_b32 s49, s49, 8
    s_add_u32 s48, s48, s49
    s_add_u32 s49, s48, 4096
    s_lshl_b32 s56, s100, 2
    s_add_u32 s56, s56, s95
    s_lshl_b32 s56, s56, 3
    s_add_u32 s56, s56, s101
    s_lshl_b32 s56, s56, 4
    s_add_u32 s56, s56, {F3_O}
    s_mov_b32 s54, 0xffff0000
    s_lshr_b32 s50, s62, 3
    s_lshl_b32 s50, s50, 2
    v_min_u32 v20, 11, v13
    v_add_u32 v20, s50, v20
    v_min_u32 v20, 107, v20
    v_and_b32 v21, 1, v14
    v_mul_u32_u24 v16, 108, v21
    v_add_u32 v20, v20, v16
    s_mul_i32 s50, s59, 5
    s_lshr_b32 s50, s50, 2
    s_mul_i32 s50, s50, 56
    s_mul_i32 s51, s95, 14
    s_add_u32 s50, s50, s51
    v_min_u32 v16, 13, v13
    v_mul_u32_u24 v21, 56, v21
    v_add3_u32 v16, v16, v21, s50
    v_min_u32 v16, 559, v16
    v_lshrrev_b32 v21, 1, v16
    v_subrev_u32 v22, {512-208}, v16
    v_cmp_le_u32 vcc, 512, v16
    v_cndmask_b32 v16, v21, v22, vcc
    v_cmp_le_u32 vcc, 32, v2
    v_cndmask_b32 v20, v20, v16, vcc
    v_lshlrev_b32 v20, 4, v20
    s_mov_b32 s57, {F5_O}
    """)
    if RTW: tf = a.vm("buffer_load_dword v21, v20, s[8:11], s57 offen sc1")
    tx = [a.ds(f"ds_read_b64 v[{112+2*T}:{113+2*T}], v15 offset:{32*T}") for T in range(5)]
    A4 = [72, 92]; RS_, PS = 24, 44
    a.wait(lg=tx[4])
    for j in range(10):
        a(f"v_lshlrev_b32 v{128+2*j}, 16, v{112+j}")
        a(f"v_and_b32 v{129+2*j}, s54, v{112+j}")
    L0 = Loads(a, 60); w3_dma(L0, 0, 3); w3_dma(L0, 1, 3)
    if RTW:
        a.wait(vm=tf)
        check_flags(a, "M_f5", 21, 20, "s57", False)
        L0.pump(W3EARLY, gate=3)
    mspill(a)
    poll(a, "M_poll2b", 7, "s46", 9)
    mmark(a, "p2_sync")
    L = Loads(a, 40)
    order = [(sl, k) for sl in (1, 2, 3, 0) for k in range(5)]
    for i, (sl, k) in enumerate(order):
        pre = None
        if k == 0:
            pre = f"s_add_u32 s55, s95, {sl}\ns_and_b32 s55, s55, 3\ns_mul_i32 s55, s55, {O_TT}\ns_add_u32 s55, s55, s45"
        elif k == 4:
            pre = "s_add_u32 s55, s55, 4096"
        L.add(f"buffer_load_dwordx4 a[{4*i}:{4*i+3}], v3, s[28:31], s55 offen offset:{1024*(k%4)} {SC} {NT4}", pre=pre, tag=i)
        while woq and woq[0][1][1] <= i + 1: L.q.append(woq.pop(0))
        if i == F5I and not RTW: L.add("buffer_load_dword v21, v20, s[8:11], s57 offen sc1", tag='f5')
    L.q += L0.q; L.t.update(L0.t)
    if TOUCH:
        nsh = 4 if MAP4 == 'row' else 8
        per = 560 // nsh
        nin = (per + 63) // 64
        srd(a, 64, 20, W4_OFF, W4_SZ)
        a(f"""
        s_mov_b32 s36, s16
        s_mov_b32 s37, s17
        s_mov_b32 s38, 204800
        s_mov_b32 s39, 0x20000
        s_and_b32 s40, s60, 7
        s_lshl_b32 s40, s40, 2
        s_add_u32 s40, s40, s95
        s_mul_i32 s22, s40, {50*128}
        v_min_u32 v148, 49, v2
        v_lshlrev_b32 v148, 7, v148
        s_and_b32 s40, s58, {nsh-1}
        s_mul_i32 s40, s40, {per}
        s_mul_i32 s41, s95, 14
        s_mul_i32 s23, s59, {5*56}
        s_add_u32 s23, s23, s41
        s_lshl_b32 s23, s23, 10
        s_movk_i32 s41, 586
        """)
        L.add("buffer_load_dword v152, v148, s[36:39], s22 offen sc1", gate=3)
        for q in range(nin):
            a(f"""
            v_add_u32 v153, {64*q}, v2
            v_min_u32 v153, {per-1}, v153
            v_add_u32 v153, s40, v153
            v_mul_u32_u24 v154, s41, v153
            v_lshrrev_b32 v154, 16, v154
            v_mul_u32_u24 v154, {57344 - 112*128}, v154
            v_lshl_add_u32 v{149+q}, v153, 7, v154
            """)
            L.add(f"buffer_load_dword v152, v{149+q}, s[64:67], s23 offen sc1", gate=3)
    L.pump(12)
    ACC2 = [72, 92, 72, 128]
    def flush_p(ph):
        dp = ACC2[ph]
        for T in range(5):
            a(f"ds_write_b128 v6, v[{dp+4*T}:{dp+4*T+3}] offset:{ph*5120 + T*1024}")
    wr = []; todo = []
    for i, (sl, k) in enumerate(order):
        ph = i // 5
        d = ACC2[ph]
        L.need(i)
        if i == 0: mmark(a, "p2_first")
        if i == F5I + 1 and not RTW: check_flags(a, "M_f5", 21, 20, "s57", False)
        if i == 15:
            a.wait_all_lg()
            a("s_barrier")
            for j, rb in ((2, RS_), (1, PS)):
                for T in range(5):
                    te = a.ds(f"ds_read_b128 v[{rb+4*T}:{rb+4*T+3}], v{10+j} offset:{1024*T}")
        if i == 17:
            a.wait(lg=te)
            todo = [f"v_add_f32 v{RS_+j}, v{RS_+j}, v{PS+j}" for j in range(20)]
        for T in range(5):
            a(f"v_mfma_f32_16x16x32_bf16 v[{d+4*T}:{d+4*T+3}], {woreg(T, k)}, a[{4*i}:{4*i+3}], " + ("0" if k == 0 and ph < 3 else f"v[{d+4*T}:{d+4*T+3}]"))
            if wr and T in (0, 2, 4): a(wr.pop(0))
            elif T == 1 or T == 3: L.pump(1, gate=3 if i > F5I else None)
            elif todo:
                a(todo.pop(0)); a(todo.pop(0))
        if k == 0 and ph > 0:
            dp = ACC2[ph - 1]
            wr = [f"ds_write_b128 v6, v[{dp+4*T}:{dp+4*T+3}] offset:{(ph-1)*5120 + T*1024}" for T in range(5)]
    assert not wr and not woq
    a.wait_all_lg()
    a("s_barrier")
    mmark(a, "p2_bar")
    for T in range(5):
        t = a.ds(f"ds_read_b128 v[{A4[0]+4*T}:{A4[0]+4*T+3}], v10 offset:{1024*T}")
    for x_ in todo: a(x_)
    a("v_mov_b32 v14, 0x3f803f80\nv_mov_b32 v112, 0\nv_mov_b32 v113, 0")
    for r in range(0, 20, 2):
        a(f"v_pk_add_f32 {P(128+r)}, {P(128+r)}, {P(RS_+r)}")
    a.wait(lg=t)
    for r in range(0, 20, 2):
        a(f"v_pk_add_f32 {P(128+r)}, {P(128+r)}, {P(A4[0]+r)}")
    for j in range(10):
        a(f"v_cvt_pk_bf16_f32 v{RS_+j}, v{128+2*j}, v{129+2*j}")
    for j in (8, 9):
        a(f"v_dot2c_f32_bf16 v112, v{RS_+j}, v14")
        a(f"v_dot2c_f32_bf16 v113, v{RS_+j}, v{RS_+j}")
    for it in range(3):
        r = RS_ + 4 * it
        a(f"v_permlane16_swap_b32 v{r}, v{r+2}\nv_permlane16_swap_b32 v{r+1}, v{r+3}")
        if it == 2: a("s_mov_b32 exec_lo, 0xffff\ns_mov_b32 exec_hi, 0xffff")
        a(f"buffer_store_dwordx4 v[{r}:{r+3}], v19, s[24:27], s{48 if it < 2 else 49} offen offset:{2048*(it%2)} {LS}")
    a("s_mov_b64 exec, -1")
    for j in range(8):
        a(f"v_dot2c_f32_bf16 v112, v{RS_+j}, v14")
        a(f"v_dot2c_f32_bf16 v113, v{RS_+j}, v{RS_+j}")
    a(f"""
    v_lshlrev_b32 v13, 3, v13
    s_nop 1
    v_mov_b32 v114, v112
    v_mov_b32 v115, v113
    v_permlane32_swap_b32 v112, v114
    v_permlane32_swap_b32 v113, v115
    v_pk_add_f32 v[112:113], v[112:113], v[114:115]
    v_mov_b32 v114, v112
    v_mov_b32 v115, v113
    v_permlane16_swap_b32 v112, v114
    v_permlane16_swap_b32 v113, v115
    v_pk_add_f32 v[112:113], v[112:113], v[114:115]
    s_mov_b64 exec, 0xffff
    """)
    tst = a.vm(f"buffer_store_dwordx2 v[112:113], v13, s[32:35], s53 offen {LS}")
    a("s_mov_b64 exec, -1")
    mmark(a, "p2_st")
    if P2A: L.pump(99, gate=3)
    srd(a, 28, 20, ST_OFF, ST_SZ)
    a.wait(vm=tst)
    signal(a, "s56", 8, LF)
    mmark(a, "p2_sig")
    L.need(('W3', 1), gate=3)
    a("s_barrier")
    L.pump(99, gate=3); w3_dma(L, 2); L.pump(99)
    a("""; ==== P3: gate/up GEMM on h; mean removed by an extra K-step with the weight column sums, rstd applied in the GELU epilogue""")
    map_p4(a, 100, 101, 40)
    a(f"s_mul_i32 s96, s101, {ROT4}\ns_add_u32 s96, s96, s95\ns_and_b32 s96, s96, 3")
    a(f"""
    s_lshl_b32 s44, s60, 2
    s_add_u32 s44, s44, s95
    s_mul_i32 s45, s44, 40960
    v_bfe_u32 v7, v2, 2, 1
    v_bfe_u32 v8, v2, 4, 1
    v_xor_b32 v9, v8, v4
    v_lshlrev_b32 v9, 7, v9
    v_lshl_add_u32 v9, v8, 8, v9
    v_bfe_u32 v8, v2, 3, 1
    v_lshl_add_u32 v9, v8, 6, v9
    v_and_b32 v8, 3, v2
    v_lshl_add_u32 v9, v8, 4, v9
    v_lshl_add_u32 v8, v7, 9, v9
    v_mul_u32_u24 v7, 20480, v7
    v_add_u32 v10, v7, v9
    v_add_u32 v11, 40960, v10
    v_add_u32 v12, 81920, v10
    v_add_u32 v13, 122880, v10
    """)
    srd(a, 12, 20, CS_OFF, CS_SZ)
    a("s_lshl_b32 s46, s62, 9\ns_add_u32 s47, s46, 4096\nv_mov_b32 v0, v8")
    def cs_ld(T):
        return f"buffer_load_dwordx4 a[{160+4*(T%3)}:{163+4*(T%3)}], v0, s[12:15], s{46 if T < 4 else 47} offen offset:{1024*(T%4)} {SC}"
    for T in range(3): a(cs_ld(T))
    srd(a, 36, 20, HH_OFF, HH_SZ)
    srd(a, 32, 20, RS_OFF, RS_SZ)
    a(f"""
    v_lshlrev_b32 v6, 3, v5
    v_lshl_add_u32 v6, v4, 10, v6
    s_lshl_b32 s48, s44, 11
    v_lshrrev_b32 v20, 4, v5
    v_mul_u32_u24 v20, 57344, v20
    v_and_b32 v21, 15, v2
    v_lshlrev_b32 v7, 4, v21
    v_add_u32 v20, v7, v20
    v_lshl_add_u32 v20, v4, 8, v20
    s_mul_i32 s50, s44, 114688
    s_lshr_b32 s51, s61, 2
    s_mul_i32 s51, s51, 14336
    s_add_u32 s50, s50, s51
    s_and_b32 s51, s61, 3
    s_lshl_b32 s51, s51, 9
    s_add_u32 s50, s50, s51
    s_lshr_b32 s51, s44, 1
    s_lshl_b32 s51, s51, 2
    s_lshr_b32 s52, s61, 2
    s_add_u32 s51, s51, s52
    s_lshl_b32 s51, s51, 7
    s_and_b32 s52, s44, 1
    s_lshl_b32 s52, s52, 4
    s_add_u32 s51, s51, s52
    s_and_b32 s52, s61, 3
    s_lshl_b32 s52, s52, 2
    s_add_u32 s51, s51, s52
    v_mov_b32 v8, 0x1000000
    v_writelane_b32 v8, s51, 0
    s_mov_b32 s58, {F4E_O}
    s_mov_b32 s59, {F4_O}
    s_lshl_b32 s51, s44, 8
    s_add_u32 s51, s51, {F3_O}
    s_lshr_b32 s52, s61, 2
    s_lshl_b32 s52, s52, 13
    s_lshl_b32 s53, s44, 7
    s_add_u32 s52, s52, s53
    s_and_b32 s53, s61, 3
    s_cmp_eq_u32 s53, 1
    s_cselect_b32 s52, s52, 0x1000000
    """)
    def w4reg(i):
        if i < 21: return f"a[{172+4*i}:{175+4*i}]"
        if i < 53: return f"v[{252-4*(i-21)}:{255-4*(i-21)}]"
        return f"a[{96+4*(i-53)}:{99+4*(i-53)}]"
    def w4_item(i):
        k, T = divmod(i, 5)
        return dict(text=f"buffer_load_dwordx4 {w4reg(i)}, v3, s[64:67], s23 offen {SC}", pre=f"s_add_u32 s23, s22, {T*57344 + 1024*k}", tag=('W4', i))
    srd(a, 64, 20, W4_OFF, W4_SZ)
    a(f"""
    s_mul_i32 s40, s95, 14
    s_mul_i32 s22, s101, {5*56}
    s_add_u32 s22, s22, s40
    s_lshl_b32 s22, s22, 10
    """)
    if TOUCH3:
        a(f"""
        s_and_b32 s40, s60, 7
        s_lshl_b32 s40, s40, 2
        s_add_u32 s40, s40, s95
        s_mul_i32 s40, s40, {30*128}
        s_mul_i32 s41, s62, 20480
        s_add_u32 s40, s40, s41
        s_add_u32 s40, s40, {W3_OFF + 163840}
        v_min_u32 v72, 29, v2
        v_lshl_add_u32 v72, v72, 7, s40
        s_and_b32 s40, s100, 7
        s_mul_i32 s40, s40, 50
        v_min_u32 v73, 49, v2
        v_add_u32 v73, s40, v73
        s_movk_i32 s41, 820
        v_mul_u32_u24 v74, s41, v73
        v_lshrrev_b32 v74, 16, v74
        v_mul_u32_u24 v74, {57344 - 80*128}, v74
        v_lshl_add_u32 v73, v73, 7, v74
        s_add_u32 s40, s22, {W4_OFF + 4096}
        v_add_u32 v73, s40, v73
        """)
    Lw = Loads(a, 60)
    for q in range(W4S3): Lw.add(**w4_item(q))
    Lw.pump(99)
    mspill(a)
    poll(a, "M_poll3", 7, "s51", 9)
    mmark(a, "p3_sync")
    a("v_mov_b32 v1, s93")
    L = Loads(a, P3LIM)
    SR = 64
    for n in range(40):
        L.add(f"buffer_load_dwordx4 a[{4*n}:{4*n+3}], v3, s[24:27], s45 offen offset:{1024*(n%4)} {SC} {NT3}", tag=n,
              post="s_add_u32 s45, s45, 4096" if n % 4 == 3 else None)
        if n == 11:
            for p in range(4):
                L.add(f"buffer_load_dwordx2 v[{SR+2*p}:{SR+2*p+1}], v6, s[28:31], s48 offen offset:{256*p} {SC}", tag='st' if p == 3 else None)
    if TOUCH3 == 2: L.add("global_load_dword v9, v72, s[20:21] sc1")
    w3_dma(L, 3)
    if TOUCH3 == 1: L.add("global_load_dword v9, v72, s[20:21] sc1")
    if TOUCH3: L.add("global_load_dword v9, v73, s[20:21] sc1")
    L.pump(12)
    ACB = [80, 96, 112]
    NA = 3
    WF, NB, TMP, OUT = 24, 10, 64, [72, 76]
    REG = [12, 13, 10, 11, 12, 13, 10]
    seq = []
    for s in range(40):
        seq += [(0, s), (1, s)]
        if s >= LAG: seq.append((2, s - LAG))
    seq += [(2, s) for s in range(max(40 - LAG, 0), 40)] + [(T, s) for T in range(3, 7) for s in range(40)]
    frs = {}
    nrd = [0]
    def rd3():
        i = nrd[0]
        if i >= len(seq): return
        T, s = seq[i]
        r = WF + 4 * (i % NB)
        frs[i] = (r, a.ds(f"ds_read_b128 v[{r}:{r+3}], v{REG[T]} offset:{512*s}"))
        nrd[0] += 1
    def epi(T, pk):
        d, out, tmp = ACB[T % NA], OUT[T % 2], TMP
        Lx = []
        if pk:
            for j in range(0, 8, 2): Lx.append(f"v_pk_mul_f32 {P(tmp+j)}, {P(d+j)}, {P(d+j)}")
            for j in range(0, 8, 2): Lx.append(f"v_pk_fma_f32 {P(tmp+j)}, {P(tmp+j)}, v[14:15], v[14:15] op_sel:[0,1,0] op_sel_hi:[1,1,0]")
            for j in range(0, 8, 2): Lx.append(f"v_pk_mul_f32 {P(tmp+j)}, {P(tmp+j)}, {P(d+j)}")
            for j in range(8): Lx.append(f"v_exp_f32 v{tmp+j}, v{tmp+j}")
            for j in range(0, 8, 2): Lx.append(f"v_pk_mul_f32 {P(d+j)}, {P(d+j)}, {P(d+8+j)}")
            for j in range(0, 8, 2): Lx.append(f"v_pk_add_f32 {P(tmp+j)}, {P(tmp+j)}, 1.0 op_sel_hi:[1,0]")
            for j in range(8): Lx.append(f"v_rcp_f32 v{tmp+j}, v{tmp+j}")
            for j in range(0, 8, 2): Lx.append(f"v_pk_mul_f32 {P(d+j)}, {P(d+j)}, {P(tmp+j)}")
        else:
            for j in range(8): Lx.append(f"v_mul_f32 v{tmp+j}, v{d+j}, v{d+j}")
            for j in range(8): Lx.append(f"v_fma_f32 v{tmp+j}, v{tmp+j}, v15, v14")
            for j in range(8): Lx.append(f"v_mul_f32 v{tmp+j}, v{tmp+j}, v{d+j}")
            for j in range(8):
                Lx.append(f"v_exp_f32 v{tmp+j}, v{tmp+j}")
                Lx.append(f"v_mul_f32 v{d+j}, v{d+j}, v{d+8+j}")
            for j in range(8): Lx.append(f"v_add_f32 v{tmp+j}, 1.0, v{tmp+j}")
            for j in range(8):
                Lx.append(f"v_rcp_f32 v{tmp+j}, v{tmp+j}")
                if j >= 1: Lx.append(f"v_mul_f32 v{d+j-1}, v{d+j-1}, v{tmp+j-1}")
            Lx.append(f"v_cvt_pk_bf16_f32 v{out}, v{d}, v{d+1}")
            Lx.append(f"v_mul_f32 v{d+7}, v{d+7}, v{tmp+7}")
        for j in range(0 if pk else 1, 4): Lx.append(f"v_cvt_pk_bf16_f32 v{out+j}, v{d+2*j}, v{d+2*j+1}")
        Lx.append(f"buffer_store_dwordx4 v[{out}:{out+3}], v20, s[36:39], s50 offen offset:{2048*(T%2)} {SC if T < LOCT else LS}" + ("\ns_add_u32 s50, s50, 4096" if T % 2 else ""))
        return [(T, x) for x in Lx]
    stats = f"""
    v_add_f32 v{SR+0}, v{SR+0}, v{SR+2}
    v_add_f32 v{SR+1}, v{SR+1}, v{SR+3}
    v_add_f32 v{SR+4}, v{SR+4}, v{SR+6}
    v_add_f32 v{SR+5}, v{SR+5}, v{SR+7}
    v_add_f32 v{SR+0}, v{SR+0}, v{SR+4}
    v_add_f32 v{SR+1}, v{SR+1}, v{SR+5}
    v_mov_b32 v{SR+2}, v{SR}
    v_mov_b32 v{SR+3}, v{SR+1}
    v_permlane32_swap_b32 v{SR}, v{SR+2}
    v_permlane32_swap_b32 v{SR+1}, v{SR+3}
    v_add_f32 v{SR}, v{SR}, v{SR+2}
    v_add_f32 v{SR+1}, v{SR+1}, v{SR+3}
    v_mul_f32 v{SR}, {f32(-1.0/640)}, v{SR}
    v_mul_f32 v{SR+1}, {f32(1.0/640)}, v{SR+1}
    v_fma_f32 v{SR+1}, -v{SR}, v{SR}, v{SR+1}
    v_max_f32 v{SR+1}, 0, v{SR+1}
    v_add_f32 v{SR+1}, {f32(1e-5)}, v{SR+1}
    v_rsq_f32 v{SR+1}, v{SR+1}
    v_cvt_pk_bf16_f32 v{SR+2}, v{SR}, v{SR}
    v_lshlrev_b32 v{SR+2}, 16, v{SR+2}
    v_sub_f32 v{SR+3}, v{SR}, v{SR+2}
    v_cvt_pk_bf16_f32 v16, v{SR+2}, v{SR+3}
    v_mul_f32 v22, v{SR+1}, v{SR+1}
    v_mov_b32 v17, v16
    v_mov_b32 v18, v16
    v_mov_b32 v19, v16
    v_mul_f32 v14, {f32(C0)}, v{SR+1}
    v_mul_f32 v15, {f32(C1)}, v{SR+1}
    v_mul_f32 v15, v15, v22
    v_lshlrev_b32 v21, 2, v5
    buffer_store_dword v22, v21, s[32:35], s52 offen {SC}
    """.strip().split("\n")
    pending = []
    a(f"""
    v_and_b32 v7, 7, v2
    s_lshl_b32 s40, s100, 9
    s_lshl_b32 s41, s95, 7
    s_add_u32 s63, s40, s41
    v_lshl_add_u32 v7, v7, 2, s63
    s_mul_i32 s40, s95, 14
    s_mul_i32 s57, s100, {4*56}
    s_add_u32 s57, s57, s40
    s_lshl_b32 s57, s57, 10
    """)
    DIST = 8
    def cost(x):
        x = x.strip()
        return 2 if x.startswith(("v_exp", "v_rcp", "v_rsq", "buffer_")) else 1
    def fill(budget, hold=None):
        while budget > 0 and pending:
            pick = None
            blockW, blockR = set(), set()
            for n, (t, x) in enumerate(pending[:14]):
                ins = Ins(x.split("\n")[0])
                if ins.kind == 'vmem' and n > 0 and any(Ins(y.split("\n")[0]).kind == 'vmem' for _, y in pending[:n]): break
                ok = cost(x) <= budget and t != hold and not (set(ins.r) & blockW) and not (set(ins.w) & (blockW | blockR))
                if ok and any(need(p, ins) > dd for dd, p in enumerate(reversed(a.ins[-2:]))): ok = False
                if ok: pick = n; break
                blockW |= set(ins.w); blockR |= set(ins.r)
            if pick is None: break
            t_, x = pending.pop(pick)
            a(x); budget -= cost(x)
            if x.startswith("buffer_store"): stored[t_] = (a.vm_issued, cur[0])
    stored = {}; cur = [0]; posted = False; posted2 = False
    a(f"s_mov_b32 s56, {F4M_O}")
    KE, KN = 2 * EARLY, 2 * MID
    KM = 2 * MID2
    order = [(sl, k) for lo, hi in ((0, KE), (KE, KN), (KN, KM), (KM, 14)) for sl in (1, 2, 3, 0) for k in range(lo, hi)]
    L4 = Loads(a, 26)
    lateW = list(range(53, 70))
    for i, (sl, k) in enumerate(order):
        pre = None
        if k in (0, KE, KN, KM):
            pre = f"s_add_u32 s55, s96, {sl}\ns_and_b32 s55, s55, 3\ns_mul_i32 s55, s55, 57344\ns_add_u32 s55, s55, s57"
            if k: pre += f"\ns_add_u32 s55, s55, {1024*k}"
            k0 = k
        elif (k - k0) % 4 == 0:
            pre = "s_add_u32 s55, s55, 4096"
        r = 4 * (i % 24)
        g = i if i < 24 else 1000 + i - 24
        if i >= 4 * KE: g = max(g, 1000 + 4 * KE - CHK1)
        if i >= 4 * KN and KM > KN: g = max(g, 1000 + 4 * KN - CHK2)
        if i >= 4 * KM: g = max(g, 1000 + 4 * KM - CHK)
        L4.add(f"buffer_load_dwordx4 a[{r}:{r+3}], v3, s[36:39], s55 offen offset:{1024*((k-k0)%4)} {SC} {NT4}", pre=pre, tag=('H', i), gate=g)
        if i == 23:
            for _ in range(LWA): L4.add(**w4_item(lateW.pop(0)), gate=999)
        if i == 4 * KN - 1:
            for _ in range(min(LWB, len(lateW))): L4.add(**w4_item(lateW.pop(0)), gate=999)
        if i == 4 * KM - 1:
            while lateW: L4.add(**w4_item(lateW.pop(0)), gate=999)
            for T in range(5):
                L4.add(f"buffer_load_dwordx2 v[{104+2*T}:{105+2*T}], v15, s[24:27], s{48 if T < 4 else 49} offen offset:{1024*(T%4)} {SC}", gate=1000)
            L4.add(f"buffer_load_dword v114, v16, s[32:35], s50 offen {SC}", tag='res', gate=1000)
    hh0, late4 = L4.q[:24], L4.q[24:]
    L.t.update(Lw.t)
    for q in range(W4S3, 53): L.add(**w4_item(q))
    done01 = False
    for _ in range(DIST): rd3()
    for i, (T, s) in enumerate(seq):
        cur[0] = i
        nx = nrd[0]
        if nx < len(seq) and seq[nx][1] == 0 and seq[nx][0] >= 2:
            Tn = seq[nx][0]
            if Tn > 2: L.need(('W3', Tn))
            a("s_barrier")
            if Tn == 3:
                assert done01
                q0 = L.q; L.q = []; w3_dma(L, 4); w3_dma(L, 5); L.q += q0
            if Tn == 4:
                q0 = [x for x in L.q if 'lds' not in x[0]]; L.q = [x for x in L.q if 'lds' in x[0]]; w3_dma(L, 6); L.q += q0
        if T == 6 and s == 0: print('queue at tile 6:', len(L.q))
        if (T, s) == (5, CK0):
            tfe = a.vm("buffer_load_dword v9, v7, s[8:11], s58 offen sc1")
        if (T, s) == (5, CK1):
            a.wait(vm=tfe)
            check_flags(a, "M_f4e", 9, 7, "s58", False)
            mmark(a, "p3_chk")
            L.q = L.q + hh0
        if (T, s) == (6, 2) and HF:
            hq = [x for x in L.q if x[1] and x[1][0] == 'H']; oq = [x for x in L.q if not (x[1] and x[1][0] == 'H')]
            L.q = hq[:HF] + oq + hq[HF:]
        rd3()
        budget = 3
        nxt_wait = (i + 1) % 4 == 0
        if T == 0: L.need(s)
        if i == 0: mmark(a, "p3_first")
        if i % 4 == 0: a.wait(lg=frs[min(i + 3, len(seq) - 1)][1])
        r = frs[i][0]
        d = ACB[T % NA]
        if s == 0: assert all(t % NA != T % NA for t, _ in pending if t >= 0), "accumulator still pending"
        a(f"v_mfma_f32_32x32x16_bf16 v[{d}:{d+15}], v[{r}:{r+3}], a[{4*s}:{4*s+3}], " + ("0" if s == 0 else f"v[{d}:{d+15}]"))
        if nxt_wait: budget -= 1
        n0 = a.vm_issued
        if not done01:
            L.pump(1)
            if i + 1 < len(seq) and seq[i + 1][0] == 0: budget -= 1
            if s == 14 and T == 0:
                L.need('st'); pending += [(-1, x) for x in stats]
        elif not posted and EARLY - 1 in stored and i >= stored[EARLY - 1][1] + ACKD:
            a.wait(vm=stored[EARLY - 1][0])
            a("buffer_store_dword v1, v8, s[8:11], s58 offen sc0 sc1")
            posted = True; budget -= 1
            mmark(a, "p3_early")
        elif posted and not posted2 and MID - 1 in stored and i >= stored[MID - 1][1] + ACKM:
            a.wait(vm=stored[MID - 1][0])
            a("buffer_store_dword v1, v8, s[8:11], s56 offen sc0 sc1")
            posted2 = True; budget -= 1
        elif (i % 2 == 1 and (T == 2 or (T == 3 and s < 24) or T == 6)) or i % 8 in PACE3:
            if not (T == 6 and s >= QS): L.paced(gate=s - 1 if T == 6 else None)
        budget -= 2 * (a.vm_issued - n0)
        fill(budget, hold=(T - 1 if s < 3 else None) if T > 2 else None)
        if s == 39 and T != 0:
            for t in ((0, 1) if T == 1 else (T,)):
                dd = ACB[t % NA]
                assert not any(p[0] == -1 for p in pending)
                if t >= 3: L.need(('CS', t))
                a(f"v_mfma_f32_32x32x16_bf16 v[{dd}:{dd+15}], a[{160+4*(t%3)}:{163+4*(t%3)}], v[16:19], v[{dd}:{dd+15}]")
                if NPK <= t < 6: pending += epi(t, False)
                if t + 3 < 7: L.q.insert(min(len(L.q), 8) if t == 2 else 0, (cs_ld(t + 3), ('CS', t + 3), None, None, None))
            if T == (1 if NPK < 2 or LAG >= 40 else 2) or (T == 1 and False):
                pass
            assert not any('global_load' in x[0] for x in L.q)
            if T in (1, 2):
                for t in (range(min(NPK, 2)) if T == 1 else range(2, NPK)):
                    pq_ = Paced(a, L, PQ2)
                    for _, ins in epi(t, True): (pq_ if T == 2 else a)(ins)
                    stored[t] = (a.vm_issued, i)
            mmark(a, f"p3_t{T}")
            if T == 1: done01 = True
    print('stores at', {k: v[1] for k, v in stored.items()}, 'of', len(seq), 'left loads', len(L.q), 'pending', len(pending))
    assert posted and MID - 1 in stored
    if not posted2:
        a.wait(vm=stored[MID - 1][0])
        a("buffer_store_dword v1, v8, s[8:11], s56 offen sc0 sc1")
    if 4 * KE - CHK1 - 3 < 0 and not SFM: tf4 = a.vm("buffer_load_dword v9, v7, s[8:11], s56 offen sc1")
    if KM > KN:
        a.wait(vm=stored[MID2 - 1][0])
        a(f"s_mov_b32 s58, {F4N_O}\nbuffer_store_dword v1, v8, s[8:11], s58 offen sc0 sc1")
    rest = [(x[0], x[1], x[2], x[3], None) for x in L.q]
    L.q = rest + late4
    L.lim = LIM4
    pa = Paced(a, L, FP, gate=999)
    started = {t for t, _ in pending if sum(1 for u, _ in pending if u == t) < len(epi(t, False))}
    rest = sorted({t for t, _ in pending} - started)
    for t, ins in pending:
        if t in started: pa(ins)
    for t in rest + [6]:
        for _, ins in epi(t, True): pa(ins)
    tst = a.vm_issued
    mmark(a, "p3_st")
    for _ in range(AFT): L.paced(gate=999)
    a("""; ==== P4: out = h + rstd^2 * (hh' w_down) (64 rows x 80 columns, K split over the 4 waves)""")
    PB, TB = 40960, 40960 + 61440
    srd(a, 12, 6, 0, 2621440)
    a(f"""
    s_mul_i32 s47, s95, 15360
    s_add_u32 s47, s47, {PB}
    v_add_u32 v6, s47, v3
    """)
    for j in range(1, 4):
        a(f"""
        s_add_u32 s47, s95, {j}
        s_and_b32 s47, s47, 3
        s_mul_i32 s47, s47, 15360
        s_add_u32 s47, s47, {PB + (3-j)*5120}
        v_add_u32 v{9+j}, s47, v3
        """)
    a(f"""
    v_and_b32 v13, 15, v2
    v_lshrrev_b32 v14, 4, v2
    v_lshlrev_b32 v15, 4, v13
    v_lshl_add_u32 v15, v4, 9, v15
    v_and_b32 v16, 1, v14
    v_lshl_add_u32 v15, v16, 3, v15
    s_lshl_b32 s48, s100, 1
    s_lshr_b32 s49, s96, 1
    s_add_u32 s48, s48, s49
    s_mul_i32 s48, s48, 40960
    s_mul_i32 s49, s101, 5120
    s_add_u32 s48, s48, s49
    s_and_b32 s49, s96, 1
    s_lshl_b32 s49, s49, 8
    s_add_u32 s48, s48, s49
    s_add_u32 s49, s48, 4096
    v_lshlrev_b32 v16, 2, v13
    s_lshl_b32 s50, s95, 13
    s_lshl_b32 s51, s100, 8
    s_add_u32 s50, s50, s51
    s_lshl_b32 s51, s96, 6
    s_add_u32 s50, s50, s51
    v_mul_u32_u24 v17, 160, v13
    v_lshl_add_u32 v17, v14, 3, v17
    s_mul_i32 s51, s95, 2560
    s_add_u32 s51, s51, {TB}
    v_add_u32 v17, s51, v17
    v_add_u32 v18, s51, v3
    s_mov_b32 s52, 6554
    """)
    for it in range(3):
        a(f"""
        v_add_u32 v13, {64*it}, v2
        v_mul_u32_u24 v14, s52, v13
        v_lshrrev_b32 v14, 16, v14
        v_mul_u32_u24 v14, {1280-160}, v14
        v_lshl_add_u32 v{19+it}, v13, 4, v14
        """)
    a(f"""
    s_lshl_b32 s52, s100, 2
    s_add_u32 s52, s52, s96
    s_mul_i32 s52, s52, {16*1280}
    s_mul_i32 s53, s101, 160
    s_add_u32 s52, s52, s53
    s_mov_b32 s54, 0xffff0000
    """)
    mspill(a)
    A4 = {1: 24, 2: 44, 3: 64, 0: 84}
    RS_, PS = 24, 44
    todo = []; wr = []; rdl = []
    NL = 14 - KM
    for i, (sl, k) in enumerate(order):
        d = A4[sl]
        if i == SIGI:
            a.wait(vm=tst)
            a(f"buffer_store_dword v1, v8, s[8:11], s59 offen {LF}")
            mmark(a, "p3_sig")
            L.pump(BURST0, gate=999 + i)
        if SFM and i == 0: sflag_load(a, F4M_O)
        if i == 4 * KE - CHK1 - 3 and not SFM:
            tf4 = a.vm("buffer_load_dword v9, v7, s[8:11], s56 offen sc1")
        if i == 4 * KE - CHK1 + 1:
            if SFM: sflag_check(a, "M_f4m", 9, 7, "s56")
            else:
                a.wait(vm=tf4)
                check_flags(a, "M_f4m", 9, 7, "s56", False)
            mmark(a, "p4_mid")
        if KM > KN and i == 4 * KN - CHK2 - FL4:
            sflag_load(a, F4N_O)
        if KM > KN and i == 4 * KN - CHK2 + 1:
            sflag_check(a, "M_f4n", 9, 7, "s58")
            mmark(a, "p4_mid2")
        if i == 4 * KM - CHK - FL4:
            if SFL: sflag_load(a, F4_O)
            else: tf4 = a.vm("buffer_load_dword v9, v7, s[8:11], s59 offen sc1")
        if i == 4 * KM - CHK + 1:
            if SFL: sflag_check(a, "M_f4", 9, 7, "s59")
            else:
                a.wait(vm=tf4)
                check_flags(a, "M_f4", 9, 7, "s59", False)
            mmark(a, "p4_sync")
            L.pump(BURST, gate=999 + i)
        L.need(('H', i), gate=999 + i)
        for T in range(5):
            L.need(('W4', 5 * k + T), gate=999 + i)
        if i == 0: mmark(a, "p4_first")
        if i == 4 * KM: mmark(a, "p4_late")
        r = 4 * (i % 24)
        for T in range(5):
            a(f"v_mfma_f32_16x16x32_bf16 v[{d+4*T}:{d+4*T+3}], {w4reg(5*k+T)}, a[{r}:{r+3}], " + ("0" if k == 0 else f"v[{d+4*T}:{d+4*T+3}]"))
            if rdl: tl = a.ds(rdl.pop(0))
            elif wr and T in (1, 3, 4): a(wr.pop(0))
            elif T in PT4 and L.q and (i >= SIGI or AFT): L.pump(1, gate=999 + i)
            elif todo:
                a(todo.pop(0))
                if todo: a(todo.pop(0))
        if i >= 4 * KM:
            assert NL == 6
            ph, kk = divmod(i - 4 * KM, NL)
            if kk == 0 and ph > 0:
                dp = A4[ph]
                wr = [f"ds_write_b128 v6, v[{dp+4*T}:{dp+4*T+3}] offset:{(ph-1)*5120 + T*1024}" for T in range(5)]
            if ph == 2 and kk == 3:
                assert not wr and not todo
                a.wait_all_lg()
                a("s_barrier")
                rdl = [f"ds_read_b128 v[{rb+4*T}:{rb+4*T+3}], v{av} offset:{1024*T}" for av, rb in ((12, 24), (11, 44)) for T in range(5)]
            if ph == 3 and kk == 0:
                assert not rdl
                a.wait(lg=tl)
                todo += [f"v_add_f32 v{24+q}, v{24+q}, v{44+q}" for q in range(20)]
                for q in range(10):
                    todo += [f"v_fma_f32 v{44+2*q}, v{24+2*q}, v114, v{116+q}", f"v_fma_f32 v{45+2*q}, v{25+2*q}, v114, v{104+q}"]
            if ph == 3 and kk == 3:
                assert not wr
                a.wait_all_lg()
                a("s_barrier")
                for T in range(5):
                    tl = a.ds(f"ds_read_b128 v[{64+4*T}:{67+4*T}], v10 offset:{1024*T}")
            if ph == 1 and kk == 2:
                L.need('res', gate=999 + i)
                for q in range(0, 10):
                    todo += [f"v_lshlrev_b32 v{116+q}, 16, v{104+q}", f"v_and_b32 v{104+q}, s54, v{104+q}"]
    for ins in todo: a(ins)
    a.wait(lg=tl)
    mmark(a, "p4_mm")
    for q in range(0, 20, 2):
        a(f"v_pk_fma_f32 {P(PS+q)}, {P(64+q)}, v[114:115], {P(PS+q)} op_sel_hi:[1,0,1]")
    for q in range(0, 20, 2):
        a(f"v_pk_fma_f32 {P(PS+q)}, {P(84+q)}, v[114:115], {P(PS+q)} op_sel_hi:[1,0,1]")
    for j in range(10):
        a(f"v_cvt_pk_bf16_f32 v{RS_+j}, v{PS+2*j}, v{PS+2*j+1}")
    for T in range(5):
        a(f"ds_write_b64 v17, v[{RS_+2*T}:{RS_+2*T+1}] offset:{32*T}")
    a.wait_all_lg()
    tk = [a.ds(f"ds_read_b128 v[{PS+4*it}:{PS+4*it+3}], v18 offset:{1024*it}") for it in range(3)]
    for it in range(3):
        a.wait(lg=tk[it])
        if it == 2: a("s_mov_b32 exec_hi, 0")
        a(f"buffer_store_dwordx4 v[{PS+4*it}:{PS+4*it+3}], v{19+it}, s[12:15], s52 offen {OUTF}")
    a(f"""
    s_or_b32 s40, s2, s95
    s_cmp_lg_u32 s40, 0
    s_cbranch_scc1 M_noclr
    s_load_dwordx2 s[40:41], s[0:1], 72
    s_mov_b64 exec, 1
    v_mov_b32 v8, 0
    s_waitcnt lgkmcnt(0)
    global_store_dword v8, v8, s[40:41] sc0 sc1
M_noclr:
    """)
    mstamp_end(a, 1, 20)
    a("M_exit:\ns_endpgm")
    return a
```

```python
from common import *
from k0 import reduce32
SC = "sc1"
WL, PL, WOL, LB3, LB4 = 10240, 20480, 24576, 114688, 135168

import os
WNT = os.environ.get('WNT', 'nt'); PNT = os.environ.get('PNT', ''); LDS_NONCE = 163836; KVZ = os.environ.get('KVZ', 'x'); ORDP = os.environ.get('ORDP', 'm'); FTN = int(os.environ.get('FTN', 4)); FTOUCH = os.environ.get('FTOUCH', 'sc0_sc1'); PFW = int(os.environ.get('PFW', 8)); PFW2 = int(os.environ.get('PFW2', 248)); PF1 = int(os.environ.get('PF1', 6144)); PFAT = os.environ.get('PFAT', 'sig'); RTL = os.environ.get('RTL', 'win')
def rt_src(a, now):
    nR0 = a.vm_issued
    a(f"""
    s_cmp_ge_u32 s2, 108
    s_cselect_b32 s36, s58, s56
    s_cselect_b32 s37, s59, s57
    s_cselect_b32 s56, 1, 0
    s_mov_b32 s38, {640*3456}
    s_mov_b32 s39, 0x20000
    s_mul_i32 s57, s56, 108
    s_sub_u32 s57, s2, s57
    s_and_b32 s58, s57, 3
    s_lshr_b32 s57, s57, 2
    v_lshrrev_b32 v8, 3, v2
    v_and_b32 v9, 7, v2
    v_lshlrev_b32 v9, 4, v9
    v_mul_u32_u24 v232, 3456, v8
    v_add_u32 v232, v232, v9
    s_mul_i32 s60, s58, 160
    s_mul_i32 s40, s95, 40
    s_add_u32 s60, s60, s40
    s_mul_i32 s60, s60, 3456
    s_lshl_b32 s40, s57, 7
    s_add_u32 s60, s60, s40
    s_cmp_ge_u32 s2, 216
    s_cselect_b32 s60, 0x10000000, s60
    s_mul_i32 s55, s95, 5120
    s_lshl_b32 s51, s95, 12
    """)
    ld = []
    for n in range(5):
        ld.append((f"s_add_u32 m0, s55, {LB3 + 1024*n}", f"buffer_load_dwordx4 v232, s[36:39], s60 offen nt lds", f"s_add_u32 s60, s60, {8*3456}"))
    if now:
        for x in ld: a("\n".join(x))
    a(f"""
    s_mov_b32 s71, 0x20000
    s_cmp_eq_u32 s95, 3
    s_cbranch_scc1 P0_wo
    s_mov_b32 s68, s62
    s_mov_b32 s69, s63
    s_mov_b32 s70, {1728*1280}
    v_mul_u32_u24 v10, 1280, v8
    v_add_u32 v10, v10, v9
    s_lshl_b32 s40, s2, 1
    s_add_u32 s40, s40, s95
    s_add_u32 s49, s2, {512 - 208}
    s_cmp_lt_u32 s2, 208
    s_cselect_b32 s49, 999, s49
    s_cmp_eq_u32 s95, 2
    s_cselect_b32 s40, s49, s40
    s_mul_i32 s59, s40, 1171
    s_lshr_b32 s59, s59, 16
    s_mul_i32 s62, s59, 56
    s_sub_u32 s62, s40, s62
    s_mul_i32 s41, s62, 147
    s_lshr_b32 s41, s41, 11
    s_mul_i32 s49, s41, 14
    s_sub_u32 s49, s62, s49
    s_lshl_b32 s41, s41, 1
    s_and_b32 s61, s49, 1
    s_add_u32 s41, s41, s61
    s_mul_i32 s41, s41, 27
    s_andn2_b32 s49, s49, 1
    s_add_u32 s41, s41, s49
    s_mul_i32 s41, s41, {8*1280}
    v_add_u32 v216, s41, v10
    v_add_u32 v218, {13*8*1280}, v216
    v_add_u32 v219, {14*8*1280}, v216
    s_movk_i32 s41, {8*1280}
    s_cmp_eq_u32 s49, 12
    s_cselect_b32 s41, 0x10000000, s41
    v_add_u32 v217, s41, v216
    s_lshl_b32 s61, s59, 7
    s_mul_i32 s59, s59, 224
    s_add_u32 s59, s59, s62
    s_lshl_b32 s59, s59, 10
    s_add_u32 s59, s59, {W4_OFF - WO_OFF}
    s_mov_b32 s96, {56*1024}
    s_cmp_ge_u32 s40, 560
    s_branch P0_wt
P0_wo:
    s_mov_b32 s68, s16
    s_mov_b32 s69, s17
    s_mov_b32 s70, {640*1280}
    s_mul_i32 s59, s2, 205
    s_lshr_b32 s59, s59, 12
    s_mul_i32 s62, s59, 20
    s_sub_u32 s62, s2, s62
    v_cmp_le_u32 vcc, 2, v8
    v_cndmask_b32 v11, 8, 18, vcc
    v_add_u32 v11, v11, v8
    v_lshrrev_b32 v10, 2, v8
    v_mul_u32_u24 v10, 6, v10
    v_add3_u32 v10, v10, v8, 26
    """)
    for n in range(4):
        a(f"""
        s_lshl_b32 s40, s62, 2
        s_add_u32 s40, s40, {n}
        s_mul_i32 s41, s40, 205
        s_lshr_b32 s41, s41, 10
        s_mul_i32 s49, s41, 5
        s_sub_u32 s40, s40, s49
        s_mul_i32 s41, s41, 40
        s_and_b32 s49, s40, 1
        s_mul_i32 s49, s49, 10
        s_add_u32 s41, s41, s49
        s_cmp_ge_u32 s40, 2
        s_cselect_b64 vcc, -1, 0
        v_cndmask_b32 v{216+n}, v8, v11, vcc
        s_cmp_eq_u32 s40, 4
        s_cselect_b64 vcc, -1, 0
        v_cndmask_b32 v{216+n}, v{216+n}, v10, vcc
        v_add_u32 v{216+n}, s41, v{216+n}
        v_mul_u32_u24 v{216+n}, 1280, v{216+n}
        v_add_u32 v{216+n}, v{216+n}, v9
        """)
    a(f"""
    s_lshl_b32 s61, s59, 7
    s_mul_i32 s59, s59, 80
    s_add_u32 s59, s59, s62
    s_lshl_b32 s59, s59, 10
    s_mov_b32 s96, {20*1024}
    s_cmp_ge_u32 s2, 200
P0_wt:
    s_cselect_b32 s61, 0x10000000, s61
    s_cselect_b32 s59, 0x10000000, s59
    """)
    for n in range(4):
        ld.append((f"s_add_u32 m0, s51, {LB4 + 1024*n}", f"buffer_load_dwordx4 v{216+n}, s[68:71], s61 offen nt lds", ""))
    if now:
        for x in ld[5:]: a("\n".join(x))
    return a.vm_issued - nR0 if now else ld

def p0(a, npf):
    P = lambda r: f"v[{r}:{r+1}]"
    a(f"""
    s_getpc_b64 s[100:101]
P0_pc:
    s_cmp_ge_u32 s2, {PFW}
    s_cbranch_scc1 P0_nopf
    v_lshlrev_b32 v8, 7, v0
    v_mov_b32 v11, s101
    v_cmp_gt_u32 vcc, {PF1}, v8
    s_and_saveexec_b64 s[40:41], vcc
    s_cbranch_execz P0_pf0
    v_add_co_u32 v10, vcc, s100, v8
    v_addc_co_u32 v11, vcc, 0, v11, vcc
    global_load_dword v255, v[10:11], off
P0_pf0:
    s_mov_b64 exec, s[40:41]
    """)
    a(f"""
P0_nopf:
    v_lshrrev_b32 v6, 5, v0
    v_mul_u32_u24 v7, 1280, v6
    v_lshl_add_u32 v7, v5, 3, v7
    s_lshl_b32 s44, s42, 4
    s_add_u32 s44, s44, s43
    s_mul_i32 s40, s44, 10240
    s_mov_b32 s26, 2621440
    s_mov_b32 s27, 0x20000
    s_mov_b32 s30, {640*3840}
    s_mov_b32 s31, 0x20000
    s_mov_b32 s35, 0x20000
    s_movk_i32 s45, 13108
    s_mul_i32 s46, s42, {40*3840}
    s_mul_i32 s47, s43, 80
    s_add_u32 s46, s46, s47
    s_mul_i32 s47, s43, 1600
    s_lshl_b32 s48, s95, 10
    """)
    for n in range(3):
        a(f"""
        v_add_u32 v{8+n}, {256*n}, v0
        v_min_u32 v{8+n}, 599, v{8+n}
        v_mul_u32_u24 v11, s45, v{8+n}
        v_lshrrev_b32 v11, 16, v11
        v_mul_u32_u24 v11, 1200, v11
        v_lshl_add_u32 v{8+n}, v{8+n}, 4, v11
        """)
    a(f"""
    v_subrev_u32 v11, 128, v0
    v_min_u32 v11, 99, v11
    v_lshlrev_b32 v11, 4, v11
    s_cmp_ge_u32 s95, 2
    s_cselect_b64 vcc, -1, 0
    s_cselect_b32 s34, {32*800}, s30
    s_cselect_b32 s47, s47, s46
    v_cndmask_b32 v10, v10, v11, vcc
    s_waitcnt lgkmcnt(0)
    s_cselect_b32 s32, s14, s12
    s_cselect_b32 s33, s15, s13
    s_mov_b32 s24, s4
    s_mov_b32 s25, s5
    s_mov_b32 s28, s12
    s_mov_b32 s29, s13
    """)
    mmark(a, "p0_karg")
    a.reset_counters()
    X = 24
    def ldx():
        for i in range(5):
            t = a.vm(f"buffer_load_dwordx2 v[{X+2*i}:{X+1+2*i}], v7, s[24:27], s40 offen offset:{256*i} nt")
        return t
    def ldw(ns):
        for n in ns:
            a(f"s_add_u32 m0, s48, {WL + 4096*n}")
            a(f"buffer_load_dwordx4 v{8+n}, s[{28 if n < 2 else 32}:{31 if n < 2 else 35}], s{46 if n < 2 else 47} offen {WNT if n < 2 else PNT} lds")
    if ORDP == 'xw': tX = ldx(); ldw((2, 0, 1))
    elif ORDP == 'wx': ldw((2, 0, 1)); tX = ldx()
    else: ldw((2, 0)); tX = ldx(); ldw((1,))
    nW = a.vm_issued
    mmark(a, "p0_iss")
    srd(a, 64, 18, 0, 256)
    srd(a, 8, 20, FL_OFF, FL_SZ)
    if FTOUCH:
        lo, hi = (FL_OFF, FL_OFF + FL_SZ) if FTN == 1 else (KV_OFF if FTN == 3 else ST_OFF, RS_OFF + RS_SZ)
        if FTN == 4: lo, hi = FL_OFF, CS_OFF + CS_SZ
        srd(a, 68, 20, lo, hi - lo)
        a(f"""
        s_lshl_b32 s40, s2, 2
        s_add_u32 s40, s40, s95
        s_lshl_b32 s40, s40, 7
        v_lshlrev_b32 v8, 17, v2
        buffer_load_dword v254, v8, s[68:71], s40 offen {FTOUCH.replace('_', ' ')}
        """)
        nW += 1
    a(f"""
    v_mov_b32 v16, 0
    s_or_b32 s40, s2, s95
    s_cmp_lg_u32 s40, 0
    s_cbranch_scc1 P0_non
    s_or_b32 s40, s98, 1
    s_mov_b64 exec, 1
    v_mov_b32 v8, s40
    buffer_store_dword v8, v16, s[64:67], 0 offen sc0 sc1
    s_mov_b64 exec, -1
P0_non:
    """)
    nR = rt_src(a, True) if RTL == 'p0' else 0
    ldst = rt_src(a, False) if RTL == 'st' else []
    ldln = rt_src(a, False) if RTL == 'ln' else []
    srd(a, 28, 20, XN_OFF, XN_SZ)
    srd(a, 32, 20, W1_OFF, W1_SZ)
    a(f"""
    v_lshrrev_b32 v8, 1, v5
    v_xor_b32 v7, v6, v8
    v_and_b32 v7, 7, v7
    v_lshlrev_b32 v7, 4, v7
    v_lshl_add_u32 v7, v8, 7, v7
    v_and_b32 v8, 1, v5
    v_lshl_add_u32 v7, v8, 3, v7
    v_lshrrev_b32 v10, 3, v0
    v_xor_b32 v18, v0, v10
    v_and_b32 v18, 7, v18
    v_lshlrev_b32 v18, 4, v18
    v_lshl_add_u32 v18, v10, 7, v18
    v_and_b32 v19, 7, v0
    v_lshlrev_b32 v19, 4, v19
    v_lshl_add_u32 v19, v10, 9, v19
    s_lshr_b32 s52, s44, 2
    s_mul_i32 s52, s52, 40960
    s_and_b32 s53, s44, 3
    s_lshl_b32 s53, s53, 7
    s_add_u32 s52, s52, s53
    s_add_u32 s53, s52, 16384
    s_add_u32 s54, s52, 32768
    s_mov_b32 s41, 0xffff0000
    s_and_b32 s45, s95, 1
    s_lshr_b32 s46, s95, 1
    """)
    A0 = [64, 72, 80]; A1 = [68, 76, 84]
    a(f"""
    v_and_b32 v8, 0x13, v5
    v_lshrrev_b32 v9, 1, v5
    v_and_b32 v9, 4, v9
    v_lshlrev_b32 v10, 1, v5
    v_and_b32 v10, 8, v10
    v_or3_b32 v8, v8, v9, v10
    s_lshl_b32 s47, s46, 5
    v_add_u32 v8, s47, v8
    v_min_u32 v8, 39, v8
    v_mul_u32_u24 v8, 240, v8
    s_mul_i32 s47, s45, 40
    s_add_u32 s47, s47, {WL}
    v_add_u32 v21, s47, v8
    v_lshl_add_u32 v20, v4, 4, v21
    v_bfe_u32 v8, v2, 2, 2
    v_lshl_add_u32 v8, v4, 3, v8
    v_mul_u32_u24 v8, 40, v8
    v_bfe_u32 v9, v2, 4, 1
    v_lshl_add_u32 v8, v9, 5, v8
    v_and_b32 v9, 3, v2
    v_lshl_add_u32 v8, v9, 3, v8
    s_mul_i32 s47, s45, 800
    s_add_u32 s47, s47, {PL}
    v_add_u32 v22, s47, v8
    """)
    for sg in range(3):
        a(f"v_mov_b32 v{A1[sg]+2}, 0\nv_mov_b32 v{A1[sg]+3}, 0")
    a(f"""
    v_add_u32 v8, 2, v5
    v_cmp_gt_u32 vcc, 18, v5
    v_cndmask_b32 v8, v8, v5, vcc
    v_bfe_u32 v9, v8, 2, 1
    v_mul_u32_u24 v9, 10, v9
    v_lshrrev_b32 v10, 3, v8
    v_lshl_add_u32 v9, v10, 2, v9
    v_and_b32 v10, 3, v8
    v_add_u32 v9, v9, v10
    v_lshlrev_b32 v10, 3, v4
    v_sub_u32 v9, v9, v10
    v_and_b32 v10, 1, v9
    v_lshlrev_b32 v10, 4, v10
    v_mov_b32 v8, 0x3f80
    v_lshlrev_b32 v10, v10, v8
    v_lshrrev_b32 v9, 1, v9
    """)
    for jj, cmpv in enumerate([0, 1, 2, 3, 8, 9]):
        a(f"v_cmp_eq_u32 vcc, {cmpv}, v9\nv_cndmask_b32 v{112+jj}, 0, v10, vcc")
    a("v_mov_b32 v118, 0\nv_mov_b32 v119, 0\nv_mov_b32 v94, 0\nv_mov_b32 v95, 0")
    a(f"""
    s_mul_i32 s40, s42, 5
    s_lshl_b32 s47, s46, 2
    s_add_u32 s40, s40, s47
    v_add_u32 v12, s40, v4
    v_lshrrev_b32 v11, 1, v12
    v_mul_u32_u24 v14, 768, v11
    v_mul_u32_u24 v11, 3072, v11
    v_and_b32 v12, 1, v12
    v_lshl_add_u32 v11, v12, 9, v11
    v_mul_u32_u24 v12, 384, v12
    v_add_u32 v14, v14, v12
    v_add_u32 v14, {122880 - 3072}, v14
    """)
    for sg, sb in enumerate([40, 0, 20]):
        d = 120 + sg
        a(f"v_add_u32 v8, {sb}, v5\nv_lshrrev_b32 v9, 4, v8")
        if sg == 0:
            a("v_cmp_eq_u32 vcc, 3, v9\nv_cndmask_b32 v15, v11, v14, vcc\nv_mov_b32 v123, 3072\nv_mov_b32 v10, 768\nv_cndmask_b32 v123, v123, v10, vcc")
        a(f"""
        v_lshl_add_u32 v{d}, v9, 10, v{15 if sg == 0 else 11}
        v_bfe_u32 v10, v8, 2, 2
        v_lshl_add_u32 v{d}, v10, 7, v{d}
        v_and_b32 v10, 3, v8
        v_lshl_add_u32 v{d}, v10, 4, v{d}
        """)
    a("v_add_u32 v123, v123, v120")
    a(f"""
    s_mul_i32 s48, s43, 153600
    s_lshl_b32 s49, s45, 6
    s_add_u32 s48, s48, s49
    s_mov_b32 s50, {f32(LOG2E)}
    """)
    srd(a, 24, 20, KV_OFF, KV_SZ)
    a(f"""
    v_mov_b32 v60, 0
    v_mov_b32 v61, 0
    v_mov_b32 v62, 0
    v_mov_b32 v63, 0
    s_mul_i32 s22, s43, 7680
    s_lshl_b32 s23, s42, 9
    s_add_u32 s22, s22, s23
    s_cmp_eq_u32 s42, 15
    s_cselect_b32 s22, 0x10000000, s22
    v_cmp_gt_u32 vcc, 32, v0
    v_mov_b32 v13, 0x10000000
    v_cndmask_b32 v13, v13, v3, vcc
    """)
    mmark(a, "p0_pre")
    a(f"s_waitcnt vmcnt({nW - tX + nR})")
    mmark(a, "p0_x")
    if KVZ == 'x': a(f"buffer_store_dwordx4 v[60:63], v13, s[24:27], s22 offen {SC}")
    F = 36
    for i in range(10):
        a(f"v_lshlrev_b32 v{F+2*i}, 16, v{X+i}")
        a(f"v_and_b32 v{F+2*i+1}, s41, v{X+i}")
    a(f"v_pk_add_f32 v[56:57], {P(F)}, {P(F+2)}")
    a(f"v_pk_add_f32 v[58:59], {P(F+4)}, {P(F+6)}")
    for i in range(4, 10):
        a(f"v_pk_add_f32 {P(56+2*(i%2))}, {P(56+2*(i%2))}, {P(F+2*i)}")
    a("v_pk_add_f32 v[56:57], v[56:57], v[58:59]")
    a("v_add_f32 v56, v56, v57")
    reduce32(a, 56, 57)
    a(f"v_mul_f32 v56, {f32(1.0/640)}, v56")
    for i in range(10):
        a(f"v_pk_add_f32 {P(F+2*i)}, {P(F+2*i)}, v[56:57] op_sel_hi:[1,0] neg_lo:[0,1] neg_hi:[0,1]")
    a(f"v_pk_mul_f32 v[58:59], {P(F)}, {P(F)}")
    for i in range(1, 10):
        a(f"v_pk_fma_f32 v[58:59], {P(F+2*i)}, {P(F+2*i)}, v[58:59]")
    a("v_add_f32 v58, v58, v59")
    reduce32(a, 58, 59)
    a(f"v_mov_b32 v59, {f32(1e-5)}")
    a(f"v_fmac_f32 v59, {f32(1.0/640)}, v58")
    a("v_rsq_f32 v58, v59")
    for i in range(10):
        a(f"v_pk_mul_f32 {P(F+2*i)}, {P(F+2*i)}, v[58:59] op_sel_hi:[1,0]")
    for i in range(10):
        a(f"v_cvt_pk_bf16_f32 v{X+i}, v{F+2*i}, v{F+2*i+1}")
    for i in range(5):
        a(f"ds_write_b64 v7, v[{X+2*i}:{X+1+2*i}] offset:{2048*i}")
    if RTL == 'ln':
        for x in ldln: a("\n".join(x))
        nR = len(ldln)
    mmark(a, "p0_ln")
    a(f"s_waitcnt vmcnt({(KVZ == 'x') + nR}) lgkmcnt(0)\ns_barrier")
    mmark(a, "p0_w")
    a.reset_counters()
    a("s_lshl_b32 s23, s95, 12\nbuffer_load_dword v17, v16, s[64:67], s23 offen sc1")
    if KVZ != 'x': a(f"buffer_store_dwordx4 v[60:63], v13, s[24:27], s22 offen {SC}")
    b = Asm()
    b(f"""
    s_sub_u32 s40, s2, {PFW2}
    s_cmp_ge_u32 s40, 8
    s_cbranch_scc1 P0_nopf2
    v_lshlrev_b32 v8, 7, v0
    v_add_u32 v8, {PF1}, v8
    v_mov_b32 v11, s101
    v_cmp_gt_u32 vcc, CODE_END-P0_pc, v8
    s_and_saveexec_b64 s[46:47], vcc
    s_cbranch_execz P0_pf1
    v_add_co_u32 v10, vcc, s100, v8
    v_addc_co_u32 v11, vcc, 0, v11, vcc
    global_load_dword v255, v[10:11], off
P0_pf1:
    s_mov_b64 exec, s[46:47]
P0_nopf2:
    """)
    if PFAT == 'w': a.splice(b)
    a("ds_read_b64_tr_b16 v[88:89], v22\nds_read_b64_tr_b16 v[90:91], v22 offset:160")
    tb = a.ds("ds_read_b64_tr_b16 v[92:93], v22 offset:640")
    tA = []
    for sg in range(3):
        a(f"ds_read2_b64 v[{A0[sg]}:{A0[sg]+3}], v20 offset0:{10*sg} offset1:{10*sg+1}")
        tA.append(a.ds(f"ds_read_b64 v[{A1[sg]}:{A1[sg]+1}], v21 offset:{80*sg+32}"))
    tx = [a.ds(f"ds_read_b128 v[{36+4*n}:{39+4*n}], v18 offset:{4096*n}") for n in range(3)]
    a(f"""
    s_cmp_ge_u32 s95, 2
    s_cselect_b32 s54, 0x10000000, s54
    s_cselect_b32 s49, 0x10000000, s48
    s_cselect_b32 s40, 0, 0xfffff
    """)
    a.wait(lg=tb)
    a("s_mov_b32 exec_lo, 0\nv_mov_b32 v92, 0\nv_mov_b32 v93, 0\ns_mov_b32 exec_lo, -1")
    Dr = [128, 144, 160]
    for sg in range(3):
        a.wait(lg=tA[sg])
        b0, b1 = (88, 92) if sg < 2 else (112, 116)
        a(f"v_mfma_f32_32x32x16_bf16 v[{Dr[sg]}:{Dr[sg]+15}], v[{A0[sg]}:{A0[sg]+3}], v[{b0}:{b0+3}], 0")
        a(f"v_mfma_f32_32x32x16_bf16 v[{Dr[sg]}:{Dr[sg]+15}], v[{A1[sg]}:{A1[sg]+3}], v[{b1}:{b1+3}], v[{Dr[sg]}:{Dr[sg]+15}]")
    for n in range(3):
        a.wait(lg=tx[n])
        a(f"buffer_store_dwordx4 v[{36+4*n}:{39+4*n}], v19, s[28:31], s{52+n} offen {SC}")
    a("s_mov_b32 exec_lo, 0xfffff\ns_mov_b32 exec_hi, s40")
    for sg in range(3):
        d = Dr[sg]
        if sg < 2:
            for r in range(0, 16, 2):
                a(f"v_pk_mul_f32 {P(d+r)}, {P(d+r)}, s[50:51] op_sel_hi:[1,0]")
        o = 64 + 8 * sg
        for r in range(8):
            a(f"v_cvt_pk_bf16_f32 v{o+r}, v{d+2*r}, v{d+2*r+1}")
        a(f"buffer_store_dwordx4 v[{o}:{o+3}], v{120+sg}, s[32:35], s48 offen {SC}")
        a(f"buffer_store_dwordx4 v[{o+4}:{o+7}], v{120+sg}, s[32:35], s49 offen offset:3072 {SC}" if sg else f"buffer_store_dwordx4 v[{o+4}:{o+7}], v123, s[32:35], s49 offen {SC}")
    a(f"""
    s_mov_b64 exec, -1
    """)
    mmark(a, "p0_st")
    for x in ldst: a("\n".join(x))
    a(f"""
    s_lshl_b32 s40, s44, 4
    s_add_u32 s40, s40, {F1A_O}
    s_lshl_b32 s41, s43, 8
    s_add_u32 s41, s41, {F1B_O}
    s_lshl_b32 s50, s42, 4
    s_add_u32 s50, s50, s41
    v_mov_b32 v10, s50
    v_writelane_b32 v10, s40, 0
    v_lshlrev_b32 v10, {FSH}, v10
    v_add_u32 v10, {FBIAS}, v10
    s_lshl_b32 s40, s42, 8
    s_lshl_b32 s50, s95, 6
    s_add_u32 s40, s40, s50
    s_add_u32 s40, s40, {F1A_O}
    v_and_b32 v12, 3, v2
    v_lshl_add_u32 v12, v12, 4, s40
    v_add_u32 v13, s41, v3
    v_cmp_gt_u32 vcc, 16, v2
    v_cndmask_b32 v12, v12, v13, vcc
    s_waitcnt vmcnt({len(ldst)})
    s_cmp_lg_u32 s95, 0
    s_cbranch_scc1 P0_oth
    s_mov_b32 s92, 0
P0_nspin:
    v_readfirstlane_b32 s93, v17
    s_add_u32 s92, s92, 1
    s_nop 2
    s_cmp_lg_u32 s93, 0
    s_cbranch_scc1 P0_ngo
    s_cmp_gt_u32 s92, 400000
    s_cbranch_scc1 P0_ngo
    buffer_load_dword v17, v16, s[64:67], 0 offen sc1
    s_waitcnt vmcnt(0)
    s_branch P0_nspin
P0_ngo:
    v_mov_b32 v16, {LDS_NONCE}
    ds_write_b32 v16, v17
    s_waitcnt lgkmcnt(0)
    s_barrier
    s_mov_b64 exec, 3
    buffer_store_dword v17, v10, s[8:11], 0 offen sc0 sc1
    s_mov_b64 exec, -1
    s_branch P0_sig
P0_oth:
    v_mov_b32 v16, {LDS_NONCE}
    s_barrier
    ds_read_b32 v17, v16
    s_waitcnt lgkmcnt(0)
    v_readfirstlane_b32 s93, v17
P0_sig:
    """)
    mmark(a, "p0_sig")
    if PFAT == 'sig': a.splice(b)
    a.reset_counters()


def rt_setup(a):
    ld0 = []
    if RTL == 'loop': ld0 = rt_src(a, False)
    if RTL == 'win': rt_src(a, True)
    srd(a, 12, 20, W3_OFF, W3_SZ)
    srd(a, 32, 20, CS_OFF, CS_SZ)
    srd(a, 16, 20, WO_OFF, W4_OFF + W4_SZ - WO_OFF)
    a(f"""
    v_lshrrev_b32 v6, 4, v2
    v_bfe_u32 v7, v2, 2, 2
    v_lshl_add_u32 v7, v6, 3, v7
    v_lshlrev_b32 v7, 7, v7
    v_and_b32 v8, 3, v2
    v_lshl_add_u32 v7, v8, 3, v7
    s_lshl_b32 s45, s95, 5
    s_add_u32 s45, s45, {LB3}
    v_add_u32 v248, s45, v7
    s_add_u32 s45, s51, {LB4}
    v_add_u32 v249, s45, v7
    v_bfe_u32 v9, v2, 3, 1
    v_and_b32 v10, 7, v2
    v_mul_u32_u24 v238, 20480, v9
    v_lshlrev_b32 v239, 9, v9
    v_lshl_add_u32 v239, v10, 4, v239
    v_lshl_add_u32 v239, v6, 26, v239
    v_lshl_add_u32 v238, v10, 4, v238
    v_lshl_add_u32 v238, v4, 9, v238
    v_xor_b32 v9, s56, v6
    v_and_b32 v9, 1, v9
    v_lshl_add_u32 v238, v9, 7, v238
    s_lshl_b32 s45, s57, 3
    s_lshl_b32 s46, s95, 1
    s_add_u32 s45, s45, s46
    s_mul_i32 s52, s45, 20480
    s_mul_i32 s47, s58, 5120
    s_add_u32 s52, s52, s47
    s_lshl_b32 s47, s56, 8
    s_add_u32 s52, s52, s47
    s_lshl_b32 s45, s45, 9
    s_add_u32 s45, s45, s47
    s_lshr_b32 s47, s58, 1
    s_xor_b32 s47, s47, s56
    s_lshl_b32 s47, s47, 7
    s_add_u32 s45, s45, s47
    s_and_b32 s47, s58, 1
    s_lshl_b32 s47, s47, 3
    s_add_u32 s58, s45, s47
    s_cmp_ge_u32 s2, 216
    s_cselect_b32 s52, 0x10000000, s52
    s_cselect_b32 s58, 0x10000000, s58
    s_add_u32 s53, s52, 4096
    v_mov_b32 v240, 0x3f803f80
    v_mov_b32 v241, 0x3f803f80
    v_mov_b32 v242, 0x3f803f80
    v_mov_b32 v243, 0x3f803f80
    """)
    ld = ld0
    rd = []
    for ss in range(5):
        rd.append(f"ds_read_b64_tr_b16 a[{160+4*ss}:{161+4*ss}], v248 offset:{4096*ss}")
        rd.append(f"ds_read_b64_tr_b16 a[{162+4*ss}:{163+4*ss}], v248 offset:{4096*ss+512}")
    for f in range(4):
        rd.append(f"ds_read_b64_tr_b16 a[{180+4*f}:{181+4*f}], v249 offset:{32*f}")
        rd.append(f"ds_read_b64_tr_b16 a[{182+4*f}:{183+4*f}], v249 offset:{32*f+512}")
    cs = [f"v_mfma_f32_16x16x32_bf16 v[244:247], v[240:243], a[{160+4*ss}:{163+4*ss}], " + ("0" if ss == 0 else "v[244:247]") for ss in range(5)]
    cs2 = ["v_cvt_pk_bf16_f32 v236, v244, v244", "v_lshlrev_b32 v245, 16, v236", "v_sub_f32 v245, v244, v245", "v_cvt_pk_bf16_f32 v237, v245, v245"]
    st = []
    for ss in range(5):
        so, off = ("s52", 1024 * ss) if ss < 4 else ("s53", 0)
        st.append((f"buffer_store_dwordx4 a[{160+4*ss}:{163+4*ss}], v238, s[12:15], {so} offen offset:{off} {SC}", None))
    st.append((f"buffer_store_dwordx2 v[236:237], v239, s[32:35], s58 offen {SC}", None))
    for f in range(4):
        st.append((f"buffer_store_dwordx4 a[{180+4*f}:{183+4*f}], v3, s[16:19], s59 offen {SC}", "s_add_u32 s59, s59, s96"))
    a("""
    s_cmp_eq_u32 s95, 3
    s_cselect_b32 s97, s59, 0x10000000
    s_cselect_b32 s59, 0x10000000, s59
    """)
    se = [(f"buffer_store_dwordx4 a[{180+4*f}:{183+4*f}], v3, s[16:19], s97 offen {SC}", "s_add_u32 s97, s97, s96") for f in range(4)]
    return ld, rd, cs, cs2, st, se
```

```python
from common import *
from asmlib import Ins, need
import common, math, p0, p0b, re

GRID = 256
LDS = 160 * 1024
C0 = -2.0 * math.sqrt(2.0 / math.pi) * LOG2E
C1 = C0 * 0.044715
SC = "sc1"
POLL_MAX = 400000
P1_PACE = 12
import os
F5I = int(os.environ.get('F5I', 8)); PQ2 = int(os.environ.get('PQ2', 12)); P3LIM = int(os.environ.get('P3LIM', 20)); W4S3 = int(os.environ.get('W4S3', 12)); RQ0 = int(os.environ.get('RQ0', 16)); P1LIM = int(os.environ.get('P1LIM', 24)); SIG2 = int(os.environ.get('SIG2', 39)); OUTF = os.environ.get('OUTF', 'nt').replace('_', ' '); MAP1 = os.environ.get('MAP1', 'x'); MAP2 = os.environ.get('MAP2', 'x'); MAP4 = os.environ.get('MAP4', 'x'); MAP3 = os.environ.get('MAP3', 'x'); NT4 = os.environ.get('NT4', ''); NT3 = os.environ.get('NT3', ''); PACE3 = eval(os.environ.get('PACE3', '(1,3,5,7)')); NPK = int(os.environ.get('NPK', 3)); ACKD = int(os.environ.get('ACKD', 36)); AFT = int(os.environ.get('AFT', 0)); HF = int(os.environ.get('HF', 0)); P2A = int(os.environ.get('P2A', 0)); PRET = int(os.environ.get('PRET', 0)); ACKM = int(os.environ.get('ACKM', 24)); BURST = int(os.environ.get('BURST', 6)); FL4 = int(os.environ.get('FL4', 6)); WOP = int(os.environ.get('WOP', 8)); LOC = os.environ.get('LOC'); LOCT = int(os.environ.get('LOCT', 4)); TOUCH3 = int(os.environ.get('TOUCH3', 0)); MID2 = int(os.environ.get('MID2', 4)); CHK2 = int(os.environ.get('CHK2', 16)); LWB = int(os.environ.get('LWB', 8)); SFL = int(os.environ.get('SFL', 1)); BURST0 = int(os.environ.get('BURST0', 0)); LIM4 = int(os.environ.get('LIM4', 40)); PT4 = eval(os.environ.get('PT4', '(0,2)')); SFM = int(os.environ.get('SFM', 1)); ROT4 = int(os.environ.get('ROT4', 0)); ONE2A = int(os.environ.get('ONE2A', 0)); PSL = int(os.environ.get('PSL', 0)); RTK = int(os.environ.get('RTK', 0)); SEG = int(os.environ.get('SEG', 34)); F6S = int(os.environ.get('F6S', 28)); WO2 = int(os.environ.get('WO2', 0)); F6E = int(os.environ.get('F6E', 0)); MID = int(os.environ.get('MID', 4)); CHK1 = int(os.environ.get('CHK1', 18)); LWA = int(os.environ.get('LWA', 0)); CHK = int(os.environ.get('CHK', 10)); TOUCH = int(os.environ.get('TOUCH', 0)); FP = int(os.environ.get('FP', 999)); QS = int(os.environ.get('QS', 40)); CK0 = int(os.environ.get('CK0', 16)); CK1 = int(os.environ.get('CK1', 38)); HH1 = int(os.environ.get('HH1', 16)); SIGI = int(os.environ.get('SIGI', 5)); W3EARLY = int(os.environ.get('W3EARLY', 10)); LAG = int(os.environ.get('LAG', 12)); EARLY = int(os.environ.get('EARLY', 3)); WO1 = int(os.environ.get('WO1', 25)); RTSG = int(os.environ.get('RTSG', 36)); RTS0 = int(os.environ.get('RTS0', 99)); RTSN = int(os.environ.get('RTSN', 3))

class Paced:
    def __init__(self, a, L, n, gate=None):
        self.a, self.L, self.n, self.c, self.gate = a, L, n, 0, gate
    def __call__(self, text):
        for line in text.strip().split("\n"):
            if not line.strip(): continue
            self.a(line)
            self.c += 1
            if self.c % self.n == 0: self.L.paced(self.gate)

def poll(a, name, voff, soff, tmp):
    if FSH:
        a(f"v_add_u32 v{tmp}, {soff}, v{voff}\nv_lshlrev_b32 v{tmp}, {FSH}, v{tmp}\nv_add_u32 v1, {FBIAS}, v{tmp}")
        voff, soff = 1, "0"
    a(f"""
    s_mov_b32 s92, 0
{name}:
    buffer_load_dword v{tmp}, v{voff}, s[8:11], {soff} offen {PFL}
    s_add_u32 s92, s92, 1
    s_cmp_gt_u32 s92, {POLL_MAX}
    s_cbranch_scc1 {name}_go
    s_waitcnt vmcnt(0)
    v_cmp_ne_u32 vcc, s93, v{tmp}
    s_nop 4
    {"s_cbranch_vccz %s_go" % name if PSL else ""}
    {"s_sleep %d" % PSL if PSL else ""}
    {"s_branch" if PSL else "s_cbranch_vccnz"} {name}
{name}_go:
    s_waitcnt vmcnt(0)
    """)
    a.vm_done = a.vm_issued

def signal(a, soff, tmp, fl='sc0 sc1', scale=True):
    if FSH and scale: a(f"s_lshl_b32 {soff}, {soff}, {FSH}\ns_add_u32 {soff}, {soff}, {FBIAS}")
    a(f"""
    s_mov_b64 exec, 1
    v_mov_b32 v{tmp}, s93
    v_mov_b32 v{tmp+1}, 0
    buffer_store_dword v{tmp}, v{tmp+1}, s[8:11], {soff} offen {fl}
    s_mov_b64 exec, -1
    """)

def softmax_pair(a, P, E, O, tmp, inter=False):
    mx, mn = tmp, tmp + 2
    a(f"v_max3_f32 v{mx}, v{P}, v{P+1}, v{P+2}")
    a(f"v_min3_f32 v{mn}, v{P}, v{P+1}, v{P+2}")
    for i in range(3, 19, 2):
        a(f"v_max3_f32 v{mx}, v{mx}, v{P+i}, v{P+i+1}")
        a(f"v_min3_f32 v{mn}, v{mn}, v{P+i}, v{P+i+1}")
    a(f"v_max_f32 v{mx}, v{mx}, v{P+19}")
    a(f"v_min_f32 v{mn}, v{mn}, v{P+19}")
    for i in range(0, 20, 2):
        a(f"v_pk_add_f32 v[{E+i}:{E+i+1}], v[{P+i}:{P+i+1}], v[{mx}:{mx+1}] op_sel_hi:[1,0] neg_lo:[0,1] neg_hi:[0,1]")
        a(f"v_pk_add_f32 v[{E+20+i}:{E+21+i}], v[{P+i}:{P+i+1}], v[{mn}:{mn+1}] op_sel_hi:[1,0] neg_lo:[1,0] neg_hi:[1,0]")
    for i in range(40):
        a(f"v_exp_f32 v{E+i}, v{E+i}")
    sp, sn = tmp, tmp + 2
    a(f"v_pk_add_f32 v[{sp}:{sp+1}], v[{E}:{E+1}], v[{E+2}:{E+3}]")
    a(f"v_pk_add_f32 v[{sn}:{sn+1}], v[{E+20}:{E+21}], v[{E+22}:{E+23}]")
    for i in range(4, 20, 2):
        a(f"v_pk_add_f32 v[{sp}:{sp+1}], v[{sp}:{sp+1}], v[{E+i}:{E+i+1}]")
        a(f"v_pk_add_f32 v[{sn}:{sn+1}], v[{sn}:{sn+1}], v[{E+20+i}:{E+21+i}]")
    a(f"v_add_f32 v{sp}, v{sp}, v{sp+1}")
    a(f"v_add_f32 v{sn}, v{sn}, v{sn+1}")
    a(f"v_rcp_f32 v{sp}, v{sp}")
    a(f"v_rcp_f32 v{sn}, v{sn}")
    if inter:
        for q in range(5):
            for i in range(8 * q, 8 * q + 8, 2):
                sc = sp if i < 20 else sn
                a(f"v_pk_mul_f32 v[{E+i}:{E+i+1}], v[{E+i}:{E+i+1}], v[{sc}:{sc+1}] op_sel_hi:[1,0]")
            for i in range(4 * q, 4 * q + 4):
                a(f"v_cvt_pk_bf16_f32 v{O+i}, v{E+2*i}, v{E+2*i+1}")
        return
    for i in range(0, 20, 2):
        a(f"v_pk_mul_f32 v[{E+i}:{E+i+1}], v[{E+i}:{E+i+1}], v[{sp}:{sp+1}] op_sel_hi:[1,0]")
        a(f"v_pk_mul_f32 v[{E+20+i}:{E+21+i}], v[{E+20+i}:{E+21+i}], v[{sn}:{sn+1}] op_sel_hi:[1,0]")
    for i in range(20):
        a(f"v_cvt_pk_bf16_f32 v{O+i}, v{E+2*i}, v{E+2*i+1}")

def map_p1(a, rb, hp, t, kind='x'):
    if kind == 'h4':
        map_p3(a, rb, hp, t, 'x')
        return
    if kind == 'h2':
        map_p3(a, hp, rb, t, 'row')
        return
    a(f"""
    s_bfe_u32 s{rb}, s2, 0x20001
    s_lshl_b32 s{rb}, s{rb}, 2
    s_bfe_u32 s{t}, s2, 0x20003
    s_add_u32 s{rb}, s{rb}, s{t}
    s_and_b32 s{hp}, s2, 1
    s_lshl_b32 s{hp}, s{hp}, 3
    s_lshr_b32 s{t}, s2, 5
    s_add_u32 s{hp}, s{hp}, s{t}
    """)
def map_p2(a, tb, nb, t):
    a(f"""
    s_and_b32 s{tb}, s2, 7
    s_lshl_b32 s{tb}, s{tb}, 3
    s_bfe_u32 s{t}, s2, 0x30003
    s_add_u32 s{tb}, s{tb}, s{t}
    s_lshr_b32 s{nb}, s2, 6
    """)
def map_p3(a, rb, cb, t, kind=None):
    kind = kind or MAP3
    if kind == 'row':
        a(f"""
        s_and_b32 s{rb}, s2, 7
        s_lshl_b32 s{rb}, s{rb}, 1
        s_bfe_u32 s{t}, s2, 0x10003
        s_add_u32 s{rb}, s{rb}, s{t}
        s_lshr_b32 s{cb}, s2, 4
        """)
        return
    if kind == 'mid':
        map_p1(a, rb, cb, t)
        return
    a(f"""
    s_bfe_u32 s{rb}, s2, 0x10002
    s_lshl_b32 s{rb}, s{rb}, 3
    s_bfe_u32 s{t}, s2, 0x30003
    s_add_u32 s{rb}, s{rb}, s{t}
    s_and_b32 s{cb}, s2, 3
    s_lshl_b32 s{cb}, s{cb}, 2
    s_lshr_b32 s{t}, s2, 6
    s_add_u32 s{cb}, s{cb}, s{t}
    """)
def map_p4(a, rb, nb, t, kind=None):
    if (kind or MAP4) == 'row':
        a(f"""
        s_and_b32 s{rb}, s2, 7
        s_lshl_b32 s{rb}, s{rb}, 2
        s_bfe_u32 s{t}, s2, 0x20003
        s_add_u32 s{rb}, s{rb}, s{t}
        s_lshr_b32 s{nb}, s2, 5
        """)
        return
    a(f"""
    s_bfe_u32 s{rb}, s2, 0x20001
    s_lshl_b32 s{rb}, s{rb}, 3
    s_bfe_u32 s{t}, s2, 0x30003
    s_add_u32 s{rb}, s{rb}, s{t}
    s_and_b32 s{nb}, s2, 1
    s_lshl_b32 s{nb}, s{nb}, 2
    s_lshr_b32 s{t}, s2, 6
    s_add_u32 s{nb}, s{nb}, s{t}
    """)

def w3_dma(L, T, gate=None):
    reg = [81920, 122880, 0, 40960, 81920, 122880, 0][T]
    sr = 12 if T < 2 else (16 if T < 6 else 68)
    for c in range(10):
        grp = 0 if c < 4 else (4 if c < 8 else 8)
        L.add(f"buffer_load_dwordx4 v3, s[{sr}:{sr+3}], m0 offen offset:{1024*(c-grp)} {SC} lds", gate=gate,
              pre=f"s_add_u32 m0, s3, {reg + 1024*c}" if c == grp else None, tag=('W3', T) if c == 9 else None)

def check_flags(a, name, regs, voff, soff, wide):
    def test(x):
        if wide:
            x(f"v_xor_b32 v{regs}, s93, v{regs}\nv_xor_b32 v{regs+1}, s93, v{regs+1}\nv_xor_b32 v{regs+2}, s93, v{regs+2}\nv_xor_b32 v{regs+3}, s93, v{regs+3}")
            x(f"v_or3_b32 v{regs}, v{regs}, v{regs+1}, v{regs+2}\nv_or_b32 v{regs}, v{regs}, v{regs+3}\nv_cmp_ne_u32 vcc, 0, v{regs}")
        else:
            x(f"v_cmp_ne_u32 vcc, s93, v{regs}")
    test(a)
    a(f"s_mov_b32 s92, 0\ns_nop 3\ns_cbranch_vccz {name}_ok")
    b = Asm()
    b(f"{name}:")
    b(f"buffer_load_dwordx4 v[{regs}:{regs+3}], v{voff}, s[8:11], {soff} offen sc1" if wide else f"buffer_load_dword v{regs}, v{voff}, s[8:11], {soff} offen sc1")
    b(f"s_add_u32 s92, s92, 1\ns_waitcnt vmcnt(0)\ns_cmp_gt_u32 s92, {POLL_MAX}\ns_cbranch_scc1 {name}_ok")
    test(b)
    b(f"s_nop 4\ns_cbranch_vccnz {name}")
    a.splice(b)
    a(f"{name}_ok:")

def sflag_load(a, off):
    a(f"s_add_u32 s62, s63, {off}\ns_buffer_load_dwordx8 s[40:47], s[8:11], s62 glc")
def sflag_check(a, name, regs, voff, soff):
    a.wait_all_lg()
    a(f"""
    s_and_b64 s[60:61], s[40:41], s[42:43]
    s_or_b64 s[40:41], s[40:41], s[42:43]
    s_and_b64 s[42:43], s[44:45], s[46:47]
    s_or_b64 s[44:45], s[44:45], s[46:47]
    s_and_b64 s[60:61], s[60:61], s[42:43]
    s_or_b64 s[40:41], s[40:41], s[44:45]
    s_and_b32 s60, s60, s61
    s_or_b32 s61, s40, s41
    s_mov_b32 s92, s93
    s_cmp_eq_u64 s[60:61], s[92:93]
    s_cbranch_scc1 {name}_ok
    """)
    b = Asm()
    b(f"s_mov_b32 s92, 0\n{name}:")
    b(f"buffer_load_dword v{regs}, v{voff}, s[8:11], {soff} offen sc1")
    b(f"s_add_u32 s92, s92, 1\ns_waitcnt vmcnt(0)\ns_cmp_gt_u32 s92, {POLL_MAX}\ns_cbranch_scc1 {name}_ok")
    b(f"v_cmp_ne_u32 vcc, s93, v{regs}\ns_nop 4\ns_cbranch_vccnz {name}")
    a.splice(b)
    a(f"{name}_ok:")

def gen_mega():
    LS = SC if LOC is None else LOC.strip('_'); LF = 'sc0 sc1' if LOC is None else ''
    a = Asm()
    a(f"""
    s_memrealtime s[98:99]
    s_load_dwordx2 s[20:21], s[0:1], 80
    s_load_dwordx2 s[4:5], s[0:1], 0
    s_load_dwordx4 s[12:15], s[0:1], 8
    s_load_dwordx2 s[16:17], s[0:1], 24
    s_load_dwordx2 s[6:7], s[0:1], 64
    s_load_dwordx2 s[18:19], s[0:1], 72
    s_load_dwordx4 s[56:59], s[0:1], 40
    s_load_dwordx2 s[62:63], s[0:1], 56
    v_lshrrev_b32 v1, 6, v0
    v_and_b32 v2, 63, v0
    v_readfirstlane_b32 s95, v1
    s_cmp_ge_u32 s2, {GRID}
    s_cbranch_scc1 M_exit
    """)
    mstamp_begin(a)
    a(f"""
    v_lshlrev_b32 v3, 4, v2
    v_lshrrev_b32 v4, 5, v2
    v_and_b32 v5, 31, v2
    s_mul_i32 s3, s95, 10240
    """)
    map_p1(a, 42, 43, 40, MAP1)
    a("; ==== P0: first LayerNorm (8 rows per workgroup), w_phi folded into wq/wk, weights re-laid out as MFMA fragments in d_ws")
    p0b.p0(a, int(os.environ.get('NPF', 2)))
    rt_ld, rt_rd, rt_cs, rt_cs2, rt_st, rt_se = p0b.rt_setup(a)
    assert not rt_ld
    RTW = p0b.RTL in ('p0', 'ln') or RTK
    if RTW and not RTK:
        tt_ = [a.ds(x_) for x_ in rt_rd]; rt_rd = []
        for n_ in range(5):
            a.wait(lg=tt_[2 * n_ + 1]); a(rt_cs[n_]); a(rt_st[n_][0])
        for n_ in range(4):
            a.wait(lg=tt_[11 + 2 * n_]); a(rt_st[6 + n_][0]); a(rt_st[6 + n_][1]); a(rt_se[n_][0]); a(rt_se[n_][1])
        for x_ in rt_cs2: a(x_)
        a(rt_st[5][0])
        rt_cs = []; rt_cs2 = []; rt_st = []; rt_se = []
        mmark(a, "p0_rt")
    a("""; ==== P1: k/v/q projection (LayerNorm rows x folded weights), dual softmax (true max / min subtracted),
;      per-workgroup phi_k^T [v|1] partial added into the kv accumulator, q tile deferred behind the adds""")
    EB, XL, QB = 0, 61440, 122880
    srd(a, 64, 20, WO_OFF, WO_SZ)
    srd(a, 36, 20, KV_OFF, KV_SZ)
    srd(a, 68, 4, 0, 2621440)
    map_p4(a, 100, 101, 40, MAP2)
    a(f"""
    s_lshl_b32 s44, s42, 2
    s_add_u32 s44, s44, s95
    s_mul_i32 s45, s44, 40960
    s_mul_i32 s46, s43, 153600
    s_mul_i32 s47, s95, 3072
    s_lshl_b32 s48, s95, 13
    s_mul_i32 s40, s101, 5
    s_lshr_b32 s40, s40, 2
    s_mul_i32 s40, s40, 20
    s_mul_i32 s41, s95, 5
    s_add_u32 s40, s40, s41
    s_lshl_b32 s40, s40, 4
    s_add_u32 s40, s40, {F6_O}
    v_and_b32 v62, 7, v2
    v_min_u32 v62, 4, v62
    v_lshl_add_u32 v62, v62, 4, s40
    v_bfe_u32 v63, v2, 3, 1
    v_mul_u32_u24 v63, 320, v63
    v_add_u32 v62, v62, v63
    s_mul_i32 s22, s101, 100
    s_add_u32 s22, s22, s41
    s_lshl_b32 s22, s22, 10
    v_lshlrev_b32 v6, 7, v4
    v_sub_u32 v6, v3, v6
    v_add_u32 v6, {QB}, v6
    v_add_u32 v7, {20*3072}, v3
    s_lshl_b32 s40, s95, 5
    v_add_u32 v11, s40, v5
    v_mul_u32_u24 v11, 272, v11
    v_lshl_add_u32 v11, v4, 7, v11
    v_bfe_u32 v56, v2, 2, 2
    v_lshlrev_b32 v56, 2, v56
    v_lshl_add_u32 v56, v4, 1, v56
    v_mul_u32_u24 v56, 272, v56
    v_bfe_u32 v57, v2, 4, 1
    v_lshl_add_u32 v56, v57, 5, v56
    v_and_b32 v57, 3, v2
    v_lshl_add_u32 v56, v57, 3, v56
    s_lshr_b32 s51, s95, 1
    s_and_b32 s55, s95, 1
    s_lshl_b32 s40, s51, 7
    v_add_u32 v56, s40, v56
    s_mul_i32 s40, s55, 40
    v_add_u32 v57, s40, v56
    s_lshl_b32 s40, s95, 12
    s_add_u32 s40, s40, 40960
    v_mul_u32_u24 v58, 384, v4
    v_lshl_add_u32 v58, v5, 4, v58
    v_add_u32 v58, s40, v58
    v_lshl_add_u32 v59, v2, 2, s40
    v_lshlrev_b32 v60, 2, v2
    s_lshl_b32 s54, s43, 1
    s_add_u32 s54, s54, s51
    s_mul_i32 s54, s54, 3840
    s_mul_i32 s55, s55, 1920
    s_add_u32 s54, s54, s55
    s_lshl_b32 s49, s43, 4
    s_add_u32 s49, s49, s42
    s_lshl_b32 s49, s49, 4
    s_add_u32 s49, s49, {F2A_O}
    s_lshl_b32 s49, s49, {FSH}
    s_add_u32 s49, s49, {FBIAS}
    s_lshl_b32 s50, s2, 4
    s_add_u32 s50, s50, {F6_O}
    s_cmp_eq_u32 s95, 3
    s_cselect_b32 s50, s50, 0x1000000
    s_cmp_eq_u32 s95, 0
    s_cselect_b32 s49, s49, {'0x1000000' if (F6E or RTK) else 's50'}
    v_mov_b32 v61, 0x1000000
    v_writelane_b32 v61, s49, 0
    v_mov_b32 v19, s93
    s_lshl_b32 s40, s2, 4
    s_add_u32 s40, s40, {F5_O}
    s_cmp_eq_u32 s95, 2
    s_cselect_b32 s40, s40, {'0x1000000' if RTK else 's50'}
    v_mov_b32 v10, 0x1000000
    v_writelane_b32 v10, s40, 0
    s_mov_b32 s57, s50
    s_lshl_b32 s56, s100, 2
    s_add_u32 s56, s56, s95
    s_mul_i32 s56, s56, {16*1280}
    s_mul_i32 s41, s101, 160
    s_add_u32 s56, s56, s41
    s_movk_i32 s41, 6554
    """)
    for n in range(3):
        a(f"""
        v_add_u32 v8, {64*n}, v2
        v_min_u32 v8, 159, v8
        v_mul_u32_u24 v9, s41, v8
        v_lshrrev_b32 v9, 16, v9
        v_mul_u32_u24 v9, {1280-160}, v9
        v_lshl_add_u32 v{16+n}, v8, 4, v9
        """)
    if PRET:
        map_p3(a, 60, 61, 40)
        a(f"""
        s_lshl_b32 s40, s60, 2
        s_add_u32 s40, s40, s95
        s_mul_i32 s40, s40, 114688
        s_lshr_b32 s41, s61, 2
        s_mul_i32 s41, s41, 14336
        s_add_u32 s40, s40, s41
        s_and_b32 s41, s61, 3
        s_lshl_b32 s41, s41, 9
        s_add_u32 s40, s40, s41
        s_add_u32 s40, s40, {HH_OFF}
        v_and_b32 v20, 3, v2
        v_lshlrev_b32 v20, 7, v20
        v_bfe_u32 v21, v2, 2, 3
        v_min_u32 v21, 6, v21
        v_lshl_add_u32 v20, v21, 11, v20
        v_mul_u32_u24 v21, 57344, v4
        v_add3_u32 v20, v20, v21, s40
        s_lshl_b32 s40, s100, 1
        s_lshr_b32 s41, s95, 1
        s_add_u32 s40, s40, s41
        s_mul_i32 s40, s40, 40960
        s_mul_i32 s41, s101, 5120
        s_add_u32 s40, s40, s41
        s_and_b32 s41, s95, 1
        s_lshl_b32 s41, s41, 8
        s_add_u32 s40, s40, s41
        s_add_u32 s40, s40, {H_OFF}
        v_lshrrev_b32 v21, 1, v2
        v_min_u32 v21, 9, v21
        v_lshlrev_b32 v21, 9, v21
        v_and_b32 v22, 1, v2
        v_lshl_add_u32 v21, v22, 7, v21
        v_add_u32 v21, s40, v21
        """)
    srd(a, 24, 20, XN_OFF, XN_SZ)
    srd_dyn(a, 28, 20, W1_OFF, 46, 153600)
    mspill(a)
    poll(a, "M_poll1", 12, "0", 9)
    mmark(a, "p1_sync")
    L = Loads(a, P1LIM)
    for n in range(10):
        g = 11 if n >= 9 else None
        L.add(f"buffer_load_dwordx4 a[{16*n}:{16*n+3}], v3, s[24:27], s45 offen {SC}", pre=f"s_add_u32 m0, s47, {12288*n}", gate=g)
        for c in range(3):
            L.add(f"buffer_load_dwordx4 v3, s[28:31], m0 offen offset:{1024*c} {SC} lds", gate=g)
        for c in range(1, 4):
            L.add(f"buffer_load_dwordx4 a[{16*n+4*c}:{16*n+4*c+3}], v3, s[24:27], s45 offen offset:{1024*c} {SC}",
                  tag=n if c == 3 else None, post="s_add_u32 s45, s45, 4096" if c == 3 and n < 9 else None, gate=g)
    for c in range(8):
        L.add(f"buffer_load_dwordx4 v3, s[28:31], m0 offen offset:{1024*(c%4)} {SC} lds", pre=f"s_add_u32 m0, s48, {QB + 1024*c}" if c % 4 == 0 else None, gate=11, tag='qb' if c == 7 else None)
    for n in range(3):
        L.add(f"buffer_load_dwordx4 v{16+n}, s[68:71], s56 offen nt lds", pre=f"s_add_u32 m0, s47, {XL + 1024*n}", gate=27)
    L.pump(14)
    for tx_, po in rt_se: L.add(tx_, post=po, gate=SEG, tag='se')
    for n_, (tx_, po) in enumerate(rt_st): L.add(tx_, post=po, gate=(41 if RTK else 50), tag='rts' if n_ == len(rt_st) - 1 else None)
    if RTW and not RTK: L.add("buffer_store_dword v19, v10, s[8:11], 0 offen sc0 sc1", gate=4)
    L.add("buffer_load_dword v63, v62, s[8:11], 0 offen sc1", tag='f6', gate=60)
    def woreg(T, k):
        r = 156 + 4 * ((5 * T + k + 1) % 25)
        return f"a[{r}:{r+3}]"
    for k in range(5):
        for T in range(5):
            L.add(f"buffer_load_dwordx4 {woreg(T, k)}, v3, s[64:67], s23 offen {SC}", pre=f"s_add_u32 s23, s22, {T*20480 + 1024*k}", gate=70, tag=('WO', k))
    ACC = 64; WF = 24
    def rd(s, T):
        r = WF + 4 * ((s % 2) * 3 + T)
        return a.ds(f"ds_read_b128 v[{r}:{r+3}], v{3 if s < 20 else 7} offset:{(s % 20) * 3072 + T * 1024}")
    tR = {}
    L.need(0)
    a("s_barrier")
    mmark(a, "p1_first")
    for T in range(3): tR[(0, T)] = rd(0, T)
    for s in range(40):
        nxt = s + 1
        if nxt < 40 and nxt % 4 == 0:
            L.need(nxt // 4, gate=s - 1)
            a("s_barrier")
        for T in range(3):
            if nxt < 40: tR[(nxt, T)] = rd(nxt, T)
            a.wait(lg=tR[(s, T)])
            r = WF + 4 * ((s % 2) * 3 + T)
            d = ACC + 16 * T
            a(f"v_mfma_f32_32x32x16_bf16 v[{d}:{d+15}], v[{r}:{r+3}], a[{4*s}:{4*s+3}], " + ("0" if s == 0 else f"v[{d}:{d+15}]"))
            if s >= 1 and rt_rd:
                a(rt_rd.pop(0))
            elif s == 12 and T == 0:
                for x_ in rt_cs: a(x_)
            elif s in (16, 17) and rt_cs2:
                a(rt_cs2.pop(0))
            if T != 1 or s >= 36:
                if 9 in L.t: L.paced(gate=s)
                else: L.pump(1, gate=s)
    assert not rt_rd
    mmark(a, "p1_loop")
    if RTK or F6E: a("v_mov_b32 v9, 0x1000000\nv_writelane_b32 v9, s57, 0")
    if PRET == 2: a("global_load_dword v22, v21, s[20:21] sc1\nglobal_load_dword v22, v20, s[20:21] sc1")
    pa = Paced(a, L, 8, gate=45)
    E, O, TMP, VP = 128, 168, 12, 188
    for i in range(9):
        a(f"v_cvt_pk_bf16_f32 v{VP+i}, v{84+2*i}, v{85+2*i}")
    a(f"v_mov_b32 v{VP+9}, 0x3f80\nv_cvt_pk_bf16_f32 v{VP+10}, v102, v103\nv_mov_b32 v{VP+11}, 0x3f80")
    class KW:
        c = 0
        def __call__(self, text):
            pa(text); self.c += 1
            if self.c in (10, 30, 50):
                q = (self.c - 10) // 20
                a(f"ds_write_b128 v11, v[{VP+4*q}:{VP+4*q+3}] offset:{80+16*q}")
            m = re.match(r"v_cvt_pk_bf16_f32 v(\d+),", text)
            if m and (int(m.group(1)) - O) % 4 == 3:
                q = (int(m.group(1)) - O) // 4
                a(f"ds_write_b128 v11, v[{O+4*q}:{O+4*q+3}] offset:{16*q}")
    softmax_pair(KW(), 64, E, O, TMP, True)
    if RTW and not RTK: L.lim = 60; L.pump(1, gate=60)
    a.wait_all_lg()
    L.need('qb')
    if RTK or F6E:
        L.need('se')
        a("buffer_store_dword v19, v9, s[8:11], 0 offen sc0 sc1")
    a("s_barrier")
    mmark(a, "p1_ksm")
    tk = []
    FA, FB, KD = 128, 200, 24
    def kvm(k2):
        a.wait(lg=tk[k2])
        a(f"v_mfma_f32_32x32x16_bf16 v[{KD}:{KD+15}], v[{FA+4*k2}:{FA+4*k2+3}], v[{FB+4*k2}:{FB+4*k2+3}], " + ("0" if k2 == 0 else f"v[{KD}:{KD+15}]"))
    for ks in range(8):
        for rho in range(2):
            off = (16 * ks + rho) * 272
            a(f"ds_read_b64_tr_b16 v[{FA+4*ks+2*rho}:{FA+4*ks+2*rho+1}], v57 offset:{off}")
            t = a.ds(f"ds_read_b64_tr_b16 v[{FB+4*ks+2*rho}:{FB+4*ks+2*rho+1}], v56 offset:{off+80}")
        tk.append(t)
        if ks >= 2: kvm(ks - 2)
    kvm(6); kvm(7)
    a("s_mov_b32 exec_lo, 0xffffff\ns_mov_b32 exec_hi, 0xffffff")
    for c in range(3):
        a(f"ds_write_b128 v58, v[{KD+4*c}:{KD+3+4*c}] offset:{768*c}")
    a("s_mov_b64 exec, -1")
    tk = [a.ds(f"ds_read_b32 v{40+i}, v59 offset:{256*i}") for i in range(8)]
    def rdq(s):
        r = 128 + 4 * (s % 10)
        return a.ds(f"ds_read_b128 v[{r}:{r+3}], v6 offset:{768*s}")
    tq = [rdq(s) for s in range(6)]
    if a.vm_issued - a.vm_done > 40: a.wait(vm=a.vm_issued - 24)
    for i in range(8):
        a.wait(lg=tk[i])
        if i == 7: a("s_mov_b32 exec_hi, 0")
        a(f"buffer_atomic_add_f32 v{40+i}, v60, s[36:39], s54 offen offset:{256*i}")
    a("s_mov_b64 exec, -1")
    mmark(a, "p1_atom")
    tat = a.vm_issued
    def pretouch():
        a("global_load_dword v22, v21, s[20:21] sc1\nglobal_load_dword v22, v20, s[20:21] sc1")
    if PRET == 1: pretouch()
    P = lambda r: f"v[{r}:{r+1}]"
    L.lim = 60
    def sig2a():
        a.wait(vm=tat)
        a("s_barrier")
        a("buffer_store_dword v19, v61, s[8:11], 0 offen sc0 sc1")
        if RTK: a("buffer_store_dword v19, v10, s[8:11], 0 offen sc0 sc1")
        mmark(a, "p1_sig")
    for s in range(40):
        if s + 6 < 40: tq.append(rdq(s + 6))
        if s % 2 == 0: a.wait(lg=tq[s + 1])
        r = 128 + 4 * (s % 10)
        a(f"v_mfma_f32_32x32x16_bf16 v[112:127], v[{r}:{r+3}], a[{4*s}:{4*s+3}], " + ("0" if s == 0 else "v[112:127]"))
        if s >= RQ0 and s % 2 == 1: L.paced(gate=50)
        if RTK and s == F6S: L.pump(1, gate=60)
        if s == SIG2: sig2a()
    assert RTW or 'rts' in L.t
    mmark(a, "p1_q")
    if F6E: L.pump(1, gate=60)
    if RTK: L.need('f6')
    if RTW: check_flags(a, "M_f6", 63, 62, "0", False)
    softmax_pair(Paced(a, L, WOP, gate=99) if RTW else a, 104, E, O, TMP)
    for c in (0, 2):
        for j in range(4):
            a(f"v_permlane32_swap_b32 v{O+4*c+j}, v{O+4*c+4+j}")
    mmark(a, "p1_qsm")
    a("""; ==== P1b: o = phi_q kv / (phi_q z + 1e-6) for this workgroup's 128 rows x 2 heads""")
    srd(a, 24, 20, KV_OFF, KV_SZ)
    srd(a, 28, 20, O_OFF, O_SZ)
    a(f"""
    v_min_u32 v6, 23, v5
    v_lshlrev_b32 v6, 4, v6
    v_mul_u32_u24 v7, 3840, v4
    v_add_u32 v7, v7, v6
    v_mul_u32_u24 v8, 768, v4
    v_add_u32 v6, v8, v6
    s_mul_i32 s45, s43, 7680
    s_add_u32 s46, s45, 3840
    v_and_b32 v8, 15, v2
    v_lshlrev_b32 v8, 4, v8
    s_lshl_b32 s47, s43, 8
    s_add_u32 s47, s47, {F2A_O}
    v_lshrrev_b32 v10, 4, v5
    v_mul_u32_u24 v10, {O_TT}, v10
    v_add_u32 v10, v10, v8
    v_lshl_add_u32 v11, v4, 8, v10
    s_mul_i32 s48, s44, {2*O_TT}
    s_mul_i32 s49, s43, 1280
    s_add_u32 s48, s48, s49
    s_lshl_b32 s49, s44, 4
    s_add_u32 s49, s49, s43
    s_lshl_b32 s49, s49, 4
    s_add_u32 s49, s49, {FO_O}
    """)
    for r in range(12, 20): a(f"v_mov_b32 v{r}, 0")
    if F6E:
        L.need('f6')
        check_flags(a, "M_f6", 63, 62, "0", False)
    if RTK or F6E: L.pump(WO2, gate=99)
    mspill(a)
    if ONE2A:
        a("s_cmp_lg_u32 s95, 0\ns_cbranch_scc1 M_poll2a_go")
        poll(a, "M_poll2a", 8, "s47", 9)
        a("s_barrier")
    else:
        poll(a, "M_poll2a", 8, "s47", 9)
    mmark(a, "p1b_sync")
    b = 64
    for hh in range(2):
        for u in range(2):
            for e in range(2):
                r = b + 16 * hh + 8 * u + 4 * e
                a(f"buffer_load_dwordx4 v[{r}:{r+3}], v6, s[24:27], s{45+hh} offen offset:{(4*u+e)*384} {SC}")
        if hh == 0:
            for e in range(2):
                r = b + 32 + 4 * e
                t0 = a.vm(f"buffer_load_dwordx4 v[{r}:{r+3}], v7, s[24:27], s45 offen offset:{(8+e)*384} {SC}")
    t1 = a.vm_issued
    if not RTW and not ONE2A: a("s_barrier")
    OD, OB = [24, 40], 56
    for hh in range(2):
        a.wait(vm=t0 if hh == 0 else t1)
        if hh == 0: mmark(a, "p1b_kv")
        for u in range(2):
            r = b + 16 * hh + 8 * u
            for j in range(4):
                a(f"v_cvt_pk_bf16_f32 v{r+j}, v{r+2*j}, v{r+2*j+1}")
        a("s_mov_b32 exec_hi, 0" if hh == 0 else "s_mov_b32 exec_lo, 0")
        for j in range(4): a(f"v_cvt_pk_bf16_f32 v{12+4*hh+j}, v{b+32+2*j}, v{b+33+2*j}")
        a("s_mov_b64 exec, -1")
        d = OD[hh]
        for u in range(2):
            r = b + 16 * hh + 8 * u
            q = O + 8 * u + 4 * hh
            a(f"v_mfma_f32_32x32x16_bf16 v[{d}:{d+15}], v[{r}:{r+3}], v[{q}:{q+3}], " + ("0" if u == 0 else f"v[{d}:{d+15}]"))
        a(f"v_mfma_f32_32x32x16_bf16 v[{d}:{d+15}], v[{12+4*hh}:{15+4*hh}], v[{O+16}:{O+19}], v[{d}:{d+15}]")
    OB = 104
    for hh in range(2):
        d = OD[hh]
        a(f"v_add_f32 v{d+10}, {f32(1e-6)}, v{d+10}")
        a(f"v_rcp_f32 v{d+10}, v{d+10}")
        for j in range(0, 10, 2):
            a(f"v_pk_mul_f32 {P(d+j)}, {P(d+j)}, {P(d+10)} op_sel_hi:[1,0]")
        for j in range(5):
            a(f"v_cvt_pk_bf16_f32 v{OB+5*hh+j}, v{d+2*j}, v{d+2*j+1}")
        if hh == 0:
            a(f"buffer_store_dwordx4 v[{OB}:{OB+3}], v11, s[28:31], s48 offen {SC}")
    a(f"""
    buffer_store_dwordx4 v[{OB+4}:{OB+7}], v11, s[28:31], s48 offen offset:512 {SC}
    v_permlane32_swap_b32 v{OB+8}, v{OB+10}
    v_permlane32_swap_b32 v{OB+9}, v{OB+11}
    s_mov_b32 exec_hi, 0
    """)
    tst = a.vm(f"buffer_store_dwordx4 v[{OB+8}:{OB+11}], v10, s[28:31], s48 offen offset:1024 {SC}")
    a("s_mov_b32 exec_hi, -1")
    if not RTW and not F6E: L.pump(1, gate=60)
    mmark(a, "p1b_st")
    map_p3(a, 60, 61, 40)
    a(f"""
    s_mul_i32 s62, s61, 27
    s_lshr_b32 s62, s62, 1
    s_mul_i32 s40, s62, 20480
    """)
    srd_dyn(a, 12, 20, W3_OFF - 81920, 40, 163840)
    srd_dyn(a, 16, 20, W3_OFF + 81920, 40, 163840)
    srd_dyn(a, 68, 20, W3_OFF + 245760, 40, 40960)
    a.wait(vm=tst)
    signal(a, "s49", 8)
    if not RTW:
        a(f"s_sub_u32 s50, s50, {F6_O - F5_O}")
        signal(a, "s50", 8, scale=False)
    mmark(a, "p1b_sig")
    if not RTW and not F6E:
        L.need('f6')
        check_flags(a, "M_f6", 63, 62, "0", False)
    L.pump(WO1, gate=99); woq = [(x[0], x[1], x[2], x[3], None) for x in L.q]
    a("""; ==== P2: h = x + o wo (64 rows x 80 columns, K split over the 4 waves), row sums for the second LayerNorm""")
    PB2, TB2 = 0, XL
    srd(a, 24, 20, H_OFF, H_SZ)
    srd(a, 32, 20, ST_OFF, ST_SZ)
    a(f"""
    s_mul_i32 s44, s95, 5
    s_mul_i32 s45, s100, {4*O_TT//1024}
    s_add_u32 s45, s45, s44
    s_lshl_b32 s45, s45, 10
    v_and_b32 v7, 3, v2
    v_lshlrev_b32 v7, 4, v7
    v_bfe_u32 v8, v2, 2, 1
    v_lshl_add_u32 v7, v8, 8, v7
    s_lshl_b32 s46, s100, 9
    s_lshl_b32 s47, s95, 6
    s_add_u32 s46, s46, s47
    s_add_u32 s46, s46, {FO_O}
    s_mul_i32 s47, s95, 15360
    v_add_u32 v6, s47, v3
    """)
    for j in range(1, 4):
        a(f"""
        s_add_u32 s47, s95, {j}
        s_and_b32 s47, s47, 3
        s_mul_i32 s47, s47, 15360
        s_add_u32 s47, s47, {PB2 + (3-j)*5120}
        v_add_u32 v{9+j}, s47, v3
        """)
    map_p4(a, 58, 59, 40)
    a(f"""
    v_and_b32 v13, 15, v2
    v_lshrrev_b32 v14, 4, v2
    v_mul_u32_u24 v17, 160, v13
    v_lshl_add_u32 v17, v14, 3, v17
    s_mul_i32 s51, s95, 3072
    s_add_u32 s52, s51, {XL}
    v_add_u32 v15, s52, v17
    s_add_u32 s51, s51, {TB2}
    v_add_u32 v17, s51, v17
    v_mul_u32_u24 v18, 160, v13
    v_lshl_add_u32 v18, v14, 4, v18
    v_add_u32 v18, s51, v18
    v_lshlrev_b32 v19, 4, v13
    v_lshl_add_u32 v19, v4, 9, v19
    v_and_b32 v18, 1, v14
    v_lshl_add_u32 v19, v18, 10, v19
    s_lshl_b32 s48, s100, 1
    s_lshr_b32 s49, s95, 1
    s_add_u32 s48, s48, s49
    s_lshl_b32 s53, s48, 3
    s_add_u32 s53, s53, s101
    s_lshl_b32 s53, s53, 8
    s_mul_i32 s48, s48, 40960
    s_mul_i32 s49, s101, 5120
    s_add_u32 s48, s48, s49
    s_and_b32 s49, s95, 1
    s_lshl_b32 s50, s49, 7
    s_add_u32 s53, s53, s50
    s_lshl_b32 s49, s49, 8
    s_add_u32 s48, s48, s49
    s_add_u32 s49, s48, 4096
    s_lshl_b32 s56, s100, 2
    s_add_u32 s56, s56, s95
    s_lshl_b32 s56, s56, 3
    s_add_u32 s56, s56, s101
    s_lshl_b32 s56, s56, 4
    s_add_u32 s56, s56, {F3_O}
    s_mov_b32 s54, 0xffff0000
    s_lshr_b32 s50, s62, 3
    s_lshl_b32 s50, s50, 2
    v_min_u32 v20, 11, v13
    v_add_u32 v20, s50, v20
    v_min_u32 v20, 107, v20
    v_and_b32 v21, 1, v14
    v_mul_u32_u24 v16, 108, v21
    v_add_u32 v20, v20, v16
    s_mul_i32 s50, s59, 5
    s_lshr_b32 s50, s50, 2
    s_mul_i32 s50, s50, 56
    s_mul_i32 s51, s95, 14
    s_add_u32 s50, s50, s51
    v_min_u32 v16, 13, v13
    v_mul_u32_u24 v21, 56, v21
    v_add3_u32 v16, v16, v21, s50
    v_min_u32 v16, 559, v16
    v_lshrrev_b32 v21, 1, v16
    v_subrev_u32 v22, {512-208}, v16
    v_cmp_le_u32 vcc, 512, v16
    v_cndmask_b32 v16, v21, v22, vcc
    v_cmp_le_u32 vcc, 32, v2
    v_cndmask_b32 v20, v20, v16, vcc
    v_lshlrev_b32 v20, 4, v20
    s_mov_b32 s57, {F5_O}
    """)
    if RTW: tf = a.vm("buffer_load_dword v21, v20, s[8:11], s57 offen sc1")
    tx = [a.ds(f"ds_read_b64 v[{112+2*T}:{113+2*T}], v15 offset:{32*T}") for T in range(5)]
    A4 = [72, 92]; RS_, PS = 24, 44
    a.wait(lg=tx[4])
    for j in range(10):
        a(f"v_lshlrev_b32 v{128+2*j}, 16, v{112+j}")
        a(f"v_and_b32 v{129+2*j}, s54, v{112+j}")
    L0 = Loads(a, 60); w3_dma(L0, 0, 3); w3_dma(L0, 1, 3)
    if RTW:
        a.wait(vm=tf)
        check_flags(a, "M_f5", 21, 20, "s57", False)
        L0.pump(W3EARLY, gate=3)
    mspill(a)
    poll(a, "M_poll2b", 7, "s46", 9)
    mmark(a, "p2_sync")
    L = Loads(a, 40)
    order = [(sl, k) for sl in (1, 2, 3, 0) for k in range(5)]
    for i, (sl, k) in enumerate(order):
        pre = None
        if k == 0:
            pre = f"s_add_u32 s55, s95, {sl}\ns_and_b32 s55, s55, 3\ns_mul_i32 s55, s55, {O_TT}\ns_add_u32 s55, s55, s45"
        elif k == 4:
            pre = "s_add_u32 s55, s55, 4096"
        L.add(f"buffer_load_dwordx4 a[{4*i}:{4*i+3}], v3, s[28:31], s55 offen offset:{1024*(k%4)} {SC} {NT4}", pre=pre, tag=i)
        while woq and woq[0][1][1] <= i + 1: L.q.append(woq.pop(0))
        if i == F5I and not RTW: L.add("buffer_load_dword v21, v20, s[8:11], s57 offen sc1", tag='f5')
    L.q += L0.q; L.t.update(L0.t)
    if TOUCH:
        nsh = 4 if MAP4 == 'row' else 8
        per = 560 // nsh
        nin = (per + 63) // 64
        srd(a, 64, 20, W4_OFF, W4_SZ)
        a(f"""
        s_mov_b32 s36, s16
        s_mov_b32 s37, s17
        s_mov_b32 s38, 204800
        s_mov_b32 s39, 0x20000
        s_and_b32 s40, s60, 7
        s_lshl_b32 s40, s40, 2
        s_add_u32 s40, s40, s95
        s_mul_i32 s22, s40, {50*128}
        v_min_u32 v148, 49, v2
        v_lshlrev_b32 v148, 7, v148
        s_and_b32 s40, s58, {nsh-1}
        s_mul_i32 s40, s40, {per}
        s_mul_i32 s41, s95, 14
        s_mul_i32 s23, s59, {5*56}
        s_add_u32 s23, s23, s41
        s_lshl_b32 s23, s23, 10
        s_movk_i32 s41, 586
        """)
        L.add("buffer_load_dword v152, v148, s[36:39], s22 offen sc1", gate=3)
        for q in range(nin):
            a(f"""
            v_add_u32 v153, {64*q}, v2
            v_min_u32 v153, {per-1}, v153
            v_add_u32 v153, s40, v153
            v_mul_u32_u24 v154, s41, v153
            v_lshrrev_b32 v154, 16, v154
            v_mul_u32_u24 v154, {57344 - 112*128}, v154
            v_lshl_add_u32 v{149+q}, v153, 7, v154
            """)
            L.add(f"buffer_load_dword v152, v{149+q}, s[64:67], s23 offen sc1", gate=3)
    L.pump(12)
    ACC2 = [72, 92, 72, 128]
    def flush_p(ph):
        dp = ACC2[ph]
        for T in range(5):
            a(f"ds_write_b128 v6, v[{dp+4*T}:{dp+4*T+3}] offset:{ph*5120 + T*1024}")
    wr = []; todo = []
    for i, (sl, k) in enumerate(order):
        ph = i // 5
        d = ACC2[ph]
        L.need(i)
        if i == 0: mmark(a, "p2_first")
        if i == F5I + 1 and not RTW: check_flags(a, "M_f5", 21, 20, "s57", False)
        if i == 15:
            a.wait_all_lg()
            a("s_barrier")
            for j, rb in ((2, RS_), (1, PS)):
                for T in range(5):
                    te = a.ds(f"ds_read_b128 v[{rb+4*T}:{rb+4*T+3}], v{10+j} offset:{1024*T}")
        if i == 17:
            a.wait(lg=te)
            todo = [f"v_add_f32 v{RS_+j}, v{RS_+j}, v{PS+j}" for j in range(20)]
        for T in range(5):
            a(f"v_mfma_f32_16x16x32_bf16 v[{d+4*T}:{d+4*T+3}], {woreg(T, k)}, a[{4*i}:{4*i+3}], " + ("0" if k == 0 and ph < 3 else f"v[{d+4*T}:{d+4*T+3}]"))
            if wr and T in (0, 2, 4): a(wr.pop(0))
            elif T == 1 or T == 3: L.pump(1, gate=3 if i > F5I else None)
            elif todo:
                a(todo.pop(0)); a(todo.pop(0))
        if k == 0 and ph > 0:
            dp = ACC2[ph - 1]
            wr = [f"ds_write_b128 v6, v[{dp+4*T}:{dp+4*T+3}] offset:{(ph-1)*5120 + T*1024}" for T in range(5)]
    assert not wr and not woq
    a.wait_all_lg()
    a("s_barrier")
    mmark(a, "p2_bar")
    for T in range(5):
        t = a.ds(f"ds_read_b128 v[{A4[0]+4*T}:{A4[0]+4*T+3}], v10 offset:{1024*T}")
    for x_ in todo: a(x_)
    a("v_mov_b32 v14, 0x3f803f80\nv_mov_b32 v112, 0\nv_mov_b32 v113, 0")
    for r in range(0, 20, 2):
        a(f"v_pk_add_f32 {P(128+r)}, {P(128+r)}, {P(RS_+r)}")
    a.wait(lg=t)
    for r in range(0, 20, 2):
        a(f"v_pk_add_f32 {P(128+r)}, {P(128+r)}, {P(A4[0]+r)}")
    for j in range(10):
        a(f"v_cvt_pk_bf16_f32 v{RS_+j}, v{128+2*j}, v{129+2*j}")
    for j in (8, 9):
        a(f"v_dot2c_f32_bf16 v112, v{RS_+j}, v14")
        a(f"v_dot2c_f32_bf16 v113, v{RS_+j}, v{RS_+j}")
    for it in range(3):
        r = RS_ + 4 * it
        a(f"v_permlane16_swap_b32 v{r}, v{r+2}\nv_permlane16_swap_b32 v{r+1}, v{r+3}")
        if it == 2: a("s_mov_b32 exec_lo, 0xffff\ns_mov_b32 exec_hi, 0xffff")
        a(f"buffer_store_dwordx4 v[{r}:{r+3}], v19, s[24:27], s{48 if it < 2 else 49} offen offset:{2048*(it%2)} {LS}")
    a("s_mov_b64 exec, -1")
    for j in range(8):
        a(f"v_dot2c_f32_bf16 v112, v{RS_+j}, v14")
        a(f"v_dot2c_f32_bf16 v113, v{RS_+j}, v{RS_+j}")
    a(f"""
    v_lshlrev_b32 v13, 3, v13
    s_nop 1
    v_mov_b32 v114, v112
    v_mov_b32 v115, v113
    v_permlane32_swap_b32 v112, v114
    v_permlane32_swap_b32 v113, v115
    v_pk_add_f32 v[112:113], v[112:113], v[114:115]
    v_mov_b32 v114, v112
    v_mov_b32 v115, v113
    v_permlane16_swap_b32 v112, v114
    v_permlane16_swap_b32 v113, v115
    v_pk_add_f32 v[112:113], v[112:113], v[114:115]
    s_mov_b64 exec, 0xffff
    """)
    tst = a.vm(f"buffer_store_dwordx2 v[112:113], v13, s[32:35], s53 offen {LS}")
    a("s_mov_b64 exec, -1")
    mmark(a, "p2_st")
    if P2A: L.pump(99, gate=3)
    srd(a, 28, 20, ST_OFF, ST_SZ)
    a.wait(vm=tst)
    signal(a, "s56", 8, LF)
    mmark(a, "p2_sig")
    L.need(('W3', 1), gate=3)
    a("s_barrier")
    L.pump(99, gate=3); w3_dma(L, 2); L.pump(99)
    a("""; ==== P3: gate/up GEMM on h; mean removed by an extra K-step with the weight column sums, rstd applied in the GELU epilogue""")
    map_p4(a, 100, 101, 40)
    a(f"s_mul_i32 s96, s101, {ROT4}\ns_add_u32 s96, s96, s95\ns_and_b32 s96, s96, 3")
    a(f"""
    s_lshl_b32 s44, s60, 2
    s_add_u32 s44, s44, s95
    s_mul_i32 s45, s44, 40960
    v_bfe_u32 v7, v2, 2, 1
    v_bfe_u32 v8, v2, 4, 1
    v_xor_b32 v9, v8, v4
    v_lshlrev_b32 v9, 7, v9
    v_lshl_add_u32 v9, v8, 8, v9
    v_bfe_u32 v8, v2, 3, 1
    v_lshl_add_u32 v9, v8, 6, v9
    v_and_b32 v8, 3, v2
    v_lshl_add_u32 v9, v8, 4, v9
    v_lshl_add_u32 v8, v7, 9, v9
    v_mul_u32_u24 v7, 20480, v7
    v_add_u32 v10, v7, v9
    v_add_u32 v11, 40960, v10
    v_add_u32 v12, 81920, v10
    v_add_u32 v13, 122880, v10
    """)
    srd(a, 12, 20, CS_OFF, CS_SZ)
    a("s_lshl_b32 s46, s62, 9\ns_add_u32 s47, s46, 4096\nv_mov_b32 v0, v8")
    def cs_ld(T):
        return f"buffer_load_dwordx4 a[{160+4*(T%3)}:{163+4*(T%3)}], v0, s[12:15], s{46 if T < 4 else 47} offen offset:{1024*(T%4)} {SC}"
    for T in range(3): a(cs_ld(T))
    srd(a, 36, 20, HH_OFF, HH_SZ)
    srd(a, 32, 20, RS_OFF, RS_SZ)
    a(f"""
    v_lshlrev_b32 v6, 3, v5
    v_lshl_add_u32 v6, v4, 10, v6
    s_lshl_b32 s48, s44, 11
    v_lshrrev_b32 v20, 4, v5
    v_mul_u32_u24 v20, 57344, v20
    v_and_b32 v21, 15, v2
    v_lshlrev_b32 v7, 4, v21
    v_add_u32 v20, v7, v20
    v_lshl_add_u32 v20, v4, 8, v20
    s_mul_i32 s50, s44, 114688
    s_lshr_b32 s51, s61, 2
    s_mul_i32 s51, s51, 14336
    s_add_u32 s50, s50, s51
    s_and_b32 s51, s61, 3
    s_lshl_b32 s51, s51, 9
    s_add_u32 s50, s50, s51
    s_lshr_b32 s51, s44, 1
    s_lshl_b32 s51, s51, 2
    s_lshr_b32 s52, s61, 2
    s_add_u32 s51, s51, s52
    s_lshl_b32 s51, s51, 7
    s_and_b32 s52, s44, 1
    s_lshl_b32 s52, s52, 4
    s_add_u32 s51, s51, s52
    s_and_b32 s52, s61, 3
    s_lshl_b32 s52, s52, 2
    s_add_u32 s51, s51, s52
    v_mov_b32 v8, 0x1000000
    v_writelane_b32 v8, s51, 0
    s_mov_b32 s58, {F4E_O}
    s_mov_b32 s59, {F4_O}
    s_lshl_b32 s51, s44, 8
    s_add_u32 s51, s51, {F3_O}
    s_lshr_b32 s52, s61, 2
    s_lshl_b32 s52, s52, 13
    s_lshl_b32 s53, s44, 7
    s_add_u32 s52, s52, s53
    s_and_b32 s53, s61, 3
    s_cmp_eq_u32 s53, 1
    s_cselect_b32 s52, s52, 0x1000000
    """)
    def w4reg(i):
        if i < 21: return f"a[{172+4*i}:{175+4*i}]"
        if i < 53: return f"v[{252-4*(i-21)}:{255-4*(i-21)}]"
        return f"a[{96+4*(i-53)}:{99+4*(i-53)}]"
    def w4_item(i):
        k, T = divmod(i, 5)
        return dict(text=f"buffer_load_dwordx4 {w4reg(i)}, v3, s[64:67], s23 offen {SC}", pre=f"s_add_u32 s23, s22, {T*57344 + 1024*k}", tag=('W4', i))
    srd(a, 64, 20, W4_OFF, W4_SZ)
    a(f"""
    s_mul_i32 s40, s95, 14
    s_mul_i32 s22, s101, {5*56}
    s_add_u32 s22, s22, s40
    s_lshl_b32 s22, s22, 10
    """)
    if TOUCH3:
        a(f"""
        s_and_b32 s40, s60, 7
        s_lshl_b32 s40, s40, 2
        s_add_u32 s40, s40, s95
        s_mul_i32 s40, s40, {30*128}
        s_mul_i32 s41, s62, 20480
        s_add_u32 s40, s40, s41
        s_add_u32 s40, s40, {W3_OFF + 163840}
        v_min_u32 v72, 29, v2
        v_lshl_add_u32 v72, v72, 7, s40
        s_and_b32 s40, s100, 7
        s_mul_i32 s40, s40, 50
        v_min_u32 v73, 49, v2
        v_add_u32 v73, s40, v73
        s_movk_i32 s41, 820
        v_mul_u32_u24 v74, s41, v73
        v_lshrrev_b32 v74, 16, v74
        v_mul_u32_u24 v74, {57344 - 80*128}, v74
        v_lshl_add_u32 v73, v73, 7, v74
        s_add_u32 s40, s22, {W4_OFF + 4096}
        v_add_u32 v73, s40, v73
        """)
    Lw = Loads(a, 60)
    for q in range(W4S3): Lw.add(**w4_item(q))
    Lw.pump(99)
    mspill(a)
    poll(a, "M_poll3", 7, "s51", 9)
    mmark(a, "p3_sync")
    a("v_mov_b32 v1, s93")
    L = Loads(a, P3LIM)
    SR = 64
    for n in range(40):
        L.add(f"buffer_load_dwordx4 a[{4*n}:{4*n+3}], v3, s[24:27], s45 offen offset:{1024*(n%4)} {SC} {NT3}", tag=n,
              post="s_add_u32 s45, s45, 4096" if n % 4 == 3 else None)
        if n == 11:
            for p in range(4):
                L.add(f"buffer_load_dwordx2 v[{SR+2*p}:{SR+2*p+1}], v6, s[28:31], s48 offen offset:{256*p} {SC}", tag='st' if p == 3 else None)
    if TOUCH3 == 2: L.add("global_load_dword v9, v72, s[20:21] sc1")
    w3_dma(L, 3)
    if TOUCH3 == 1: L.add("global_load_dword v9, v72, s[20:21] sc1")
    if TOUCH3: L.add("global_load_dword v9, v73, s[20:21] sc1")
    L.pump(12)
    ACB = [80, 96, 112]
    NA = 3
    WF, NB, TMP, OUT = 24, 10, 64, [72, 76]
    REG = [12, 13, 10, 11, 12, 13, 10]
    seq = []
    for s in range(40):
        seq += [(0, s), (1, s)]
        if s >= LAG: seq.append((2, s - LAG))
    seq += [(2, s) for s in range(max(40 - LAG, 0), 40)] + [(T, s) for T in range(3, 7) for s in range(40)]
    frs = {}
    nrd = [0]
    def rd3():
        i = nrd[0]
        if i >= len(seq): return
        T, s = seq[i]
        r = WF + 4 * (i % NB)
        frs[i] = (r, a.ds(f"ds_read_b128 v[{r}:{r+3}], v{REG[T]} offset:{512*s}"))
        nrd[0] += 1
    def epi(T, pk):
        d, out, tmp = ACB[T % NA], OUT[T % 2], TMP
        Lx = []
        if pk:
            for j in range(0, 8, 2): Lx.append(f"v_pk_mul_f32 {P(tmp+j)}, {P(d+j)}, {P(d+j)}")
            for j in range(0, 8, 2): Lx.append(f"v_pk_fma_f32 {P(tmp+j)}, {P(tmp+j)}, v[14:15], v[14:15] op_sel:[0,1,0] op_sel_hi:[1,1,0]")
            for j in range(0, 8, 2): Lx.append(f"v_pk_mul_f32 {P(tmp+j)}, {P(tmp+j)}, {P(d+j)}")
            for j in range(8): Lx.append(f"v_exp_f32 v{tmp+j}, v{tmp+j}")
            for j in range(0, 8, 2): Lx.append(f"v_pk_mul_f32 {P(d+j)}, {P(d+j)}, {P(d+8+j)}")
            for j in range(0, 8, 2): Lx.append(f"v_pk_add_f32 {P(tmp+j)}, {P(tmp+j)}, 1.0 op_sel_hi:[1,0]")
            for j in range(8): Lx.append(f"v_rcp_f32 v{tmp+j}, v{tmp+j}")
            for j in range(0, 8, 2): Lx.append(f"v_pk_mul_f32 {P(d+j)}, {P(d+j)}, {P(tmp+j)}")
        else:
            for j in range(8): Lx.append(f"v_mul_f32 v{tmp+j}, v{d+j}, v{d+j}")
            for j in range(8): Lx.append(f"v_fma_f32 v{tmp+j}, v{tmp+j}, v15, v14")
            for j in range(8): Lx.append(f"v_mul_f32 v{tmp+j}, v{tmp+j}, v{d+j}")
            for j in range(8):
                Lx.append(f"v_exp_f32 v{tmp+j}, v{tmp+j}")
                Lx.append(f"v_mul_f32 v{d+j}, v{d+j}, v{d+8+j}")
            for j in range(8): Lx.append(f"v_add_f32 v{tmp+j}, 1.0, v{tmp+j}")
            for j in range(8):
                Lx.append(f"v_rcp_f32 v{tmp+j}, v{tmp+j}")
                if j >= 1: Lx.append(f"v_mul_f32 v{d+j-1}, v{d+j-1}, v{tmp+j-1}")
            Lx.append(f"v_cvt_pk_bf16_f32 v{out}, v{d}, v{d+1}")
            Lx.append(f"v_mul_f32 v{d+7}, v{d+7}, v{tmp+7}")
        for j in range(0 if pk else 1, 4): Lx.append(f"v_cvt_pk_bf16_f32 v{out+j}, v{d+2*j}, v{d+2*j+1}")
        Lx.append(f"buffer_store_dwordx4 v[{out}:{out+3}], v20, s[36:39], s50 offen offset:{2048*(T%2)} {SC if T < LOCT else LS}" + ("\ns_add_u32 s50, s50, 4096" if T % 2 else ""))
        return [(T, x) for x in Lx]
    stats = f"""
    v_add_f32 v{SR+0}, v{SR+0}, v{SR+2}
    v_add_f32 v{SR+1}, v{SR+1}, v{SR+3}
    v_add_f32 v{SR+4}, v{SR+4}, v{SR+6}
    v_add_f32 v{SR+5}, v{SR+5}, v{SR+7}
    v_add_f32 v{SR+0}, v{SR+0}, v{SR+4}
    v_add_f32 v{SR+1}, v{SR+1}, v{SR+5}
    v_mov_b32 v{SR+2}, v{SR}
    v_mov_b32 v{SR+3}, v{SR+1}
    v_permlane32_swap_b32 v{SR}, v{SR+2}
    v_permlane32_swap_b32 v{SR+1}, v{SR+3}
    v_add_f32 v{SR}, v{SR}, v{SR+2}
    v_add_f32 v{SR+1}, v{SR+1}, v{SR+3}
    v_mul_f32 v{SR}, {f32(-1.0/640)}, v{SR}
    v_mul_f32 v{SR+1}, {f32(1.0/640)}, v{SR+1}
    v_fma_f32 v{SR+1}, -v{SR}, v{SR}, v{SR+1}
    v_max_f32 v{SR+1}, 0, v{SR+1}
    v_add_f32 v{SR+1}, {f32(1e-5)}, v{SR+1}
    v_rsq_f32 v{SR+1}, v{SR+1}
    v_cvt_pk_bf16_f32 v{SR+2}, v{SR}, v{SR}
    v_lshlrev_b32 v{SR+2}, 16, v{SR+2}
    v_sub_f32 v{SR+3}, v{SR}, v{SR+2}
    v_cvt_pk_bf16_f32 v16, v{SR+2}, v{SR+3}
    v_mul_f32 v22, v{SR+1}, v{SR+1}
    v_mov_b32 v17, v16
    v_mov_b32 v18, v16
    v_mov_b32 v19, v16
    v_mul_f32 v14, {f32(C0)}, v{SR+1}
    v_mul_f32 v15, {f32(C1)}, v{SR+1}
    v_mul_f32 v15, v15, v22
    v_lshlrev_b32 v21, 2, v5
    buffer_store_dword v22, v21, s[32:35], s52 offen {SC}
    """.strip().split("\n")
    pending = []
    a(f"""
    v_and_b32 v7, 7, v2
    s_lshl_b32 s40, s100, 9
    s_lshl_b32 s41, s95, 7
    s_add_u32 s63, s40, s41
    v_lshl_add_u32 v7, v7, 2, s63
    s_mul_i32 s40, s95, 14
    s_mul_i32 s57, s100, {4*56}
    s_add_u32 s57, s57, s40
    s_lshl_b32 s57, s57, 10
    """)
    DIST = 8
    def cost(x):
        x = x.strip()
        return 2 if x.startswith(("v_exp", "v_rcp", "v_rsq", "buffer_")) else 1
    def fill(budget, hold=None):
        while budget > 0 and pending:
            pick = None
            blockW, blockR = set(), set()
            for n, (t, x) in enumerate(pending[:14]):
                ins = Ins(x.split("\n")[0])
                if ins.kind == 'vmem' and n > 0 and any(Ins(y.split("\n")[0]).kind == 'vmem' for _, y in pending[:n]): break
                ok = cost(x) <= budget and t != hold and not (set(ins.r) & blockW) and not (set(ins.w) & (blockW | blockR))
                if ok and any(need(p, ins) > dd for dd, p in enumerate(reversed(a.ins[-2:]))): ok = False
                if ok: pick = n; break
                blockW |= set(ins.w); blockR |= set(ins.r)
            if pick is None: break
            t_, x = pending.pop(pick)
            a(x); budget -= cost(x)
            if x.startswith("buffer_store"): stored[t_] = (a.vm_issued, cur[0])
    stored = {}; cur = [0]; posted = False; posted2 = False
    a(f"s_mov_b32 s56, {F4M_O}")
    KE, KN = 2 * EARLY, 2 * MID
    KM = 2 * MID2
    order = [(sl, k) for lo, hi in ((0, KE), (KE, KN), (KN, KM), (KM, 14)) for sl in (1, 2, 3, 0) for k in range(lo, hi)]
    L4 = Loads(a, 26)
    lateW = list(range(53, 70))
    for i, (sl, k) in enumerate(order):
        pre = None
        if k in (0, KE, KN, KM):
            pre = f"s_add_u32 s55, s96, {sl}\ns_and_b32 s55, s55, 3\ns_mul_i32 s55, s55, 57344\ns_add_u32 s55, s55, s57"
            if k: pre += f"\ns_add_u32 s55, s55, {1024*k}"
            k0 = k
        elif (k - k0) % 4 == 0:
            pre = "s_add_u32 s55, s55, 4096"
        r = 4 * (i % 24)
        g = i if i < 24 else 1000 + i - 24
        if i >= 4 * KE: g = max(g, 1000 + 4 * KE - CHK1)
        if i >= 4 * KN and KM > KN: g = max(g, 1000 + 4 * KN - CHK2)
        if i >= 4 * KM: g = max(g, 1000 + 4 * KM - CHK)
        L4.add(f"buffer_load_dwordx4 a[{r}:{r+3}], v3, s[36:39], s55 offen offset:{1024*((k-k0)%4)} {SC} {NT4}", pre=pre, tag=('H', i), gate=g)
        if i == 23:
            for _ in range(LWA): L4.add(**w4_item(lateW.pop(0)), gate=999)
        if i == 4 * KN - 1:
            for _ in range(min(LWB, len(lateW))): L4.add(**w4_item(lateW.pop(0)), gate=999)
        if i == 4 * KM - 1:
            while lateW: L4.add(**w4_item(lateW.pop(0)), gate=999)
            for T in range(5):
                L4.add(f"buffer_load_dwordx2 v[{104+2*T}:{105+2*T}], v15, s[24:27], s{48 if T < 4 else 49} offen offset:{1024*(T%4)} {SC}", gate=1000)
            L4.add(f"buffer_load_dword v114, v16, s[32:35], s50 offen {SC}", tag='res', gate=1000)
    hh0, late4 = L4.q[:24], L4.q[24:]
    L.t.update(Lw.t)
    for q in range(W4S3, 53): L.add(**w4_item(q))
    done01 = False
    for _ in range(DIST): rd3()
    for i, (T, s) in enumerate(seq):
        cur[0] = i
        nx = nrd[0]
        if nx < len(seq) and seq[nx][1] == 0 and seq[nx][0] >= 2:
            Tn = seq[nx][0]
            if Tn > 2: L.need(('W3', Tn))
            a("s_barrier")
            if Tn == 3:
                assert done01
                q0 = L.q; L.q = []; w3_dma(L, 4); w3_dma(L, 5); L.q += q0
            if Tn == 4:
                q0 = [x for x in L.q if 'lds' not in x[0]]; L.q = [x for x in L.q if 'lds' in x[0]]; w3_dma(L, 6); L.q += q0
        if T == 6 and s == 0: print('queue at tile 6:', len(L.q))
        if (T, s) == (5, CK0):
            tfe = a.vm("buffer_load_dword v9, v7, s[8:11], s58 offen sc1")
        if (T, s) == (5, CK1):
            a.wait(vm=tfe)
            check_flags(a, "M_f4e", 9, 7, "s58", False)
            mmark(a, "p3_chk")
            L.q = L.q + hh0
        if (T, s) == (6, 2) and HF:
            hq = [x for x in L.q if x[1] and x[1][0] == 'H']; oq = [x for x in L.q if not (x[1] and x[1][0] == 'H')]
            L.q = hq[:HF] + oq + hq[HF:]
        rd3()
        budget = 3
        nxt_wait = (i + 1) % 4 == 0
        if T == 0: L.need(s)
        if i == 0: mmark(a, "p3_first")
        if i % 4 == 0: a.wait(lg=frs[min(i + 3, len(seq) - 1)][1])
        r = frs[i][0]
        d = ACB[T % NA]
        if s == 0: assert all(t % NA != T % NA for t, _ in pending if t >= 0), "accumulator still pending"
        a(f"v_mfma_f32_32x32x16_bf16 v[{d}:{d+15}], v[{r}:{r+3}], a[{4*s}:{4*s+3}], " + ("0" if s == 0 else f"v[{d}:{d+15}]"))
        if nxt_wait: budget -= 1
        n0 = a.vm_issued
        if not done01:
            L.pump(1)
            if i + 1 < len(seq) and seq[i + 1][0] == 0: budget -= 1
            if s == 14 and T == 0:
                L.need('st'); pending += [(-1, x) for x in stats]
        elif not posted and EARLY - 1 in stored and i >= stored[EARLY - 1][1] + ACKD:
            a.wait(vm=stored[EARLY - 1][0])
            a("buffer_store_dword v1, v8, s[8:11], s58 offen sc0 sc1")
            posted = True; budget -= 1
            mmark(a, "p3_early")
        elif posted and not posted2 and MID - 1 in stored and i >= stored[MID - 1][1] + ACKM:
            a.wait(vm=stored[MID - 1][0])
            a("buffer_store_dword v1, v8, s[8:11], s56 offen sc0 sc1")
            posted2 = True; budget -= 1
        elif (i % 2 == 1 and (T == 2 or (T == 3 and s < 24) or T == 6)) or i % 8 in PACE3:
            if not (T == 6 and s >= QS): L.paced(gate=s - 1 if T == 6 else None)
        budget -= 2 * (a.vm_issued - n0)
        fill(budget, hold=(T - 1 if s < 3 else None) if T > 2 else None)
        if s == 39 and T != 0:
            for t in ((0, 1) if T == 1 else (T,)):
                dd = ACB[t % NA]
                assert not any(p[0] == -1 for p in pending)
                if t >= 3: L.need(('CS', t))
                a(f"v_mfma_f32_32x32x16_bf16 v[{dd}:{dd+15}], a[{160+4*(t%3)}:{163+4*(t%3)}], v[16:19], v[{dd}:{dd+15}]")
                if NPK <= t < 6: pending += epi(t, False)
                if t + 3 < 7: L.q.insert(min(len(L.q), 8) if t == 2 else 0, (cs_ld(t + 3), ('CS', t + 3), None, None, None))
            if T == (1 if NPK < 2 or LAG >= 40 else 2) or (T == 1 and False):
                pass
            assert not any('global_load' in x[0] for x in L.q)
            if T in (1, 2):
                for t in (range(min(NPK, 2)) if T == 1 else range(2, NPK)):
                    pq_ = Paced(a, L, PQ2)
                    for _, ins in epi(t, True): (pq_ if T == 2 else a)(ins)
                    stored[t] = (a.vm_issued, i)
            mmark(a, f"p3_t{T}")
            if T == 1: done01 = True
    print('stores at', {k: v[1] for k, v in stored.items()}, 'of', len(seq), 'left loads', len(L.q), 'pending', len(pending))
    assert posted and MID - 1 in stored
    if not posted2:
        a.wait(vm=stored[MID - 1][0])
        a("buffer_store_dword v1, v8, s[8:11], s56 offen sc0 sc1")
    if 4 * KE - CHK1 - 3 < 0 and not SFM: tf4 = a.vm("buffer_load_dword v9, v7, s[8:11], s56 offen sc1")
    if KM > KN:
        a.wait(vm=stored[MID2 - 1][0])
        a(f"s_mov_b32 s58, {F4N_O}\nbuffer_store_dword v1, v8, s[8:11], s58 offen sc0 sc1")
    rest = [(x[0], x[1], x[2], x[3], None) for x in L.q]
    L.q = rest + late4
    L.lim = LIM4
    pa = Paced(a, L, FP, gate=999)
    started = {t for t, _ in pending if sum(1 for u, _ in pending if u == t) < len(epi(t, False))}
    rest = sorted({t for t, _ in pending} - started)
    for t, ins in pending:
        if t in started: pa(ins)
    for t in rest + [6]:
        for _, ins in epi(t, True): pa(ins)
    tst = a.vm_issued
    mmark(a, "p3_st")
    for _ in range(AFT): L.paced(gate=999)
    a("""; ==== P4: out = h + rstd^2 * (hh' w_down) (64 rows x 80 columns, K split over the 4 waves)""")
    PB, TB = 40960, 40960 + 61440
    srd(a, 12, 6, 0, 2621440)
    a(f"""
    s_mul_i32 s47, s95, 15360
    s_add_u32 s47, s47, {PB}
    v_add_u32 v6, s47, v3
    """)
    for j in range(1, 4):
        a(f"""
        s_add_u32 s47, s95, {j}
        s_and_b32 s47, s47, 3
        s_mul_i32 s47, s47, 15360
        s_add_u32 s47, s47, {PB + (3-j)*5120}
        v_add_u32 v{9+j}, s47, v3
        """)
    a(f"""
    v_and_b32 v13, 15, v2
    v_lshrrev_b32 v14, 4, v2
    v_lshlrev_b32 v15, 4, v13
    v_lshl_add_u32 v15, v4, 9, v15
    v_and_b32 v16, 1, v14
    v_lshl_add_u32 v15, v16, 3, v15
    s_lshl_b32 s48, s100, 1
    s_lshr_b32 s49, s96, 1
    s_add_u32 s48, s48, s49
    s_mul_i32 s48, s48, 40960
    s_mul_i32 s49, s101, 5120
    s_add_u32 s48, s48, s49
    s_and_b32 s49, s96, 1
    s_lshl_b32 s49, s49, 8
    s_add_u32 s48, s48, s49
    s_add_u32 s49, s48, 4096
    v_lshlrev_b32 v16, 2, v13
    s_lshl_b32 s50, s95, 13
    s_lshl_b32 s51, s100, 8
    s_add_u32 s50, s50, s51
    s_lshl_b32 s51, s96, 6
    s_add_u32 s50, s50, s51
    v_mul_u32_u24 v17, 160, v13
    v_lshl_add_u32 v17, v14, 3, v17
    s_mul_i32 s51, s95, 2560
    s_add_u32 s51, s51, {TB}
    v_add_u32 v17, s51, v17
    v_add_u32 v18, s51, v3
    s_mov_b32 s52, 6554
    """)
    for it in range(3):
        a(f"""
        v_add_u32 v13, {64*it}, v2
        v_mul_u32_u24 v14, s52, v13
        v_lshrrev_b32 v14, 16, v14
        v_mul_u32_u24 v14, {1280-160}, v14
        v_lshl_add_u32 v{19+it}, v13, 4, v14
        """)
    a(f"""
    s_lshl_b32 s52, s100, 2
    s_add_u32 s52, s52, s96
    s_mul_i32 s52, s52, {16*1280}
    s_mul_i32 s53, s101, 160
    s_add_u32 s52, s52, s53
    s_mov_b32 s54, 0xffff0000
    """)
    b = Asm()
    b(f"""
    s_or_b32 s40, s2, s95
    s_cmp_lg_u32 s40, 0
    s_cbranch_scc1 M_noclr
    s_load_dwordx2 s[40:41], s[0:1], 72
    s_mov_b64 exec, 1
    v_mov_b32 v13, 0
    s_waitcnt lgkmcnt(0)
    global_store_dword v13, v13, s[40:41] sc0 sc1
    s_mov_b64 exec, -1
M_noclr:
    """)
    a.splice(b)
    mspill(a)
    A4 = {1: 24, 2: 44, 3: 64, 0: 84}
    RS_, PS = 24, 44
    todo = []; wr = []; rdl = []
    NL = 14 - KM
    for i, (sl, k) in enumerate(order):
        d = A4[sl]
        if i == SIGI:
            a.wait(vm=tst)
            a(f"buffer_store_dword v1, v8, s[8:11], s59 offen {LF}")
            mmark(a, "p3_sig")
            L.pump(BURST0, gate=999 + i)
        if SFM and i == 0: sflag_load(a, F4M_O)
        if i == 4 * KE - CHK1 - 3 and not SFM:
            tf4 = a.vm("buffer_load_dword v9, v7, s[8:11], s56 offen sc1")
        if i == 4 * KE - CHK1 + 1:
            if SFM: sflag_check(a, "M_f4m", 9, 7, "s56")
            else:
                a.wait(vm=tf4)
                check_flags(a, "M_f4m", 9, 7, "s56", False)
            mmark(a, "p4_mid")
        if KM > KN and i == 4 * KN - CHK2 - FL4:
            sflag_load(a, F4N_O)
        if KM > KN and i == 4 * KN - CHK2 + 1:
            sflag_check(a, "M_f4n", 9, 7, "s58")
            mmark(a, "p4_mid2")
        if i == 4 * KM - CHK - FL4:
            if SFL: sflag_load(a, F4_O)
            else: tf4 = a.vm("buffer_load_dword v9, v7, s[8:11], s59 offen sc1")
        if i == 4 * KM - CHK + 1:
            if SFL: sflag_check(a, "M_f4", 9, 7, "s59")
            else:
                a.wait(vm=tf4)
                check_flags(a, "M_f4", 9, 7, "s59", False)
            mmark(a, "p4_sync")
            L.pump(BURST, gate=999 + i)
        L.need(('H', i), gate=999 + i)
        for T in range(5):
            L.need(('W4', 5 * k + T), gate=999 + i)
        if i == 0: mmark(a, "p4_first")
        if i == 4 * KM: mmark(a, "p4_late")
        r = 4 * (i % 24)
        for T in range(5):
            a(f"v_mfma_f32_16x16x32_bf16 v[{d+4*T}:{d+4*T+3}], {w4reg(5*k+T)}, a[{r}:{r+3}], " + ("0" if k == 0 else f"v[{d+4*T}:{d+4*T+3}]"))
            if rdl: tl = a.ds(rdl.pop(0))
            elif wr and T in (1, 3, 4): a(wr.pop(0))
            elif T in PT4 and L.q and (i >= SIGI or AFT): L.pump(1, gate=999 + i)
            elif todo:
                a(todo.pop(0))
                if todo: a(todo.pop(0))
        if i >= 4 * KM:
            assert NL == 6
            ph, kk = divmod(i - 4 * KM, NL)
            if kk == 0 and ph > 0:
                dp = A4[ph]
                wr = [f"ds_write_b128 v6, v[{dp+4*T}:{dp+4*T+3}] offset:{(ph-1)*5120 + T*1024}" for T in range(5)]
            if ph == 2 and kk == 3:
                assert not wr and not todo
                a.wait_all_lg()
                a("s_barrier")
                rdl = [f"ds_read_b128 v[{rb+4*T}:{rb+4*T+3}], v{av} offset:{1024*T}" for av, rb in ((12, 24), (11, 44)) for T in range(5)]
            if ph == 3 and kk == 0:
                assert not rdl
                a.wait(lg=tl)
                todo += [f"v_add_f32 v{24+q}, v{24+q}, v{44+q}" for q in range(20)]
                for q in range(10):
                    todo += [f"v_fma_f32 v{44+2*q}, v{24+2*q}, v114, v{116+q}", f"v_fma_f32 v{45+2*q}, v{25+2*q}, v114, v{104+q}"]
            if ph == 3 and kk == 3:
                assert not wr
                a.wait_all_lg()
                a("s_barrier")
                for T in range(5):
                    tl = a.ds(f"ds_read_b128 v[{64+4*T}:{67+4*T}], v10 offset:{1024*T}")
            if ph == 1 and kk == 2:
                L.need('res', gate=999 + i)
                for q in range(0, 10):
                    todo += [f"v_lshlrev_b32 v{116+q}, 16, v{104+q}", f"v_and_b32 v{104+q}, s54, v{104+q}"]
    for ins in todo: a(ins)
    a.wait(lg=tl)
    mmark(a, "p4_mm")
    for q in range(0, 20, 2):
        a(f"v_pk_fma_f32 {P(PS+q)}, {P(64+q)}, v[114:115], {P(PS+q)} op_sel_hi:[1,0,1]")
    for q in range(0, 20, 2):
        a(f"v_pk_fma_f32 {P(PS+q)}, {P(84+q)}, v[114:115], {P(PS+q)} op_sel_hi:[1,0,1]")
    for j in range(10):
        a(f"v_cvt_pk_bf16_f32 v{RS_+j}, v{PS+2*j}, v{PS+2*j+1}")
    for T in range(5):
        a(f"ds_write_b64 v17, v[{RS_+2*T}:{RS_+2*T+1}] offset:{32*T}")
    a.wait_all_lg()
    tk = [a.ds(f"ds_read_b128 v[{PS+4*it}:{PS+4*it+3}], v18 offset:{1024*it}") for it in range(3)]
    for it in range(3):
        a.wait(lg=tk[it])
        if it == 2: a("s_mov_b32 exec_hi, 0")
        a(f"buffer_store_dwordx4 v[{PS+4*it}:{PS+4*it+3}], v{19+it}, s[12:15], s52 offen {OUTF}")
    mstamp_end(a, 1, 20)
    a("M_exit:\ns_endpgm")
    return a
```

```python
from common import *
from asmlib import Ins, need
import common, math, p0, p0b, re

GRID = 256
LDS = 160 * 1024
C0 = -2.0 * math.sqrt(2.0 / math.pi) * LOG2E
C1 = C0 * 0.044715
SC = "sc1"
POLL_MAX = 400000
P1_PACE = 12
import os
F5I = int(os.environ.get('F5I', 8)); PQ2 = int(os.environ.get('PQ2', 12)); P3LIM = int(os.environ.get('P3LIM', 20)); W4S3 = int(os.environ.get('W4S3', 12)); RQ0 = int(os.environ.get('RQ0', 0)); P1LIM = int(os.environ.get('P1LIM', 24)); SIG2 = int(os.environ.get('SIG2', 39)); OUTF = os.environ.get('OUTF', 'nt').replace('_', ' '); MAP1 = os.environ.get('MAP1', 'x'); MAP2 = os.environ.get('MAP2', 'x'); MAP4 = os.environ.get('MAP4', 'x'); MAP3 = os.environ.get('MAP3', 'x'); NT4 = os.environ.get('NT4', ''); NT3 = os.environ.get('NT3', ''); PACE3 = eval(os.environ.get('PACE3', '(1,3,5,7)')); NPK = int(os.environ.get('NPK', 3)); ACKD = int(os.environ.get('ACKD', 36)); AFT = int(os.environ.get('AFT', 0)); HF = int(os.environ.get('HF', 0)); P2A = int(os.environ.get('P2A', 0)); PRET = int(os.environ.get('PRET', 0)); ACKM = int(os.environ.get('ACKM', 24)); BURST = int(os.environ.get('BURST', 6)); FL4 = int(os.environ.get('FL4', 6)); WOP = int(os.environ.get('WOP', 8)); LOC = os.environ.get('LOC'); LOCT = int(os.environ.get('LOCT', 4)); TOUCH3 = int(os.environ.get('TOUCH3', 0)); MID2 = int(os.environ.get('MID2', 4)); CHK2 = int(os.environ.get('CHK2', 16)); LWB = int(os.environ.get('LWB', 8)); SFL = int(os.environ.get('SFL', 1)); BURST0 = int(os.environ.get('BURST0', 0)); LIM4 = int(os.environ.get('LIM4', 40)); PT4 = eval(os.environ.get('PT4', '(0,2)')); SFM = int(os.environ.get('SFM', 1)); ROT4 = int(os.environ.get('ROT4', 0)); ONE2A = int(os.environ.get('ONE2A', 0)); PSL = int(os.environ.get('PSL', 0)); RTK = int(os.environ.get('RTK', 0)); SEG = int(os.environ.get('SEG', 34)); F6S = int(os.environ.get('F6S', 28)); WO2 = int(os.environ.get('WO2', 0)); F6E = int(os.environ.get('F6E', 0)); RQP = int(os.environ.get('RQP', 4)); KST = int(os.environ.get('KST', 0)); WOE = int(os.environ.get('WOE', 0)); MID = int(os.environ.get('MID', 4)); CHK1 = int(os.environ.get('CHK1', 18)); LWA = int(os.environ.get('LWA', 0)); CHK = int(os.environ.get('CHK', 10)); TOUCH = int(os.environ.get('TOUCH', 0)); FP = int(os.environ.get('FP', 999)); QS = int(os.environ.get('QS', 40)); CK0 = int(os.environ.get('CK0', 16)); CK1 = int(os.environ.get('CK1', 38)); HH1 = int(os.environ.get('HH1', 16)); SIGI = int(os.environ.get('SIGI', 5)); W3EARLY = int(os.environ.get('W3EARLY', 10)); LAG = int(os.environ.get('LAG', 12)); EARLY = int(os.environ.get('EARLY', 3)); WO1 = int(os.environ.get('WO1', 25)); RTSG = int(os.environ.get('RTSG', 36)); RTS0 = int(os.environ.get('RTS0', 99)); RTSN = int(os.environ.get('RTSN', 3))

class Paced:
    def __init__(self, a, L, n, gate=None):
        self.a, self.L, self.n, self.c, self.gate = a, L, n, 0, gate
    def __call__(self, text):
        for line in text.strip().split("\n"):
            if not line.strip(): continue
            self.a(line)
            self.c += 1
            if self.c % self.n == 0: self.L.paced(self.gate)

def poll(a, name, voff, soff, tmp):
    if FSH:
        a(f"v_add_u32 v{tmp}, {soff}, v{voff}\nv_lshlrev_b32 v{tmp}, {FSH}, v{tmp}\nv_add_u32 v1, {FBIAS}, v{tmp}")
        voff, soff = 1, "0"
    a(f"""
    s_mov_b32 s92, 0
{name}:
    buffer_load_dword v{tmp}, v{voff}, s[8:11], {soff} offen {PFL}
    s_add_u32 s92, s92, 1
    s_cmp_gt_u32 s92, {POLL_MAX}
    s_cbranch_scc1 {name}_go
    s_waitcnt vmcnt(0)
    v_cmp_ne_u32 vcc, s93, v{tmp}
    s_nop 4
    {"s_cbranch_vccz %s_go" % name if PSL else ""}
    {"s_sleep %d" % PSL if PSL else ""}
    {"s_branch" if PSL else "s_cbranch_vccnz"} {name}
{name}_go:
    s_waitcnt vmcnt(0)
    """)
    a.vm_done = a.vm_issued

def signal(a, soff, tmp, fl='sc0 sc1', scale=True):
    if FSH and scale: a(f"s_lshl_b32 {soff}, {soff}, {FSH}\ns_add_u32 {soff}, {soff}, {FBIAS}")
    a(f"""
    s_mov_b64 exec, 1
    v_mov_b32 v{tmp}, s93
    v_mov_b32 v{tmp+1}, 0
    buffer_store_dword v{tmp}, v{tmp+1}, s[8:11], {soff} offen {fl}
    s_mov_b64 exec, -1
    """)

def softmax_pair(a, P, E, O, tmp, inter=False):
    mx, mn = tmp, tmp + 2
    a(f"v_max3_f32 v{mx}, v{P}, v{P+1}, v{P+2}")
    a(f"v_min3_f32 v{mn}, v{P}, v{P+1}, v{P+2}")
    for i in range(3, 19, 2):
        a(f"v_max3_f32 v{mx}, v{mx}, v{P+i}, v{P+i+1}")
        a(f"v_min3_f32 v{mn}, v{mn}, v{P+i}, v{P+i+1}")
    a(f"v_max_f32 v{mx}, v{mx}, v{P+19}")
    a(f"v_min_f32 v{mn}, v{mn}, v{P+19}")
    for i in range(0, 20, 2):
        a(f"v_pk_add_f32 v[{E+i}:{E+i+1}], v[{P+i}:{P+i+1}], v[{mx}:{mx+1}] op_sel_hi:[1,0] neg_lo:[0,1] neg_hi:[0,1]")
        a(f"v_pk_add_f32 v[{E+20+i}:{E+21+i}], v[{P+i}:{P+i+1}], v[{mn}:{mn+1}] op_sel_hi:[1,0] neg_lo:[1,0] neg_hi:[1,0]")
    for i in range(40):
        a(f"v_exp_f32 v{E+i}, v{E+i}")
    sp, sn = tmp, tmp + 2
    a(f"v_pk_add_f32 v[{sp}:{sp+1}], v[{E}:{E+1}], v[{E+2}:{E+3}]")
    a(f"v_pk_add_f32 v[{sn}:{sn+1}], v[{E+20}:{E+21}], v[{E+22}:{E+23}]")
    for i in range(4, 20, 2):
        a(f"v_pk_add_f32 v[{sp}:{sp+1}], v[{sp}:{sp+1}], v[{E+i}:{E+i+1}]")
        a(f"v_pk_add_f32 v[{sn}:{sn+1}], v[{sn}:{sn+1}], v[{E+20+i}:{E+21+i}]")
    a(f"v_add_f32 v{sp}, v{sp}, v{sp+1}")
    a(f"v_add_f32 v{sn}, v{sn}, v{sn+1}")
    a(f"v_rcp_f32 v{sp}, v{sp}")
    a(f"v_rcp_f32 v{sn}, v{sn}")
    if inter:
        for q in range(5):
            for i in range(8 * q, 8 * q + 8, 2):
                sc = sp if i < 20 else sn
                a(f"v_pk_mul_f32 v[{E+i}:{E+i+1}], v[{E+i}:{E+i+1}], v[{sc}:{sc+1}] op_sel_hi:[1,0]")
            for i in range(4 * q, 4 * q + 4):
                a(f"v_cvt_pk_bf16_f32 v{O+i}, v{E+2*i}, v{E+2*i+1}")
        return
    for i in range(0, 20, 2):
        a(f"v_pk_mul_f32 v[{E+i}:{E+i+1}], v[{E+i}:{E+i+1}], v[{sp}:{sp+1}] op_sel_hi:[1,0]")
        a(f"v_pk_mul_f32 v[{E+20+i}:{E+21+i}], v[{E+20+i}:{E+21+i}], v[{sn}:{sn+1}] op_sel_hi:[1,0]")
    for i in range(20):
        a(f"v_cvt_pk_bf16_f32 v{O+i}, v{E+2*i}, v{E+2*i+1}")

def map_p1(a, rb, hp, t, kind='x'):
    if kind == 'h4':
        map_p3(a, rb, hp, t, 'x')
        return
    if kind == 'h2':
        map_p3(a, hp, rb, t, 'row')
        return
    a(f"""
    s_bfe_u32 s{rb}, s2, 0x20001
    s_lshl_b32 s{rb}, s{rb}, 2
    s_bfe_u32 s{t}, s2, 0x20003
    s_add_u32 s{rb}, s{rb}, s{t}
    s_and_b32 s{hp}, s2, 1
    s_lshl_b32 s{hp}, s{hp}, 3
    s_lshr_b32 s{t}, s2, 5
    s_add_u32 s{hp}, s{hp}, s{t}
    """)
def map_p2(a, tb, nb, t):
    a(f"""
    s_and_b32 s{tb}, s2, 7
    s_lshl_b32 s{tb}, s{tb}, 3
    s_bfe_u32 s{t}, s2, 0x30003
    s_add_u32 s{tb}, s{tb}, s{t}
    s_lshr_b32 s{nb}, s2, 6
    """)
def map_p3(a, rb, cb, t, kind=None):
    kind = kind or MAP3
    if kind == 'row':
        a(f"""
        s_and_b32 s{rb}, s2, 7
        s_lshl_b32 s{rb}, s{rb}, 1
        s_bfe_u32 s{t}, s2, 0x10003
        s_add_u32 s{rb}, s{rb}, s{t}
        s_lshr_b32 s{cb}, s2, 4
        """)
        return
    if kind == 'mid':
        map_p1(a, rb, cb, t)
        return
    a(f"""
    s_bfe_u32 s{rb}, s2, 0x10002
    s_lshl_b32 s{rb}, s{rb}, 3
    s_bfe_u32 s{t}, s2, 0x30003
    s_add_u32 s{rb}, s{rb}, s{t}
    s_and_b32 s{cb}, s2, 3
    s_lshl_b32 s{cb}, s{cb}, 2
    s_lshr_b32 s{t}, s2, 6
    s_add_u32 s{cb}, s{cb}, s{t}
    """)
def map_p4(a, rb, nb, t, kind=None):
    if (kind or MAP4) == 'row':
        a(f"""
        s_and_b32 s{rb}, s2, 7
        s_lshl_b32 s{rb}, s{rb}, 2
        s_bfe_u32 s{t}, s2, 0x20003
        s_add_u32 s{rb}, s{rb}, s{t}
        s_lshr_b32 s{nb}, s2, 5
        """)
        return
    a(f"""
    s_bfe_u32 s{rb}, s2, 0x20001
    s_lshl_b32 s{rb}, s{rb}, 3
    s_bfe_u32 s{t}, s2, 0x30003
    s_add_u32 s{rb}, s{rb}, s{t}
    s_and_b32 s{nb}, s2, 1
    s_lshl_b32 s{nb}, s{nb}, 2
    s_lshr_b32 s{t}, s2, 6
    s_add_u32 s{nb}, s{nb}, s{t}
    """)

def w3_dma(L, T, gate=None):
    reg = [81920, 122880, 0, 40960, 81920, 122880, 0][T]
    sr = 12 if T < 2 else (16 if T < 6 else 68)
    for c in range(10):
        grp = 0 if c < 4 else (4 if c < 8 else 8)
        L.add(f"buffer_load_dwordx4 v3, s[{sr}:{sr+3}], m0 offen offset:{1024*(c-grp)} {SC} lds", gate=gate,
              pre=f"s_add_u32 m0, s3, {reg + 1024*c}" if c == grp else None, tag=('W3', T) if c == 9 else None)

def check_flags(a, name, regs, voff, soff, wide):
    def test(x):
        if wide:
            x(f"v_xor_b32 v{regs}, s93, v{regs}\nv_xor_b32 v{regs+1}, s93, v{regs+1}\nv_xor_b32 v{regs+2}, s93, v{regs+2}\nv_xor_b32 v{regs+3}, s93, v{regs+3}")
            x(f"v_or3_b32 v{regs}, v{regs}, v{regs+1}, v{regs+2}\nv_or_b32 v{regs}, v{regs}, v{regs+3}\nv_cmp_ne_u32 vcc, 0, v{regs}")
        else:
            x(f"v_cmp_ne_u32 vcc, s93, v{regs}")
    test(a)
    a(f"s_mov_b32 s92, 0\ns_nop 3\ns_cbranch_vccz {name}_ok")
    b = Asm()
    b(f"{name}:")
    b(f"buffer_load_dwordx4 v[{regs}:{regs+3}], v{voff}, s[8:11], {soff} offen sc1" if wide else f"buffer_load_dword v{regs}, v{voff}, s[8:11], {soff} offen sc1")
    b(f"s_add_u32 s92, s92, 1\ns_waitcnt vmcnt(0)\ns_cmp_gt_u32 s92, {POLL_MAX}\ns_cbranch_scc1 {name}_ok")
    test(b)
    b(f"s_nop 4\ns_cbranch_vccnz {name}")
    a.splice(b)
    a(f"{name}_ok:")

def sflag_load(a, off):
    a(f"s_add_u32 s62, s63, {off}\ns_buffer_load_dwordx8 s[40:47], s[8:11], s62 glc")
def sflag_check(a, name, regs, voff, soff):
    a.wait_all_lg()
    a(f"""
    s_and_b64 s[60:61], s[40:41], s[42:43]
    s_or_b64 s[40:41], s[40:41], s[42:43]
    s_and_b64 s[42:43], s[44:45], s[46:47]
    s_or_b64 s[44:45], s[44:45], s[46:47]
    s_and_b64 s[60:61], s[60:61], s[42:43]
    s_or_b64 s[40:41], s[40:41], s[44:45]
    s_and_b32 s60, s60, s61
    s_or_b32 s61, s40, s41
    s_mov_b32 s92, s93
    s_cmp_eq_u64 s[60:61], s[92:93]
    s_cbranch_scc1 {name}_ok
    """)
    b = Asm()
    b(f"s_mov_b32 s92, 0\n{name}:")
    b(f"buffer_load_dword v{regs}, v{voff}, s[8:11], {soff} offen sc1")
    b(f"s_add_u32 s92, s92, 1\ns_waitcnt vmcnt(0)\ns_cmp_gt_u32 s92, {POLL_MAX}\ns_cbranch_scc1 {name}_ok")
    b(f"v_cmp_ne_u32 vcc, s93, v{regs}\ns_nop 4\ns_cbranch_vccnz {name}")
    a.splice(b)
    a(f"{name}_ok:")

def gen_mega():
    LS = SC if LOC is None else LOC.strip('_'); LF = 'sc0 sc1' if LOC is None else ''
    a = Asm()
    a(f"""
    s_memrealtime s[98:99]
    s_load_dwordx2 s[20:21], s[0:1], 80
    s_load_dwordx2 s[4:5], s[0:1], 0
    s_load_dwordx4 s[12:15], s[0:1], 8
    s_load_dwordx2 s[16:17], s[0:1], 24
    s_load_dwordx2 s[6:7], s[0:1], 64
    s_load_dwordx2 s[18:19], s[0:1], 72
    s_load_dwordx4 s[56:59], s[0:1], 40
    s_load_dwordx2 s[62:63], s[0:1], 56
    v_lshrrev_b32 v1, 6, v0
    v_and_b32 v2, 63, v0
    v_readfirstlane_b32 s95, v1
    s_cmp_ge_u32 s2, {GRID}
    s_cbranch_scc1 M_exit
    """)
    mstamp_begin(a)
    a(f"""
    v_lshlrev_b32 v3, 4, v2
    v_lshrrev_b32 v4, 5, v2
    v_and_b32 v5, 31, v2
    s_mul_i32 s3, s95, 10240
    """)
    map_p1(a, 42, 43, 40, MAP1)
    a("; ==== P0: first LayerNorm (8 rows per workgroup), w_phi folded into wq/wk, weights re-laid out as MFMA fragments in d_ws")
    p0b.p0(a, int(os.environ.get('NPF', 2)))
    rt_ld, rt_rd, rt_cs, rt_cs2, rt_st, rt_se = p0b.rt_setup(a)
    assert not rt_ld
    RTW = p0b.RTL in ('p0', 'ln') or RTK
    if RTW and not RTK:
        tt_ = [a.ds(x_) for x_ in rt_rd]; rt_rd = []
        for n_ in range(5):
            a.wait(lg=tt_[2 * n_ + 1]); a(rt_cs[n_]); a(rt_st[n_][0])
        for n_ in range(4):
            a.wait(lg=tt_[11 + 2 * n_]); a(rt_st[6 + n_][0]); a(rt_st[6 + n_][1]); a(rt_se[n_][0]); a(rt_se[n_][1])
        for x_ in rt_cs2: a(x_)
        a(rt_st[5][0])
        rt_cs = []; rt_cs2 = []; rt_st = []; rt_se = []
        mmark(a, "p0_rt")
    a("""; ==== P1: k/v/q projection (LayerNorm rows x folded weights), dual softmax (true max / min subtracted),
;      per-workgroup phi_k^T [v|1] partial added into the kv accumulator, q tile deferred behind the adds""")
    EB, XL, QB = 0, 61440, 122880
    srd(a, 64, 20, WO_OFF, WO_SZ)
    srd(a, 36, 20, KV_OFF, KV_SZ)
    srd(a, 68, 4, 0, 2621440)
    map_p4(a, 100, 101, 40, MAP2)
    a(f"""
    s_lshl_b32 s44, s42, 2
    s_add_u32 s44, s44, s95
    s_mul_i32 s45, s44, 40960
    s_mul_i32 s46, s43, 153600
    s_mul_i32 s47, s95, 3072
    s_lshl_b32 s48, s95, 13
    s_mul_i32 s40, s101, 5
    s_lshr_b32 s40, s40, 2
    s_mul_i32 s40, s40, 20
    s_mul_i32 s41, s95, 5
    s_add_u32 s40, s40, s41
    s_lshl_b32 s40, s40, 4
    s_add_u32 s40, s40, {F6_O}
    v_and_b32 v62, 7, v2
    v_min_u32 v62, 4, v62
    v_lshl_add_u32 v62, v62, 4, s40
    v_bfe_u32 v63, v2, 3, 1
    v_mul_u32_u24 v63, 320, v63
    v_add_u32 v62, v62, v63
    s_mul_i32 s22, s101, 100
    s_add_u32 s22, s22, s41
    s_lshl_b32 s22, s22, 10
    v_lshlrev_b32 v6, 7, v4
    v_sub_u32 v6, v3, v6
    v_add_u32 v6, {QB}, v6
    v_add_u32 v7, {20*3072}, v3
    s_lshl_b32 s40, s95, 5
    v_add_u32 v11, s40, v5
    v_mul_u32_u24 v11, 272, v11
    v_lshl_add_u32 v11, v4, 7, v11
    v_bfe_u32 v56, v2, 2, 2
    v_lshlrev_b32 v56, 2, v56
    v_lshl_add_u32 v56, v4, 1, v56
    v_mul_u32_u24 v56, 272, v56
    v_bfe_u32 v57, v2, 4, 1
    v_lshl_add_u32 v56, v57, 5, v56
    v_and_b32 v57, 3, v2
    v_lshl_add_u32 v56, v57, 3, v56
    s_lshr_b32 s51, s95, 1
    s_and_b32 s55, s95, 1
    s_lshl_b32 s40, s51, 7
    v_add_u32 v56, s40, v56
    s_mul_i32 s40, s55, 40
    v_add_u32 v57, s40, v56
    s_lshl_b32 s40, s95, 12
    s_add_u32 s40, s40, 40960
    v_mul_u32_u24 v58, 384, v4
    v_lshl_add_u32 v58, v5, 4, v58
    v_add_u32 v58, s40, v58
    v_lshl_add_u32 v59, v2, 2, s40
    v_lshlrev_b32 v60, 2, v2
    s_lshl_b32 s54, s43, 1
    s_add_u32 s54, s54, s51
    s_mul_i32 s54, s54, 3840
    s_mul_i32 s55, s55, 1920
    s_add_u32 s54, s54, s55
    s_lshl_b32 s49, s43, 4
    s_add_u32 s49, s49, s42
    s_lshl_b32 s49, s49, 4
    s_add_u32 s49, s49, {F2A_O}
    s_lshl_b32 s49, s49, {FSH}
    s_add_u32 s49, s49, {FBIAS}
    s_lshl_b32 s50, s2, 4
    s_add_u32 s50, s50, {F6_O}
    s_cmp_eq_u32 s95, 3
    s_cselect_b32 s50, s50, 0x1000000
    s_cmp_eq_u32 s95, 0
    s_cselect_b32 s49, s49, {'0x1000000' if (F6E or RTK or WOE) else 's50'}
    v_mov_b32 v61, 0x1000000
    v_writelane_b32 v61, s49, 0
    v_mov_b32 v19, s93
    s_lshl_b32 s40, s2, 4
    s_add_u32 s40, s40, {F5_O}
    s_cmp_eq_u32 s95, 2
    s_cselect_b32 s40, s40, {'0x1000000' if RTK else 's50'}
    v_mov_b32 v10, 0x1000000
    v_writelane_b32 v10, s40, 0
    s_mov_b32 s57, s50
    s_lshl_b32 s56, s100, 2
    s_add_u32 s56, s56, s95
    s_mul_i32 s56, s56, {16*1280}
    s_mul_i32 s41, s101, 160
    s_add_u32 s56, s56, s41
    s_movk_i32 s41, 6554
    """)
    for n in range(3):
        a(f"""
        v_add_u32 v8, {64*n}, v2
        v_min_u32 v8, 159, v8
        v_mul_u32_u24 v9, s41, v8
        v_lshrrev_b32 v9, 16, v9
        v_mul_u32_u24 v9, {1280-160}, v9
        v_lshl_add_u32 v{16+n}, v8, 4, v9
        """)
    if PRET:
        map_p3(a, 60, 61, 40)
        a(f"""
        s_lshl_b32 s40, s60, 2
        s_add_u32 s40, s40, s95
        s_mul_i32 s40, s40, 114688
        s_lshr_b32 s41, s61, 2
        s_mul_i32 s41, s41, 14336
        s_add_u32 s40, s40, s41
        s_and_b32 s41, s61, 3
        s_lshl_b32 s41, s41, 9
        s_add_u32 s40, s40, s41
        s_add_u32 s40, s40, {HH_OFF}
        v_and_b32 v20, 3, v2
        v_lshlrev_b32 v20, 7, v20
        v_bfe_u32 v21, v2, 2, 3
        v_min_u32 v21, 6, v21
        v_lshl_add_u32 v20, v21, 11, v20
        v_mul_u32_u24 v21, 57344, v4
        v_add3_u32 v20, v20, v21, s40
        s_lshl_b32 s40, s100, 1
        s_lshr_b32 s41, s95, 1
        s_add_u32 s40, s40, s41
        s_mul_i32 s40, s40, 40960
        s_mul_i32 s41, s101, 5120
        s_add_u32 s40, s40, s41
        s_and_b32 s41, s95, 1
        s_lshl_b32 s41, s41, 8
        s_add_u32 s40, s40, s41
        s_add_u32 s40, s40, {H_OFF}
        v_lshrrev_b32 v21, 1, v2
        v_min_u32 v21, 9, v21
        v_lshlrev_b32 v21, 9, v21
        v_and_b32 v22, 1, v2
        v_lshl_add_u32 v21, v22, 7, v21
        v_add_u32 v21, s40, v21
        """)
    srd(a, 24, 20, XN_OFF, XN_SZ)
    srd_dyn(a, 28, 20, W1_OFF, 46, 153600)
    mspill(a)
    poll(a, "M_poll1", 12, "0", 9)
    mmark(a, "p1_sync")
    L = Loads(a, P1LIM)
    if WOE: a("v_mov_b32 v8, 0x1000000\nv_writelane_b32 v8, s57, 0")
    for n in range(10):
        g = 11 if n >= 9 else None
        L.add(f"buffer_load_dwordx4 a[{16*n}:{16*n+3}], v3, s[24:27], s45 offen {SC}", pre=f"s_add_u32 m0, s47, {12288*n}", gate=g)
        for c in range(3):
            L.add(f"buffer_load_dwordx4 v3, s[28:31], m0 offen offset:{1024*c} {SC} lds", gate=g)
        for c in range(1, 4):
            L.add(f"buffer_load_dwordx4 a[{16*n+4*c}:{16*n+4*c+3}], v3, s[24:27], s45 offen offset:{1024*c} {SC}",
                  tag=n if c == 3 else None, post="s_add_u32 s45, s45, 4096" if c == 3 and n < 9 else None, gate=g)
        if WOE and n == 4:
            for tx_, po in rt_se: L.add(tx_, post=po, gate=8)
            rt_se = []
        if WOE and n == 8:
            L.add("buffer_store_dword v19, v8, s[8:11], 0 offen sc0 sc1", gate=19)
    for c in range(8):
        L.add(f"buffer_load_dwordx4 v3, s[28:31], m0 offen offset:{1024*(c%4)} {SC} lds", pre=f"s_add_u32 m0, s48, {QB + 1024*c}" if c % 4 == 0 else None, gate=11, tag='qb' if c == 7 else None)
    for n in range(3):
        L.add(f"buffer_load_dwordx4 v{16+n}, s[68:71], s56 offen nt lds", pre=f"s_add_u32 m0, s47, {XL + 1024*n}", gate=27)
    L.pump(14)
    def woreg(T, k):
        r = 156 + 4 * ((5 * T + k + 1) % 25)
        if WOE: r = 252 - 4 * (5 * k + T)
        return f"a[{r}:{r+3}]"
    def wo_add(lo, hi, g):
        for q in range(lo, hi):
            k, T = divmod(q, 5)
            L.add(f"buffer_load_dwordx4 {woreg(T, k)}, v3, s[64:67], s23 offen {SC}", pre=f"s_add_u32 s23, s22, {T*20480 + 1024*k}", gate=g, tag=('WO', k))
    if WOE:
        L.add("buffer_load_dword v63, v62, s[8:11], 0 offen sc1", tag='f6', gate=35)
        wo_add(0, WOE, 44)
    for tx_, po in rt_se: L.add(tx_, post=po, gate=SEG, tag='se')
    for n_, (tx_, po) in enumerate(rt_st): L.add(tx_, post=po, gate=(41 if RTK or n_ < KST else 50), tag='rts' if n_ == len(rt_st) - 1 else None)
    if RTW and not RTK: L.add("buffer_store_dword v19, v10, s[8:11], 0 offen sc0 sc1", gate=4)
    if not WOE: L.add("buffer_load_dword v63, v62, s[8:11], 0 offen sc1", tag='f6', gate=60)
    wo_add(WOE, 25, 70)
    ACC = 64; WF = 24
    def rd(s, T):
        r = WF + 4 * ((s % 2) * 3 + T)
        return a.ds(f"ds_read_b128 v[{r}:{r+3}], v{3 if s < 20 else 7} offset:{(s % 20) * 3072 + T * 1024}")
    tR = {}
    L.need(0)
    a("s_barrier")
    mmark(a, "p1_first")
    for T in range(3): tR[(0, T)] = rd(0, T)
    for s in range(40):
        nxt = s + 1
        if nxt < 40 and nxt % 4 == 0:
            L.need(nxt // 4, gate=s - 1)
            a("s_barrier")
        for T in range(3):
            if nxt < 40: tR[(nxt, T)] = rd(nxt, T)
            a.wait(lg=tR[(s, T)])
            r = WF + 4 * ((s % 2) * 3 + T)
            d = ACC + 16 * T
            a(f"v_mfma_f32_32x32x16_bf16 v[{d}:{d+15}], v[{r}:{r+3}], a[{4*s}:{4*s+3}], " + ("0" if s == 0 else f"v[{d}:{d+15}]"))
            if s >= 1 and rt_rd:
                a(rt_rd.pop(0))
            elif s == 12 and T == 0:
                for x_ in rt_cs: a(x_)
            elif s in (16, 17) and rt_cs2:
                a(rt_cs2.pop(0))
            if T != 1 or s >= 36:
                if 9 in L.t: L.paced(gate=s)
                else: L.pump(1, gate=s)
    assert not rt_rd
    mmark(a, "p1_loop")
    if RTK or F6E: a("v_mov_b32 v9, 0x1000000\nv_writelane_b32 v9, s57, 0")
    if PRET == 2: a("global_load_dword v22, v21, s[20:21] sc1\nglobal_load_dword v22, v20, s[20:21] sc1")
    pa = Paced(a, L, 8 if not KST else 30, gate=43 if WOE else 45)
    E, O, TMP, VP = 128, 168, 12, 188
    for i in range(9):
        a(f"v_cvt_pk_bf16_f32 v{VP+i}, v{84+2*i}, v{85+2*i}")
    a(f"v_mov_b32 v{VP+9}, 0x3f80\nv_cvt_pk_bf16_f32 v{VP+10}, v102, v103\nv_mov_b32 v{VP+11}, 0x3f80")
    class KW:
        c = 0
        def __call__(self, text):
            pa(text); self.c += 1
            if WOE and self.c == 20:
                L.need('f6', gate=43)
                check_flags(a, "M_f6", 63, 62, "0", False)
                pa.gate = 45
            if self.c in (10, 30, 50):
                q = (self.c - 10) // 20
                a(f"ds_write_b128 v11, v[{VP+4*q}:{VP+4*q+3}] offset:{80+16*q}")
            m = re.match(r"v_cvt_pk_bf16_f32 v(\d+),", text)
            if m and (int(m.group(1)) - O) % 4 == 3:
                q = (int(m.group(1)) - O) // 4
                a(f"ds_write_b128 v11, v[{O+4*q}:{O+4*q+3}] offset:{16*q}")
    softmax_pair(KW(), 64, E, O, TMP, True)
    if RTW and not RTK: L.lim = 60; L.pump(1, gate=60)
    a.wait_all_lg()
    L.need('qb')
    if RTK or F6E:
        L.need('se')
        a("buffer_store_dword v19, v9, s[8:11], 0 offen sc0 sc1")
    a("s_barrier")
    mmark(a, "p1_ksm")
    tk = []
    FA, FB, KD = 128, 200, 24
    def kvm(k2):
        a.wait(lg=tk[k2])
        a(f"v_mfma_f32_32x32x16_bf16 v[{KD}:{KD+15}], v[{FA+4*k2}:{FA+4*k2+3}], v[{FB+4*k2}:{FB+4*k2+3}], " + ("0" if k2 == 0 else f"v[{KD}:{KD+15}]"))
    for ks in range(8):
        for rho in range(2):
            off = (16 * ks + rho) * 272
            a(f"ds_read_b64_tr_b16 v[{FA+4*ks+2*rho}:{FA+4*ks+2*rho+1}], v57 offset:{off}")
            t = a.ds(f"ds_read_b64_tr_b16 v[{FB+4*ks+2*rho}:{FB+4*ks+2*rho+1}], v56 offset:{off+80}")
        tk.append(t)
        if ks >= 2: kvm(ks - 2)
    kvm(6); kvm(7)
    a("s_mov_b32 exec_lo, 0xffffff\ns_mov_b32 exec_hi, 0xffffff")
    for c in range(3):
        a(f"ds_write_b128 v58, v[{KD+4*c}:{KD+3+4*c}] offset:{768*c}")
    a("s_mov_b64 exec, -1")
    tk = [a.ds(f"ds_read_b32 v{40+i}, v59 offset:{256*i}") for i in range(8)]
    def rdq(s):
        r = 128 + 4 * (s % 10)
        return a.ds(f"ds_read_b128 v[{r}:{r+3}], v6 offset:{768*s}")
    tq = [rdq(s) for s in range(6)]
    if a.vm_issued - a.vm_done > 40: a.wait(vm=a.vm_issued - 24)
    for i in range(8):
        a.wait(lg=tk[i])
        if i == 7: a("s_mov_b32 exec_hi, 0")
        a(f"buffer_atomic_add_f32 v{40+i}, v60, s[36:39], s54 offen offset:{256*i}")
    a("s_mov_b64 exec, -1")
    mmark(a, "p1_atom")
    tat = a.vm_issued
    def pretouch():
        a("global_load_dword v22, v21, s[20:21] sc1\nglobal_load_dword v22, v20, s[20:21] sc1")
    if PRET == 1: pretouch()
    P = lambda r: f"v[{r}:{r+1}]"
    L.lim = 60
    def sig2a():
        a.wait(vm=tat)
        a("s_barrier")
        a("buffer_store_dword v19, v61, s[8:11], 0 offen sc0 sc1")
        if RTK: a("buffer_store_dword v19, v10, s[8:11], 0 offen sc0 sc1")
        mmark(a, "p1_sig")
    for s in range(40):
        if s + 6 < 40: tq.append(rdq(s + 6))
        if s % 2 == 0: a.wait(lg=tq[s + 1])
        r = 128 + 4 * (s % 10)
        a(f"v_mfma_f32_32x32x16_bf16 v[112:127], v[{r}:{r+3}], a[{4*s}:{4*s+3}], " + ("0" if s == 0 else "v[112:127]"))
        if s >= RQ0 and s % RQP == RQP - 1: L.paced(gate=50)
        if RTK and s == F6S: L.pump(1, gate=60)
        if s == SIG2: sig2a()
    mmark(a, "p1_q")
    if F6E: L.pump(1, gate=60)
    if RTK: L.need('f6')
    if RTW: check_flags(a, "M_f6", 63, 62, "0", False)
    softmax_pair(Paced(a, L, WOP, gate=99) if RTW else Paced(a, L, 24, gate=50), 104, E, O, TMP)
    assert RTW or 'rts' in L.t
    for c in (0, 2):
        for j in range(4):
            a(f"v_permlane32_swap_b32 v{O+4*c+j}, v{O+4*c+4+j}")
    mmark(a, "p1_qsm")
    a("""; ==== P1b: o = phi_q kv / (phi_q z + 1e-6) for this workgroup's 128 rows x 2 heads""")
    srd(a, 24, 20, KV_OFF, KV_SZ)
    srd(a, 28, 20, O_OFF, O_SZ)
    a(f"""
    v_min_u32 v6, 23, v5
    v_lshlrev_b32 v6, 4, v6
    v_mul_u32_u24 v7, 3840, v4
    v_add_u32 v7, v7, v6
    v_mul_u32_u24 v8, 768, v4
    v_add_u32 v6, v8, v6
    s_mul_i32 s45, s43, 7680
    s_add_u32 s46, s45, 3840
    v_and_b32 v8, 15, v2
    v_lshlrev_b32 v8, 4, v8
    s_lshl_b32 s47, s43, 8
    s_add_u32 s47, s47, {F2A_O}
    v_lshrrev_b32 v10, 4, v5
    v_mul_u32_u24 v10, {O_TT}, v10
    v_add_u32 v10, v10, v8
    v_lshl_add_u32 v11, v4, 8, v10
    s_mul_i32 s48, s44, {2*O_TT}
    s_mul_i32 s49, s43, 1280
    s_add_u32 s48, s48, s49
    s_lshl_b32 s49, s44, 4
    s_add_u32 s49, s49, s43
    s_lshl_b32 s49, s49, 4
    s_add_u32 s49, s49, {FO_O}
    """)
    for r in range(12, 20): a(f"v_mov_b32 v{r}, 0")
    if F6E:
        L.need('f6')
        check_flags(a, "M_f6", 63, 62, "0", False)
    if RTK or F6E: L.pump(WO2, gate=99)
    mspill(a)
    if ONE2A:
        a("s_cmp_lg_u32 s95, 0\ns_cbranch_scc1 M_poll2a_go")
        poll(a, "M_poll2a", 8, "s47", 9)
        a("s_barrier")
    else:
        poll(a, "M_poll2a", 8, "s47", 9)
    mmark(a, "p1b_sync")
    b = 64
    for hh in range(2):
        for u in range(2):
            for e in range(2):
                r = b + 16 * hh + 8 * u + 4 * e
                a(f"buffer_load_dwordx4 v[{r}:{r+3}], v6, s[24:27], s{45+hh} offen offset:{(4*u+e)*384} {SC}")
        if hh == 0:
            for e in range(2):
                r = b + 32 + 4 * e
                t0 = a.vm(f"buffer_load_dwordx4 v[{r}:{r+3}], v7, s[24:27], s45 offen offset:{(8+e)*384} {SC}")
    t1 = a.vm_issued
    if not RTW and not ONE2A: a("s_barrier")
    OD, OB = [24, 40], 56
    for hh in range(2):
        a.wait(vm=t0 if hh == 0 else t1)
        if hh == 0: mmark(a, "p1b_kv")
        for u in range(2):
            r = b + 16 * hh + 8 * u
            for j in range(4):
                a(f"v_cvt_pk_bf16_f32 v{r+j}, v{r+2*j}, v{r+2*j+1}")
        a("s_mov_b32 exec_hi, 0" if hh == 0 else "s_mov_b32 exec_lo, 0")
        for j in range(4): a(f"v_cvt_pk_bf16_f32 v{12+4*hh+j}, v{b+32+2*j}, v{b+33+2*j}")
        a("s_mov_b64 exec, -1")
        d = OD[hh]
        for u in range(2):
            r = b + 16 * hh + 8 * u
            q = O + 8 * u + 4 * hh
            a(f"v_mfma_f32_32x32x16_bf16 v[{d}:{d+15}], v[{r}:{r+3}], v[{q}:{q+3}], " + ("0" if u == 0 else f"v[{d}:{d+15}]"))
        a(f"v_mfma_f32_32x32x16_bf16 v[{d}:{d+15}], v[{12+4*hh}:{15+4*hh}], v[{O+16}:{O+19}], v[{d}:{d+15}]")
    OB = 104
    for hh in range(2):
        d = OD[hh]
        a(f"v_add_f32 v{d+10}, {f32(1e-6)}, v{d+10}")
        a(f"v_rcp_f32 v{d+10}, v{d+10}")
        for j in range(0, 10, 2):
            a(f"v_pk_mul_f32 {P(d+j)}, {P(d+j)}, {P(d+10)} op_sel_hi:[1,0]")
        for j in range(5):
            a(f"v_cvt_pk_bf16_f32 v{OB+5*hh+j}, v{d+2*j}, v{d+2*j+1}")
        if hh == 0:
            a(f"buffer_store_dwordx4 v[{OB}:{OB+3}], v11, s[28:31], s48 offen {SC}")
    a(f"""
    buffer_store_dwordx4 v[{OB+4}:{OB+7}], v11, s[28:31], s48 offen offset:512 {SC}
    v_permlane32_swap_b32 v{OB+8}, v{OB+10}
    v_permlane32_swap_b32 v{OB+9}, v{OB+11}
    s_mov_b32 exec_hi, 0
    """)
    tst = a.vm(f"buffer_store_dwordx4 v[{OB+8}:{OB+11}], v10, s[28:31], s48 offen offset:1024 {SC}")
    a("s_mov_b32 exec_hi, -1")
    if not RTW and not F6E and not WOE: L.pump(1, gate=60)
    mmark(a, "p1b_st")
    map_p3(a, 60, 61, 40)
    a(f"""
    s_mul_i32 s62, s61, 27
    s_lshr_b32 s62, s62, 1
    s_mul_i32 s40, s62, 20480
    """)
    srd_dyn(a, 12, 20, W3_OFF - 81920, 40, 163840)
    srd_dyn(a, 16, 20, W3_OFF + 81920, 40, 163840)
    srd_dyn(a, 68, 20, W3_OFF + 245760, 40, 40960)
    a.wait(vm=tst)
    signal(a, "s49", 8)
    if not RTW:
        a(f"s_sub_u32 s50, s50, {F6_O - F5_O}")
        signal(a, "s50", 8, scale=False)
    mmark(a, "p1b_sig")
    if not RTW and not F6E and not WOE:
        L.need('f6')
        check_flags(a, "M_f6", 63, 62, "0", False)
    L.pump(WO1, gate=99); woq = [(x[0], x[1], x[2], x[3], None) for x in L.q]
    a("""; ==== P2: h = x + o wo (64 rows x 80 columns, K split over the 4 waves), row sums for the second LayerNorm""")
    PB2, TB2 = 0, XL
    srd(a, 24, 20, H_OFF, H_SZ)
    srd(a, 32, 20, ST_OFF, ST_SZ)
    a(f"""
    s_mul_i32 s44, s95, 5
    s_mul_i32 s45, s100, {4*O_TT//1024}
    s_add_u32 s45, s45, s44
    s_lshl_b32 s45, s45, 10
    v_and_b32 v7, 3, v2
    v_lshlrev_b32 v7, 4, v7
    v_bfe_u32 v8, v2, 2, 1
    v_lshl_add_u32 v7, v8, 8, v7
    s_lshl_b32 s46, s100, 9
    s_lshl_b32 s47, s95, 6
    s_add_u32 s46, s46, s47
    s_add_u32 s46, s46, {FO_O}
    s_mul_i32 s47, s95, 15360
    v_add_u32 v6, s47, v3
    """)
    for j in range(1, 4):
        a(f"""
        s_add_u32 s47, s95, {j}
        s_and_b32 s47, s47, 3
        s_mul_i32 s47, s47, 15360
        s_add_u32 s47, s47, {PB2 + (3-j)*5120}
        v_add_u32 v{9+j}, s47, v3
        """)
    map_p4(a, 58, 59, 40)
    a(f"""
    v_and_b32 v13, 15, v2
    v_lshrrev_b32 v14, 4, v2
    v_mul_u32_u24 v17, 160, v13
    v_lshl_add_u32 v17, v14, 3, v17
    s_mul_i32 s51, s95, 3072
    s_add_u32 s52, s51, {XL}
    v_add_u32 v15, s52, v17
    s_add_u32 s51, s51, {TB2}
    v_add_u32 v17, s51, v17
    v_mul_u32_u24 v18, 160, v13
    v_lshl_add_u32 v18, v14, 4, v18
    v_add_u32 v18, s51, v18
    v_lshlrev_b32 v19, 4, v13
    v_lshl_add_u32 v19, v4, 9, v19
    v_and_b32 v18, 1, v14
    v_lshl_add_u32 v19, v18, 10, v19
    s_lshl_b32 s48, s100, 1
    s_lshr_b32 s49, s95, 1
    s_add_u32 s48, s48, s49
    s_lshl_b32 s53, s48, 3
    s_add_u32 s53, s53, s101
    s_lshl_b32 s53, s53, 8
    s_mul_i32 s48, s48, 40960
    s_mul_i32 s49, s101, 5120
    s_add_u32 s48, s48, s49
    s_and_b32 s49, s95, 1
    s_lshl_b32 s50, s49, 7
    s_add_u32 s53, s53, s50
    s_lshl_b32 s49, s49, 8
    s_add_u32 s48, s48, s49
    s_add_u32 s49, s48, 4096
    s_lshl_b32 s56, s100, 2
    s_add_u32 s56, s56, s95
    s_lshl_b32 s56, s56, 3
    s_add_u32 s56, s56, s101
    s_lshl_b32 s56, s56, 4
    s_add_u32 s56, s56, {F3_O}
    s_mov_b32 s54, 0xffff0000
    s_lshr_b32 s50, s62, 3
    s_lshl_b32 s50, s50, 2
    v_min_u32 v20, 11, v13
    v_add_u32 v20, s50, v20
    v_min_u32 v20, 107, v20
    v_and_b32 v21, 1, v14
    v_mul_u32_u24 v16, 108, v21
    v_add_u32 v20, v20, v16
    s_mul_i32 s50, s59, 5
    s_lshr_b32 s50, s50, 2
    s_mul_i32 s50, s50, 56
    s_mul_i32 s51, s95, 14
    s_add_u32 s50, s50, s51
    v_min_u32 v16, 13, v13
    v_mul_u32_u24 v21, 56, v21
    v_add3_u32 v16, v16, v21, s50
    v_min_u32 v16, 559, v16
    v_lshrrev_b32 v21, 1, v16
    v_subrev_u32 v22, {512-208}, v16
    v_cmp_le_u32 vcc, 512, v16
    v_cndmask_b32 v16, v21, v22, vcc
    v_cmp_le_u32 vcc, 32, v2
    v_cndmask_b32 v20, v20, v16, vcc
    v_lshlrev_b32 v20, 4, v20
    s_mov_b32 s57, {F5_O}
    """)
    if RTW: tf = a.vm("buffer_load_dword v21, v20, s[8:11], s57 offen sc1")
    tx = [a.ds(f"ds_read_b64 v[{112+2*T}:{113+2*T}], v15 offset:{32*T}") for T in range(5)]
    A4 = [72, 92]; RS_, PS = 24, 44
    a.wait(lg=tx[4])
    for j in range(10):
        a(f"v_lshlrev_b32 v{128+2*j}, 16, v{112+j}")
        a(f"v_and_b32 v{129+2*j}, s54, v{112+j}")
    L0 = Loads(a, 60); w3_dma(L0, 0, 3); w3_dma(L0, 1, 3)
    if RTW:
        a.wait(vm=tf)
        check_flags(a, "M_f5", 21, 20, "s57", False)
        L0.pump(W3EARLY, gate=3)
    mspill(a)
    poll(a, "M_poll2b", 7, "s46", 9)
    mmark(a, "p2_sync")
    L = Loads(a, 40)
    order = [(sl, k) for sl in (1, 2, 3, 0) for k in range(5)]
    for i, (sl, k) in enumerate(order):
        pre = None
        if k == 0:
            pre = f"s_add_u32 s55, s95, {sl}\ns_and_b32 s55, s55, 3\ns_mul_i32 s55, s55, {O_TT}\ns_add_u32 s55, s55, s45"
        elif k == 4:
            pre = "s_add_u32 s55, s55, 4096"
        L.add(f"buffer_load_dwordx4 a[{4*i}:{4*i+3}], v3, s[28:31], s55 offen offset:{1024*(k%4)} {SC} {NT4}", pre=pre, tag=i)
        while woq and woq[0][1][1] <= i + 1: L.q.append(woq.pop(0))
        if i == F5I and not RTW: L.add("buffer_load_dword v21, v20, s[8:11], s57 offen sc1", tag='f5')
    L.q += L0.q; L.t.update(L0.t)
    if TOUCH:
        nsh = 4 if MAP4 == 'row' else 8
        per = 560 // nsh
        nin = (per + 63) // 64
        srd(a, 64, 20, W4_OFF, W4_SZ)
        a(f"""
        s_mov_b32 s36, s16
        s_mov_b32 s37, s17
        s_mov_b32 s38, 204800
        s_mov_b32 s39, 0x20000
        s_and_b32 s40, s60, 7
        s_lshl_b32 s40, s40, 2
        s_add_u32 s40, s40, s95
        s_mul_i32 s22, s40, {50*128}
        v_min_u32 v148, 49, v2
        v_lshlrev_b32 v148, 7, v148
        s_and_b32 s40, s58, {nsh-1}
        s_mul_i32 s40, s40, {per}
        s_mul_i32 s41, s95, 14
        s_mul_i32 s23, s59, {5*56}
        s_add_u32 s23, s23, s41
        s_lshl_b32 s23, s23, 10
        s_movk_i32 s41, 586
        """)
        L.add("buffer_load_dword v152, v148, s[36:39], s22 offen sc1", gate=3)
        for q in range(nin):
            a(f"""
            v_add_u32 v153, {64*q}, v2
            v_min_u32 v153, {per-1}, v153
            v_add_u32 v153, s40, v153
            v_mul_u32_u24 v154, s41, v153
            v_lshrrev_b32 v154, 16, v154
            v_mul_u32_u24 v154, {57344 - 112*128}, v154
            v_lshl_add_u32 v{149+q}, v153, 7, v154
            """)
            L.add(f"buffer_load_dword v152, v{149+q}, s[64:67], s23 offen sc1", gate=3)
    L.pump(12)
    ACC2 = [72, 92, 72, 128]
    def flush_p(ph):
        dp = ACC2[ph]
        for T in range(5):
            a(f"ds_write_b128 v6, v[{dp+4*T}:{dp+4*T+3}] offset:{ph*5120 + T*1024}")
    wr = []; todo = []
    for i, (sl, k) in enumerate(order):
        ph = i // 5
        d = ACC2[ph]
        L.need(i)
        if i == 0: mmark(a, "p2_first")
        if i == F5I + 1 and not RTW: check_flags(a, "M_f5", 21, 20, "s57", False)
        if i == 15:
            a.wait_all_lg()
            a("s_barrier")
            for j, rb in ((2, RS_), (1, PS)):
                for T in range(5):
                    te = a.ds(f"ds_read_b128 v[{rb+4*T}:{rb+4*T+3}], v{10+j} offset:{1024*T}")
        if i == 17:
            a.wait(lg=te)
            todo = [f"v_add_f32 v{RS_+j}, v{RS_+j}, v{PS+j}" for j in range(20)]
        for T in range(5):
            a(f"v_mfma_f32_16x16x32_bf16 v[{d+4*T}:{d+4*T+3}], {woreg(T, k)}, a[{4*i}:{4*i+3}], " + ("0" if k == 0 and ph < 3 else f"v[{d+4*T}:{d+4*T+3}]"))
            if wr and T in (0, 2, 4): a(wr.pop(0))
            elif T == 1 or T == 3: L.pump(1, gate=3 if i > F5I else None)
            elif todo:
                a(todo.pop(0)); a(todo.pop(0))
        if k == 0 and ph > 0:
            dp = ACC2[ph - 1]
            wr = [f"ds_write_b128 v6, v[{dp+4*T}:{dp+4*T+3}] offset:{(ph-1)*5120 + T*1024}" for T in range(5)]
    assert not wr and not woq
    a.wait_all_lg()
    a("s_barrier")
    mmark(a, "p2_bar")
    for T in range(5):
        t = a.ds(f"ds_read_b128 v[{A4[0]+4*T}:{A4[0]+4*T+3}], v10 offset:{1024*T}")
    for x_ in todo: a(x_)
    a("v_mov_b32 v14, 0x3f803f80\nv_mov_b32 v112, 0\nv_mov_b32 v113, 0")
    for r in range(0, 20, 2):
        a(f"v_pk_add_f32 {P(128+r)}, {P(128+r)}, {P(RS_+r)}")
    a.wait(lg=t)
    for r in range(0, 20, 2):
        a(f"v_pk_add_f32 {P(128+r)}, {P(128+r)}, {P(A4[0]+r)}")
    for j in range(10):
        a(f"v_cvt_pk_bf16_f32 v{RS_+j}, v{128+2*j}, v{129+2*j}")
    for j in (8, 9):
        a(f"v_dot2c_f32_bf16 v112, v{RS_+j}, v14")
        a(f"v_dot2c_f32_bf16 v113, v{RS_+j}, v{RS_+j}")
    for it in range(3):
        r = RS_ + 4 * it
        a(f"v_permlane16_swap_b32 v{r}, v{r+2}\nv_permlane16_swap_b32 v{r+1}, v{r+3}")
        if it == 2: a("s_mov_b32 exec_lo, 0xffff\ns_mov_b32 exec_hi, 0xffff")
        a(f"buffer_store_dwordx4 v[{r}:{r+3}], v19, s[24:27], s{48 if it < 2 else 49} offen offset:{2048*(it%2)} {LS}")
    a("s_mov_b64 exec, -1")
    for j in range(8):
        a(f"v_dot2c_f32_bf16 v112, v{RS_+j}, v14")
        a(f"v_dot2c_f32_bf16 v113, v{RS_+j}, v{RS_+j}")
    a(f"""
    v_lshlrev_b32 v13, 3, v13
    s_nop 1
    v_mov_b32 v114, v112
    v_mov_b32 v115, v113
    v_permlane32_swap_b32 v112, v114
    v_permlane32_swap_b32 v113, v115
    v_pk_add_f32 v[112:113], v[112:113], v[114:115]
    v_mov_b32 v114, v112
    v_mov_b32 v115, v113
    v_permlane16_swap_b32 v112, v114
    v_permlane16_swap_b32 v113, v115
    v_pk_add_f32 v[112:113], v[112:113], v[114:115]
    s_mov_b64 exec, 0xffff
    """)
    tst = a.vm(f"buffer_store_dwordx2 v[112:113], v13, s[32:35], s53 offen {LS}")
    a("s_mov_b64 exec, -1")
    mmark(a, "p2_st")
    if P2A: L.pump(99, gate=3)
    srd(a, 28, 20, ST_OFF, ST_SZ)
    a.wait(vm=tst)
    signal(a, "s56", 8, LF)
    mmark(a, "p2_sig")
    L.need(('W3', 1), gate=3)
    a("s_barrier")
    L.pump(99, gate=3); w3_dma(L, 2); L.pump(99)
    a("""; ==== P3: gate/up GEMM on h; mean removed by an extra K-step with the weight column sums, rstd applied in the GELU epilogue""")
    map_p4(a, 100, 101, 40)
    a(f"s_mul_i32 s96, s101, {ROT4}\ns_add_u32 s96, s96, s95\ns_and_b32 s96, s96, 3")
    a(f"""
    s_lshl_b32 s44, s60, 2
    s_add_u32 s44, s44, s95
    s_mul_i32 s45, s44, 40960
    v_bfe_u32 v7, v2, 2, 1
    v_bfe_u32 v8, v2, 4, 1
    v_xor_b32 v9, v8, v4
    v_lshlrev_b32 v9, 7, v9
    v_lshl_add_u32 v9, v8, 8, v9
    v_bfe_u32 v8, v2, 3, 1
    v_lshl_add_u32 v9, v8, 6, v9
    v_and_b32 v8, 3, v2
    v_lshl_add_u32 v9, v8, 4, v9
    v_lshl_add_u32 v8, v7, 9, v9
    v_mul_u32_u24 v7, 20480, v7
    v_add_u32 v10, v7, v9
    v_add_u32 v11, 40960, v10
    v_add_u32 v12, 81920, v10
    v_add_u32 v13, 122880, v10
    """)
    srd(a, 12, 20, CS_OFF, CS_SZ)
    a("s_lshl_b32 s46, s62, 9\ns_add_u32 s47, s46, 4096\nv_mov_b32 v0, v8")
    def cs_ld(T):
        return f"buffer_load_dwordx4 a[{160+4*(T%3)}:{163+4*(T%3)}], v0, s[12:15], s{46 if T < 4 else 47} offen offset:{1024*(T%4)} {SC}"
    for T in range(3): a(cs_ld(T))
    srd(a, 36, 20, HH_OFF, HH_SZ)
    srd(a, 32, 20, RS_OFF, RS_SZ)
    a(f"""
    v_lshlrev_b32 v6, 3, v5
    v_lshl_add_u32 v6, v4, 10, v6
    s_lshl_b32 s48, s44, 11
    v_lshrrev_b32 v20, 4, v5
    v_mul_u32_u24 v20, 57344, v20
    v_and_b32 v21, 15, v2
    v_lshlrev_b32 v7, 4, v21
    v_add_u32 v20, v7, v20
    v_lshl_add_u32 v20, v4, 8, v20
    s_mul_i32 s50, s44, 114688
    s_lshr_b32 s51, s61, 2
    s_mul_i32 s51, s51, 14336
    s_add_u32 s50, s50, s51
    s_and_b32 s51, s61, 3
    s_lshl_b32 s51, s51, 9
    s_add_u32 s50, s50, s51
    s_lshr_b32 s51, s44, 1
    s_lshl_b32 s51, s51, 2
    s_lshr_b32 s52, s61, 2
    s_add_u32 s51, s51, s52
    s_lshl_b32 s51, s51, 7
    s_and_b32 s52, s44, 1
    s_lshl_b32 s52, s52, 4
    s_add_u32 s51, s51, s52
    s_and_b32 s52, s61, 3
    s_lshl_b32 s52, s52, 2
    s_add_u32 s51, s51, s52
    v_mov_b32 v8, 0x1000000
    v_writelane_b32 v8, s51, 0
    s_mov_b32 s58, {F4E_O}
    s_mov_b32 s59, {F4_O}
    s_lshl_b32 s51, s44, 8
    s_add_u32 s51, s51, {F3_O}
    s_lshr_b32 s52, s61, 2
    s_lshl_b32 s52, s52, 13
    s_lshl_b32 s53, s44, 7
    s_add_u32 s52, s52, s53
    s_and_b32 s53, s61, 3
    s_cmp_eq_u32 s53, 1
    s_cselect_b32 s52, s52, 0x1000000
    """)
    def w4reg(i):
        if i < 21: return f"a[{172+4*i}:{175+4*i}]"
        if i < 53: return f"v[{252-4*(i-21)}:{255-4*(i-21)}]"
        return f"a[{96+4*(i-53)}:{99+4*(i-53)}]"
    def w4_item(i):
        k, T = divmod(i, 5)
        return dict(text=f"buffer_load_dwordx4 {w4reg(i)}, v3, s[64:67], s23 offen {SC}", pre=f"s_add_u32 s23, s22, {T*57344 + 1024*k}", tag=('W4', i))
    srd(a, 64, 20, W4_OFF, W4_SZ)
    a(f"""
    s_mul_i32 s40, s95, 14
    s_mul_i32 s22, s101, {5*56}
    s_add_u32 s22, s22, s40
    s_lshl_b32 s22, s22, 10
    """)
    if TOUCH3:
        a(f"""
        s_and_b32 s40, s60, 7
        s_lshl_b32 s40, s40, 2
        s_add_u32 s40, s40, s95
        s_mul_i32 s40, s40, {30*128}
        s_mul_i32 s41, s62, 20480
        s_add_u32 s40, s40, s41
        s_add_u32 s40, s40, {W3_OFF + 163840}
        v_min_u32 v72, 29, v2
        v_lshl_add_u32 v72, v72, 7, s40
        s_and_b32 s40, s100, 7
        s_mul_i32 s40, s40, 50
        v_min_u32 v73, 49, v2
        v_add_u32 v73, s40, v73
        s_movk_i32 s41, 820
        v_mul_u32_u24 v74, s41, v73
        v_lshrrev_b32 v74, 16, v74
        v_mul_u32_u24 v74, {57344 - 80*128}, v74
        v_lshl_add_u32 v73, v73, 7, v74
        s_add_u32 s40, s22, {W4_OFF + 4096}
        v_add_u32 v73, s40, v73
        """)
    Lw = Loads(a, 60)
    for q in range(W4S3): Lw.add(**w4_item(q))
    Lw.pump(99)
    mspill(a)
    poll(a, "M_poll3", 7, "s51", 9)
    mmark(a, "p3_sync")
    a("v_mov_b32 v1, s93")
    L = Loads(a, P3LIM)
    SR = 64
    for n in range(40):
        L.add(f"buffer_load_dwordx4 a[{4*n}:{4*n+3}], v3, s[24:27], s45 offen offset:{1024*(n%4)} {SC} {NT3}", tag=n,
              post="s_add_u32 s45, s45, 4096" if n % 4 == 3 else None)
        if n == 11:
            for p in range(4):
                L.add(f"buffer_load_dwordx2 v[{SR+2*p}:{SR+2*p+1}], v6, s[28:31], s48 offen offset:{256*p} {SC}", tag='st' if p == 3 else None)
    if TOUCH3 == 2: L.add("global_load_dword v9, v72, s[20:21] sc1")
    w3_dma(L, 3)
    if TOUCH3 == 1: L.add("global_load_dword v9, v72, s[20:21] sc1")
    if TOUCH3: L.add("global_load_dword v9, v73, s[20:21] sc1")
    L.pump(12)
    ACB = [80, 96, 112]
    NA = 3
    WF, NB, TMP, OUT = 24, 10, 64, [72, 76]
    REG = [12, 13, 10, 11, 12, 13, 10]
    seq = []
    for s in range(40):
        seq += [(0, s), (1, s)]
        if s >= LAG: seq.append((2, s - LAG))
    seq += [(2, s) for s in range(max(40 - LAG, 0), 40)] + [(T, s) for T in range(3, 7) for s in range(40)]
    frs = {}
    nrd = [0]
    def rd3():
        i = nrd[0]
        if i >= len(seq): return
        T, s = seq[i]
        r = WF + 4 * (i % NB)
        frs[i] = (r, a.ds(f"ds_read_b128 v[{r}:{r+3}], v{REG[T]} offset:{512*s}"))
        nrd[0] += 1
    def epi(T, pk):
        d, out, tmp = ACB[T % NA], OUT[T % 2], TMP
        Lx = []
        if pk:
            for j in range(0, 8, 2): Lx.append(f"v_pk_mul_f32 {P(tmp+j)}, {P(d+j)}, {P(d+j)}")
            for j in range(0, 8, 2): Lx.append(f"v_pk_fma_f32 {P(tmp+j)}, {P(tmp+j)}, v[14:15], v[14:15] op_sel:[0,1,0] op_sel_hi:[1,1,0]")
            for j in range(0, 8, 2): Lx.append(f"v_pk_mul_f32 {P(tmp+j)}, {P(tmp+j)}, {P(d+j)}")
            for j in range(8): Lx.append(f"v_exp_f32 v{tmp+j}, v{tmp+j}")
            for j in range(0, 8, 2): Lx.append(f"v_pk_mul_f32 {P(d+j)}, {P(d+j)}, {P(d+8+j)}")
            for j in range(0, 8, 2): Lx.append(f"v_pk_add_f32 {P(tmp+j)}, {P(tmp+j)}, 1.0 op_sel_hi:[1,0]")
            for j in range(8): Lx.append(f"v_rcp_f32 v{tmp+j}, v{tmp+j}")
            for j in range(0, 8, 2): Lx.append(f"v_pk_mul_f32 {P(d+j)}, {P(d+j)}, {P(tmp+j)}")
        else:
            for j in range(8): Lx.append(f"v_mul_f32 v{tmp+j}, v{d+j}, v{d+j}")
            for j in range(8): Lx.append(f"v_fma_f32 v{tmp+j}, v{tmp+j}, v15, v14")
            for j in range(8): Lx.append(f"v_mul_f32 v{tmp+j}, v{tmp+j}, v{d+j}")
            for j in range(8):
                Lx.append(f"v_exp_f32 v{tmp+j}, v{tmp+j}")
                Lx.append(f"v_mul_f32 v{d+j}, v{d+j}, v{d+8+j}")
            for j in range(8): Lx.append(f"v_add_f32 v{tmp+j}, 1.0, v{tmp+j}")
            for j in range(8):
                Lx.append(f"v_rcp_f32 v{tmp+j}, v{tmp+j}")
                if j >= 1: Lx.append(f"v_mul_f32 v{d+j-1}, v{d+j-1}, v{tmp+j-1}")
            Lx.append(f"v_cvt_pk_bf16_f32 v{out}, v{d}, v{d+1}")
            Lx.append(f"v_mul_f32 v{d+7}, v{d+7}, v{tmp+7}")
        for j in range(0 if pk else 1, 4): Lx.append(f"v_cvt_pk_bf16_f32 v{out+j}, v{d+2*j}, v{d+2*j+1}")
        Lx.append(f"buffer_store_dwordx4 v[{out}:{out+3}], v20, s[36:39], s50 offen offset:{2048*(T%2)} {SC if T < LOCT else LS}" + ("\ns_add_u32 s50, s50, 4096" if T % 2 else ""))
        return [(T, x) for x in Lx]
    stats = f"""
    v_add_f32 v{SR+0}, v{SR+0}, v{SR+2}
    v_add_f32 v{SR+1}, v{SR+1}, v{SR+3}
    v_add_f32 v{SR+4}, v{SR+4}, v{SR+6}
    v_add_f32 v{SR+5}, v{SR+5}, v{SR+7}
    v_add_f32 v{SR+0}, v{SR+0}, v{SR+4}
    v_add_f32 v{SR+1}, v{SR+1}, v{SR+5}
    v_mov_b32 v{SR+2}, v{SR}
    v_mov_b32 v{SR+3}, v{SR+1}
    v_permlane32_swap_b32 v{SR}, v{SR+2}
    v_permlane32_swap_b32 v{SR+1}, v{SR+3}
    v_add_f32 v{SR}, v{SR}, v{SR+2}
    v_add_f32 v{SR+1}, v{SR+1}, v{SR+3}
    v_mul_f32 v{SR}, {f32(-1.0/640)}, v{SR}
    v_mul_f32 v{SR+1}, {f32(1.0/640)}, v{SR+1}
    v_fma_f32 v{SR+1}, -v{SR}, v{SR}, v{SR+1}
    v_max_f32 v{SR+1}, 0, v{SR+1}
    v_add_f32 v{SR+1}, {f32(1e-5)}, v{SR+1}
    v_rsq_f32 v{SR+1}, v{SR+1}
    v_cvt_pk_bf16_f32 v{SR+2}, v{SR}, v{SR}
    v_lshlrev_b32 v{SR+2}, 16, v{SR+2}
    v_sub_f32 v{SR+3}, v{SR}, v{SR+2}
    v_cvt_pk_bf16_f32 v16, v{SR+2}, v{SR+3}
    v_mul_f32 v22, v{SR+1}, v{SR+1}
    v_mov_b32 v17, v16
    v_mov_b32 v18, v16
    v_mov_b32 v19, v16
    v_mul_f32 v14, {f32(C0)}, v{SR+1}
    v_mul_f32 v15, {f32(C1)}, v{SR+1}
    v_mul_f32 v15, v15, v22
    v_lshlrev_b32 v21, 2, v5
    buffer_store_dword v22, v21, s[32:35], s52 offen {SC}
    """.strip().split("\n")
    pending = []
    a(f"""
    v_and_b32 v7, 7, v2
    s_lshl_b32 s40, s100, 9
    s_lshl_b32 s41, s95, 7
    s_add_u32 s63, s40, s41
    v_lshl_add_u32 v7, v7, 2, s63
    s_mul_i32 s40, s95, 14
    s_mul_i32 s57, s100, {4*56}
    s_add_u32 s57, s57, s40
    s_lshl_b32 s57, s57, 10
    """)
    DIST = 8
    def cost(x):
        x = x.strip()
        return 2 if x.startswith(("v_exp", "v_rcp", "v_rsq", "buffer_")) else 1
    def fill(budget, hold=None):
        while budget > 0 and pending:
            pick = None
            blockW, blockR = set(), set()
            for n, (t, x) in enumerate(pending[:14]):
                ins = Ins(x.split("\n")[0])
                if ins.kind == 'vmem' and n > 0 and any(Ins(y.split("\n")[0]).kind == 'vmem' for _, y in pending[:n]): break
                ok = cost(x) <= budget and t != hold and not (set(ins.r) & blockW) and not (set(ins.w) & (blockW | blockR))
                if ok and any(need(p, ins) > dd for dd, p in enumerate(reversed(a.ins[-2:]))): ok = False
                if ok: pick = n; break
                blockW |= set(ins.w); blockR |= set(ins.r)
            if pick is None: break
            t_, x = pending.pop(pick)
            a(x); budget -= cost(x)
            if x.startswith("buffer_store"): stored[t_] = (a.vm_issued, cur[0])
    stored = {}; cur = [0]; posted = False; posted2 = False
    a(f"s_mov_b32 s56, {F4M_O}")
    KE, KN = 2 * EARLY, 2 * MID
    KM = 2 * MID2
    order = [(sl, k) for lo, hi in ((0, KE), (KE, KN), (KN, KM), (KM, 14)) for sl in (1, 2, 3, 0) for k in range(lo, hi)]
    L4 = Loads(a, 26)
    lateW = list(range(53, 70))
    for i, (sl, k) in enumerate(order):
        pre = None
        if k in (0, KE, KN, KM):
            pre = f"s_add_u32 s55, s96, {sl}\ns_and_b32 s55, s55, 3\ns_mul_i32 s55, s55, 57344\ns_add_u32 s55, s55, s57"
            if k: pre += f"\ns_add_u32 s55, s55, {1024*k}"
            k0 = k
        elif (k - k0) % 4 == 0:
            pre = "s_add_u32 s55, s55, 4096"
        r = 4 * (i % 24)
        g = i if i < 24 else 1000 + i - 24
        if i >= 4 * KE: g = max(g, 1000 + 4 * KE - CHK1)
        if i >= 4 * KN and KM > KN: g = max(g, 1000 + 4 * KN - CHK2)
        if i >= 4 * KM: g = max(g, 1000 + 4 * KM - CHK)
        L4.add(f"buffer_load_dwordx4 a[{r}:{r+3}], v3, s[36:39], s55 offen offset:{1024*((k-k0)%4)} {SC} {NT4}", pre=pre, tag=('H', i), gate=g)
        if i == 23:
            for _ in range(LWA): L4.add(**w4_item(lateW.pop(0)), gate=999)
        if i == 4 * KN - 1:
            for _ in range(min(LWB, len(lateW))): L4.add(**w4_item(lateW.pop(0)), gate=999)
        if i == 4 * KM - 1:
            while lateW: L4.add(**w4_item(lateW.pop(0)), gate=999)
            for T in range(5):
                L4.add(f"buffer_load_dwordx2 v[{104+2*T}:{105+2*T}], v15, s[24:27], s{48 if T < 4 else 49} offen offset:{1024*(T%4)} {SC}", gate=1000)
            L4.add(f"buffer_load_dword v114, v16, s[32:35], s50 offen {SC}", tag='res', gate=1000)
    hh0, late4 = L4.q[:24], L4.q[24:]
    L.t.update(Lw.t)
    for q in range(W4S3, 53): L.add(**w4_item(q))
    done01 = False
    for _ in range(DIST): rd3()
    for i, (T, s) in enumerate(seq):
        cur[0] = i
        nx = nrd[0]
        if nx < len(seq) and seq[nx][1] == 0 and seq[nx][0] >= 2:
            Tn = seq[nx][0]
            if Tn > 2: L.need(('W3', Tn))
            a("s_barrier")
            if Tn == 3:
                assert done01
                q0 = L.q; L.q = []; w3_dma(L, 4); w3_dma(L, 5); L.q += q0
            if Tn == 4:
                q0 = [x for x in L.q if 'lds' not in x[0]]; L.q = [x for x in L.q if 'lds' in x[0]]; w3_dma(L, 6); L.q += q0
        if T == 6 and s == 0: print('queue at tile 6:', len(L.q))
        if (T, s) == (5, CK0):
            tfe = a.vm("buffer_load_dword v9, v7, s[8:11], s58 offen sc1")
        if (T, s) == (5, CK1):
            a.wait(vm=tfe)
            check_flags(a, "M_f4e", 9, 7, "s58", False)
            mmark(a, "p3_chk")
            L.q = L.q + hh0
        if (T, s) == (6, 2) and HF:
            hq = [x for x in L.q if x[1] and x[1][0] == 'H']; oq = [x for x in L.q if not (x[1] and x[1][0] == 'H')]
            L.q = hq[:HF] + oq + hq[HF:]
        rd3()
        budget = 3
        nxt_wait = (i + 1) % 4 == 0
        if T == 0: L.need(s)
        if i == 0: mmark(a, "p3_first")
        if i % 4 == 0: a.wait(lg=frs[min(i + 3, len(seq) - 1)][1])
        r = frs[i][0]
        d = ACB[T % NA]
        if s == 0: assert all(t % NA != T % NA for t, _ in pending if t >= 0), "accumulator still pending"
        a(f"v_mfma_f32_32x32x16_bf16 v[{d}:{d+15}], v[{r}:{r+3}], a[{4*s}:{4*s+3}], " + ("0" if s == 0 else f"v[{d}:{d+15}]"))
        if nxt_wait: budget -= 1
        n0 = a.vm_issued
        if not done01:
            L.pump(1)
            if i + 1 < len(seq) and seq[i + 1][0] == 0: budget -= 1
            if s == 14 and T == 0:
                L.need('st'); pending += [(-1, x) for x in stats]
        elif not posted and EARLY - 1 in stored and i >= stored[EARLY - 1][1] + ACKD:
            a.wait(vm=stored[EARLY - 1][0])
            a("buffer_store_dword v1, v8, s[8:11], s58 offen sc0 sc1")
            posted = True; budget -= 1
            mmark(a, "p3_early")
        elif posted and not posted2 and MID - 1 in stored and i >= stored[MID - 1][1] + ACKM:
            a.wait(vm=stored[MID - 1][0])
            a("buffer_store_dword v1, v8, s[8:11], s56 offen sc0 sc1")
            posted2 = True; budget -= 1
        elif (i % 2 == 1 and (T == 2 or (T == 3 and s < 24) or T == 6)) or i % 8 in PACE3:
            if not (T == 6 and s >= QS): L.paced(gate=s - 1 if T == 6 else None)
        budget -= 2 * (a.vm_issued - n0)
        fill(budget, hold=(T - 1 if s < 3 else None) if T > 2 else None)
        if s == 39 and T != 0:
            for t in ((0, 1) if T == 1 else (T,)):
                dd = ACB[t % NA]
                assert not any(p[0] == -1 for p in pending)
                if t >= 3: L.need(('CS', t))
                a(f"v_mfma_f32_32x32x16_bf16 v[{dd}:{dd+15}], a[{160+4*(t%3)}:{163+4*(t%3)}], v[16:19], v[{dd}:{dd+15}]")
                if NPK <= t < 6: pending += epi(t, False)
                if t + 3 < 7: L.q.insert(min(len(L.q), 8) if t == 2 else 0, (cs_ld(t + 3), ('CS', t + 3), None, None, None))
            if T == (1 if NPK < 2 or LAG >= 40 else 2) or (T == 1 and False):
                pass
            assert not any('global_load' in x[0] for x in L.q)
            if T in (1, 2):
                for t in (range(min(NPK, 2)) if T == 1 else range(2, NPK)):
                    pq_ = Paced(a, L, PQ2)
                    for _, ins in epi(t, True): (pq_ if T == 2 else a)(ins)
                    stored[t] = (a.vm_issued, i)
            mmark(a, f"p3_t{T}")
            if T == 1: done01 = True
    print('stores at', {k: v[1] for k, v in stored.items()}, 'of', len(seq), 'left loads', len(L.q), 'pending', len(pending))
    assert posted and MID - 1 in stored
    if not posted2:
        a.wait(vm=stored[MID - 1][0])
        a("buffer_store_dword v1, v8, s[8:11], s56 offen sc0 sc1")
    if 4 * KE - CHK1 - 3 < 0 and not SFM: tf4 = a.vm("buffer_load_dword v9, v7, s[8:11], s56 offen sc1")
    if KM > KN:
        a.wait(vm=stored[MID2 - 1][0])
        a(f"s_mov_b32 s58, {F4N_O}\nbuffer_store_dword v1, v8, s[8:11], s58 offen sc0 sc1")
    rest = [(x[0], x[1], x[2], x[3], None) for x in L.q]
    L.q = rest + late4
    L.lim = LIM4
    pa = Paced(a, L, FP, gate=999)
    started = {t for t, _ in pending if sum(1 for u, _ in pending if u == t) < len(epi(t, False))}
    rest = sorted({t for t, _ in pending} - started)
    for t, ins in pending:
        if t in started: pa(ins)
    for t in rest + [6]:
        for _, ins in epi(t, True): pa(ins)
    tst = a.vm_issued
    mmark(a, "p3_st")
    for _ in range(AFT): L.paced(gate=999)
    a("""; ==== P4: out = h + rstd^2 * (hh' w_down) (64 rows x 80 columns, K split over the 4 waves)""")
    PB, TB = 40960, 40960 + 61440
    srd(a, 12, 6, 0, 2621440)
    a(f"""
    s_mul_i32 s47, s95, 15360
    s_add_u32 s47, s47, {PB}
    v_add_u32 v6, s47, v3
    """)
    for j in range(1, 4):
        a(f"""
        s_add_u32 s47, s95, {j}
        s_and_b32 s47, s47, 3
        s_mul_i32 s47, s47, 15360
        s_add_u32 s47, s47, {PB + (3-j)*5120}
        v_add_u32 v{9+j}, s47, v3
        """)
    a(f"""
    v_and_b32 v13, 15, v2
    v_lshrrev_b32 v14, 4, v2
    v_lshlrev_b32 v15, 4, v13
    v_lshl_add_u32 v15, v4, 9, v15
    v_and_b32 v16, 1, v14
    v_lshl_add_u32 v15, v16, 3, v15
    s_lshl_b32 s48, s100, 1
    s_lshr_b32 s49, s96, 1
    s_add_u32 s48, s48, s49
    s_mul_i32 s48, s48, 40960
    s_mul_i32 s49, s101, 5120
    s_add_u32 s48, s48, s49
    s_and_b32 s49, s96, 1
    s_lshl_b32 s49, s49, 8
    s_add_u32 s48, s48, s49
    s_add_u32 s49, s48, 4096
    v_lshlrev_b32 v16, 2, v13
    s_lshl_b32 s50, s95, 13
    s_lshl_b32 s51, s100, 8
    s_add_u32 s50, s50, s51
    s_lshl_b32 s51, s96, 6
    s_add_u32 s50, s50, s51
    v_mul_u32_u24 v17, 160, v13
    v_lshl_add_u32 v17, v14, 3, v17
    s_mul_i32 s51, s95, 2560
    s_add_u32 s51, s51, {TB}
    v_add_u32 v17, s51, v17
    v_add_u32 v18, s51, v3
    s_mov_b32 s52, 6554
    """)
    for it in range(3):
        a(f"""
        v_add_u32 v13, {64*it}, v2
        v_mul_u32_u24 v14, s52, v13
        v_lshrrev_b32 v14, 16, v14
        v_mul_u32_u24 v14, {1280-160}, v14
        v_lshl_add_u32 v{19+it}, v13, 4, v14
        """)
    a(f"""
    s_lshl_b32 s52, s100, 2
    s_add_u32 s52, s52, s96
    s_mul_i32 s52, s52, {16*1280}
    s_mul_i32 s53, s101, 160
    s_add_u32 s52, s52, s53
    s_mov_b32 s54, 0xffff0000
    """)
    b = Asm()
    b(f"""
    s_or_b32 s40, s2, s95
    s_cmp_lg_u32 s40, 0
    s_cbranch_scc1 M_noclr
    s_load_dwordx2 s[40:41], s[0:1], 72
    s_mov_b64 exec, 1
    v_mov_b32 v13, 0
    s_waitcnt lgkmcnt(0)
    global_store_dword v13, v13, s[40:41] sc0 sc1
    s_mov_b64 exec, -1
M_noclr:
    """)
    a.splice(b)
    mspill(a)
    A4 = {1: 24, 2: 44, 3: 64, 0: 84}
    RS_, PS = 24, 44
    todo = []; wr = []; rdl = []
    NL = 14 - KM
    for i, (sl, k) in enumerate(order):
        d = A4[sl]
        if i == SIGI:
            a.wait(vm=tst)
            a(f"buffer_store_dword v1, v8, s[8:11], s59 offen {LF}")
            mmark(a, "p3_sig")
            L.pump(BURST0, gate=999 + i)
        if SFM and i == 0: sflag_load(a, F4M_O)
        if i == 4 * KE - CHK1 - 3 and not SFM:
            tf4 = a.vm("buffer_load_dword v9, v7, s[8:11], s56 offen sc1")
        if i == 4 * KE - CHK1 + 1:
            if SFM: sflag_check(a, "M_f4m", 9, 7, "s56")
            else:
                a.wait(vm=tf4)
                check_flags(a, "M_f4m", 9, 7, "s56", False)
            mmark(a, "p4_mid")
        if KM > KN and i == 4 * KN - CHK2 - FL4:
            sflag_load(a, F4N_O)
        if KM > KN and i == 4 * KN - CHK2 + 1:
            sflag_check(a, "M_f4n", 9, 7, "s58")
            mmark(a, "p4_mid2")
        if i == 4 * KM - CHK - FL4:
            if SFL: sflag_load(a, F4_O)
            else: tf4 = a.vm("buffer_load_dword v9, v7, s[8:11], s59 offen sc1")
        if i == 4 * KM - CHK + 1:
            if SFL: sflag_check(a, "M_f4", 9, 7, "s59")
            else:
                a.wait(vm=tf4)
                check_flags(a, "M_f4", 9, 7, "s59", False)
            mmark(a, "p4_sync")
            L.pump(BURST, gate=999 + i)
        L.need(('H', i), gate=999 + i)
        for T in range(5):
            L.need(('W4', 5 * k + T), gate=999 + i)
        if i == 0: mmark(a, "p4_first")
        if i == 4 * KM: mmark(a, "p4_late")
        r = 4 * (i % 24)
        for T in range(5):
            a(f"v_mfma_f32_16x16x32_bf16 v[{d+4*T}:{d+4*T+3}], {w4reg(5*k+T)}, a[{r}:{r+3}], " + ("0" if k == 0 else f"v[{d+4*T}:{d+4*T+3}]"))
            if rdl: tl = a.ds(rdl.pop(0))
            elif wr and T in (1, 3, 4): a(wr.pop(0))
            elif T in PT4 and L.q and (i >= SIGI or AFT): L.pump(1, gate=999 + i)
            elif todo:
                a(todo.pop(0))
                if todo: a(todo.pop(0))
        if i >= 4 * KM:
            assert NL == 6
            ph, kk = divmod(i - 4 * KM, NL)
            if kk == 0 and ph > 0:
                dp = A4[ph]
                wr = [f"ds_write_b128 v6, v[{dp+4*T}:{dp+4*T+3}] offset:{(ph-1)*5120 + T*1024}" for T in range(5)]
            if ph == 2 and kk == 3:
                assert not wr and not todo
                a.wait_all_lg()
                a("s_barrier")
                rdl = [f"ds_read_b128 v[{rb+4*T}:{rb+4*T+3}], v{av} offset:{1024*T}" for av, rb in ((12, 24), (11, 44)) for T in range(5)]
            if ph == 3 and kk == 0:
                assert not rdl
                a.wait(lg=tl)
                todo += [f"v_add_f32 v{24+q}, v{24+q}, v{44+q}" for q in range(20)]
                for q in range(10):
                    todo += [f"v_fma_f32 v{44+2*q}, v{24+2*q}, v114, v{116+q}", f"v_fma_f32 v{45+2*q}, v{25+2*q}, v114, v{104+q}"]
            if ph == 3 and kk == 3:
                assert not wr
                a.wait_all_lg()
                a("s_barrier")
                for T in range(5):
                    tl = a.ds(f"ds_read_b128 v[{64+4*T}:{67+4*T}], v10 offset:{1024*T}")
            if ph == 1 and kk == 2:
                L.need('res', gate=999 + i)
                for q in range(0, 10):
                    todo += [f"v_lshlrev_b32 v{116+q}, 16, v{104+q}", f"v_and_b32 v{104+q}, s54, v{104+q}"]
    for ins in todo: a(ins)
    a.wait(lg=tl)
    mmark(a, "p4_mm")
    for q in range(0, 20, 2):
        a(f"v_pk_fma_f32 {P(PS+q)}, {P(64+q)}, v[114:115], {P(PS+q)} op_sel_hi:[1,0,1]")
    for q in range(0, 20, 2):
        a(f"v_pk_fma_f32 {P(PS+q)}, {P(84+q)}, v[114:115], {P(PS+q)} op_sel_hi:[1,0,1]")
    for j in range(10):
        a(f"v_cvt_pk_bf16_f32 v{RS_+j}, v{PS+2*j}, v{PS+2*j+1}")
    for T in range(5):
        a(f"ds_write_b64 v17, v[{RS_+2*T}:{RS_+2*T+1}] offset:{32*T}")
    a.wait_all_lg()
    tk = [a.ds(f"ds_read_b128 v[{PS+4*it}:{PS+4*it+3}], v18 offset:{1024*it}") for it in range(3)]
    for it in range(3):
        a.wait(lg=tk[it])
        if it == 2: a("s_mov_b32 exec_hi, 0")
        a(f"buffer_store_dwordx4 v[{PS+4*it}:{PS+4*it+3}], v{19+it}, s[12:15], s52 offen {OUTF}")
    mstamp_end(a, 1, 20)
    a("M_exit:\ns_endpgm")
    return a
```

```python
from common import *
from asmlib import Ins, need
import common, math, p0, p0b, re

GRID = 256
LDS = 160 * 1024
C0 = -2.0 * math.sqrt(2.0 / math.pi) * LOG2E
C1 = C0 * 0.044715
SC = "sc1"
POLL_MAX = 400000
P1_PACE = 12
import os
F5I = int(os.environ.get('F5I', 8)); PQ2 = int(os.environ.get('PQ2', 12)); P3LIM = int(os.environ.get('P3LIM', 20)); W4S3 = int(os.environ.get('W4S3', 12)); RQ0 = int(os.environ.get('RQ0', 0)); P1LIM = int(os.environ.get('P1LIM', 24)); SIG2 = int(os.environ.get('SIG2', 39)); OUTF = os.environ.get('OUTF', 'nt').replace('_', ' '); MAP1 = os.environ.get('MAP1', 'x'); MAP2 = os.environ.get('MAP2', 'x'); MAP4 = os.environ.get('MAP4', 'x'); MAP3 = os.environ.get('MAP3', 'x'); NT4 = os.environ.get('NT4', ''); NT3 = os.environ.get('NT3', ''); PACE3 = eval(os.environ.get('PACE3', '(1,3,5,7)')); NPK = int(os.environ.get('NPK', 3)); ACKD = int(os.environ.get('ACKD', 36)); AFT = int(os.environ.get('AFT', 0)); HF = int(os.environ.get('HF', 0)); P2A = int(os.environ.get('P2A', 0)); PRET = int(os.environ.get('PRET', 0)); ACKM = int(os.environ.get('ACKM', 24)); BURST = int(os.environ.get('BURST', 6)); FL4 = int(os.environ.get('FL4', 6)); WOP = int(os.environ.get('WOP', 8)); LOC = os.environ.get('LOC'); LOCT = int(os.environ.get('LOCT', 4)); TOUCH3 = int(os.environ.get('TOUCH3', 0)); MID2 = int(os.environ.get('MID2', 4)); CHK2 = int(os.environ.get('CHK2', 16)); LWB = int(os.environ.get('LWB', 8)); SFL = int(os.environ.get('SFL', 1)); BURST0 = int(os.environ.get('BURST0', 0)); LIM4 = int(os.environ.get('LIM4', 40)); PT4 = eval(os.environ.get('PT4', '(0,2)')); SFM = int(os.environ.get('SFM', 1)); ROT4 = int(os.environ.get('ROT4', 0)); ONE2A = int(os.environ.get('ONE2A', 0)); PSL = int(os.environ.get('PSL', 0)); RTK = int(os.environ.get('RTK', 0)); SEG = int(os.environ.get('SEG', 34)); F6S = int(os.environ.get('F6S', 28)); WO2 = int(os.environ.get('WO2', 0)); F6E = int(os.environ.get('F6E', 0)); RQP = int(os.environ.get('RQP', 4)); KST = int(os.environ.get('KST', 0)); WOE = int(os.environ.get('WOE', 0)); HHT = int(os.environ.get('HHT', 0)); MID = int(os.environ.get('MID', 4)); CHK1 = int(os.environ.get('CHK1', 18)); LWA = int(os.environ.get('LWA', 0)); CHK = int(os.environ.get('CHK', 10)); TOUCH = int(os.environ.get('TOUCH', 0)); FP = int(os.environ.get('FP', 999)); QS = int(os.environ.get('QS', 40)); CK0 = int(os.environ.get('CK0', 16)); CK1 = int(os.environ.get('CK1', 38)); HH1 = int(os.environ.get('HH1', 16)); SIGI = int(os.environ.get('SIGI', 5)); W3EARLY = int(os.environ.get('W3EARLY', 10)); LAG = int(os.environ.get('LAG', 12)); EARLY = int(os.environ.get('EARLY', 3)); WO1 = int(os.environ.get('WO1', 25)); RTSG = int(os.environ.get('RTSG', 36)); RTS0 = int(os.environ.get('RTS0', 99)); RTSN = int(os.environ.get('RTSN', 3))

class Paced:
    def __init__(self, a, L, n, gate=None):
        self.a, self.L, self.n, self.c, self.gate = a, L, n, 0, gate
    def __call__(self, text):
        for line in text.strip().split("\n"):
            if not line.strip(): continue
            self.a(line)
            self.c += 1
            if self.c % self.n == 0: self.L.paced(self.gate)

def poll(a, name, voff, soff, tmp):
    if FSH:
        a(f"v_add_u32 v{tmp}, {soff}, v{voff}\nv_lshlrev_b32 v{tmp}, {FSH}, v{tmp}\nv_add_u32 v1, {FBIAS}, v{tmp}")
        voff, soff = 1, "0"
    a(f"""
    s_mov_b32 s92, 0
{name}:
    buffer_load_dword v{tmp}, v{voff}, s[8:11], {soff} offen {PFL}
    s_add_u32 s92, s92, 1
    s_cmp_gt_u32 s92, {POLL_MAX}
    s_cbranch_scc1 {name}_go
    s_waitcnt vmcnt(0)
    v_cmp_ne_u32 vcc, s93, v{tmp}
    s_nop 4
    {"s_cbranch_vccz %s_go" % name if PSL else ""}
    {"s_sleep %d" % PSL if PSL else ""}
    {"s_branch" if PSL else "s_cbranch_vccnz"} {name}
{name}_go:
    s_waitcnt vmcnt(0)
    """)
    a.vm_done = a.vm_issued

def signal(a, soff, tmp, fl='sc0 sc1', scale=True):
    if FSH and scale: a(f"s_lshl_b32 {soff}, {soff}, {FSH}\ns_add_u32 {soff}, {soff}, {FBIAS}")
    a(f"""
    s_mov_b64 exec, 1
    v_mov_b32 v{tmp}, s93
    v_mov_b32 v{tmp+1}, 0
    buffer_store_dword v{tmp}, v{tmp+1}, s[8:11], {soff} offen {fl}
    s_mov_b64 exec, -1
    """)

def softmax_pair(a, P, E, O, tmp, inter=False):
    mx, mn = tmp, tmp + 2
    a(f"v_max3_f32 v{mx}, v{P}, v{P+1}, v{P+2}")
    a(f"v_min3_f32 v{mn}, v{P}, v{P+1}, v{P+2}")
    for i in range(3, 19, 2):
        a(f"v_max3_f32 v{mx}, v{mx}, v{P+i}, v{P+i+1}")
        a(f"v_min3_f32 v{mn}, v{mn}, v{P+i}, v{P+i+1}")
    a(f"v_max_f32 v{mx}, v{mx}, v{P+19}")
    a(f"v_min_f32 v{mn}, v{mn}, v{P+19}")
    for i in range(0, 20, 2):
        a(f"v_pk_add_f32 v[{E+i}:{E+i+1}], v[{P+i}:{P+i+1}], v[{mx}:{mx+1}] op_sel_hi:[1,0] neg_lo:[0,1] neg_hi:[0,1]")
        a(f"v_pk_add_f32 v[{E+20+i}:{E+21+i}], v[{P+i}:{P+i+1}], v[{mn}:{mn+1}] op_sel_hi:[1,0] neg_lo:[1,0] neg_hi:[1,0]")
    for i in range(40):
        a(f"v_exp_f32 v{E+i}, v{E+i}")
    sp, sn = tmp, tmp + 2
    a(f"v_pk_add_f32 v[{sp}:{sp+1}], v[{E}:{E+1}], v[{E+2}:{E+3}]")
    a(f"v_pk_add_f32 v[{sn}:{sn+1}], v[{E+20}:{E+21}], v[{E+22}:{E+23}]")
    for i in range(4, 20, 2):
        a(f"v_pk_add_f32 v[{sp}:{sp+1}], v[{sp}:{sp+1}], v[{E+i}:{E+i+1}]")
        a(f"v_pk_add_f32 v[{sn}:{sn+1}], v[{sn}:{sn+1}], v[{E+20+i}:{E+21+i}]")
    a(f"v_add_f32 v{sp}, v{sp}, v{sp+1}")
    a(f"v_add_f32 v{sn}, v{sn}, v{sn+1}")
    a(f"v_rcp_f32 v{sp}, v{sp}")
    a(f"v_rcp_f32 v{sn}, v{sn}")
    if inter:
        for q in range(5):
            for i in range(8 * q, 8 * q + 8, 2):
                sc = sp if i < 20 else sn
                a(f"v_pk_mul_f32 v[{E+i}:{E+i+1}], v[{E+i}:{E+i+1}], v[{sc}:{sc+1}] op_sel_hi:[1,0]")
            for i in range(4 * q, 4 * q + 4):
                a(f"v_cvt_pk_bf16_f32 v{O+i}, v{E+2*i}, v{E+2*i+1}")
        return
    for i in range(0, 20, 2):
        a(f"v_pk_mul_f32 v[{E+i}:{E+i+1}], v[{E+i}:{E+i+1}], v[{sp}:{sp+1}] op_sel_hi:[1,0]")
        a(f"v_pk_mul_f32 v[{E+20+i}:{E+21+i}], v[{E+20+i}:{E+21+i}], v[{sn}:{sn+1}] op_sel_hi:[1,0]")
    for i in range(20):
        a(f"v_cvt_pk_bf16_f32 v{O+i}, v{E+2*i}, v{E+2*i+1}")

def map_p1(a, rb, hp, t, kind='x'):
    if kind == 'h4':
        map_p3(a, rb, hp, t, 'x')
        return
    if kind == 'h2':
        map_p3(a, hp, rb, t, 'row')
        return
    a(f"""
    s_bfe_u32 s{rb}, s2, 0x20001
    s_lshl_b32 s{rb}, s{rb}, 2
    s_bfe_u32 s{t}, s2, 0x20003
    s_add_u32 s{rb}, s{rb}, s{t}
    s_and_b32 s{hp}, s2, 1
    s_lshl_b32 s{hp}, s{hp}, 3
    s_lshr_b32 s{t}, s2, 5
    s_add_u32 s{hp}, s{hp}, s{t}
    """)
def map_p2(a, tb, nb, t):
    a(f"""
    s_and_b32 s{tb}, s2, 7
    s_lshl_b32 s{tb}, s{tb}, 3
    s_bfe_u32 s{t}, s2, 0x30003
    s_add_u32 s{tb}, s{tb}, s{t}
    s_lshr_b32 s{nb}, s2, 6
    """)
def map_p3(a, rb, cb, t, kind=None):
    kind = kind or MAP3
    if kind == 'row':
        a(f"""
        s_and_b32 s{rb}, s2, 7
        s_lshl_b32 s{rb}, s{rb}, 1
        s_bfe_u32 s{t}, s2, 0x10003
        s_add_u32 s{rb}, s{rb}, s{t}
        s_lshr_b32 s{cb}, s2, 4
        """)
        return
    if kind == 'mid':
        map_p1(a, rb, cb, t)
        return
    a(f"""
    s_bfe_u32 s{rb}, s2, 0x10002
    s_lshl_b32 s{rb}, s{rb}, 3
    s_bfe_u32 s{t}, s2, 0x30003
    s_add_u32 s{rb}, s{rb}, s{t}
    s_and_b32 s{cb}, s2, 3
    s_lshl_b32 s{cb}, s{cb}, 2
    s_lshr_b32 s{t}, s2, 6
    s_add_u32 s{cb}, s{cb}, s{t}
    """)
def map_p4(a, rb, nb, t, kind=None):
    if (kind or MAP4) == 'row':
        a(f"""
        s_and_b32 s{rb}, s2, 7
        s_lshl_b32 s{rb}, s{rb}, 2
        s_bfe_u32 s{t}, s2, 0x20003
        s_add_u32 s{rb}, s{rb}, s{t}
        s_lshr_b32 s{nb}, s2, 5
        """)
        return
    a(f"""
    s_bfe_u32 s{rb}, s2, 0x20001
    s_lshl_b32 s{rb}, s{rb}, 3
    s_bfe_u32 s{t}, s2, 0x30003
    s_add_u32 s{rb}, s{rb}, s{t}
    s_and_b32 s{nb}, s2, 1
    s_lshl_b32 s{nb}, s{nb}, 2
    s_lshr_b32 s{t}, s2, 6
    s_add_u32 s{nb}, s{nb}, s{t}
    """)

def w3_dma(L, T, gate=None):
    reg = [81920, 122880, 0, 40960, 81920, 122880, 0][T]
    sr = 12 if T < 2 else (16 if T < 6 else 68)
    for c in range(10):
        grp = 0 if c < 4 else (4 if c < 8 else 8)
        L.add(f"buffer_load_dwordx4 v3, s[{sr}:{sr+3}], m0 offen offset:{1024*(c-grp)} {SC} lds", gate=gate,
              pre=f"s_add_u32 m0, s3, {reg + 1024*c}" if c == grp else None, tag=('W3', T) if c == 9 else None)

def check_flags(a, name, regs, voff, soff, wide):
    def test(x):
        if wide:
            x(f"v_xor_b32 v{regs}, s93, v{regs}\nv_xor_b32 v{regs+1}, s93, v{regs+1}\nv_xor_b32 v{regs+2}, s93, v{regs+2}\nv_xor_b32 v{regs+3}, s93, v{regs+3}")
            x(f"v_or3_b32 v{regs}, v{regs}, v{regs+1}, v{regs+2}\nv_or_b32 v{regs}, v{regs}, v{regs+3}\nv_cmp_ne_u32 vcc, 0, v{regs}")
        else:
            x(f"v_cmp_ne_u32 vcc, s93, v{regs}")
    test(a)
    a(f"s_mov_b32 s92, 0\ns_nop 3\ns_cbranch_vccz {name}_ok")
    b = Asm()
    b(f"{name}:")
    b(f"buffer_load_dwordx4 v[{regs}:{regs+3}], v{voff}, s[8:11], {soff} offen sc1" if wide else f"buffer_load_dword v{regs}, v{voff}, s[8:11], {soff} offen sc1")
    b(f"s_add_u32 s92, s92, 1\ns_waitcnt vmcnt(0)\ns_cmp_gt_u32 s92, {POLL_MAX}\ns_cbranch_scc1 {name}_ok")
    test(b)
    b(f"s_nop 4\ns_cbranch_vccnz {name}")
    a.splice(b)
    a(f"{name}_ok:")

def sflag_load(a, off):
    a(f"s_add_u32 s62, s63, {off}\ns_buffer_load_dwordx8 s[40:47], s[8:11], s62 glc")
def sflag_check(a, name, regs, voff, soff):
    a.wait_all_lg()
    a(f"""
    s_and_b64 s[60:61], s[40:41], s[42:43]
    s_or_b64 s[40:41], s[40:41], s[42:43]
    s_and_b64 s[42:43], s[44:45], s[46:47]
    s_or_b64 s[44:45], s[44:45], s[46:47]
    s_and_b64 s[60:61], s[60:61], s[42:43]
    s_or_b64 s[40:41], s[40:41], s[44:45]
    s_and_b32 s60, s60, s61
    s_or_b32 s61, s40, s41
    s_mov_b32 s92, s93
    s_cmp_eq_u64 s[60:61], s[92:93]
    s_cbranch_scc1 {name}_ok
    """)
    b = Asm()
    b(f"s_mov_b32 s92, 0\n{name}:")
    b(f"buffer_load_dword v{regs}, v{voff}, s[8:11], {soff} offen sc1")
    b(f"s_add_u32 s92, s92, 1\ns_waitcnt vmcnt(0)\ns_cmp_gt_u32 s92, {POLL_MAX}\ns_cbranch_scc1 {name}_ok")
    b(f"v_cmp_ne_u32 vcc, s93, v{regs}\ns_nop 4\ns_cbranch_vccnz {name}")
    a.splice(b)
    a(f"{name}_ok:")

def gen_mega():
    LS = SC if LOC is None else LOC.strip('_'); LF = 'sc0 sc1' if LOC is None else ''
    a = Asm()
    a(f"""
    s_memrealtime s[98:99]
    s_load_dwordx2 s[20:21], s[0:1], 80
    s_load_dwordx2 s[4:5], s[0:1], 0
    s_load_dwordx4 s[12:15], s[0:1], 8
    s_load_dwordx2 s[16:17], s[0:1], 24
    s_load_dwordx2 s[6:7], s[0:1], 64
    s_load_dwordx2 s[18:19], s[0:1], 72
    s_load_dwordx4 s[56:59], s[0:1], 40
    s_load_dwordx2 s[62:63], s[0:1], 56
    v_lshrrev_b32 v1, 6, v0
    v_and_b32 v2, 63, v0
    v_readfirstlane_b32 s95, v1
    s_cmp_ge_u32 s2, {GRID}
    s_cbranch_scc1 M_exit
    """)
    mstamp_begin(a)
    a(f"""
    v_lshlrev_b32 v3, 4, v2
    v_lshrrev_b32 v4, 5, v2
    v_and_b32 v5, 31, v2
    s_mul_i32 s3, s95, 10240
    """)
    map_p1(a, 42, 43, 40, MAP1)
    a("; ==== P0: first LayerNorm (8 rows per workgroup), w_phi folded into wq/wk, weights re-laid out as MFMA fragments in d_ws")
    p0b.p0(a, int(os.environ.get('NPF', 2)))
    rt_ld, rt_rd, rt_cs, rt_cs2, rt_st, rt_se = p0b.rt_setup(a)
    assert not rt_ld
    RTW = p0b.RTL in ('p0', 'ln') or RTK
    if RTW and not RTK:
        tt_ = [a.ds(x_) for x_ in rt_rd]; rt_rd = []
        for n_ in range(5):
            a.wait(lg=tt_[2 * n_ + 1]); a(rt_cs[n_]); a(rt_st[n_][0])
        for n_ in range(4):
            a.wait(lg=tt_[11 + 2 * n_]); a(rt_st[6 + n_][0]); a(rt_st[6 + n_][1]); a(rt_se[n_][0]); a(rt_se[n_][1])
        for x_ in rt_cs2: a(x_)
        a(rt_st[5][0])
        rt_cs = []; rt_cs2 = []; rt_st = []; rt_se = []
        mmark(a, "p0_rt")
    a("""; ==== P1: k/v/q projection (LayerNorm rows x folded weights), dual softmax (true max / min subtracted),
;      per-workgroup phi_k^T [v|1] partial added into the kv accumulator, q tile deferred behind the adds""")
    EB, XL, QB = 0, 61440, 122880
    srd(a, 64, 20, WO_OFF, WO_SZ)
    srd(a, 36, 20, KV_OFF, KV_SZ)
    srd(a, 68, 4, 0, 2621440)
    map_p4(a, 100, 101, 40, MAP2)
    a(f"""
    s_lshl_b32 s44, s42, 2
    s_add_u32 s44, s44, s95
    s_mul_i32 s45, s44, 40960
    s_mul_i32 s46, s43, 153600
    s_mul_i32 s47, s95, 3072
    s_lshl_b32 s48, s95, 13
    s_mul_i32 s40, s101, 5
    s_lshr_b32 s40, s40, 2
    s_mul_i32 s40, s40, 20
    s_mul_i32 s41, s95, 5
    s_add_u32 s40, s40, s41
    s_lshl_b32 s40, s40, 4
    s_add_u32 s40, s40, {F6_O}
    v_and_b32 v62, 7, v2
    v_min_u32 v62, 4, v62
    v_lshl_add_u32 v62, v62, 4, s40
    v_bfe_u32 v63, v2, 3, 1
    v_mul_u32_u24 v63, 320, v63
    v_add_u32 v62, v62, v63
    s_mul_i32 s22, s101, 100
    s_add_u32 s22, s22, s41
    s_lshl_b32 s22, s22, 10
    v_lshlrev_b32 v6, 7, v4
    v_sub_u32 v6, v3, v6
    v_add_u32 v6, {QB}, v6
    v_add_u32 v7, {20*3072}, v3
    s_lshl_b32 s40, s95, 5
    v_add_u32 v11, s40, v5
    v_mul_u32_u24 v11, 272, v11
    v_lshl_add_u32 v11, v4, 7, v11
    v_bfe_u32 v56, v2, 2, 2
    v_lshlrev_b32 v56, 2, v56
    v_lshl_add_u32 v56, v4, 1, v56
    v_mul_u32_u24 v56, 272, v56
    v_bfe_u32 v57, v2, 4, 1
    v_lshl_add_u32 v56, v57, 5, v56
    v_and_b32 v57, 3, v2
    v_lshl_add_u32 v56, v57, 3, v56
    s_lshr_b32 s51, s95, 1
    s_and_b32 s55, s95, 1
    s_lshl_b32 s40, s51, 7
    v_add_u32 v56, s40, v56
    s_mul_i32 s40, s55, 40
    v_add_u32 v57, s40, v56
    s_lshl_b32 s40, s95, 12
    s_add_u32 s40, s40, 40960
    v_mul_u32_u24 v58, 384, v4
    v_lshl_add_u32 v58, v5, 4, v58
    v_add_u32 v58, s40, v58
    v_lshl_add_u32 v59, v2, 2, s40
    v_lshlrev_b32 v60, 2, v2
    s_lshl_b32 s54, s43, 1
    s_add_u32 s54, s54, s51
    s_mul_i32 s54, s54, 3840
    s_mul_i32 s55, s55, 1920
    s_add_u32 s54, s54, s55
    s_lshl_b32 s49, s43, 4
    s_add_u32 s49, s49, s42
    s_lshl_b32 s49, s49, 4
    s_add_u32 s49, s49, {F2A_O}
    s_lshl_b32 s49, s49, {FSH}
    s_add_u32 s49, s49, {FBIAS}
    s_lshl_b32 s50, s2, 4
    s_add_u32 s50, s50, {F6_O}
    s_cmp_eq_u32 s95, 3
    s_cselect_b32 s50, s50, 0x1000000
    s_cmp_eq_u32 s95, 0
    s_cselect_b32 s49, s49, {'0x1000000' if (F6E or RTK or WOE) else 's50'}
    v_mov_b32 v61, 0x1000000
    v_writelane_b32 v61, s49, 0
    v_mov_b32 v19, s93
    s_lshl_b32 s40, s2, 4
    s_add_u32 s40, s40, {F5_O}
    s_cmp_eq_u32 s95, 2
    s_cselect_b32 s40, s40, {'0x1000000' if RTK else 's50'}
    v_mov_b32 v10, 0x1000000
    v_writelane_b32 v10, s40, 0
    s_mov_b32 s57, s50
    s_lshl_b32 s56, s100, 2
    s_add_u32 s56, s56, s95
    s_mul_i32 s56, s56, {16*1280}
    s_mul_i32 s41, s101, 160
    s_add_u32 s56, s56, s41
    s_movk_i32 s41, 6554
    """)
    for n in range(3):
        a(f"""
        v_add_u32 v8, {64*n}, v2
        v_min_u32 v8, 159, v8
        v_mul_u32_u24 v9, s41, v8
        v_lshrrev_b32 v9, 16, v9
        v_mul_u32_u24 v9, {1280-160}, v9
        v_lshl_add_u32 v{16+n}, v8, 4, v9
        """)
    if PRET:
        map_p3(a, 60, 61, 40)
        a(f"""
        s_lshl_b32 s40, s60, 2
        s_add_u32 s40, s40, s95
        s_mul_i32 s40, s40, 114688
        s_lshr_b32 s41, s61, 2
        s_mul_i32 s41, s41, 14336
        s_add_u32 s40, s40, s41
        s_and_b32 s41, s61, 3
        s_lshl_b32 s41, s41, 9
        s_add_u32 s40, s40, s41
        s_add_u32 s40, s40, {HH_OFF}
        v_and_b32 v20, 3, v2
        v_lshlrev_b32 v20, 7, v20
        v_bfe_u32 v21, v2, 2, 3
        v_min_u32 v21, 6, v21
        v_lshl_add_u32 v20, v21, 11, v20
        v_mul_u32_u24 v21, 57344, v4
        v_add3_u32 v20, v20, v21, s40
        s_lshl_b32 s40, s100, 1
        s_lshr_b32 s41, s95, 1
        s_add_u32 s40, s40, s41
        s_mul_i32 s40, s40, 40960
        s_mul_i32 s41, s101, 5120
        s_add_u32 s40, s40, s41
        s_and_b32 s41, s95, 1
        s_lshl_b32 s41, s41, 8
        s_add_u32 s40, s40, s41
        s_add_u32 s40, s40, {H_OFF}
        v_lshrrev_b32 v21, 1, v2
        v_min_u32 v21, 9, v21
        v_lshlrev_b32 v21, 9, v21
        v_and_b32 v22, 1, v2
        v_lshl_add_u32 v21, v22, 7, v21
        v_add_u32 v21, s40, v21
        """)
    srd(a, 24, 20, XN_OFF, XN_SZ)
    srd_dyn(a, 28, 20, W1_OFF, 46, 153600)
    mspill(a)
    poll(a, "M_poll1", 12, "0", 9)
    mmark(a, "p1_sync")
    L = Loads(a, P1LIM)
    if WOE: a("v_mov_b32 v8, 0x1000000\nv_writelane_b32 v8, s57, 0")
    for n in range(10):
        g = 11 if n >= 9 else None
        L.add(f"buffer_load_dwordx4 a[{16*n}:{16*n+3}], v3, s[24:27], s45 offen {SC}", pre=f"s_add_u32 m0, s47, {12288*n}", gate=g)
        for c in range(3):
            L.add(f"buffer_load_dwordx4 v3, s[28:31], m0 offen offset:{1024*c} {SC} lds", gate=g)
        for c in range(1, 4):
            L.add(f"buffer_load_dwordx4 a[{16*n+4*c}:{16*n+4*c+3}], v3, s[24:27], s45 offen offset:{1024*c} {SC}",
                  tag=n if c == 3 else None, post="s_add_u32 s45, s45, 4096" if c == 3 and n < 9 else None, gate=g)
        if WOE and n == 4:
            for tx_, po in rt_se: L.add(tx_, post=po, gate=8)
            rt_se = []
        if WOE and n == 8:
            L.add("buffer_store_dword v19, v8, s[8:11], 0 offen sc0 sc1", gate=19)
    for c in range(8):
        L.add(f"buffer_load_dwordx4 v3, s[28:31], m0 offen offset:{1024*(c%4)} {SC} lds", pre=f"s_add_u32 m0, s48, {QB + 1024*c}" if c % 4 == 0 else None, gate=11, tag='qb' if c == 7 else None)
    for n in range(3):
        L.add(f"buffer_load_dwordx4 v{16+n}, s[68:71], s56 offen nt lds", pre=f"s_add_u32 m0, s47, {XL + 1024*n}", gate=27)
    L.pump(14)
    def woreg(T, k):
        r = 156 + 4 * ((5 * T + k + 1) % 25)
        if WOE: r = 252 - 4 * (5 * k + T)
        return f"a[{r}:{r+3}]"
    def wo_add(lo, hi, g):
        for q in range(lo, hi):
            k, T = divmod(q, 5)
            L.add(f"buffer_load_dwordx4 {woreg(T, k)}, v3, s[64:67], s23 offen {SC}", pre=f"s_add_u32 s23, s22, {T*20480 + 1024*k}", gate=g, tag=('WO', k))
    if WOE:
        L.add("buffer_load_dword v63, v62, s[8:11], 0 offen sc1", tag='f6', gate=35)
        wo_add(0, WOE, 44)
    for tx_, po in rt_se: L.add(tx_, post=po, gate=SEG, tag='se')
    for n_, (tx_, po) in enumerate(rt_st): L.add(tx_, post=po, gate=(41 if RTK or n_ < KST else 50), tag='rts' if n_ == len(rt_st) - 1 else None)
    if RTW and not RTK: L.add("buffer_store_dword v19, v10, s[8:11], 0 offen sc0 sc1", gate=4)
    if not WOE: L.add("buffer_load_dword v63, v62, s[8:11], 0 offen sc1", tag='f6', gate=60)
    wo_add(WOE, 25, 70)
    ACC = 64; WF = 24
    def rd(s, T):
        r = WF + 4 * ((s % 2) * 3 + T)
        return a.ds(f"ds_read_b128 v[{r}:{r+3}], v{3 if s < 20 else 7} offset:{(s % 20) * 3072 + T * 1024}")
    tR = {}
    L.need(0)
    a("s_barrier")
    mmark(a, "p1_first")
    for T in range(3): tR[(0, T)] = rd(0, T)
    for s in range(40):
        nxt = s + 1
        if nxt < 40 and nxt % 4 == 0:
            L.need(nxt // 4, gate=s - 1)
            a("s_barrier")
        for T in range(3):
            if nxt < 40: tR[(nxt, T)] = rd(nxt, T)
            a.wait(lg=tR[(s, T)])
            r = WF + 4 * ((s % 2) * 3 + T)
            d = ACC + 16 * T
            a(f"v_mfma_f32_32x32x16_bf16 v[{d}:{d+15}], v[{r}:{r+3}], a[{4*s}:{4*s+3}], " + ("0" if s == 0 else f"v[{d}:{d+15}]"))
            if s >= 1 and rt_rd:
                a(rt_rd.pop(0))
            elif s == 12 and T == 0:
                for x_ in rt_cs: a(x_)
            elif s in (16, 17) and rt_cs2:
                a(rt_cs2.pop(0))
            if T != 1 or s >= 36:
                if 9 in L.t: L.paced(gate=s)
                else: L.pump(1, gate=s)
    assert not rt_rd
    mmark(a, "p1_loop")
    if RTK or F6E: a("v_mov_b32 v9, 0x1000000\nv_writelane_b32 v9, s57, 0")
    if PRET == 2: a("global_load_dword v22, v21, s[20:21] sc1\nglobal_load_dword v22, v20, s[20:21] sc1")
    pa = Paced(a, L, 8 if not KST else 30, gate=43 if WOE else 45)
    E, O, TMP, VP = 128, 168, 12, 188
    for i in range(9):
        a(f"v_cvt_pk_bf16_f32 v{VP+i}, v{84+2*i}, v{85+2*i}")
    a(f"v_mov_b32 v{VP+9}, 0x3f80\nv_cvt_pk_bf16_f32 v{VP+10}, v102, v103\nv_mov_b32 v{VP+11}, 0x3f80")
    class KW:
        c = 0
        def __call__(self, text):
            pa(text); self.c += 1
            if WOE and self.c == 20:
                L.need('f6', gate=43)
                check_flags(a, "M_f6", 63, 62, "0", False)
                pa.gate = 45
            if self.c in (10, 30, 50):
                q = (self.c - 10) // 20
                a(f"ds_write_b128 v11, v[{VP+4*q}:{VP+4*q+3}] offset:{80+16*q}")
            m = re.match(r"v_cvt_pk_bf16_f32 v(\d+),", text)
            if m and (int(m.group(1)) - O) % 4 == 3:
                q = (int(m.group(1)) - O) // 4
                a(f"ds_write_b128 v11, v[{O+4*q}:{O+4*q+3}] offset:{16*q}")
    softmax_pair(KW(), 64, E, O, TMP, True)
    if RTW and not RTK: L.lim = 60; L.pump(1, gate=60)
    a.wait_all_lg()
    L.need('qb')
    if RTK or F6E:
        L.need('se')
        a("buffer_store_dword v19, v9, s[8:11], 0 offen sc0 sc1")
    a("s_barrier")
    mmark(a, "p1_ksm")
    tk = []
    FA, FB, KD = 128, 200, 24
    def kvm(k2):
        a.wait(lg=tk[k2])
        a(f"v_mfma_f32_32x32x16_bf16 v[{KD}:{KD+15}], v[{FA+4*k2}:{FA+4*k2+3}], v[{FB+4*k2}:{FB+4*k2+3}], " + ("0" if k2 == 0 else f"v[{KD}:{KD+15}]"))
    for ks in range(8):
        for rho in range(2):
            off = (16 * ks + rho) * 272
            a(f"ds_read_b64_tr_b16 v[{FA+4*ks+2*rho}:{FA+4*ks+2*rho+1}], v57 offset:{off}")
            t = a.ds(f"ds_read_b64_tr_b16 v[{FB+4*ks+2*rho}:{FB+4*ks+2*rho+1}], v56 offset:{off+80}")
        tk.append(t)
        if ks >= 2: kvm(ks - 2)
    kvm(6); kvm(7)
    a("s_mov_b32 exec_lo, 0xffffff\ns_mov_b32 exec_hi, 0xffffff")
    for c in range(3):
        a(f"ds_write_b128 v58, v[{KD+4*c}:{KD+3+4*c}] offset:{768*c}")
    a("s_mov_b64 exec, -1")
    tk = [a.ds(f"ds_read_b32 v{40+i}, v59 offset:{256*i}") for i in range(8)]
    def rdq(s):
        r = 128 + 4 * (s % 10)
        return a.ds(f"ds_read_b128 v[{r}:{r+3}], v6 offset:{768*s}")
    tq = [rdq(s) for s in range(6)]
    if a.vm_issued - a.vm_done > 40: a.wait(vm=a.vm_issued - 24)
    for i in range(8):
        a.wait(lg=tk[i])
        if i == 7: a("s_mov_b32 exec_hi, 0")
        a(f"buffer_atomic_add_f32 v{40+i}, v60, s[36:39], s54 offen offset:{256*i}")
    a("s_mov_b64 exec, -1")
    mmark(a, "p1_atom")
    tat = a.vm_issued
    def pretouch():
        a("global_load_dword v22, v21, s[20:21] sc1\nglobal_load_dword v22, v20, s[20:21] sc1")
    if PRET == 1: pretouch()
    P = lambda r: f"v[{r}:{r+1}]"
    L.lim = 60
    def sig2a():
        a.wait(vm=tat)
        a("s_barrier")
        a("buffer_store_dword v19, v61, s[8:11], 0 offen sc0 sc1")
        if RTK: a("buffer_store_dword v19, v10, s[8:11], 0 offen sc0 sc1")
        mmark(a, "p1_sig")
    for s in range(40):
        if s + 6 < 40: tq.append(rdq(s + 6))
        if s % 2 == 0: a.wait(lg=tq[s + 1])
        r = 128 + 4 * (s % 10)
        a(f"v_mfma_f32_32x32x16_bf16 v[112:127], v[{r}:{r+3}], a[{4*s}:{4*s+3}], " + ("0" if s == 0 else "v[112:127]"))
        if s >= RQ0 and s % RQP == RQP - 1: L.paced(gate=50)
        if RTK and s == F6S: L.pump(1, gate=60)
        if s == SIG2: sig2a()
    mmark(a, "p1_q")
    if F6E: L.pump(1, gate=60)
    if RTK: L.need('f6')
    if RTW: check_flags(a, "M_f6", 63, 62, "0", False)
    softmax_pair(Paced(a, L, WOP, gate=99) if RTW else Paced(a, L, 24, gate=50), 104, E, O, TMP)
    assert RTW or 'rts' in L.t
    for c in (0, 2):
        for j in range(4):
            a(f"v_permlane32_swap_b32 v{O+4*c+j}, v{O+4*c+4+j}")
    mmark(a, "p1_qsm")
    a("""; ==== P1b: o = phi_q kv / (phi_q z + 1e-6) for this workgroup's 128 rows x 2 heads""")
    srd(a, 24, 20, KV_OFF, KV_SZ)
    srd(a, 28, 20, O_OFF, O_SZ)
    a(f"""
    v_min_u32 v6, 23, v5
    v_lshlrev_b32 v6, 4, v6
    v_mul_u32_u24 v7, 3840, v4
    v_add_u32 v7, v7, v6
    v_mul_u32_u24 v8, 768, v4
    v_add_u32 v6, v8, v6
    s_mul_i32 s45, s43, 7680
    s_add_u32 s46, s45, 3840
    v_and_b32 v8, 15, v2
    v_lshlrev_b32 v8, 4, v8
    s_lshl_b32 s47, s43, 8
    s_add_u32 s47, s47, {F2A_O}
    v_lshrrev_b32 v10, 4, v5
    v_mul_u32_u24 v10, {O_TT}, v10
    v_add_u32 v10, v10, v8
    v_lshl_add_u32 v11, v4, 8, v10
    s_mul_i32 s48, s44, {2*O_TT}
    s_mul_i32 s49, s43, 1280
    s_add_u32 s48, s48, s49
    s_lshl_b32 s49, s44, 4
    s_add_u32 s49, s49, s43
    s_lshl_b32 s49, s49, 4
    s_add_u32 s49, s49, {FO_O}
    """)
    for r in range(12, 20): a(f"v_mov_b32 v{r}, 0")
    if F6E:
        L.need('f6')
        check_flags(a, "M_f6", 63, 62, "0", False)
    if RTK or F6E: L.pump(WO2, gate=99)
    mspill(a)
    if ONE2A:
        a("s_cmp_lg_u32 s95, 0\ns_cbranch_scc1 M_poll2a_go")
        poll(a, "M_poll2a", 8, "s47", 9)
        a("s_barrier")
    else:
        poll(a, "M_poll2a", 8, "s47", 9)
    mmark(a, "p1b_sync")
    b = 64
    for hh in range(2):
        for u in range(2):
            for e in range(2):
                r = b + 16 * hh + 8 * u + 4 * e
                a(f"buffer_load_dwordx4 v[{r}:{r+3}], v6, s[24:27], s{45+hh} offen offset:{(4*u+e)*384} {SC}")
        if hh == 0:
            for e in range(2):
                r = b + 32 + 4 * e
                t0 = a.vm(f"buffer_load_dwordx4 v[{r}:{r+3}], v7, s[24:27], s45 offen offset:{(8+e)*384} {SC}")
    t1 = a.vm_issued
    if not RTW and not ONE2A: a("s_barrier")
    OD, OB = [24, 40], 56
    for hh in range(2):
        a.wait(vm=t0 if hh == 0 else t1)
        if hh == 0: mmark(a, "p1b_kv")
        for u in range(2):
            r = b + 16 * hh + 8 * u
            for j in range(4):
                a(f"v_cvt_pk_bf16_f32 v{r+j}, v{r+2*j}, v{r+2*j+1}")
        a("s_mov_b32 exec_hi, 0" if hh == 0 else "s_mov_b32 exec_lo, 0")
        for j in range(4): a(f"v_cvt_pk_bf16_f32 v{12+4*hh+j}, v{b+32+2*j}, v{b+33+2*j}")
        a("s_mov_b64 exec, -1")
        d = OD[hh]
        for u in range(2):
            r = b + 16 * hh + 8 * u
            q = O + 8 * u + 4 * hh
            a(f"v_mfma_f32_32x32x16_bf16 v[{d}:{d+15}], v[{r}:{r+3}], v[{q}:{q+3}], " + ("0" if u == 0 else f"v[{d}:{d+15}]"))
        a(f"v_mfma_f32_32x32x16_bf16 v[{d}:{d+15}], v[{12+4*hh}:{15+4*hh}], v[{O+16}:{O+19}], v[{d}:{d+15}]")
    OB = 104
    for hh in range(2):
        d = OD[hh]
        a(f"v_add_f32 v{d+10}, {f32(1e-6)}, v{d+10}")
        a(f"v_rcp_f32 v{d+10}, v{d+10}")
        for j in range(0, 10, 2):
            a(f"v_pk_mul_f32 {P(d+j)}, {P(d+j)}, {P(d+10)} op_sel_hi:[1,0]")
        for j in range(5):
            a(f"v_cvt_pk_bf16_f32 v{OB+5*hh+j}, v{d+2*j}, v{d+2*j+1}")
        if hh == 0:
            a(f"buffer_store_dwordx4 v[{OB}:{OB+3}], v11, s[28:31], s48 offen {SC}")
    a(f"""
    buffer_store_dwordx4 v[{OB+4}:{OB+7}], v11, s[28:31], s48 offen offset:512 {SC}
    v_permlane32_swap_b32 v{OB+8}, v{OB+10}
    v_permlane32_swap_b32 v{OB+9}, v{OB+11}
    s_mov_b32 exec_hi, 0
    """)
    tst = a.vm(f"buffer_store_dwordx4 v[{OB+8}:{OB+11}], v10, s[28:31], s48 offen offset:1024 {SC}")
    a("s_mov_b32 exec_hi, -1")
    if not RTW and not F6E and not WOE: L.pump(1, gate=60)
    mmark(a, "p1b_st")
    map_p3(a, 60, 61, 40)
    a(f"""
    s_mul_i32 s62, s61, 27
    s_lshr_b32 s62, s62, 1
    s_mul_i32 s40, s62, 20480
    """)
    srd_dyn(a, 12, 20, W3_OFF - 81920, 40, 163840)
    srd_dyn(a, 16, 20, W3_OFF + 81920, 40, 163840)
    srd_dyn(a, 68, 20, W3_OFF + 245760, 40, 40960)
    a.wait(vm=tst)
    signal(a, "s49", 8)
    if not RTW:
        a(f"s_sub_u32 s50, s50, {F6_O - F5_O}")
        signal(a, "s50", 8, scale=False)
    mmark(a, "p1b_sig")
    if not RTW and not F6E and not WOE:
        L.need('f6')
        check_flags(a, "M_f6", 63, 62, "0", False)
    L.pump(WO1, gate=99); woq = [(x[0], x[1], x[2], x[3], None) for x in L.q]
    a("""; ==== P2: h = x + o wo (64 rows x 80 columns, K split over the 4 waves), row sums for the second LayerNorm""")
    PB2, TB2 = 0, XL
    srd(a, 24, 20, H_OFF, H_SZ)
    srd(a, 32, 20, ST_OFF, ST_SZ)
    a(f"""
    s_mul_i32 s44, s95, 5
    s_mul_i32 s45, s100, {4*O_TT//1024}
    s_add_u32 s45, s45, s44
    s_lshl_b32 s45, s45, 10
    v_and_b32 v7, 3, v2
    v_lshlrev_b32 v7, 4, v7
    v_bfe_u32 v8, v2, 2, 1
    v_lshl_add_u32 v7, v8, 8, v7
    s_lshl_b32 s46, s100, 9
    s_lshl_b32 s47, s95, 6
    s_add_u32 s46, s46, s47
    s_add_u32 s46, s46, {FO_O}
    s_mul_i32 s47, s95, 15360
    v_add_u32 v6, s47, v3
    """)
    for j in range(1, 4):
        a(f"""
        s_add_u32 s47, s95, {j}
        s_and_b32 s47, s47, 3
        s_mul_i32 s47, s47, 15360
        s_add_u32 s47, s47, {PB2 + (3-j)*5120}
        v_add_u32 v{9+j}, s47, v3
        """)
    map_p4(a, 58, 59, 40)
    a(f"""
    v_and_b32 v13, 15, v2
    v_lshrrev_b32 v14, 4, v2
    v_mul_u32_u24 v17, 160, v13
    v_lshl_add_u32 v17, v14, 3, v17
    s_mul_i32 s51, s95, 3072
    s_add_u32 s52, s51, {XL}
    v_add_u32 v15, s52, v17
    s_add_u32 s51, s51, {TB2}
    v_add_u32 v17, s51, v17
    v_mul_u32_u24 v18, 160, v13
    v_lshl_add_u32 v18, v14, 4, v18
    v_add_u32 v18, s51, v18
    v_lshlrev_b32 v19, 4, v13
    v_lshl_add_u32 v19, v4, 9, v19
    v_and_b32 v18, 1, v14
    v_lshl_add_u32 v19, v18, 10, v19
    s_lshl_b32 s48, s100, 1
    s_lshr_b32 s49, s95, 1
    s_add_u32 s48, s48, s49
    s_lshl_b32 s53, s48, 3
    s_add_u32 s53, s53, s101
    s_lshl_b32 s53, s53, 8
    s_mul_i32 s48, s48, 40960
    s_mul_i32 s49, s101, 5120
    s_add_u32 s48, s48, s49
    s_and_b32 s49, s95, 1
    s_lshl_b32 s50, s49, 7
    s_add_u32 s53, s53, s50
    s_lshl_b32 s49, s49, 8
    s_add_u32 s48, s48, s49
    s_add_u32 s49, s48, 4096
    s_lshl_b32 s56, s100, 2
    s_add_u32 s56, s56, s95
    s_lshl_b32 s56, s56, 3
    s_add_u32 s56, s56, s101
    s_lshl_b32 s56, s56, 4
    s_add_u32 s56, s56, {F3_O}
    s_mov_b32 s54, 0xffff0000
    s_lshr_b32 s50, s62, 3
    s_lshl_b32 s50, s50, 2
    v_min_u32 v20, 11, v13
    v_add_u32 v20, s50, v20
    v_min_u32 v20, 107, v20
    v_and_b32 v21, 1, v14
    v_mul_u32_u24 v16, 108, v21
    v_add_u32 v20, v20, v16
    s_mul_i32 s50, s59, 5
    s_lshr_b32 s50, s50, 2
    s_mul_i32 s50, s50, 56
    s_mul_i32 s51, s95, 14
    s_add_u32 s50, s50, s51
    v_min_u32 v16, 13, v13
    v_mul_u32_u24 v21, 56, v21
    v_add3_u32 v16, v16, v21, s50
    v_min_u32 v16, 559, v16
    v_lshrrev_b32 v21, 1, v16
    v_subrev_u32 v22, {512-208}, v16
    v_cmp_le_u32 vcc, 512, v16
    v_cndmask_b32 v16, v21, v22, vcc
    v_cmp_le_u32 vcc, 32, v2
    v_cndmask_b32 v20, v20, v16, vcc
    v_lshlrev_b32 v20, 4, v20
    s_mov_b32 s57, {F5_O}
    """)
    if RTW: tf = a.vm("buffer_load_dword v21, v20, s[8:11], s57 offen sc1")
    tx = [a.ds(f"ds_read_b64 v[{112+2*T}:{113+2*T}], v15 offset:{32*T}") for T in range(5)]
    A4 = [72, 92]; RS_, PS = 24, 44
    a.wait(lg=tx[4])
    for j in range(10):
        a(f"v_lshlrev_b32 v{128+2*j}, 16, v{112+j}")
        a(f"v_and_b32 v{129+2*j}, s54, v{112+j}")
    L0 = Loads(a, 60); w3_dma(L0, 0, 3); w3_dma(L0, 1, 3)
    if RTW:
        a.wait(vm=tf)
        check_flags(a, "M_f5", 21, 20, "s57", False)
        L0.pump(W3EARLY, gate=3)
    mspill(a)
    poll(a, "M_poll2b", 7, "s46", 9)
    mmark(a, "p2_sync")
    L = Loads(a, 40)
    order = [(sl, k) for sl in (1, 2, 3, 0) for k in range(5)]
    for i, (sl, k) in enumerate(order):
        pre = None
        if k == 0:
            pre = f"s_add_u32 s55, s95, {sl}\ns_and_b32 s55, s55, 3\ns_mul_i32 s55, s55, {O_TT}\ns_add_u32 s55, s55, s45"
        elif k == 4:
            pre = "s_add_u32 s55, s55, 4096"
        L.add(f"buffer_load_dwordx4 a[{4*i}:{4*i+3}], v3, s[28:31], s55 offen offset:{1024*(k%4)} {SC} {NT4}", pre=pre, tag=i)
        while woq and woq[0][1][1] <= i + 1: L.q.append(woq.pop(0))
        if i == F5I and not RTW: L.add("buffer_load_dword v21, v20, s[8:11], s57 offen sc1", tag='f5')
    L.q += L0.q; L.t.update(L0.t)
    if TOUCH:
        nsh = 4 if MAP4 == 'row' else 8
        per = 560 // nsh
        nin = (per + 63) // 64
        srd(a, 64, 20, W4_OFF, W4_SZ)
        a(f"""
        s_mov_b32 s36, s16
        s_mov_b32 s37, s17
        s_mov_b32 s38, 204800
        s_mov_b32 s39, 0x20000
        s_and_b32 s40, s60, 7
        s_lshl_b32 s40, s40, 2
        s_add_u32 s40, s40, s95
        s_mul_i32 s22, s40, {50*128}
        v_min_u32 v148, 49, v2
        v_lshlrev_b32 v148, 7, v148
        s_and_b32 s40, s58, {nsh-1}
        s_mul_i32 s40, s40, {per}
        s_mul_i32 s41, s95, 14
        s_mul_i32 s23, s59, {5*56}
        s_add_u32 s23, s23, s41
        s_lshl_b32 s23, s23, 10
        s_movk_i32 s41, 586
        """)
        L.add("buffer_load_dword v152, v148, s[36:39], s22 offen sc1", gate=3)
        for q in range(nin):
            a(f"""
            v_add_u32 v153, {64*q}, v2
            v_min_u32 v153, {per-1}, v153
            v_add_u32 v153, s40, v153
            v_mul_u32_u24 v154, s41, v153
            v_lshrrev_b32 v154, 16, v154
            v_mul_u32_u24 v154, {57344 - 112*128}, v154
            v_lshl_add_u32 v{149+q}, v153, 7, v154
            """)
            L.add(f"buffer_load_dword v152, v{149+q}, s[64:67], s23 offen sc1", gate=3)
    L.pump(12)
    ACC2 = [72, 92, 72, 128]
    def flush_p(ph):
        dp = ACC2[ph]
        for T in range(5):
            a(f"ds_write_b128 v6, v[{dp+4*T}:{dp+4*T+3}] offset:{ph*5120 + T*1024}")
    wr = []; todo = []
    for i, (sl, k) in enumerate(order):
        ph = i // 5
        d = ACC2[ph]
        L.need(i)
        if i == 0: mmark(a, "p2_first")
        if i == F5I + 1 and not RTW: check_flags(a, "M_f5", 21, 20, "s57", False)
        if i == 15:
            a.wait_all_lg()
            a("s_barrier")
            for j, rb in ((2, RS_), (1, PS)):
                for T in range(5):
                    te = a.ds(f"ds_read_b128 v[{rb+4*T}:{rb+4*T+3}], v{10+j} offset:{1024*T}")
        if i == 17:
            a.wait(lg=te)
            todo = [f"v_add_f32 v{RS_+j}, v{RS_+j}, v{PS+j}" for j in range(20)]
        for T in range(5):
            a(f"v_mfma_f32_16x16x32_bf16 v[{d+4*T}:{d+4*T+3}], {woreg(T, k)}, a[{4*i}:{4*i+3}], " + ("0" if k == 0 and ph < 3 else f"v[{d+4*T}:{d+4*T+3}]"))
            if wr and T in (0, 2, 4): a(wr.pop(0))
            elif T == 1 or T == 3: L.pump(1, gate=3 if i > F5I else None)
            elif todo:
                a(todo.pop(0)); a(todo.pop(0))
        if k == 0 and ph > 0:
            dp = ACC2[ph - 1]
            wr = [f"ds_write_b128 v6, v[{dp+4*T}:{dp+4*T+3}] offset:{(ph-1)*5120 + T*1024}" for T in range(5)]
    assert not wr and not woq
    a.wait_all_lg()
    a("s_barrier")
    mmark(a, "p2_bar")
    for T in range(5):
        t = a.ds(f"ds_read_b128 v[{A4[0]+4*T}:{A4[0]+4*T+3}], v10 offset:{1024*T}")
    for x_ in todo: a(x_)
    a("v_mov_b32 v14, 0x3f803f80\nv_mov_b32 v112, 0\nv_mov_b32 v113, 0")
    for r in range(0, 20, 2):
        a(f"v_pk_add_f32 {P(128+r)}, {P(128+r)}, {P(RS_+r)}")
    a.wait(lg=t)
    for r in range(0, 20, 2):
        a(f"v_pk_add_f32 {P(128+r)}, {P(128+r)}, {P(A4[0]+r)}")
    for j in range(10):
        a(f"v_cvt_pk_bf16_f32 v{RS_+j}, v{128+2*j}, v{129+2*j}")
    for j in (8, 9):
        a(f"v_dot2c_f32_bf16 v112, v{RS_+j}, v14")
        a(f"v_dot2c_f32_bf16 v113, v{RS_+j}, v{RS_+j}")
    for it in range(3):
        r = RS_ + 4 * it
        a(f"v_permlane16_swap_b32 v{r}, v{r+2}\nv_permlane16_swap_b32 v{r+1}, v{r+3}")
        if it == 2: a("s_mov_b32 exec_lo, 0xffff\ns_mov_b32 exec_hi, 0xffff")
        a(f"buffer_store_dwordx4 v[{r}:{r+3}], v19, s[24:27], s{48 if it < 2 else 49} offen offset:{2048*(it%2)} {LS}")
    a("s_mov_b64 exec, -1")
    for j in range(8):
        a(f"v_dot2c_f32_bf16 v112, v{RS_+j}, v14")
        a(f"v_dot2c_f32_bf16 v113, v{RS_+j}, v{RS_+j}")
    a(f"""
    v_lshlrev_b32 v13, 3, v13
    s_nop 1
    v_mov_b32 v114, v112
    v_mov_b32 v115, v113
    v_permlane32_swap_b32 v112, v114
    v_permlane32_swap_b32 v113, v115
    v_pk_add_f32 v[112:113], v[112:113], v[114:115]
    v_mov_b32 v114, v112
    v_mov_b32 v115, v113
    v_permlane16_swap_b32 v112, v114
    v_permlane16_swap_b32 v113, v115
    v_pk_add_f32 v[112:113], v[112:113], v[114:115]
    s_mov_b64 exec, 0xffff
    """)
    tst = a.vm(f"buffer_store_dwordx2 v[112:113], v13, s[32:35], s53 offen {LS}")
    a("s_mov_b64 exec, -1")
    mmark(a, "p2_st")
    if P2A: L.pump(99, gate=3)
    srd(a, 28, 20, ST_OFF, ST_SZ)
    a.wait(vm=tst)
    signal(a, "s56", 8, LF)
    mmark(a, "p2_sig")
    L.need(('W3', 1), gate=3)
    a("s_barrier")
    L.pump(99, gate=3); w3_dma(L, 2); L.pump(99)
    a("""; ==== P3: gate/up GEMM on h; mean removed by an extra K-step with the weight column sums, rstd applied in the GELU epilogue""")
    map_p4(a, 100, 101, 40)
    a(f"s_mul_i32 s96, s101, {ROT4}\ns_add_u32 s96, s96, s95\ns_and_b32 s96, s96, 3")
    a(f"""
    s_lshl_b32 s44, s60, 2
    s_add_u32 s44, s44, s95
    s_mul_i32 s45, s44, 40960
    v_bfe_u32 v7, v2, 2, 1
    v_bfe_u32 v8, v2, 4, 1
    v_xor_b32 v9, v8, v4
    v_lshlrev_b32 v9, 7, v9
    v_lshl_add_u32 v9, v8, 8, v9
    v_bfe_u32 v8, v2, 3, 1
    v_lshl_add_u32 v9, v8, 6, v9
    v_and_b32 v8, 3, v2
    v_lshl_add_u32 v9, v8, 4, v9
    v_lshl_add_u32 v8, v7, 9, v9
    v_mul_u32_u24 v7, 20480, v7
    v_add_u32 v10, v7, v9
    v_add_u32 v11, 40960, v10
    v_add_u32 v12, 81920, v10
    v_add_u32 v13, 122880, v10
    """)
    srd(a, 12, 20, CS_OFF, CS_SZ)
    a("s_lshl_b32 s46, s62, 9\ns_add_u32 s47, s46, 4096\nv_mov_b32 v0, v8")
    def cs_ld(T):
        return f"buffer_load_dwordx4 a[{160+4*(T%3)}:{163+4*(T%3)}], v0, s[12:15], s{46 if T < 4 else 47} offen offset:{1024*(T%4)} {SC}"
    for T in range(3): a(cs_ld(T))
    srd(a, 36, 20, HH_OFF, HH_SZ)
    srd(a, 32, 20, RS_OFF, RS_SZ)
    a(f"""
    v_lshlrev_b32 v6, 3, v5
    v_lshl_add_u32 v6, v4, 10, v6
    s_lshl_b32 s48, s44, 11
    v_lshrrev_b32 v20, 4, v5
    v_mul_u32_u24 v20, {8192 if HHT else 57344}, v20
    v_and_b32 v21, 15, v2
    v_lshlrev_b32 v7, 4, v21
    v_add_u32 v20, v7, v20
    v_lshl_add_u32 v20, v4, 8, v20
    s_mul_i32 s50, s44, {16384 if HHT else 114688}
    s_lshr_b32 s51, s61, 2
    s_mul_i32 s51, s51, {2048 if HHT else 14336}
    s_add_u32 s50, s50, s51
    s_and_b32 s51, s61, 3
    s_lshl_b32 s51, s51, 9
    s_add_u32 s50, s50, s51
    s_lshr_b32 s51, s44, 1
    s_lshl_b32 s51, s51, 2
    s_lshr_b32 s52, s61, 2
    s_add_u32 s51, s51, s52
    s_lshl_b32 s51, s51, 7
    s_and_b32 s52, s44, 1
    s_lshl_b32 s52, s52, 4
    s_add_u32 s51, s51, s52
    s_and_b32 s52, s61, 3
    s_lshl_b32 s52, s52, 2
    s_add_u32 s51, s51, s52
    v_mov_b32 v8, 0x1000000
    v_writelane_b32 v8, s51, 0
    s_mov_b32 s58, {F4E_O}
    s_mov_b32 s59, {F4_O}
    s_lshl_b32 s51, s44, 8
    s_add_u32 s51, s51, {F3_O}
    s_lshr_b32 s52, s61, 2
    s_lshl_b32 s52, s52, 13
    s_lshl_b32 s53, s44, 7
    s_add_u32 s52, s52, s53
    s_and_b32 s53, s61, 3
    s_cmp_eq_u32 s53, 1
    s_cselect_b32 s52, s52, 0x1000000
    """)
    def w4reg(i):
        if i < 21: return f"a[{172+4*i}:{175+4*i}]"
        if i < 53: return f"v[{252-4*(i-21)}:{255-4*(i-21)}]"
        return f"a[{96+4*(i-53)}:{99+4*(i-53)}]"
    def w4_item(i):
        k, T = divmod(i, 5)
        return dict(text=f"buffer_load_dwordx4 {w4reg(i)}, v3, s[64:67], s23 offen {SC}", pre=f"s_add_u32 s23, s22, {T*57344 + 1024*k}", tag=('W4', i))
    srd(a, 64, 20, W4_OFF, W4_SZ)
    a(f"""
    s_mul_i32 s40, s95, 14
    s_mul_i32 s22, s101, {5*56}
    s_add_u32 s22, s22, s40
    s_lshl_b32 s22, s22, 10
    """)
    if TOUCH3:
        a(f"""
        s_and_b32 s40, s60, 7
        s_lshl_b32 s40, s40, 2
        s_add_u32 s40, s40, s95
        s_mul_i32 s40, s40, {30*128}
        s_mul_i32 s41, s62, 20480
        s_add_u32 s40, s40, s41
        s_add_u32 s40, s40, {W3_OFF + 163840}
        v_min_u32 v72, 29, v2
        v_lshl_add_u32 v72, v72, 7, s40
        s_and_b32 s40, s100, 7
        s_mul_i32 s40, s40, 50
        v_min_u32 v73, 49, v2
        v_add_u32 v73, s40, v73
        s_movk_i32 s41, 820
        v_mul_u32_u24 v74, s41, v73
        v_lshrrev_b32 v74, 16, v74
        v_mul_u32_u24 v74, {57344 - 80*128}, v74
        v_lshl_add_u32 v73, v73, 7, v74
        s_add_u32 s40, s22, {W4_OFF + 4096}
        v_add_u32 v73, s40, v73
        """)
    Lw = Loads(a, 60)
    for q in range(W4S3): Lw.add(**w4_item(q))
    Lw.pump(99)
    mspill(a)
    poll(a, "M_poll3", 7, "s51", 9)
    mmark(a, "p3_sync")
    a("v_mov_b32 v1, s93")
    L = Loads(a, P3LIM)
    SR = 64
    for n in range(40):
        L.add(f"buffer_load_dwordx4 a[{4*n}:{4*n+3}], v3, s[24:27], s45 offen offset:{1024*(n%4)} {SC} {NT3}", tag=n,
              post="s_add_u32 s45, s45, 4096" if n % 4 == 3 else None)
        if n == 11:
            for p in range(4):
                L.add(f"buffer_load_dwordx2 v[{SR+2*p}:{SR+2*p+1}], v6, s[28:31], s48 offen offset:{256*p} {SC}", tag='st' if p == 3 else None)
    if TOUCH3 == 2: L.add("global_load_dword v9, v72, s[20:21] sc1")
    w3_dma(L, 3)
    if TOUCH3 == 1: L.add("global_load_dword v9, v72, s[20:21] sc1")
    if TOUCH3: L.add("global_load_dword v9, v73, s[20:21] sc1")
    L.pump(12)
    ACB = [80, 96, 112]
    NA = 3
    WF, NB, TMP, OUT = 24, 10, 64, [72, 76]
    REG = [12, 13, 10, 11, 12, 13, 10]
    seq = []
    for s in range(40):
        seq += [(0, s), (1, s)]
        if s >= LAG: seq.append((2, s - LAG))
    seq += [(2, s) for s in range(max(40 - LAG, 0), 40)] + [(T, s) for T in range(3, 7) for s in range(40)]
    frs = {}
    nrd = [0]
    def rd3():
        i = nrd[0]
        if i >= len(seq): return
        T, s = seq[i]
        r = WF + 4 * (i % NB)
        frs[i] = (r, a.ds(f"ds_read_b128 v[{r}:{r+3}], v{REG[T]} offset:{512*s}"))
        nrd[0] += 1
    def epi(T, pk):
        d, out, tmp = ACB[T % NA], OUT[T % 2], TMP
        Lx = []
        if pk:
            for j in range(0, 8, 2): Lx.append(f"v_pk_mul_f32 {P(tmp+j)}, {P(d+j)}, {P(d+j)}")
            for j in range(0, 8, 2): Lx.append(f"v_pk_fma_f32 {P(tmp+j)}, {P(tmp+j)}, v[14:15], v[14:15] op_sel:[0,1,0] op_sel_hi:[1,1,0]")
            for j in range(0, 8, 2): Lx.append(f"v_pk_mul_f32 {P(tmp+j)}, {P(tmp+j)}, {P(d+j)}")
            for j in range(8): Lx.append(f"v_exp_f32 v{tmp+j}, v{tmp+j}")
            for j in range(0, 8, 2): Lx.append(f"v_pk_mul_f32 {P(d+j)}, {P(d+j)}, {P(d+8+j)}")
            for j in range(0, 8, 2): Lx.append(f"v_pk_add_f32 {P(tmp+j)}, {P(tmp+j)}, 1.0 op_sel_hi:[1,0]")
            for j in range(8): Lx.append(f"v_rcp_f32 v{tmp+j}, v{tmp+j}")
            for j in range(0, 8, 2): Lx.append(f"v_pk_mul_f32 {P(d+j)}, {P(d+j)}, {P(tmp+j)}")
        else:
            for j in range(8): Lx.append(f"v_mul_f32 v{tmp+j}, v{d+j}, v{d+j}")
            for j in range(8): Lx.append(f"v_fma_f32 v{tmp+j}, v{tmp+j}, v15, v14")
            for j in range(8): Lx.append(f"v_mul_f32 v{tmp+j}, v{tmp+j}, v{d+j}")
            for j in range(8):
                Lx.append(f"v_exp_f32 v{tmp+j}, v{tmp+j}")
                Lx.append(f"v_mul_f32 v{d+j}, v{d+j}, v{d+8+j}")
            for j in range(8): Lx.append(f"v_add_f32 v{tmp+j}, 1.0, v{tmp+j}")
            for j in range(8):
                Lx.append(f"v_rcp_f32 v{tmp+j}, v{tmp+j}")
                if j >= 1: Lx.append(f"v_mul_f32 v{d+j-1}, v{d+j-1}, v{tmp+j-1}")
            Lx.append(f"v_cvt_pk_bf16_f32 v{out}, v{d}, v{d+1}")
            Lx.append(f"v_mul_f32 v{d+7}, v{d+7}, v{tmp+7}")
        for j in range(0 if pk else 1, 4): Lx.append(f"v_cvt_pk_bf16_f32 v{out+j}, v{d+2*j}, v{d+2*j+1}")
        if HHT: Lx.append(f"buffer_store_dwordx4 v[{out}:{out+3}], v20, s[36:39], s50 offen {SC}\ns_add_u32 s50, s50, {1 << 20}")
        else:
            Lx.append(f"buffer_store_dwordx4 v[{out}:{out+3}], v20, s[36:39], s50 offen offset:{2048*(T%2)} {SC if T < LOCT else LS}" + ("\ns_add_u32 s50, s50, 4096" if T % 2 else ""))
        return [(T, x) for x in Lx]
    stats = f"""
    v_add_f32 v{SR+0}, v{SR+0}, v{SR+2}
    v_add_f32 v{SR+1}, v{SR+1}, v{SR+3}
    v_add_f32 v{SR+4}, v{SR+4}, v{SR+6}
    v_add_f32 v{SR+5}, v{SR+5}, v{SR+7}
    v_add_f32 v{SR+0}, v{SR+0}, v{SR+4}
    v_add_f32 v{SR+1}, v{SR+1}, v{SR+5}
    v_mov_b32 v{SR+2}, v{SR}
    v_mov_b32 v{SR+3}, v{SR+1}
    v_permlane32_swap_b32 v{SR}, v{SR+2}
    v_permlane32_swap_b32 v{SR+1}, v{SR+3}
    v_add_f32 v{SR}, v{SR}, v{SR+2}
    v_add_f32 v{SR+1}, v{SR+1}, v{SR+3}
    v_mul_f32 v{SR}, {f32(-1.0/640)}, v{SR}
    v_mul_f32 v{SR+1}, {f32(1.0/640)}, v{SR+1}
    v_fma_f32 v{SR+1}, -v{SR}, v{SR}, v{SR+1}
    v_max_f32 v{SR+1}, 0, v{SR+1}
    v_add_f32 v{SR+1}, {f32(1e-5)}, v{SR+1}
    v_rsq_f32 v{SR+1}, v{SR+1}
    v_cvt_pk_bf16_f32 v{SR+2}, v{SR}, v{SR}
    v_lshlrev_b32 v{SR+2}, 16, v{SR+2}
    v_sub_f32 v{SR+3}, v{SR}, v{SR+2}
    v_cvt_pk_bf16_f32 v16, v{SR+2}, v{SR+3}
    v_mul_f32 v22, v{SR+1}, v{SR+1}
    v_mov_b32 v17, v16
    v_mov_b32 v18, v16
    v_mov_b32 v19, v16
    v_mul_f32 v14, {f32(C0)}, v{SR+1}
    v_mul_f32 v15, {f32(C1)}, v{SR+1}
    v_mul_f32 v15, v15, v22
    v_lshlrev_b32 v21, 2, v5
    buffer_store_dword v22, v21, s[32:35], s52 offen {SC}
    """.strip().split("\n")
    pending = []
    a(f"""
    v_and_b32 v7, 7, v2
    s_lshl_b32 s40, s100, 9
    s_lshl_b32 s41, s95, 7
    s_add_u32 s63, s40, s41
    v_lshl_add_u32 v7, v7, 2, s63
    s_mul_i32 s40, s95, {2 if HHT else 14}
    s_mul_i32 s57, s100, {32 if HHT else 4*56}
    s_add_u32 s57, s57, s40
    s_lshl_b32 s57, s57, 10
    """)
    DIST = 8
    def cost(x):
        x = x.strip()
        return 2 if x.startswith(("v_exp", "v_rcp", "v_rsq", "buffer_")) else 1
    def fill(budget, hold=None):
        while budget > 0 and pending:
            pick = None
            blockW, blockR = set(), set()
            for n, (t, x) in enumerate(pending[:14]):
                ins = Ins(x.split("\n")[0])
                if ins.kind == 'vmem' and n > 0 and any(Ins(y.split("\n")[0]).kind == 'vmem' for _, y in pending[:n]): break
                ok = cost(x) <= budget and t != hold and not (set(ins.r) & blockW) and not (set(ins.w) & (blockW | blockR))
                if ok and any(need(p, ins) > dd for dd, p in enumerate(reversed(a.ins[-2:]))): ok = False
                if ok: pick = n; break
                blockW |= set(ins.w); blockR |= set(ins.r)
            if pick is None: break
            t_, x = pending.pop(pick)
            a(x); budget -= cost(x)
            if x.startswith("buffer_store"): stored[t_] = (a.vm_issued, cur[0])
    stored = {}; cur = [0]; posted = False; posted2 = False
    a(f"s_mov_b32 s56, {F4M_O}")
    KE, KN = 2 * EARLY, 2 * MID
    KM = 2 * MID2
    order = [(sl, k) for lo, hi in ((0, KE), (KE, KN), (KN, KM), (KM, 14)) for sl in (1, 2, 3, 0) for k in range(lo, hi)]
    L4 = Loads(a, 26)
    lateW = list(range(53, 70))
    for i, (sl, k) in enumerate(order):
        pre = None
        if k in (0, KE, KN, KM):
            pre = f"s_add_u32 s55, s96, {sl}\ns_and_b32 s55, s55, 3\ns_mul_i32 s55, s55, 57344\ns_add_u32 s55, s55, s57"
            if k: pre += f"\ns_add_u32 s55, s55, {1024*k}"
            k0 = k
        elif (k - k0) % 4 == 0:
            pre = "s_add_u32 s55, s55, 4096"
        if HHT:
            pre = None
            if k in (0, KE, KN, KM):
                pre = f"s_add_u32 s55, s96, {sl}\ns_and_b32 s55, s55, 3\ns_lshl_b32 s55, s55, 13\ns_add_u32 s55, s55, s57"
                if k: pre += f"\ns_add_u32 s55, s55, {(k // 2) << 20}"
            elif k % 2 == 0:
                pre = f"s_add_u32 s55, s55, {1 << 20}"
            k0 = k & ~1
        r = 4 * (i % 24)
        g = i if i < 24 else 1000 + i - 24
        if i >= 4 * KE: g = max(g, 1000 + 4 * KE - CHK1)
        if i >= 4 * KN and KM > KN: g = max(g, 1000 + 4 * KN - CHK2)
        if i >= 4 * KM: g = max(g, 1000 + 4 * KM - CHK)
        L4.add(f"buffer_load_dwordx4 a[{r}:{r+3}], v3, s[36:39], s55 offen offset:{1024*((k-k0)%4)} {SC} {NT4}", pre=pre, tag=('H', i), gate=g)
        if i == 23:
            for _ in range(LWA): L4.add(**w4_item(lateW.pop(0)), gate=999)
        if i == 4 * KN - 1:
            for _ in range(min(LWB, len(lateW))): L4.add(**w4_item(lateW.pop(0)), gate=999)
        if i == 4 * KM - 1:
            while lateW: L4.add(**w4_item(lateW.pop(0)), gate=999)
            for T in range(5):
                L4.add(f"buffer_load_dwordx2 v[{104+2*T}:{105+2*T}], v15, s[24:27], s{48 if T < 4 else 49} offen offset:{1024*(T%4)} {SC}", gate=1000)
            L4.add(f"buffer_load_dword v114, v16, s[32:35], s50 offen {SC}", tag='res', gate=1000)
    hh0, late4 = L4.q[:24], L4.q[24:]
    L.t.update(Lw.t)
    for q in range(W4S3, 53): L.add(**w4_item(q))
    done01 = False
    for _ in range(DIST): rd3()
    for i, (T, s) in enumerate(seq):
        cur[0] = i
        nx = nrd[0]
        if nx < len(seq) and seq[nx][1] == 0 and seq[nx][0] >= 2:
            Tn = seq[nx][0]
            if Tn > 2: L.need(('W3', Tn))
            a("s_barrier")
            if Tn == 3:
                assert done01
                q0 = L.q; L.q = []; w3_dma(L, 4); w3_dma(L, 5); L.q += q0
            if Tn == 4:
                q0 = [x for x in L.q if 'lds' not in x[0]]; L.q = [x for x in L.q if 'lds' in x[0]]; w3_dma(L, 6); L.q += q0
        if T == 6 and s == 0: print('queue at tile 6:', len(L.q))
        if (T, s) == (5, CK0):
            tfe = a.vm("buffer_load_dword v9, v7, s[8:11], s58 offen sc1")
        if (T, s) == (5, CK1):
            a.wait(vm=tfe)
            check_flags(a, "M_f4e", 9, 7, "s58", False)
            mmark(a, "p3_chk")
            L.q = L.q + hh0
        if (T, s) == (6, 2) and HF:
            hq = [x for x in L.q if x[1] and x[1][0] == 'H']; oq = [x for x in L.q if not (x[1] and x[1][0] == 'H')]
            L.q = hq[:HF] + oq + hq[HF:]
        rd3()
        budget = 3
        nxt_wait = (i + 1) % 4 == 0
        if T == 0: L.need(s)
        if i == 0: mmark(a, "p3_first")
        if i % 4 == 0: a.wait(lg=frs[min(i + 3, len(seq) - 1)][1])
        r = frs[i][0]
        d = ACB[T % NA]
        if s == 0: assert all(t % NA != T % NA for t, _ in pending if t >= 0), "accumulator still pending"
        a(f"v_mfma_f32_32x32x16_bf16 v[{d}:{d+15}], v[{r}:{r+3}], a[{4*s}:{4*s+3}], " + ("0" if s == 0 else f"v[{d}:{d+15}]"))
        if nxt_wait: budget -= 1
        n0 = a.vm_issued
        if not done01:
            L.pump(1)
            if i + 1 < len(seq) and seq[i + 1][0] == 0: budget -= 1
            if s == 14 and T == 0:
                L.need('st'); pending += [(-1, x) for x in stats]
        elif not posted and EARLY - 1 in stored and i >= stored[EARLY - 1][1] + ACKD:
            a.wait(vm=stored[EARLY - 1][0])
            a("buffer_store_dword v1, v8, s[8:11], s58 offen sc0 sc1")
            posted = True; budget -= 1
            mmark(a, "p3_early")
        elif posted and not posted2 and MID - 1 in stored and i >= stored[MID - 1][1] + ACKM:
            a.wait(vm=stored[MID - 1][0])
            a("buffer_store_dword v1, v8, s[8:11], s56 offen sc0 sc1")
            posted2 = True; budget -= 1
        elif (i % 2 == 1 and (T == 2 or (T == 3 and s < 24) or T == 6)) or i % 8 in PACE3:
            if not (T == 6 and s >= QS): L.paced(gate=s - 1 if T == 6 else None)
        budget -= 2 * (a.vm_issued - n0)
        fill(budget, hold=(T - 1 if s < 3 else None) if T > 2 else None)
        if s == 39 and T != 0:
            for t in ((0, 1) if T == 1 else (T,)):
                dd = ACB[t % NA]
                assert not any(p[0] == -1 for p in pending)
                if t >= 3: L.need(('CS', t))
                a(f"v_mfma_f32_32x32x16_bf16 v[{dd}:{dd+15}], a[{160+4*(t%3)}:{163+4*(t%3)}], v[16:19], v[{dd}:{dd+15}]")
                if NPK <= t < 6: pending += epi(t, False)
                if t + 3 < 7: L.q.insert(min(len(L.q), 8) if t == 2 else 0, (cs_ld(t + 3), ('CS', t + 3), None, None, None))
            if T == (1 if NPK < 2 or LAG >= 40 else 2) or (T == 1 and False):
                pass
            assert not any('global_load' in x[0] for x in L.q)
            if T in (1, 2):
                for t in (range(min(NPK, 2)) if T == 1 else range(2, NPK)):
                    pq_ = Paced(a, L, PQ2)
                    for _, ins in epi(t, True): (pq_ if T == 2 else a)(ins)
                    stored[t] = (a.vm_issued, i)
            mmark(a, f"p3_t{T}")
            if T == 1: done01 = True
    print('stores at', {k: v[1] for k, v in stored.items()}, 'of', len(seq), 'left loads', len(L.q), 'pending', len(pending))
    assert posted and MID - 1 in stored
    if not posted2:
        a.wait(vm=stored[MID - 1][0])
        a("buffer_store_dword v1, v8, s[8:11], s56 offen sc0 sc1")
    if 4 * KE - CHK1 - 3 < 0 and not SFM: tf4 = a.vm("buffer_load_dword v9, v7, s[8:11], s56 offen sc1")
    if KM > KN:
        a.wait(vm=stored[MID2 - 1][0])
        a(f"s_mov_b32 s58, {F4N_O}\nbuffer_store_dword v1, v8, s[8:11], s58 offen sc0 sc1")
    rest = [(x[0], x[1], x[2], x[3], None) for x in L.q]
    L.q = rest + late4
    L.lim = LIM4
    pa = Paced(a, L, FP, gate=999)
    started = {t for t, _ in pending if sum(1 for u, _ in pending if u == t) < len(epi(t, False))}
    rest = sorted({t for t, _ in pending} - started)
    for t, ins in pending:
        if t in started: pa(ins)
    for t in rest + [6]:
        for _, ins in epi(t, True): pa(ins)
    tst = a.vm_issued
    mmark(a, "p3_st")
    for _ in range(AFT): L.paced(gate=999)
    a("""; ==== P4: out = h + rstd^2 * (hh' w_down) (64 rows x 80 columns, K split over the 4 waves)""")
    PB, TB = 40960, 40960 + 61440
    srd(a, 12, 6, 0, 2621440)
    a(f"""
    s_mul_i32 s47, s95, 15360
    s_add_u32 s47, s47, {PB}
    v_add_u32 v6, s47, v3
    """)
    for j in range(1, 4):
        a(f"""
        s_add_u32 s47, s95, {j}
        s_and_b32 s47, s47, 3
        s_mul_i32 s47, s47, 15360
        s_add_u32 s47, s47, {PB + (3-j)*5120}
        v_add_u32 v{9+j}, s47, v3
        """)
    a(f"""
    v_and_b32 v13, 15, v2
    v_lshrrev_b32 v14, 4, v2
    v_lshlrev_b32 v15, 4, v13
    v_lshl_add_u32 v15, v4, 9, v15
    v_and_b32 v16, 1, v14
    v_lshl_add_u32 v15, v16, 3, v15
    s_lshl_b32 s48, s100, 1
    s_lshr_b32 s49, s96, 1
    s_add_u32 s48, s48, s49
    s_mul_i32 s48, s48, 40960
    s_mul_i32 s49, s101, 5120
    s_add_u32 s48, s48, s49
    s_and_b32 s49, s96, 1
    s_lshl_b32 s49, s49, 8
    s_add_u32 s48, s48, s49
    s_add_u32 s49, s48, 4096
    v_lshlrev_b32 v16, 2, v13
    s_lshl_b32 s50, s95, 13
    s_lshl_b32 s51, s100, 8
    s_add_u32 s50, s50, s51
    s_lshl_b32 s51, s96, 6
    s_add_u32 s50, s50, s51
    v_mul_u32_u24 v17, 160, v13
    v_lshl_add_u32 v17, v14, 3, v17
    s_mul_i32 s51, s95, 2560
    s_add_u32 s51, s51, {TB}
    v_add_u32 v17, s51, v17
    v_add_u32 v18, s51, v3
    s_mov_b32 s52, 6554
    """)
    for it in range(3):
        a(f"""
        v_add_u32 v13, {64*it}, v2
        v_mul_u32_u24 v14, s52, v13
        v_lshrrev_b32 v14, 16, v14
        v_mul_u32_u24 v14, {1280-160}, v14
        v_lshl_add_u32 v{19+it}, v13, 4, v14
        """)
    a(f"""
    s_lshl_b32 s52, s100, 2
    s_add_u32 s52, s52, s96
    s_mul_i32 s52, s52, {16*1280}
    s_mul_i32 s53, s101, 160
    s_add_u32 s52, s52, s53
    s_mov_b32 s54, 0xffff0000
    """)
    b = Asm()
    b(f"""
    s_or_b32 s40, s2, s95
    s_cmp_lg_u32 s40, 0
    s_cbranch_scc1 M_noclr
    s_load_dwordx2 s[40:41], s[0:1], 72
    s_mov_b64 exec, 1
    v_mov_b32 v13, 0
    s_waitcnt lgkmcnt(0)
    global_store_dword v13, v13, s[40:41] sc0 sc1
    s_mov_b64 exec, -1
M_noclr:
    """)
    a.splice(b)
    mspill(a)
    A4 = {1: 24, 2: 44, 3: 64, 0: 84}
    RS_, PS = 24, 44
    todo = []; wr = []; rdl = []
    NL = 14 - KM
    for i, (sl, k) in enumerate(order):
        d = A4[sl]
        if i == SIGI:
            a.wait(vm=tst)
            a(f"buffer_store_dword v1, v8, s[8:11], s59 offen {LF}")
            mmark(a, "p3_sig")
            L.pump(BURST0, gate=999 + i)
        if SFM and i == 0: sflag_load(a, F4M_O)
        if i == 4 * KE - CHK1 - 3 and not SFM:
            tf4 = a.vm("buffer_load_dword v9, v7, s[8:11], s56 offen sc1")
        if i == 4 * KE - CHK1 + 1:
            if SFM: sflag_check(a, "M_f4m", 9, 7, "s56")
            else:
                a.wait(vm=tf4)
                check_flags(a, "M_f4m", 9, 7, "s56", False)
            mmark(a, "p4_mid")
        if KM > KN and i == 4 * KN - CHK2 - FL4:
            sflag_load(a, F4N_O)
        if KM > KN and i == 4 * KN - CHK2 + 1:
            sflag_check(a, "M_f4n", 9, 7, "s58")
            mmark(a, "p4_mid2")
        if i == 4 * KM - CHK - FL4:
            if SFL: sflag_load(a, F4_O)
            else: tf4 = a.vm("buffer_load_dword v9, v7, s[8:11], s59 offen sc1")
        if i == 4 * KM - CHK + 1:
            if SFL: sflag_check(a, "M_f4", 9, 7, "s59")
            else:
                a.wait(vm=tf4)
                check_flags(a, "M_f4", 9, 7, "s59", False)
            mmark(a, "p4_sync")
            L.pump(BURST, gate=999 + i)
        L.need(('H', i), gate=999 + i)
        for T in range(5):
            L.need(('W4', 5 * k + T), gate=999 + i)
        if i == 0: mmark(a, "p4_first")
        if i == 4 * KM: mmark(a, "p4_late")
        r = 4 * (i % 24)
        for T in range(5):
            a(f"v_mfma_f32_16x16x32_bf16 v[{d+4*T}:{d+4*T+3}], {w4reg(5*k+T)}, a[{r}:{r+3}], " + ("0" if k == 0 else f"v[{d+4*T}:{d+4*T+3}]"))
            if rdl: tl = a.ds(rdl.pop(0))
            elif wr and T in (1, 3, 4): a(wr.pop(0))
            elif T in PT4 and L.q and (i >= SIGI or AFT): L.pump(1, gate=999 + i)
            elif todo:
                a(todo.pop(0))
                if todo: a(todo.pop(0))
        if i >= 4 * KM:
            assert NL == 6
            ph, kk = divmod(i - 4 * KM, NL)
            if kk == 0 and ph > 0:
                dp = A4[ph]
                wr = [f"ds_write_b128 v6, v[{dp+4*T}:{dp+4*T+3}] offset:{(ph-1)*5120 + T*1024}" for T in range(5)]
            if ph == 2 and kk == 3:
                assert not wr and not todo
                a.wait_all_lg()
                a("s_barrier")
                rdl = [f"ds_read_b128 v[{rb+4*T}:{rb+4*T+3}], v{av} offset:{1024*T}" for av, rb in ((12, 24), (11, 44)) for T in range(5)]
            if ph == 3 and kk == 0:
                assert not rdl
                a.wait(lg=tl)
                todo += [f"v_add_f32 v{24+q}, v{24+q}, v{44+q}" for q in range(20)]
                for q in range(10):
                    todo += [f"v_fma_f32 v{44+2*q}, v{24+2*q}, v114, v{116+q}", f"v_fma_f32 v{45+2*q}, v{25+2*q}, v114, v{104+q}"]
            if ph == 3 and kk == 3:
                assert not wr
                a.wait_all_lg()
                a("s_barrier")
                for T in range(5):
                    tl = a.ds(f"ds_read_b128 v[{64+4*T}:{67+4*T}], v10 offset:{1024*T}")
            if ph == 1 and kk == 2:
                L.need('res', gate=999 + i)
                for q in range(0, 10):
                    todo += [f"v_lshlrev_b32 v{116+q}, 16, v{104+q}", f"v_and_b32 v{104+q}, s54, v{104+q}"]
    for ins in todo: a(ins)
    a.wait(lg=tl)
    mmark(a, "p4_mm")
    for q in range(0, 20, 2):
        a(f"v_pk_fma_f32 {P(PS+q)}, {P(64+q)}, v[114:115], {P(PS+q)} op_sel_hi:[1,0,1]")
    for q in range(0, 20, 2):
        a(f"v_pk_fma_f32 {P(PS+q)}, {P(84+q)}, v[114:115], {P(PS+q)} op_sel_hi:[1,0,1]")
    for j in range(10):
        a(f"v_cvt_pk_bf16_f32 v{RS_+j}, v{PS+2*j}, v{PS+2*j+1}")
    for T in range(5):
        a(f"ds_write_b64 v17, v[{RS_+2*T}:{RS_+2*T+1}] offset:{32*T}")
    a.wait_all_lg()
    tk = [a.ds(f"ds_read_b128 v[{PS+4*it}:{PS+4*it+3}], v18 offset:{1024*it}") for it in range(3)]
    for it in range(3):
        a.wait(lg=tk[it])
        if it == 2: a("s_mov_b32 exec_hi, 0")
        a(f"buffer_store_dwordx4 v[{PS+4*it}:{PS+4*it+3}], v{19+it}, s[12:15], s52 offen {OUTF}")
    mstamp_end(a, 1, 20)
    a("M_exit:\ns_endpgm")
    return a
```
